```python
import torch

def _softmax(x, axis=-1):
    return torch.softmax(x, dim=axis)

def _gelu(x):
    return torch.nn.functional.gelu(x, approximate='tanh')

def _silu(x):
    return torch.nn.functional.silu(x)

def _sigmoid(x):
    return torch.sigmoid(x)

def _layernorm(x, axis=-1, eps=1e-05):
    m = x.mean(dim=axis, keepdim=True)
    v = x.var(dim=axis, keepdim=True, unbiased=False)
    return (x - m) / torch.sqrt(v + eps)

def _scatter_add(tgt, idx, src, axis=0):
    return tgt.clone().index_add_(axis, idx, src)

def _segment_sum(src, seg, n):
    out = torch.zeros((n,) + src.shape[1:], dtype=src.dtype)
    return out.index_add_(0, seg, src)

def _pad(x, pw):
    flat = tuple((v for pair in reversed(pw) for v in pair))
    return torch.nn.functional.pad(x, flat)
kernel_name = 'adaLN_cond__sliding_block__dense_activation_relu__prompt'

def setup_inputs():

    _w = lambda a: (lambda t: t.to(torch.bfloat16) if t.is_floating_point() else t)(torch.as_tensor(a))

    def _A_setup():
        B, S, D = (1, 2048, 512)
        return {'x': _w((lambda *s: torch.randn(*s, dtype=torch.bfloat16) * 0.05)(B, S, D)), 'wqkv': _w((lambda *s: torch.randn(*s, dtype=torch.bfloat16) * 0.05)(D, 3 * D)), 'wo': _w((lambda *s: torch.randn(*s, dtype=torch.bfloat16) * 0.05)(D, D))}
    _A_in = _A_setup()

    def _B_setup():
        B, S, D, Dff = (1, 2048, 512, 1792)
        return {'x': _w((lambda *s: torch.randn(*s, dtype=torch.bfloat16) * 0.05)(B, S, D)), 'w1': _w((lambda *s: torch.randn(*s, dtype=torch.bfloat16) * 0.05)(D, Dff)), 'w2': _w((lambda *s: torch.randn(*s, dtype=torch.bfloat16) * 0.05)(Dff, D))}
    _B_in = _B_setup()
    return {'A_x': _A_in['x'], 'A_wqkv': _A_in['wqkv'], 'A_wo': _A_in['wo'], 'B_x': _B_in['x'], 'B_w1': _B_in['w1'], 'B_w2': _B_in['w2'], 'c': _w((lambda *s: torch.randn(*s, dtype=torch.bfloat16) * 0.1)(1, 512) * 8.0), 'w_mod': _w((lambda *s: torch.randn(*s, dtype=torch.bfloat16) * 0.1)(512, 6 * 512) * 512 ** (-0.5) * 8.0)}

def reference(A_x, A_wqkv, A_wo, B_x, B_w1, B_w2, c, w_mod):

    def _A_ref(x, wqkv, wo):
        B, S, D = x.shape
        H = 32
        Dh = D // H
        W = 256
        qkv = (lambda x, *d: x.permute(*d))((x @ wqkv).reshape(B, S, 3, H, Dh), 2, 0, 3, 1, 4)
        q, k, v = (qkv[0], qkv[1], qkv[2])
        scores = torch.einsum('bhqd,bhkd->bhqk', q, k) * Dh ** (-0.5)
        idx = torch.arange(S)
        mask = (idx[:, None] - idx[None, :] >= 0) & (idx[:, None] - idx[None, :] < W)
        scores = torch.where(mask[None, None], scores, -1000000000.0)
        p = _softmax(scores, axis=-1)
        o = torch.einsum('bhqk,bhkd->bhqd', p, v)
        return (lambda x, *d: x.permute(*d))(o, 0, 2, 1, 3).reshape(B, S, D) @ wo

    def _B_ref(x, w1, w2):
        h = torch.einsum('bsd,df->bsf', x, w1)
        zero = torch.zeros_like(h)
        h = torch.maximum(h, zero)
        return torch.einsum('bsf,fd->bsd', h, w2)
    x = A_x
    mod = (_silu(c) @ w_mod).reshape(c.shape[0], 6, 1, -1)
    sa, ca, ga, sb, cb, gb = (mod[:, 0].clone(), mod[:, 1].clone(), mod[:, 2].clone(), mod[:, 3].clone(), mod[:, 4].clone(), mod[:, 5].clone())
    h = _layernorm(x, axis=-1) * (1 + ca) + sa
    x = x + ga * _A_ref(h, A_wqkv, A_wo)
    h = _layernorm(x, axis=-1) * (1 + cb) + sb
    x = x + gb * _B_ref(h, B_w1, B_w2)
    return x
```

```python
import re

REG_RE = re.compile(r'(?<![\w.])([vas])(\d+)(?![\w\[])|(?<![\w.])([vas])\[(\d+):(\d+)\]')
TRANS = ('v_exp_', 'v_log_', 'v_rcp_', 'v_rsq_', 'v_sqrt_', 'v_sin_', 'v_cos_')


def regs_of(op):
    out = set()
    for m in REG_RE.finditer(op):
        if m.group(1):
            out.add((m.group(1), int(m.group(2))))
        else:
            for i in range(int(m.group(4)), int(m.group(5)) + 1):
                out.add((m.group(3), i))
    if re.search(r'\bvcc(_lo|_hi)?\b', op):
        out.add(('s', 'vcc'))
    if re.search(r'\bexec(_lo|_hi)?\b', op):
        out.add(('s', 'exec'))
    if re.search(r'\bm0\b', op):
        out.add(('s', 'm0'))
    return out


def split_ops(rest):
    ops, depth, cur = [], 0, ''
    for ch in rest:
        if ch in '[(':
            depth += 1
        if ch in '])':
            depth -= 1
        if ch == ',' and depth == 0:
            ops.append(cur.strip())
            cur = ''
        else:
            cur += ch
    if cur.strip():
        ops.append(cur.strip())
    return ops


class Ins:
    def __init__(self, text):
        self.text = text
        self.label = None
        self.kind = 'other'
        self.rd = set()
        self.wr = set()
        self.target = None
        self.uncond = False
        self.states = 1
        t = text.split(';')[0].strip()
        if not t or t.startswith('.'):
            self.kind = 'dir'
            self.states = 0
            return
        if t.endswith(':'):
            self.kind = 'label'
            self.label = t[:-1]
            self.states = 0
            return
        parts = t.split(None, 1)
        op = self.op = parts[0]
        ops = split_ops(parts[1]) if len(parts) > 1 else []
        R = [regs_of(o) for o in ops]
        allr = set().union(*R) if R else set()
        if op.startswith('v_mfma'):
            self.kind = 'mfma'
            self.passes = 8 if '32x32' in op else 4
            self.wr = R[0]
            self.A, self.B, self.C = R[1], R[2], R[3]
            self.rd = R[1] | R[2] | R[3]
        elif op.startswith('v_'):
            self.kind = 'valu'
            self.trans = op.startswith(TRANS)
            self.dpp = ('dpp' in op) or any(k in t for k in ('row_', 'quad_perm', 'wave_'))
            self.perm = op.startswith('v_permlane')
            self.rdlane = op.startswith(('v_readlane', 'v_readfirstlane'))
            self.opsel = ('sdwa' in op and 'dst_sel' in t) or op.startswith(('v_fma_mixlo', 'v_fma_mixhi'))
            if self.perm:
                self.wr = R[0] | R[1]
                self.rd = R[0] | R[1]
            elif op.startswith(('v_add_co', 'v_sub_co', 'v_addc_co', 'v_subb_co')):
                self.wr = R[0] | R[1]
                self.rd = set().union(*R[2:])
            else:
                self.wr = R[0] if R else set()
                self.rd = set().union(*R[1:]) if len(R) > 1 else set()
                if op.startswith(('v_fmac', 'v_pk_fmac', 'v_dot2c', 'v_writelane', 'v_fma_mixlo', 'v_fma_mixhi')) or self.dpp:
                    self.rd |= R[0]
                if op.startswith('v_cndmask') and len(ops) == 3:
                    self.rd.add(('s', 'vcc'))
                if op.startswith('v_cmpx'):
                    self.wr.add(('s', 'exec'))
        elif op.startswith(('buffer_', 'global_')):
            self.kind = 'vmem'
            self.lds = bool(re.search(r'\blds\b', t)) or '_lds_' in op
            self.store = 'store' in op or 'atomic' in op
            self.wide = self.store and ('x3' in op or 'x4' in op)
            if op.startswith(('buffer_wbl2', 'buffer_inv')):
                pass
            elif self.lds:
                self.rd = allr | {('s', 'm0')}
            elif self.store:
                self.rd = allr
                self.data = R[0] if op.startswith('buffer_') else R[1]
            else:
                self.wr = R[0]
                self.rd = set().union(*R[1:])
        elif op.startswith('ds_'):
            self.kind = 'ds'
            if op.startswith(('ds_read', 'ds_bpermute', 'ds_permute', 'ds_swizzle')):
                self.wr = R[0]
                self.rd = set().union(*R[1:])
            else:
                self.rd = allr
        elif op.startswith('s_'):
            self.kind = 'salu'
            if op == 's_nop':
                self.states = int(ops[0], 0) + 1
            elif op.startswith('s_cbranch') or op == 's_branch':
                self.target = ops[0]
                self.uncond = op == 's_branch'
            elif op == 's_endpgm':
                self.uncond = True
            elif op.startswith(('s_cmp', 's_waitcnt', 's_barrier', 's_setprio', 's_sleep', 's_bitcmp')):
                self.rd = allr
            else:
                self.wr = R[0] if R else set()
                self.rd = set().union(*R[1:]) if len(R) > 1 else set()
                if 'saveexec' in op:
                    self.wr = self.wr | {('s', 'exec')}


def vregs(s):
    return {r for r in s if r[0] in 'va'}


def sregs(s):
    return {r for r in s if r[0] == 's'}


def need(p, c):
    n = 0
    if p.kind == 'valu':
        wv = vregs(p.wr)
        ws = sregs(p.wr)
        if c.kind == 'mfma' and wv & c.rd:
            n = max(n, 2)
        if c.kind == 'mfma' and ('s', 'exec') in ws:
            n = max(n, 4)
        if c.kind == 'valu':
            if p.trans and wv & c.rd and not c.trans:
                n = max(n, 1)
            if (c.perm or c.dpp) and wv & c.rd:
                n = max(n, 2)
            if c.rdlane and wv & c.rd:
                n = max(n, 1)
            if ws & c.rd:
                n = max(n, 4 if c.op.startswith(('v_readlane', 'v_writelane')) else 2)
            if p.opsel and wv & (c.rd | c.wr):
                n = max(n, 1)
            if ('s', 'exec') in ws and (c.dpp or c.perm or c.rdlane):
                n = max(n, 5)
        if c.kind == 'vmem' and ws & c.rd:
            n = max(n, 5)
        if c.kind == 'salu' and ws & c.rd:
            n = max(n, 1)
    elif p.kind == 'mfma':
        big = p.passes == 8
        if c.kind == 'mfma':
            if p.wr & c.C and not (p.wr == c.C and p.passes == c.passes):
                n = max(n, 10 if big else 6)
            if p.wr & (c.A | c.B):
                n = max(n, 12 if big else 8)
        elif c.kind in ('valu', 'vmem', 'ds'):
            if p.wr & (c.rd | c.wr):
                n = max(n, 12 if big else 8)
            if p.C & c.wr:
                n = max(n, 7 if big else 3)
    elif p.kind == 'vmem':
        if getattr(p, 'wide', False) and p.data & c.wr:
            n = max(n, 2)
    elif p.kind in ('ds',):
        pass
    elif p.kind == 'salu':
        if ('s', 'm0') in p.wr and c.kind == 'vmem' and c.lds:
            n = max(n, 1)
    return n


class Asm:
    def __init__(self):
        self.lines = []
        self.vm = 0
        self.lg = 0
        self.vm_done = 0
        self.lg_done = 0
        self.uid = 0

    def __call__(self, text):
        t = None
        for ln in text.split('\n'):
            ln = ln.strip()
            if not ln:
                continue
            self.lines.append(ln)
            if ln.startswith(('buffer_', 'global_')):
                self.vm += 1
                t = self.vm
            elif ln.startswith('ds_'):
                self.lg += 1
                t = self.lg
        return t

    def label(self, base):
        self.uid += 1
        return 'L_%s_%d' % (base, self.uid)

    def wait(self, vm=None, lg=None, force=False):
        parts = []
        if vm is not None:
            if vm == 'all':
                vm = self.vm
            if vm > self.vm_done or force:
                n = self.vm - vm
                assert n >= 0
                if n <= 63:
                    parts.append('vmcnt(%d)' % n)
                else:
                    parts.append('vmcnt(63)')
                    vm = self.vm - 63
                self.vm_done = max(self.vm_done, vm)
        if lg is not None:
            if lg == 'all':
                lg = self.lg
            if lg > self.lg_done or force:
                n = self.lg - lg
                assert n >= 0
                if n > 15:
                    n = 15
                    lg = self.lg - 15
                parts.append('lgkmcnt(%d)' % n)
                self.lg_done = max(self.lg_done, lg)
        if parts:
            self.lines.append('s_waitcnt ' + ' '.join(parts))

    def sync_all(self):
        self.lines.append('s_waitcnt vmcnt(0) lgkmcnt(0)')
        self.vm_done = self.vm
        self.lg_done = self.lg

    def finalize(self):
        ins = [Ins(l) for l in self.lines]
        for x in ins:
            x.pad = 0
        labels = {x.label: i for i, x in enumerate(ins) if x.kind == 'label'}
        jumps = {}
        for i, x in enumerate(ins):
            if x.target is not None:
                assert x.target in labels, x.text
                jumps.setdefault(labels[x.target], []).append(i)
        changed = True
        while changed:
            changed = False
            for i, c in enumerate(ins):
                if c.kind not in ('mfma', 'valu', 'vmem', 'ds', 'salu') or c.op == 's_nop':
                    continue
                worst = 0
                stack = [(i, c.pad)]
                seen = {}
                while stack:
                    k, d = stack.pop()
                    if seen.get(k, 99) <= d:
                        continue
                    seen[k] = d
                    preds = []
                    if k > 0 and not ins[k - 1].uncond:
                        preds.append(k - 1)
                    if ins[k].kind == 'label':
                        preds += jumps.get(k, [])
                    for p in preds:
                        P = ins[p]
                        if P.states:
                            worst = max(worst, need(P, c) - d)
                        nd = d + P.states + P.pad
                        if nd < 12:
                            stack.append((p, nd))
                if worst > 0:
                    c.pad += worst
                    changed = True
        out = []
        total = 0
        for x in ins:
            if x.pad:
                out.append('s_nop %d' % (x.pad - 1))
                total += x.pad
            out.append(x.text)
        return out, total
```

```python
import sys, os
from asmlib import Asm

NAME = 'adaLN_cond__sliding_block__dense_activation_relu__prompt'
OPT = dict(stamps=0, force_fallback=0, stop=99)
for a in sys.argv[2:]:
    k, v = a.split('=')
    OPT[k] = int(v)

WS_E = 0
WS_FA = 0x1000
WS_FBH = 0x8000
WS_FBKV = 0x10000
WS_FBO = 0x20000
WS_FBY = 0x30000
WS_FBHID = 0x40000
WS_MOD = 0x50000
WS_STAT = 0x80000
WS_TS = 0xC0000
WS_WOT = 0x100000
WS_W2T = 0x200000
WS_H = 0x400000
WS_O = 0x600000
WS_Y = 0x800000
WS_KV = 0xA00000
WS_HID = 0xE00000
WS_SIZE = 0x1600000

L_SCR = 98304
L_KV = 114688
L_MODL = 114688
L_UT = L_MODL + 4096
L_RED = L_MODL + 8192
L_RED2 = 0

sX, sJ, sW, sT, sM = 's3', 's4', 's5', 's6', 's7'
SRD_X, SRD_WQKV, SRD_WO, SRD_W1, SRD_W2, SRD_WS, SRD_OUT, SRD_WMOD, SRD_C = [
    's[%d:%d]' % (32 + 4 * i, 35 + 4 * i) for i in range(9)]
sTAG, sE = 's68', 's69'
sCT, sRT, sA, sB, sT0 = 's70', 's71', 's72', 's73', 's74'
sLID = 's75'
t0, t1, t2, t3, t4, t5 = 's76', 's77', 's78', 's79', 's80', 's81'
sCNT = 's82'
sMASK = 's[84:85]'
sLO, sHI = 's[86:87]', 's[88:89]'
sPB = 's83'
STAMP0 = 8

vLANE, vL16, vTAG = 'v1', 'v2', 'v3'

A = Asm()
nstamp = [0]


def vr(b, n=1, k='v'):
    return '%s%d' % (k, b) if n == 1 else '%s[%d:%d]' % (k, b, b + n - 1)


def ar(b, n=1):
    return vr(b, n, 'a')


def stamp(name):
    if not OPT['stamps']:
        return
    i = nstamp[0]
    nstamp[0] += 1
    assert i < 22
    A.wait(lg='all')
    A('s_memtime s[90:91]')
    A('s_waitcnt lgkmcnt(0)')
    A('s_mov_b32 s%d, s90 ; stamp %d %s' % (STAMP0 + 2 + i, i, name))
    STAMP_NAMES.append(name)


STAMP_NAMES = []


def flag_store(soff, sc1):
    A('s_mov_b64 exec, 1')
    t = A('buffer_store_dword %s, off, %s, %s%s' % (vTAG, SRD_WS, soff, ' sc1' if sc1 else ''))
    A('s_mov_b64 exec, -1')
    return t


LIMIT = 1 << 17


def poll_dual(vA, vB, vT, name):
    L, D = A.label('p' + name), A.label('d' + name)
    A('s_mov_b32 %s, 0' % sCNT)
    A(L + ':')
    A('buffer_load_dword %s, %s, %s, 0 offen sc1' % (vT, vA, SRD_WS))
    A('s_add_u32 %s, %s, 1' % (sCNT, sCNT))
    A('s_waitcnt vmcnt(0)')
    A('v_cmp_ne_u32 vcc, %s, %s' % (sTAG, vT))
    A('s_and_b64 vcc, vcc, %s' % sMASK)
    A('s_cbranch_scc0 ' + D)
    A('s_cmp_lt_u32 %s, 24' % sCNT)
    A('s_cbranch_scc1 ' + L)
    flag_store(sPB, True)
    A('buffer_load_dword %s, %s, %s, 0 offen sc1' % (vT, vB, SRD_WS))
    A('s_waitcnt vmcnt(0)')
    A('v_cmp_ne_u32 vcc, %s, %s' % (sTAG, vT))
    A('s_and_b64 vcc, vcc, %s' % sMASK)
    A('s_cbranch_scc0 ' + D)
    A('s_cmp_lt_u32 %s, %d' % (sCNT, LIMIT))
    A('s_cbranch_scc1 ' + L)
    A(D + ':')
    A.vm_done = A.vm


def srd(dst, lo, size):
    b = int(dst[2:dst.index(':')])
    A('s_mov_b32 s%d, s%d' % (b, lo))
    A('s_and_b32 s%d, s%d, 0xffff' % (b + 1, lo + 1))
    A('s_mov_b32 s%d, 0x%x' % (b + 2, size))
    A('s_mov_b32 s%d, 0x20000' % (b + 3))


def unpack(dst, src):
    A('v_lshlrev_b32 v%d, 16, v%d' % (dst, src))
    A('v_and_b32 v%d, 0xffff0000, v%d' % (dst + 1, src))


def dma(voff, srdname, soff, ldsaddr_s):
    A('s_mov_b32 m0, %s' % ldsaddr_s)
    return A('buffer_load_dwordx4 %s, %s, %s offen lds' % (voff, srdname, soff))


MF32 = 'v_mfma_f32_32x32x16_bf16'
MF16 = 'v_mfma_f32_16x16x32_bf16'


def finish():
    A('s_branch L_end')


def prologue():
    A('s_cmp_ge_u32 s2, 256')
    A('s_cbranch_scc1 L_exit')
    A('s_load_dwordx16 s[8:23], s[0:1], 0')
    A('s_load_dwordx4 s[24:27], s[0:1], 64')
    A('s_load_dwordx2 s[28:29], s[0:1], 80')
    A('s_getpc_b64 s[30:31]')
    A('L_pc:')
    A('s_lshr_b32 %s, s2, 3' % sJ)
    A('s_and_b32 %s, s2, 7' % sX)
    A('s_lshl_b32 %s, %s, 11' % (t0, sJ))
    A('v_lshl_add_u32 v4, v0, 3, %s' % t0)
    A('v_min_u32 v4, L_codeend-L_pc-8, v4')
    A('global_load_dwordx2 v[6:7], v4, s[30:31]')
    A('v_lshrrev_b32 v5, 6, v0')
    A('v_and_b32 %s, 63, v0' % vLANE)
    A('v_readfirstlane_b32 %s, v5' % sW)
    A('v_lshlrev_b32 %s, 4, %s' % (vL16, vLANE))
    if OPT['stamps']:
        A('s_memrealtime s[92:93]')
        A('s_memtime s[94:95]')
    A('v_and_b32 v8, 7, %s' % vLANE)
    A('v_lshrrev_b32 v9, 3, %s' % vLANE)
    A('v_lshlrev_b32 v10, 10, v8')
    A('v_lshl_add_u32 v10, v9, 4, v10')
    A('s_lshl_b32 %s, %s, 5' % (sLID, sX))
    A('s_add_u32 %s, %s, %s' % (sLID, sLID, sJ))
    A('s_lshl_b32 %s, %s, 13' % (t0, sLID))
    A('s_lshl_b32 %s, %s, 8' % (t1, sW))
    A('s_add_u32 %s, %s, %s' % (t0, t0, t1))
    A('s_waitcnt lgkmcnt(0)')
    A('s_load_dword %s, s[28:29], %d' % (sE, WS_E))
    srd(SRD_X, 8, 2097152)
    A('buffer_load_dwordx4 v[16:19], v10, %s, %s offen' % (SRD_X, t0))
    tx = A('buffer_load_dwordx4 v[20:23], v10, %s, %s offen offset:128' % (SRD_X, t0))
    srd(SRD_C, 20, 1024)
    srd(SRD_WMOD, 22, 3145728)
    srd(SRD_WS, 28, WS_SIZE)
    srd(SRD_WQKV, 10, 1572864)
    srd(SRD_WO, 12, 524288)
    srd(SRD_W1, 16, 1835008)
    srd(SRD_W2, 18, 1835008)
    srd(SRD_OUT, 24, 2097152)
    A('s_and_b32 %s, %s, 15' % (sM, sJ))
    A('s_lshr_b32 %s, %s, 4' % (t0, sJ))
    A('s_lshl_b32 %s, %s, 2' % (t0, t0))
    A('s_lshl_b32 %s, %s, 3' % (t1, sX))
    A('s_add_u32 %s, %s, %s' % (sT, t0, t1))
    A('s_add_u32 %s, %s, %s' % (sT, sT, sW))
    A('s_and_b32 %s, %s, 7' % (sCT, sJ))
    A('s_lshr_b32 %s, %s, 3' % (sRT, sJ))
    A('s_lshl_b32 %s, %s, 1' % (sT0, sRT))
    A('s_add_u32 %s, %s, %s' % (sT0, sT0, t1))
    A('s_and_b32 %s, %s, 1' % (sA, sW))
    A('s_lshr_b32 %s, %s, 1' % (sB, sW))
    A('s_mov_b32 s86, 0x0000ffff')
    A('s_mov_b32 s87, 0x0000ffff')
    A('s_mov_b32 s88, 0xffff0000')
    A('s_mov_b32 s89, 0xffff0000')
    return tx


def get_tag():
    A('s_waitcnt lgkmcnt(0)')
    A.lg_done = A.lg
    A('s_mul_i32 %s, %s, 1664525' % (sTAG, sE))
    A('s_add_u32 %s, %s, 1013904223' % (sTAG, sTAG))
    A('v_mov_b32 %s, %s' % (vTAG, sTAG))
    if OPT['stamps']:
        A('s_mov_b32 s8, s92')
        A('s_mov_b32 s9, s94')


def mod_producer():
    SK = A.label('nomod')
    A('s_cmp_ge_u32 %s, 6' % sJ)
    A('s_cbranch_scc1 ' + SK)
    A('s_lshl_b32 %s, %s, 1' % (t0, sX))
    A('s_lshl_b32 %s, %s, 2' % (t1, sX))
    A('s_add_u32 %s, %s, 14' % (t1, t1))
    A('s_cmp_lt_u32 %s, 2' % sJ)
    A('s_cselect_b32 %s, %s, %s' % (t0, t0, t1))
    A('s_add_u32 %s, %s, %s' % (t5, t0, sJ))
    A('v_lshlrev_b32 v11, 2, %s' % vLANE)
    A('s_lshl_b32 %s, %s, 8' % (t1, sW))
    tc = A('buffer_load_dword v12, v11, %s, %s offen' % (SRD_C, t1))
    A('v_mul_u32_u24 v13, %d, v9' % (16 * 6144))
    A('v_lshl_add_u32 v13, v8, 4, v13')
    A('s_mul_i32 %s, %s, %d' % (t1, sW, 128 * 6144))
    A('s_lshl_b32 %s, %s, 7' % (t2, t5))
    A('s_add_u32 %s, %s, %s' % (t1, t1, t2))
    tw = []
    for i in range(16):
        tw.append(A('buffer_load_dwordx4 %s, v13, %s, %s offen' % (vr(64 + 4 * i, 4), SRD_WMOD, t1)))
        if i < 15:
            A('s_add_u32 %s, %s, 6144' % (t1, t1))
    A('s_lshl_b32 %s, %s, 9' % (t1, sW))
    A('s_add_u32 %s, %s, %d' % (t1, t1, L_SCR + 1024))
    A('v_lshl_add_u32 v14, %s, 3, %s' % (vLANE, t1))
    A('v_lshl_add_u32 v15, v9, 6, %s' % t1)
    for i in range(8):
        A('v_mov_b32 v%d, 0' % (56 + i))
    A.wait(vm=tc)
    unpack(40, 12)
    for i in (0, 1):
        A('v_mul_f32 v%d, 0xbfb8aa3b, v%d' % (42 + i, 40 + i))
    for i in (0, 1):
        A('v_exp_f32 v%d, v%d' % (42 + i, 42 + i))
    for i in (0, 1):
        A('v_add_f32 v%d, 1.0, v%d' % (42 + i, 42 + i))
    for i in (0, 1):
        A('v_rcp_f32 v%d, v%d' % (42 + i, 42 + i))
    for i in (0, 1):
        A('v_mul_f32 v%d, v%d, v%d' % (40 + i, 40 + i, 42 + i))
    A('v_cvt_pk_bf16_f32 v42, v40, v41')
    unpack(40, 42)
    get_tag()
    t = A('ds_write_b64 v14, v[40:41]')
    A.wait(lg=t)
    for i in range(4):
        t = A('ds_read_b128 %s, v15 offset:%d' % (vr(40 + 4 * i, 4), 16 * i))
    A.wait(lg=t)
    for i in range(16):
        A.wait(vm=tw[i])
        for d in range(4):
            unpack(128 + 2 * d, 64 + 4 * i + d)
        s = i & 1
        for d in range(4):
            A('v_pk_fma_f32 %s, %s, %s, %s op_sel:[0,%d,0] op_sel_hi:[1,%d,1]' % (
                vr(56 + 2 * d, 2), vr(128 + 2 * d, 2), vr(40 + (i & ~1), 2), vr(56 + 2 * d, 2), s, s))
    for i in range(4):
        A('v_permlane32_swap_b32 v%d, v%d' % (56 + i, 60 + i))
    for i in range(4):
        A('v_add_f32 v%d, v%d, v%d' % (56 + i, 56 + i, 60 + i))
    for i in range(2):
        A('v_permlane16_swap_b32 v%d, v%d' % (56 + i, 58 + i))
    for i in range(2):
        A('v_add_f32 v%d, v%d, v%d' % (56 + i, 56 + i, 58 + i))
    for i in range(2):
        A('v_add_f32_dpp v%d, v%d, v%d row_ror:8 row_mask:0xf bank_mask:0xf' % (58 + i, 56 + i, 56 + i))
    A('v_lshrrev_b32 v11, 4, %s' % vLANE)
    A('v_lshl_add_u32 v11, v8, 2, v11')
    A('s_lshl_b32 %s, %s, 8' % (t1, sW))
    A('s_add_u32 %s, %s, %d' % (t1, t1, L_SCR + 3072))
    A('v_lshl_add_u32 v11, v11, 3, %s' % t1)
    t = A('ds_write_b64 v11, v[58:59]')
    A('v_and_b32 v12, 31, %s' % vLANE)
    A('v_lshlrev_b32 v12, 3, v12')
    A('v_add_u32 v13, %d, v12' % (L_SCR + 3072))
    A.wait(lg=t)
    A('s_barrier')
    S2 = A.label('modpub')
    A('s_cmp_lg_u32 %s, 0' % sW)
    A('s_cbranch_scc1 ' + S2)
    for i in range(4):
        t = A('ds_read_b64 %s, v13 offset:%d' % (vr(40 + 2 * i, 2), 256 * i))
    A('s_lshr_b32 %s, %s, 3' % (t1, t5))
    A('s_cmp_eq_u32 %s, 1' % t1)
    A('s_cselect_b32 %s, 1.0, 0' % t2)
    A('s_cmp_eq_u32 %s, 4' % t1)
    A('s_cselect_b32 %s, 1.0, %s' % (t2, t2))
    A('s_lshl_b32 %s, %s, 8' % (t1, t5))
    A('s_add_u32 %s, %s, %d' % (t1, t1, WS_MOD))
    A.wait(lg=t)
    A('v_pk_add_f32 v[40:41], v[40:41], v[42:43]')
    A('v_pk_add_f32 v[44:45], v[44:45], v[46:47]')
    A('v_pk_add_f32 v[40:41], v[40:41], v[44:45]')
    A('v_cvt_pk_bf16_f32 v42, v40, v41')
    unpack(40, 42)
    A('v_add_f32 v40, %s, v40' % t2)
    A('v_add_f32 v41, %s, v41' % t2)
    A('v_cvt_pk_bf16_f32 v42, v40, v41')
    A('v_mov_b32 v43, %s' % sTAG)
    A('s_mov_b64 exec, 0xffffffff')
    A('buffer_store_dwordx2 v[42:43], v12, %s, %s offen sc1' % (SRD_WS, t1))
    A('s_mov_b64 exec, -1')
    A(S2 + ':')
    A(SK + ':')


def prep_issue():
    A('v_lshrrev_b32 v11, 2, %s' % vLANE)
    A('v_and_b32 v11, 7, v11')
    A('v_lshlrev_b32 v11, 10, v11')
    A('v_lshrrev_b32 v12, 5, %s' % vLANE)
    A('v_lshl_add_u32 v11, v12, 6, v11')
    A('v_and_b32 v12, 3, %s' % vLANE)
    A('v_lshl_add_u32 v11, v12, 4, v11')
    A('s_lshl_b32 %s, %s, 2' % (t0, sJ))
    A('s_add_u32 %s, %s, %s' % (t0, t0, sW))
    A('s_sub_u32 %s, %s, 16' % (t0, t0))
    A('s_lshl_b32 %s, %s, 14' % (t0, t0))
    A('s_cmp_lt_u32 %s, 4' % sJ)
    A('s_cselect_b32 %s, 0, %s' % (t0, t0))
    A('s_cselect_b32 %s, 0x40000000, 0' % t3)
    A('v_add_u32 v12, %s, v11' % t3)
    A('s_lshl_b32 %s, %s, 7' % (t1, sX))
    A('s_add_u32 %s, %s, %s' % (t0, t0, t1))
    A('s_lshl_b32 %s, %s, 11' % (t2, sW))
    A('s_add_u32 %s, %s, %d' % (t2, t2, L_KV))
    dma('v12', SRD_W2, t0, t2)
    A('s_add_u32 %s, %s, 8192' % (t0, t0))
    A('s_add_u32 %s, %s, 1024' % (t2, t2))
    dma('v12', SRD_W2, t0, t2)
    A('s_lshl_b32 %s, %s, 14' % (t0, sJ))
    A('s_cmp_lg_u32 %s, 3' % sW)
    A('s_cselect_b32 %s, 0x40000000, 0' % t3)
    A('v_add_u32 v13, %s, v11' % t3)
    A('s_add_u32 %s, %s, %s' % (t0, t0, t1))
    A('s_add_u32 %s, %s, %d' % (t2, t2, 8192 - 1024))
    dma('v13', SRD_WO, t0, t2)
    A('s_add_u32 %s, %s, 8192' % (t0, t0))
    A('s_add_u32 %s, %s, 1024' % (t2, t2))
    return dma('v13', SRD_WO, t0, t2)


def wqkv_dma(tiles):
    A('v_lshrrev_b32 v12, 2, %s' % vLANE)
    A('v_mul_u32_u24 v12, 3072, v12')
    A('v_and_b32 v13, 3, %s' % vLANE)
    A('v_lshl_add_u32 v12, v13, 4, v12')
    t = None
    for tile in tiles:
        col = {0: 1024, 1: 2048, 2: 0}[tile]
        A('s_mul_i32 %s, %s, %d' % (t0, sW, 128 * 3072))
        A('s_lshl_b32 %s, %s, 6' % (t1, sM))
        A('s_add_u32 %s, %s, %s' % (t0, t0, t1))
        A('s_add_u32 %s, %s, %d' % (t0, t0, col))
        A('s_lshl_b32 %s, %s, 13' % (t2, sW))
        A('s_add_u32 %s, %s, %d' % (t2, t2, tile * 32768))
        for i in range(8):
            t = dma('v12', SRD_WQKV, t0, t2)
            if i < 7:
                A('s_add_u32 %s, %s, %d' % (t0, t0, 16 * 3072))
                A('s_add_u32 %s, %s, 1024' % (t2, t2))
    return t


def ln1_stats(tx):
    A.wait(vm=tx, force=True)
    for i in range(8):
        unpack(24 + 2 * i, 16 + i)
    A('v_pk_add_f32 v[40:41], v[24:25], v[26:27]')
    A('v_pk_mul_f32 v[42:43], v[24:25], v[24:25]')
    A('v_pk_fma_f32 v[42:43], v[26:27], v[26:27], v[42:43]')
    for i in range(2, 8):
        A('v_pk_add_f32 v[40:41], v[40:41], %s' % vr(24 + 2 * i, 2))
        A('v_pk_fma_f32 v[42:43], %s, %s, v[42:43]' % (vr(24 + 2 * i, 2), vr(24 + 2 * i, 2)))
    A('v_add_f32 v40, v40, v41')
    A('v_add_f32 v42, v42, v43')
    A('v_permlane32_swap_b32 v40, v42')
    A('v_add_f32 v40, v40, v42')
    A('v_mov_b32 v41, v40')
    A('v_permlane16_swap_b32 v40, v41')
    A('v_add_f32 v40, v40, v41')
    A('v_add_f32_dpp v41, v40, v40 row_ror:8 row_mask:0xf bank_mask:0xf')
    A('v_lshrrev_b32 v12, 5, %s' % vLANE)
    A('v_lshl_add_u32 v12, v12, 3, v8')
    A('s_lshl_b32 %s, %s, 2' % (t0, sW))
    A('s_add_u32 %s, %s, %d' % (t0, t0, L_SCR))
    A('v_lshl_add_u32 v12, v12, 4, %s' % t0)
    t = A('ds_write_b32 v12, v41')
    A('v_lshlrev_b32 v13, 4, v8')
    A('v_add_u32 v13, %d, v13' % L_SCR)
    A.wait(lg=t)
    A('s_barrier')
    A('ds_read_b128 v[40:43], v13')
    t = A('ds_read_b128 v[44:47], v13 offset:128')
    A.wait(lg=t)
    A('v_pk_add_f32 v[40:41], v[40:41], v[42:43]')
    A('v_pk_add_f32 v[44:45], v[44:45], v[46:47]')
    A('v_add_f32 v40, v40, v41')
    A('v_add_f32 v44, v44, v45')
    A('v_mul_f32 v40, 0x3b000000, v40')
    A('v_mul_f32 v44, 0x3b000000, v44')
    A('v_fma_f32 v44, -v40, v40, v44')
    A('v_max_f32 v44, 0, v44')
    A('v_add_f32 v44, 0x3727c5ac, v44')
    A('v_rsq_f32 v42, v44')
    A('v_mul_f32 v43, -v40, v42')
    for i in range(8):
        A('v_pk_fma_f32 %s, %s, v[42:43], v[42:43] op_sel:[0,0,1] op_sel_hi:[1,0,1]' % (vr(24 + 2 * i, 2), vr(24 + 2 * i, 2)))


def prep_finish(tp):
    A('v_and_b32 v11, 1, %s' % vLANE)
    A('v_lshlrev_b32 v11, 5, v11')
    A('v_bfe_u32 v12, %s, 1, 1' % vLANE)
    A('v_lshl_add_u32 v11, v12, 3, v11')
    A('v_bfe_u32 v12, %s, 4, 1' % vLANE)
    A('v_lshl_add_u32 v11, v12, 4, v11')
    A('v_bfe_u32 v12, %s, 2, 2' % vLANE)
    A('v_lshl_add_u32 v11, v12, 6, v11')
    A('s_lshl_b32 %s, %s, 11' % (t2, sW))
    A('s_add_u32 %s, %s, %d' % (t2, t2, L_KV))
    A('v_add_u32 v11, %s, v11' % t2)
    A('v_lshrrev_b32 v12, 5, %s' % vLANE)
    A('v_lshl_add_u32 v13, v12, 10, v11')
    A('v_lshl_add_u32 v14, v12, 8, v11')
    A.wait(vm=tp)
    for nt in range(2):
        for half in range(2):
            A('ds_read_b64_tr_b16 %s, v13 offset:%d' % (vr(48 + 4 * nt + 2 * half, 2), nt * 512 + half * 256))
    for nt in range(2):
        for half in range(2):
            t = A('ds_read_b64_tr_b16 %s, v14 offset:%d' % (vr(56 + 4 * nt + 2 * half, 2), 8192 + nt * 512 + half * 1024))
    A('s_mul_i32 %s, %s, 112' % (t0, sX))
    A('s_lshl_b32 %s, %s, 2' % (t1, sJ))
    A('s_add_u32 %s, %s, %s' % (t0, t0, t1))
    A('s_add_u32 %s, %s, %s' % (t0, t0, sW))
    A('s_lshl_b32 %s, %s, 11' % (t0, t0))
    A('s_add_u32 %s, %s, %d' % (t0, t0, WS_W2T - 16 * 2048))
    A('s_cmp_lt_u32 %s, 4' % sJ)
    A('s_cselect_b32 %s, 0x40000000, 0' % t3)
    A('v_add_u32 v11, %s, %s' % (t3, vL16))
    A('s_lshl_b32 %s, %s, 11' % (t1, sLID))
    A('s_add_u32 %s, %s, %d' % (t1, t1, WS_WOT))
    A('s_cmp_lg_u32 %s, 3' % sW)
    A('s_cselect_b32 %s, 0x40000000, 0' % t3)
    A('v_add_u32 v12, %s, %s' % (t3, vL16))
    A.wait(lg=t)
    A('buffer_store_dwordx4 v[48:51], v11, %s, %s offen sc1' % (SRD_WS, t0))
    A('buffer_store_dwordx4 v[52:55], v11, %s, %s offen offset:1024 sc1' % (SRD_WS, t0))
    A('buffer_store_dwordx4 v[56:59], v12, %s, %s offen sc1' % (SRD_WS, t1))
    A('buffer_store_dwordx4 v[60:63], v12, %s, %s offen offset:1024 sc1' % (SRD_WS, t1))


def h_phase():
    A('v_and_b32 v11, 31, %s' % vLANE)
    A('v_lshlrev_b32 v11, 4, v11')
    A('v_lshrrev_b32 v12, 5, %s' % vLANE)
    A('v_lshl_add_u32 v11, v12, 11, v11')
    A('s_lshl_b32 %s, %s, 9' % (t0, sW))
    A('s_add_u32 %s, %s, %d' % (t1, t0, L_SCR + 4096))
    A('s_add_u32 %s, %s, %d' % (t0, t0, WS_MOD))
    A('v_lshl_add_u32 v12, %s, 3, %s' % (vLANE, t1))
    A('v_lshl_add_u32 v13, v9, 4, %s' % t1)
    A('v_lshlrev_b32 v14, 9, v9')
    A('v_lshl_add_u32 v14, v8, 4, v14')
    A('s_lshr_b32 %s, %s, 2' % (t2, sLID))
    A('s_lshl_b32 %s, %s, 15' % (t3, t2))
    A('s_and_b32 %s, %s, 3' % (t4, sJ))
    A('s_lshl_b32 %s, %s, 7' % (t5, t4))
    A('s_add_u32 %s, %s, %s' % (t3, t3, t5))
    A('s_lshl_b32 %s, %s, 13' % (t5, sW))
    A('s_add_u32 %s, %s, %s' % (t3, t3, t5))
    A('s_add_u32 %s, %s, %d' % (t3, t3, WS_H))
    A('s_lshl_b32 %s, %s, 8' % (t2, t2))
    A('s_lshl_b32 %s, %s, 4' % (t4, t4))
    A('s_add_u32 %s, %s, %s' % (t2, t2, t4))
    A('s_lshl_b32 %s, %s, 2' % (t4, sW))
    A('s_add_u32 %s, %s, %s' % (t2, t2, t4))
    A('s_add_u32 %s, %s, %d' % (t2, t2, WS_FA))
    A('s_lshl_b32 %s, %s, 7' % (sPB, sLID))
    A('s_add_u32 %s, %s, %s' % (sPB, sPB, t4))
    A('s_add_u32 %s, %s, %d' % (sPB, sPB, WS_FBH))
    L, D = A.label('pmod'), A.label('dmod')
    A('s_mov_b32 %s, 0' % sCNT)
    A(L + ':')
    A('buffer_load_dwordx4 v[40:43], v11, %s, %s offen sc1' % (SRD_WS, t0))
    A('s_add_u32 %s, %s, 1' % (sCNT, sCNT))
    A('s_waitcnt vmcnt(0)')
    A('v_cmp_ne_u32 vcc, %s, v41' % sTAG)
    A('v_cmp_ne_u32 %s, %s, v43' % (sMASK, sTAG))
    A('s_or_b64 vcc, vcc, %s' % sMASK)
    A('s_cbranch_scc0 ' + D)
    A('s_cmp_lt_u32 %s, %d' % (sCNT, LIMIT))
    A('s_cbranch_scc1 ' + L)
    A(D + ':')
    A.vm_done = A.vm
    stamp('mod seen')
    t = A('ds_write2_b32 v12, v40, v42 offset0:0 offset1:1')
    A.wait(lg=t)
    tr = []
    for i in range(2):
        A('ds_read_b128 %s, v13 offset:%d' % (vr(40 + 8 * i, 4), 128 * i))
        tr.append(A('ds_read_b128 %s, v13 offset:%d' % (vr(44 + 8 * i, 4), 256 + 128 * i)))
    for i in range(2):
        A.wait(lg=tr[i])
        for d in range(4):
            unpack(56, 40 + 8 * i + d)
            unpack(58, 44 + 8 * i + d)
            x = 24 + 8 * i + 2 * d
            A('v_pk_fma_f32 v[60:61], %s, v[58:59], v[56:57]' % vr(x, 2))
            A('v_cvt_pk_bf16_f32 v%d, v60, v61' % (16 + 4 * i + d))
        A('buffer_store_dwordx4 %s, v14, %s, %s offen sc1' % (vr(16 + 4 * i, 4), SRD_WS, t3))
        if i == 0:
            A('s_add_u32 %s, %s, 4096' % (t3, t3))
    A.wait(vm='all')
    flag_store(t2, False)


def qkv():
    A('s_lshl_b32 %s, %s, 8' % (t0, sT))
    A('s_add_u32 %s, %s, %d' % (t0, t0, WS_FA))
    A('v_lshl_add_u32 v10, %s, 2, %s' % (vLANE, t0))
    A('s_lshl_b32 %s, %s, 9' % (t0, sT))
    A('s_add_u32 %s, %s, %d' % (t0, t0, WS_FBH))
    A('v_bfe_u32 v11, %s, 2, 2' % vLANE)
    A('v_lshl_add_u32 v11, v11, 7, %s' % t0)
    A('v_and_b32 v12, 3, %s' % vLANE)
    A('v_lshl_add_u32 v11, v12, 2, v11')
    A('s_mov_b64 %s, 0xffff' % sMASK)
    A('v_lshlrev_b32 v13, 3, v12')
    A('v_bfe_u32 v12, %s, 4, 1' % vLANE)
    A('v_lshl_add_u32 v13, v12, 5, v13')
    A('v_bfe_u32 v12, %s, 2, 2' % vLANE)
    A('v_lshl_add_u32 v13, v12, 6, v13')
    A('v_lshrrev_b32 v12, 5, %s' % vLANE)
    A('v_lshl_add_u32 v13, v12, 9, v13')
    A('v_add_u32 v14, 65536, v13')
    A('s_barrier')
    RING = 4
    rd = {}

    def bread(s):
        b = 64 + 8 * (s % RING)
        for tile in range(2):
            for half in range(2):
                rd[s] = A('ds_read_b64_tr_b16 %s, v13 offset:%d' % (vr(b + 4 * tile + 2 * half, 2), tile * 32768 + s * 1024 + half * 256))
    for s in range(RING - 1):
        bread(s)
    A('s_lshl_b32 %s, %s, 15' % (t0, sT))
    A('s_add_u32 %s, %s, %d' % (t0, t0, WS_H))
    poll_dual('v10', 'v11', 'v15', 'h')
    stamp('h seen')
    ta = []
    for s in range(32):
        ta.append(A('buffer_load_dwordx4 %s, %s, %s, %s offen offset:%d sc1' % (vr(128 + 4 * s, 4), vL16, SRD_WS, t0, (s & 3) * 1024)))
        if s & 3 == 3 and s < 31:
            A('s_add_u32 %s, %s, 4096' % (t0, t0))
    flag_store(sPB, True)
    for s in range(32):
        b = 64 + 8 * (s % RING)
        if s + RING - 1 < 32:
            bread(s + RING - 1)
        A.wait(vm=ta[s], lg=rd[s])
        a = vr(128 + 4 * s, 4)
        A('%s v[16:31], %s, %s, %s' % (MF32, vr(b, 4), a, 'v[16:31]' if s else '0'))
        A('%s v[32:47], %s, %s, %s' % (MF32, a, vr(b + 4, 4), 'v[32:47]' if s else '0'))
    stamp('kv pass')
    rq = {}

    def qread(s):
        b = 64 + 4 * (s % 8)
        for half in range(2):
            rq[s] = A('ds_read_b64_tr_b16 %s, v14 offset:%d' % (vr(b + 2 * half, 2), s * 1024 + half * 256))
    for s in range(6):
        qread(s)
    A('s_lshl_b32 %s, %s, 4' % (t0, sT))
    A('s_add_u32 %s, %s, %s' % (t0, t0, sM))
    A('s_lshl_b32 %s, %s, 6' % (t4, t0))
    A('s_add_u32 %s, %s, %d' % (t4, t4, WS_FBKV))
    A('s_lshl_b32 %s, %s, 12' % (t0, t0))
    A('s_add_u32 %s, %s, %d' % (t0, t0, WS_KV))
    A('s_lshl_b32 %s, %s, 12' % (t1, sW))
    A('s_add_u32 %s, %s, %d' % (t1, t1, L_KV))
    A('v_add_u32 v4, %s, %s' % (t1, vL16))
    for p in range(4):
        for d in range(4):
            A('v_cvt_pk_bf16_f32 v%d, v%d, v%d' % (96 + 4 * p + d, 16 + 8 * p + 2 * d, 17 + 8 * p + 2 * d))
        tst = A('buffer_store_dwordx4 %s, %s, %s, %s offen offset:%d sc1' % (vr(96 + 4 * p, 4), vL16, SRD_WS, t0, p * 1024))
    A('s_lshl_b32 %s, %s, 12' % (t2, sCT))
    A('s_add_u32 %s, %s, %d' % (t2, t2, WS_FBH))
    A('v_and_b32 v10, 31, %s' % vLANE)
    A('v_lshlrev_b32 v10, 7, v10')
    A('v_lshlrev_b32 v11, 4, v0')
    A('s_mov_b32 %s, %d' % (t3, WS_MOD + 4096))
    A('s_mov_b32 %s, %d' % (t5, WS_MOD + 8192))

    def chk_loads():
        A('buffer_load_dwordx4 v[112:115], v10, %s, %s offen sc1' % (SRD_WS, t2))
        A('buffer_load_dwordx4 v[116:119], v11, %s, %s offen sc1' % (SRD_WS, t3))
        A('buffer_load_dwordx4 v[120:123], v11, %s, %s offen sc1' % (SRD_WS, t5))
    chk_loads()
    for p in range(4):
        A('ds_write_b128 v4, %s offset:%d' % (vr(96 + 4 * p, 4), 8 * 4096 + p * 1024))
    for s in range(32):
        if s + 6 < 32:
            qread(s + 6)
        A.wait(lg=rq[s])
        A('%s v[48:63], %s, %s, %s' % (MF32, vr(64 + 4 * (s % 8), 4), vr(128 + 4 * s, 4), 'v[48:63]' if s else '0'))
        if s == 20:
            A.wait(vm=tst)
            flag_store(t4, True)
    stamp('q pass')
    L, D = A.label('pchk'), A.label('dchk')
    A('s_mov_b32 %s, 0' % sCNT)
    A('s_waitcnt vmcnt(1)')
    A(L + ':')
    A('v_cmp_ne_u32 vcc, %s, v112' % sTAG)
    for r in (113, 114, 115, 117, 119, 121, 123):
        A('v_cmp_ne_u32 %s, %s, v%d' % (sMASK, sTAG, r))
        A('s_or_b64 vcc, vcc, %s' % sMASK)
    A('s_cbranch_scc0 ' + D)
    A('s_add_u32 %s, %s, 1' % (sCNT, sCNT))
    A('s_cmp_ge_u32 %s, %d' % (sCNT, LIMIT))
    A('s_cbranch_scc1 ' + D)
    vm_save = A.vm
    chk_loads()
    A.vm = vm_save
    A('s_waitcnt vmcnt(0)')
    A('s_branch ' + L)
    A(D + ':')
    A('v_mov_b32 v5, v116')
    A('v_mov_b32 v6, v118')
    A('v_mov_b32 v7, v120')
    A('v_mov_b32 v8, v122')
    A('s_mov_b32 %s, 0x3eb8aa3b' % t0)
    for i in range(16):
        A('v_mul_f32 v%d, %s, v%d' % (48 + i, t0, 48 + i))
    A.wait(lg='all')
    for i in range(8):
        A('v_cvt_pk_bf16_f32 v%d, v%d, v%d' % (96 + i, 48 + 2 * i, 49 + 2 * i))
    A('s_barrier')


W1V = 104


def w1_addr():
    for i in range(7):
        A('v_add_u32 v10, %d, %s' % (64 * i, vLANE))
        A('v_mul_u32_u24 v11, 4682, v10')
        A('v_lshrrev_b32 v11, 16, v11')
        A('v_mul_u32_u24 v12, 14, v11')
        A('v_sub_u32 v10, v10, v12')
        A('v_mul_u32_u24 v11, 3584, v11')
        A('v_lshl_add_u32 v%d, v10, 4, v11' % (W1V + i))


def w1_dma(g):
    A('s_mul_i32 %s, %s, %d' % (t0, sW, 32 * 3584))
    A('s_mul_i32 %s, %s, 224' % (t1, sM))
    A('s_add_u32 %s, %s, %s' % (t0, t0, t1))
    A('s_add_u32 %s, %s, %d' % (t0, t0, g * 128 * 3584))
    A('s_mul_i32 %s, %s, 7168' % (t1, sW))
    A('s_add_u32 %s, %s, %d' % (t1, t1, g * 4 * 7168))
    for i in range(7):
        t = dma('v%d' % (W1V + i), SRD_W1, t0, t1)
        if i < 6:
            A('s_add_u32 %s, %s, 1024' % (t1, t1))
    return t


vB0, vB1 = 'v111', 'v112'


def wfrag_addr():
    A('s_lshl_b32 %s, %s, 10' % (t0, sB))
    A('v_add_u32 %s, %s, %s' % (vB0, t0, vL16))
    A('v_xor_b32 %s, 1024, %s' % (vB1, vB0))


def wo_frag_loads():
    A('s_lshl_b32 %s, %s, 16' % (t0, sCT))
    A('s_lshl_b32 %s, %s, 14' % (t1, sW))
    A('s_add_u32 %s, %s, %s' % (t0, t0, t1))
    A('s_add_u32 %s, %s, %d' % (t0, t0, WS_WOT))
    for i in range(8):
        A('buffer_load_dwordx4 %s, %s, %s, %s offen offset:%d sc1' % (ar(192 + 8 * i, 4), vB0, SRD_WS, t0, (i & 1) * 2048))
        t = A('buffer_load_dwordx4 %s, %s, %s, %s offen offset:%d sc1' % (ar(196 + 8 * i, 4), vB1, SRD_WS, t0, (i & 1) * 2048))
        if i & 1:
            A('s_add_u32 %s, %s, 4096' % (t0, t0))
    return t


def w2_frag_loads(k0, k1):
    A('s_mul_i32 %s, %s, %d' % (t0, sCT, 112 * 2048))
    A('s_mul_i32 %s, %s, %d' % (t1, sW, 28 * 2048))
    A('s_add_u32 %s, %s, %s' % (t0, t0, t1))
    A('s_add_u32 %s, %s, %d' % (t0, t0, WS_W2T + k0 * 2048))
    t = None
    for i in range(k0, k1):
        o = ((i - k0) & 1) * 2048
        A('buffer_load_dwordx4 %s, %s, %s, %s offen offset:%d sc1' % (ar(8 * i, 4), vB0, SRD_WS, t0, o))
        t = A('buffer_load_dwordx4 %s, %s, %s, %s offen offset:%d sc1' % (ar(8 * i + 4, 4), vB1, SRD_WS, t0, o))
        if (i - k0) & 1:
            A('s_add_u32 %s, %s, 4096' % (t0, t0))
    return t


XT = 240
vXO = 'v113'


def xtile_load():
    A('s_add_u32 %s, %s, %s' % (t0, sT0, sA))
    A('s_lshl_b32 %s, %s, 15' % (t0, t0))
    A('s_lshl_b32 %s, %s, 7' % (t1, sCT))
    A('s_add_u32 %s, %s, %s' % (t0, t0, t1))
    A('s_lshl_b32 %s, %s, 6' % (t1, sB))
    A('s_add_u32 %s, %s, %s' % (t0, t0, t1))
    A('v_and_b32 v10, 31, %s' % vLANE)
    A('v_lshl_add_u32 v10, v10, 10, %s' % t0)
    A('v_lshrrev_b32 v11, 5, %s' % vLANE)
    A('v_lshl_add_u32 %s, v11, 5, v10' % vXO)
    A('buffer_load_dwordx4 %s, %s, %s, 0 offen' % (vr(XT, 4), vXO, SRD_X))
    return A('buffer_load_dwordx4 %s, %s, %s, 0 offen offset:16' % (vr(XT + 4, 4), vXO, SRD_X))


Q0, Q1 = 96, 100
MD, MFAR = 128, 144
S0, S1 = 160, 176
P0, P1 = 192, 200
O0, O1 = 208, 224
K0, K1 = 64, 68
V0, V1 = 72, 80


def kv_off(d, piece):
    return (8 - d) * 4096 + piece * 1024


def attention():
    w1_addr()
    wfrag_addr()
    w1_dma(0)
    w1_dma(1)
    A('v_and_b32 v10, 31, %s' % vLANE)
    A('v_lshrrev_b32 v11, 5, %s' % vLANE)
    A('v_lshlrev_b32 v11, 2, v11')
    A('v_sub_u32 v10, v10, v11')
    A('v_mov_b32 v12, 0xff800000')
    for r in range(16):
        key = (r & 3) + 8 * (r >> 2)
        A('v_cmp_le_i32 vcc, %d, v10' % key)
        A('v_cndmask_b32 v%d, v12, 0, vcc' % (MD + r))
        A('v_cndmask_b32 v%d, 0, v12, vcc' % (MFAR + r))
    for r in range(16):
        A('v_mov_b32 v%d, 0x3f803f80' % (V0 + r))
    for r in range(16):
        A('v_mov_b32 v%d, 0' % (O0 + r))
        A('v_mov_b32 v%d, 0' % (O1 + r))
    for r in range(4):
        A('v_mov_b32 v%d, 0' % (P1 + 4 + r))

    def cop(d):
        return vr(MD, 16) if d == 0 else vr(MFAR, 16) if d == 8 else '0'

    def rdK(h, d):
        return A('ds_read_b128 %s, v4 offset:%d' % (vr((K0, K1)[h], 4), kv_off(d, h)))

    def rdV(h, d):
        A('s_mov_b64 exec, %s' % (sLO, sHI)[h])
        A('ds_read_b128 %s, v4 offset:%d' % (vr((V0, V1)[h], 4), kv_off(d, 2)))
        t = A('ds_read_b128 %s, v4 offset:%d' % (vr((V0, V1)[h] + 4, 4), kv_off(d, 3)))
        A('s_mov_b64 exec, -1')
        return t

    def pipe_prologue(d):
        t = rdK(0, d)
        rdK(1, d)
        rdV(0, d)
        A.wait(lg=t)
        A('%s %s, %s, %s, %s' % (MF32, vr(S0, 16), vr(K0, 4), vr(Q0, 4), cop(d)))
        A.wait(lg='all')

    def half(h, d):
        S, P, O, V = (S0, S1)[h], (P0, P1)[h], (O0, O1)[h], (V0, V1)[h]
        oS, oP, oO, oV, oK, oQ = (S1, S0)[h], (P1, P0)[h], (O1, O0)[h], (V1, V0)[h], (K1, K0)[h], (Q1, Q0)[h]
        od = d if h == 0 else d + 1
        A.wait(lg='all')
        if od <= 8:
            A('%s %s, %s, %s, %s' % (MF32, vr(oS, 16), vr(oK, 4), vr(oQ, 4), cop(od)))
        for i in range(4):
            A('v_exp_f32 v%d, v%d' % (S + i, S + i))
            if i == 0 and d + 1 <= 8:
                rdK(h, d + 1)
        A('%s %s, %s, %s, %s' % (MF32, vr(oO, 16), vr(oV + 4, 4), vr(oP + 4, 4), vr(oO, 16)))
        if od <= 8:
            rdV(1 - h, od)
        for i in range(4, 8):
            A('v_exp_f32 v%d, v%d' % (S + i, S + i))
        for i in range(4):
            A('v_cvt_pk_bf16_f32 v%d, v%d, v%d' % (P + i, S + 2 * i, S + 2 * i + 1))
        for i in range(8, 10):
            A('v_exp_f32 v%d, v%d' % (S + i, S + i))
        A('%s %s, %s, %s, %s' % (MF32, vr(O, 16), vr(V, 4), vr(P, 4), vr(O, 16)))
        for i in range(10, 16):
            A('v_exp_f32 v%d, v%d' % (S + i, S + i))
        for i in range(4, 8):
            A('v_cvt_pk_bf16_f32 v%d, v%d, v%d' % (P + i, S + 2 * i, S + 2 * i + 1))

    pipe_prologue(0)
    IT = [A.label('it%d' % d) for d in range(9)]
    CHK = [A.label('chk%d' % d) for d in range(4)]
    REM, END = A.label('rem'), A.label('attend')
    for d in range(9):
        A(IT[d] + ':')
        half(0, d)
        half(1, d)
        if d < 4:
            A('s_cmp_eq_u32 %s, %d' % (sW, d))
            A('s_cbranch_scc1 ' + REM)
        if d < 8:
            A('s_cmp_eq_u32 %s, %d' % (sT, d))
            A('s_cbranch_scc1 ' + END)
    A('s_branch ' + END)
    A(REM + ':')
    stamp('local att')
    NOREM = A.label('norem')
    A('s_cmp_lt_u32 %s, 4' % sT)
    A('s_cbranch_scc1 ' + NOREM)
    A('s_sub_u32 %s, %s, 4' % (t0, sT))
    A('s_sub_u32 %s, %s, 8' % (t1, sT))
    A('s_cmp_lt_u32 %s, 8' % sT)
    A('s_cselect_b32 %s, %s, %s' % (t1, t0, t1))
    for t in (t0, t1):
        A('s_lshl_b32 %s, %s, 4' % (t, t))
        A('s_add_u32 %s, %s, %s' % (t, t, sM))
    A('v_mov_b32 v10, %s' % t0)
    A('v_mov_b32 v11, %s' % t1)
    A('v_cndmask_b32 v10, v10, v11, %s' % sLO)
    A('v_lshlrev_b32 v10, 6, v10')
    A('s_mov_b32 %s, %d' % (t2, WS_FBKV))
    L, D = A.label('pkv'), A.label('dkv')
    A('s_mov_b32 %s, 0' % sCNT)
    A(L + ':')
    A('buffer_load_dword v11, v10, %s, %s offen sc1' % (SRD_WS, t2))
    A('s_add_u32 %s, %s, 1' % (sCNT, sCNT))
    A('s_waitcnt vmcnt(0)')
    A('v_cmp_ne_u32 vcc, %s, v11' % sTAG)
    A('s_cbranch_vccz ' + D)
    A('s_cmp_lt_u32 %s, %d' % (sCNT, LIMIT))
    A('s_cbranch_scc1 ' + L)
    A(D + ':')
    stamp('kv seen')
    A('s_lshl_b32 %s, %s, 12' % (t2, sW))
    for t, slot in ((t0, 4), (t1, 0)):
        A('s_lshl_b32 %s, %s, 12' % (t, t))
        A('s_add_u32 %s, %s, %d' % (t, t, WS_KV))
        A('s_add_u32 m0, %s, %d' % (t2, L_KV + slot * 4096))
        for p in range(4):
            A('buffer_load_dwordx4 %s, %s, %s offen offset:%d sc1 lds' % (vL16, SRD_WS, t, p * 1024))
    A(NOREM + ':')
    tkv = A.vm
    A.vm_done = 0
    w1_dma(2)
    w1_dma(3)
    wo_frag_loads()
    xtile_load()
    A.wait(vm=tkv, lg='all', force=True)
    A('s_barrier')
    stamp('kv loaded')
    A('s_cmp_eq_u32 %s, %s' % (sT, sW))
    A('s_cbranch_scc1 ' + END)
    for d in range(4):
        if d < 3:
            A('s_cmp_lg_u32 %s, %d' % (sW, d))
            A('s_cbranch_scc1 ' + CHK[d])
        pipe_prologue(d + 1)
        A('s_branch ' + IT[d + 1])
        if d < 3:
            A(CHK[d] + ':')
    A(END + ':')
    A('%s %s, %s, %s, %s' % (MF32, vr(O1, 16), vr(V1 + 4, 4), vr(P1 + 4, 4), vr(O1, 16)))
    A('s_waitcnt lgkmcnt(0)')
    A.lg_done = A.lg
    stamp('att done')
    FB, OK = A.label('fb'), A.label('attok')
    A('s_mov_b32 %s, 0x1f800000' % t0)
    A('s_mov_b32 %s, 0x5f800000' % t1)
    A('s_mov_b32 %s, 0x7f000000' % t2)
    A('v_add_f32 v10, abs(v%d), abs(v%d)' % (O0, O0 + 1))
    for i in range(2, 8):
        A('v_add_f32 v10, v10, abs(v%d)' % (O0 + i))
    for i in range(8):
        A('v_add_f32 v10, v10, abs(v%d)' % (O1 + 8 + i))
    A('v_cmp_nlt_f32 vcc, v10, %s' % t2)
    for l in (O0 + 8, O1):
        A('v_cmp_nle_f32 %s, %s, v%d' % (sMASK, t0, l))
        A('s_or_b64 vcc, vcc, %s' % sMASK)
        A('v_cmp_nge_f32 %s, %s, v%d' % (sMASK, t1, l))
        A('s_or_b64 vcc, vcc, %s' % sMASK)
    if OPT['force_fallback']:
        A('s_branch ' + FB)
    A('s_cbranch_scc1 ' + FB)
    A(OK + ':')
    A('s_lshl_b32 %s, %s, 4' % (t0, sT))
    A('s_add_u32 %s, %s, %s' % (t0, t0, sM))
    A('s_lshl_b32 %s, %s, 6' % (sPB, t0))
    A('s_add_u32 %s, %s, %d' % (sPB, sPB, WS_FBO))
    A('s_lshl_b32 %s, %s, 11' % (t0, t0))
    A('s_add_u32 %s, %s, %d' % (t0, t0, WS_O))
    A('v_rcp_f32 v10, v%d' % (O0 + 8))
    A('v_rcp_f32 v12, v%d' % O1)
    for h, (src, rc) in enumerate(((O0, 10), (O1 + 8, 12))):
        for i in range(4):
            A('v_pk_mul_f32 %s, %s, %s op_sel_hi:[1,0]' % (vr(src + 2 * i, 2), vr(src + 2 * i, 2), vr(rc, 2)))
        for i in range(4):
            A('v_cvt_pk_bf16_f32 v%d, v%d, v%d' % (P0 + 4 * h + i, src + 2 * i, src + 2 * i + 1))
        A('buffer_store_dwordx4 %s, %s, %s, %s offen offset:%d sc1' % (vr(P0 + 4 * h, 4), vL16, SRD_WS, t0, h * 1024))
    A('s_lshl_b32 %s, %s, 8' % (t1, sT))
    A('s_lshl_b32 %s, %s, 2' % (t2, sM))
    A('s_add_u32 %s, %s, %s' % (t1, t1, t2))
    A('s_add_u32 %s, %s, %d' % (t1, t1, WS_FA + 64))
    A.wait(vm='all', force=True)
    flag_store(t1, False)
    stamp('o pub')
    return FB, OK


def attention_fallback(FB, OK):
    A(FB + ':')
    A('s_min_u32 %s, %s, 8' % (t3, sT))
    for h in range(2):
        Kp, Q, O, V = h, (Q0, Q1)[h], (O0, O1)[h], (V0, V1)[h]
        for ps in range(2):
            L, ND, NF = A.label('fl'), A.label('fnd'), A.label('fnf')
            A('s_mov_b32 %s, 0' % t4)
            A('v_add_u32 v10, %d, v4' % (8 * 4096))
            if ps == 0:
                A('v_mov_b32 v11, 0xff800000')
            else:
                for r in range(16):
                    A('v_mov_b32 v%d, 0' % (O + r))
            A(L + ':')
            A('ds_read_b128 %s, v10 offset:%d' % (vr(K0, 4), Kp * 1024))
            if ps == 1:
                A('s_mov_b64 exec, %s' % (sLO, sHI)[h])
                A('ds_read_b128 %s, v10 offset:2048' % vr(V, 4))
                A('ds_read_b128 %s, v10 offset:3072' % vr(V + 4, 4))
                A('s_mov_b64 exec, -1')
            A('s_waitcnt lgkmcnt(0)')
            A('%s %s, %s, %s, 0' % (MF32, vr(S0, 16), vr(K0, 4), vr(Q, 4)))
            A('s_nop 15')
            A('s_cmp_lg_u32 %s, 0' % t4)
            A('s_cbranch_scc1 ' + ND)
            for r in range(16):
                A('v_add_f32 v%d, v%d, v%d' % (S0 + r, S0 + r, MD + r))
            A(ND + ':')
            A('s_cmp_lg_u32 %s, 8' % t4)
            A('s_cbranch_scc1 ' + NF)
            for r in range(16):
                A('v_add_f32 v%d, v%d, v%d' % (S0 + r, S0 + r, MFAR + r))
            A(NF + ':')
            if ps == 0:
                for r in range(8):
                    A('v_max3_f32 v11, v11, v%d, v%d' % (S0 + 2 * r, S0 + 2 * r + 1))
            else:
                for r in range(16):
                    A('v_sub_f32 v%d, v%d, v11' % (S0 + r, S0 + r))
                for r in range(16):
                    A('v_exp_f32 v%d, v%d' % (S0 + r, S0 + r))
                for r in range(8):
                    A('v_cvt_pk_bf16_f32 v%d, v%d, v%d' % (P0 + r, S0 + 2 * r, S0 + 2 * r + 1))
                A('%s %s, %s, %s, %s' % (MF32, vr(O, 16), vr(V, 4), vr(P0, 4), vr(O, 16)))
                A('%s %s, %s, %s, %s' % (MF32, vr(O, 16), vr(V + 4, 4), vr(P0 + 4, 4), vr(O, 16)))
                A('s_nop 15')
            A('v_subrev_u32 v10, 4096, v10')
            A('s_add_u32 %s, %s, 1' % (t4, t4))
            A('s_cmp_le_u32 %s, %s' % (t4, t3))
            A('s_cbranch_scc1 ' + L)
            if ps == 0:
                A('v_mov_b32 v12, v11')
                A('v_permlane32_swap_b32 v11, v12')
                A('v_max_f32 v11, v11, v12')
    A('s_branch ' + OK)


def group_poll_addr(kindoff, fb):
    A('v_lshrrev_b32 v12, 5, %s' % vLANE)
    A('v_add_u32 v12, %s, v12' % sT0)
    A('v_and_b32 v13, 31, %s' % vLANE)
    A('v_lshlrev_b32 v10, 8, v12')
    A('v_lshl_add_u32 v10, v13, 2, v10')
    A('v_add_u32 v10, %d, v10' % (WS_FA + kindoff))
    A('v_and_b32 v13, 15, %s' % vLANE)
    A('v_lshl_add_u32 v11, v12, 4, v13')
    A('v_lshlrev_b32 v11, 6, v11')
    A('v_add_u32 v11, %d, v11' % fb)
    A('s_lshl_b32 %s, %s, 2' % (t0, sW))
    A('s_lshl_b32 s84, 15, %s' % t0)
    A('s_mov_b32 s85, s84')


def red_addr(base):
    A('s_xor_b32 %s, %s, 1' % (t0, sW))
    A('s_lshl_b32 %s, %s, 1' % (t0, t0))
    A('s_add_u32 %s, %s, %s' % (t0, t0, sB))
    A('s_lshl_b32 %s, %s, 12' % (t0, t0))
    A('s_xor_b32 %s, %s, 16384' % (t1, t0))
    A('s_add_u32 %s, %s, %d' % (t0, t0, base))
    A('s_add_u32 %s, %s, %d' % (t1, t1, base))
    A('v_add_u32 v14, %s, %s' % (t0, vL16))
    A('v_add_u32 v13, %s, %s' % (t1, vL16))
    A('s_lshl_b32 %s, %s, 13' % (t0, sW))
    A('s_xor_b32 %s, %s, 16384' % (t1, t0))
    A('s_add_u32 %s, %s, %d' % (t0, t0, base))
    A('s_add_u32 %s, %s, %d' % (t1, t1, base))
    A('v_add_u32 v15, %s, %s' % (t0, vL16))
    A('v_add_u32 v9, %s, %s' % (t1, vL16))


def ksplit_gemm(nks, wsbase, tstride, breg, ring_base, ring_n, C, PART, after_issue=None):
    A('s_add_u32 %s, %s, %s' % (t3, sT0, sA))
    A('s_xor_b32 %s, %s, 1' % (t2, t3))
    A('s_mul_i32 %s, %s, %d' % (t4, sW, nks * 1024))
    for t in (t2, t3):
        A('s_mul_i32 %s, %s, %d' % (t, t, tstride))
        A('s_add_u32 %s, %s, %s' % (t, t, t4))
        A('s_add_u32 %s, %s, %d' % (t, t, wsbase))
    return lambda: _ksplit_body(nks, breg, ring_base, ring_n, C, PART, after_issue)


def _ksplit_body(nks, breg, ring_base, ring_n, C, PART, after_issue):
    ta = {}

    def aload(i):
        st, k = divmod(i, nks)
        so = (t2, t3)[st]
        ta[i] = A('buffer_load_dwordx4 %s, %s, %s, %s offen offset:%d sc1' % (vr(ring_base + 4 * (i % ring_n), 4), vL16, SRD_WS, so, (k & 3) * 1024))
        if k & 3 == 3:
            A('s_add_u32 %s, %s, 4096' % (so, so))
    n = 2 * nks
    first = min(ring_n, n)
    for i in range(first):
        aload(i)
    if first == n and after_issue:
        after_issue()
    tw = tr = None
    wq = []
    for i in range(n):
        st, k = divmod(i, nks)
        A.wait(vm=ta[i])
        a = vr(ring_base + 4 * (i % ring_n), 4)
        for s in range(2):
            c = vr(C[2 * st + s], 16)
            A('%s %s, %s, %s, %s' % (MF32, c, breg(k, s), a, c if k else '0'))
            if wq:
                wq.pop(0)()
        if i + ring_n < n:
            aload(i + ring_n)
            if i + ring_n == n - 1 and after_issue:
                after_issue()
        if st == 1 and k == 0:
            for s in range(2):
                for g in range(4):
                    wq.append(lambda s=s, g=g: A('ds_write_b128 %s, %s offset:%d' % (('v14', 'v13')[s], vr(C[s] + 4 * g, 4), g * 1024)))
        if st == 1 and k == 5:
            assert not wq
            A.wait(lg='all')
            A('s_barrier')
            for p in range(2):
                for g in range(4):
                    tr = A('ds_read_b128 %s, v15 offset:%d' % (vr(C[p] + 4 * g, 4), p * 4096 + g * 1024))
    A.wait(lg=tr)
    for g in range(8):
        A('v_pk_add_f32 %s, %s, %s' % (vr(C[0] + 2 * g, 2), vr(C[0] + 2 * g, 2), vr(C[1] + 2 * g, 2)))
    for g in range(4):
        tw = A('ds_write_b128 v15, %s offset:%d' % (vr(C[3] + 4 * g, 4), g * 1024))
    for g in range(8):
        A('v_pk_add_f32 %s, %s, %s' % (vr(C[2] + 2 * g, 2), vr(C[2] + 2 * g, 2), vr(C[0] + 2 * g, 2)))
    A.wait(lg=tw)
    A('s_barrier')
    for g in range(4):
        tr = A('ds_read_b128 %s, v9 offset:%d' % (vr(C[1] + 4 * g, 4), g * 1024))
    for g in range(4):
        A.wait(lg=tr - 3 + g)
        for e in range(2):
            r = 4 * g + 2 * e
            A('v_pk_add_f32 %s, %s, %s' % (vr(C[2] + r, 2), vr(C[2] + r, 2), vr(C[1] + r, 2)))


X2 = 240
GA, G2 = 208, 224


def wo_phase():
    A('s_barrier')
    A('v_lshlrev_b32 v10, 3, v0')
    A('v_add_u32 v10, %d, v10' % L_MODL)
    A('ds_write2_b32 v10, v5, v6 offset0:0 offset1:1')
    A('v_add_u32 v10, 2048, v10')
    t = A('ds_write2_b32 v10, v7, v8 offset0:0 offset1:1')
    A('s_lshl_b32 %s, %s, 7' % (t0, sCT))
    A('s_lshl_b32 %s, %s, 6' % (t1, sB))
    A('s_add_u32 %s, %s, %s' % (t0, t0, t1))
    A('s_add_u32 %s, %s, %d' % (t0, t0, L_MODL))
    A('v_lshrrev_b32 v11, 5, %s' % vLANE)
    A.wait(lg=t)
    A('v_lshl_add_u32 v5, v11, 5, %s' % t0)
    A('s_barrier')
    for i in range(2):
        A('ds_read_b128 %s, v5 offset:%d' % (vr(64 + 4 * i, 4), 16 * i))
        t = A('ds_read_b128 %s, v5 offset:%d' % (vr(72 + 4 * i, 4), 2048 + 16 * i))
    group_poll_addr(64, WS_FBO)
    red_addr(L_RED)
    A.wait(lg=t)
    for i in range(8):
        unpack(GA + 2 * i, 64 + i)
        unpack(G2 + 2 * i, 72 + i)
    for i in range(7, -1, -1):
        A('v_and_b32 v%d, 0xffff0000, v%d' % (X2 + 2 * i + 1, XT + i))
        A('v_lshlrev_b32 v%d, 16, v%d' % (X2 + 2 * i, XT + i))
    C = [16, 32, 48, 64]
    body = ksplit_gemm(8, WS_O, 32768, lambda k, s: ar(192 + 8 * k + 4 * s, 4), 128, 16, C, None,
                       after_issue=lambda: (flag_store(sPB, True), w2_frag_loads(0, W2A)))
    poll_dual('v10', 'v11', 'v12', 'o')
    stamp('o seen')
    body()
    stamp('wo gemm')
    R = C[2]
    for i in range(8):
        A('v_pk_fma_f32 %s, %s, %s, %s' % (vr(X2 + 2 * i, 2), vr(R + 2 * i, 2), vr(GA + 2 * i, 2), vr(X2 + 2 * i, 2)))
    for i in range(8):
        A('v_pk_mul_f32 %s, %s, %s' % (vr(16 + 2 * i, 2), vr(X2 + 2 * i, 2), vr(G2 + 2 * i, 2)))
    A('s_add_u32 %s, %s, %s' % (t3, sT0, sA))
    A('s_lshl_b32 %s, %s, 1' % (t4, sCT))
    A('s_add_u32 %s, %s, %s' % (t4, t4, sB))
    A('s_lshl_b32 %s, %s, 15' % (t0, t3))
    A('s_lshl_b32 %s, %s, 10' % (t1, t4))
    A('s_add_u32 %s, %s, %s' % (t0, t0, t1))
    A('s_add_u32 %s, %s, %d' % (t0, t0, WS_Y))
    A('v_and_b32 v10, 15, %s' % vLANE)
    A('v_lshlrev_b32 v10, 4, v10')
    A('v_bfe_u32 v11, %s, 4, 1' % vLANE)
    A('v_lshl_add_u32 v10, v11, 14, v10')
    A('v_lshrrev_b32 v11, 5, %s' % vLANE)
    A('v_lshl_add_u32 v10, v11, 9, v10')
    for p in range(2):
        for e in range(2):
            for d in range(2):
                r = 16 + 8 * e + 4 * p + 2 * d
                A('v_cvt_pk_bf16_f32 v%d, v%d, v%d' % (32 + 4 * p + 2 * e + d, r, r + 1))
        A('buffer_store_dwordx4 %s, v10, %s, %s offen offset:%d sc1' % (vr(32 + 4 * p, 4), SRD_WS, t0, p * 256))
    A('v_pk_add_f32 v[40:41], %s, %s' % (vr(X2, 2), vr(X2 + 2, 2)))
    A('v_pk_mul_f32 v[42:43], %s, %s' % (vr(X2, 2), vr(X2, 2)))
    A('v_pk_fma_f32 v[42:43], %s, %s, v[42:43]' % (vr(X2 + 2, 2), vr(X2 + 2, 2)))
    for i in range(2, 8):
        A('v_pk_add_f32 v[40:41], v[40:41], %s' % vr(X2 + 2 * i, 2))
        A('v_pk_fma_f32 v[42:43], %s, %s, v[42:43]' % (vr(X2 + 2 * i, 2), vr(X2 + 2 * i, 2)))
    A('v_add_f32 v40, v40, v41')
    A('v_add_f32 v42, v42, v43')
    A('s_lshl_b32 %s, %s, 4' % (t0, t3))
    A('s_add_u32 %s, %s, %s' % (t0, t0, t4))
    A('s_lshl_b32 %s, %s, 6' % (sPB, t0))
    A('s_add_u32 %s, %s, %d' % (sPB, sPB, WS_FBY))
    A('s_lshl_b32 %s, %s, 8' % (t0, t0))
    A('s_add_u32 %s, %s, %d' % (t0, t0, WS_STAT))
    A('v_permlane32_swap_b32 v40, v42')
    A('v_add_f32 v40, v40, v42')
    A('v_lshlrev_b32 v6, 2, %s' % vLANE)
    A('buffer_store_dword v40, v6, %s, %s offen sc1' % (SRD_WS, t0))
    A('s_lshl_b32 %s, %s, 8' % (t1, t3))
    A('s_lshl_b32 %s, %s, 2' % (t2, t4))
    A('s_add_u32 %s, %s, %s' % (t1, t1, t2))
    A('s_add_u32 %s, %s, %d' % (t5, t1, WS_FA + 128))
    ut_compute()
    A.wait(vm='all')
    flag_store(t5, False)
    stamp('y pub')


W2A = 8
W2B = 28


def g1_addr():
    A('v_lshrrev_b32 v10, 5, %s' % vLANE)
    A('v_lshlrev_b32 v10, 4, v10')
    A('v_bfe_u32 v11, %s, 4, 1' % vLANE)
    A('v_lshl_add_u32 v10, v11, 2, v10')
    A('v_bfe_u32 v11, %s, 2, 2' % vLANE)
    A('v_add_u32 v10, v10, v11')
    A('v_mul_u32_u24 v10, 224, v10')
    A('v_and_b32 v11, 3, %s' % vLANE)
    A('v_lshl_add_u32 v7, v11, 3, v10')
    A('v_add_u32 v8, 57344, v7')


def ut_compute():
    g1_addr()
    A('s_lshl_b32 %s, %s, 5' % (t0, sW))
    A('s_add_u32 %s, %s, 128' % (t1, t0))
    A('s_min_u32 %s, %s, 192' % (t1, t1))
    A('v_add_u32 v16, %s, v7' % t0)
    A('v_add_u32 v17, %s, v8' % t0)
    A('v_add_u32 v18, %s, v7' % t1)
    A('v_add_u32 v19, %s, v8' % t1)
    A('v_and_b32 v10, 1, %s' % vLANE)
    A('v_lshlrev_b32 v11, 10, v10')
    A('v_sub_u32 v11, %d, v11' % (L_MODL + 2048))
    A('v_lshrrev_b32 v12, 5, %s' % vLANE)
    A('v_lshl_add_u32 v11, v12, 5, v11')
    A('v_bfe_u32 v12, %s, 4, 1' % vLANE)
    A('v_lshl_add_u32 v20, v12, 3, v11')
    A('v_lshrrev_b32 v12, 4, %s' % vLANE)
    A('v_lshlrev_b32 v12, 4, v12')
    A('v_lshl_add_u32 v12, v10, 9, v12')
    A('s_lshl_b32 %s, %s, 1' % (t0, t0))
    A('s_lshl_b32 %s, %s, 1' % (t1, t1))
    A('s_add_u32 %s, %s, %d' % (t0, t0, L_UT))
    A('s_add_u32 %s, %s, %d' % (t1, t1, L_UT))
    A('v_add_u32 v21, %s, v12' % t0)
    A('v_add_u32 v22, %s, v12' % t1)
    rd = {}

    def rds(ks):
        b = 128 + 12 * (ks % 3)
        o = (ks & 7) * 7168
        A('ds_read2_b64 %s, v20 offset0:%d offset1:%d' % (vr(b, 4), 8 * ks, 8 * ks + 2))
        for n in range(2):
            for half in range(2):
                rd[ks] = A('ds_read_b64_tr_b16 %s, v%d offset:%d' % (vr(b + 4 + 4 * n + 2 * half, 2), 16 + 2 * n + (ks >> 3), o + half * 8 * 224))
    rds(0)
    rds(1)
    for ks in range(16):
        if ks + 2 < 16:
            rds(ks + 2)
        A.wait(lg=rd[ks])
        b = 128 + 12 * (ks % 3)
        for n in range(2):
            c = vr(24 + 4 * n, 4)
            A('%s %s, %s, %s, %s' % (MF16, c, vr(b + 4 + 4 * n, 4), vr(b, 4), c if ks else '0'))
    A('ds_write_b128 v21, v[24:27]')
    A('ds_write_b128 v22, v[28:31]')


def g1_phase():
    ACC, BF, YA, ST = 16, 72, 112, 100
    A('v_mov_b32 v100, %s' % vB0)
    A('v_mov_b32 v101, %s' % vB1)
    A('v_mov_b32 v102, %s' % vXO)
    globals().update(vB0='v100', vB1='v101', vXO='v102')
    A('s_lshl_b32 %s, %s, 8' % (t0, sT))
    A('s_add_u32 %s, %s, %d' % (t0, t0, WS_FA + 128))
    A('v_and_b32 v12, 31, %s' % vLANE)
    A('v_lshl_add_u32 v10, v12, 2, %s' % t0)
    A('s_lshl_b32 %s, %s, 10' % (t0, sT))
    A('s_add_u32 %s, %s, %d' % (t0, t0, WS_FBY))
    A('v_and_b32 v12, 15, %s' % vLANE)
    A('v_lshl_add_u32 v11, v12, 6, %s' % t0)
    A('s_mov_b64 %s, 0xffff' % sMASK)
    rd = {}

    def bread(ks, nt):
        for half in range(2):
            rd[ks, nt] = A('ds_read_b64_tr_b16 %s, v%d offset:%d' % (vr(BF + 4 * nt + 2 * half, 2), 7 + (ks >> 3), (ks & 7) * 7168 + half * 8 * 224 + nt * 32))
    A.wait(lg='all')
    A('s_barrier')
    for nt in range(7):
        bread(0, nt)
    A('s_lshl_b32 %s, %s, 15' % (t2, sT))
    A('s_add_u32 %s, %s, %d' % (t2, t2, WS_Y))
    A('s_add_u32 %s, %s, 16384' % (t3, t2))
    A('s_lshl_b32 %s, %s, 12' % (t4, sT))
    A('s_add_u32 %s, %s, %d' % (t4, t4, WS_STAT))
    poll_dual('v10', 'v11', 'v12', 'y')
    stamp('y seen')
    ta = {}
    for ks in range(16):
        for tt in range(2):
            so = (t2, t3)[tt]
            ta[ks, tt] = A('buffer_load_dwordx4 %s, %s, %s, %s offen offset:%d sc1' % (vr(YA + 8 * ks + 4 * tt, 4), vL16, SRD_WS, so, (ks & 3) * 1024))
            if ks & 3 == 3:
                A('s_add_u32 %s, %s, 4096' % (so, so))
    flag_store(sPB, True)
    tst = None
    for ks in range(16):
        A.wait(vm=ta[ks, 1])
        for nt in range(7):
            A.wait(lg=rd[ks, nt])
            for tt in range(2):
                c = vr(ACC + 8 * nt + 4 * tt, 4)
                A('%s %s, %s, %s, %s' % (MF16, c, vr(BF + 4 * nt, 4), vr(YA + 8 * ks + 4 * tt, 4), c if ks else '0'))
            if ks < 15:
                bread(ks + 1, nt)
        if ks == 2:
            for p in range(16):
                tst = A('buffer_load_dword v%d, v6, %s, %s offen offset:%d sc1' % (YA + p, SRD_WS, t4, p * 256))
        if ks == 6:
            w2_frag_loads(W2A, 18)
        if ks == 12:
            w2_frag_loads(18, 28)
    stamp('g1 gemm')
    A('v_lshrrev_b32 v10, 4, %s' % vLANE)
    A('v_lshlrev_b32 v10, 4, v10')
    A('v_add_u32 v10, %d, v10' % L_UT)
    U, TT = 144, 176
    tu = []
    for nt in range(7):
        A('ds_read_b128 %s, v10 offset:%d' % (vr(U + 4 * nt, 4), nt * 64))
        tu.append(A('ds_read_b128 %s, v10 offset:%d' % (vr(TT + 4 * nt, 4), 512 + nt * 64)))
    A.wait(vm=tst)
    for n in (8, 4, 2):
        for i in range(0, n, 2):
            A('v_pk_add_f32 %s, %s, %s' % (vr(YA + i, 2), vr(YA + i, 2), vr(YA + n + i, 2)))
    A('v_add_f32 v112, v112, v113')
    A('v_mul_f32 v112, 0x3b000000, v112')
    A('v_mov_b32 v113, v112')
    A('v_permlane32_swap_b32 v112, v113')
    A('v_fma_f32 v113, -v112, v112, v113')
    A('v_max_f32 v113, 0, v113')
    A('v_add_f32 v113, 0x3727c5ac, v113')
    A('v_rsq_f32 v114, v113')
    A('v_mul_f32 v115, -v112, v114')
    A('v_mov_b32 v116, v114')
    A('v_mov_b32 v117, v115')
    A('v_permlane16_swap_b32 v114, v116')
    A('v_permlane16_swap_b32 v115, v117')
    A('s_mul_i32 %s, %s, 112' % (t0, sT))
    A('s_mul_i32 %s, %s, 7' % (t1, sM))
    A('s_add_u32 %s, %s, %s' % (t0, t0, t1))
    A('s_lshl_b32 %s, %s, 10' % (t0, t0))
    A('s_add_u32 %s, %s, %d' % (t0, t0, WS_HID))
    for nt in range(7):
        A.wait(lg=tu[nt])
        o = 208 + 4 * nt
        for tt in range(2):
            rp = vr(114 + 2 * tt, 2)
            for e in range(2):
                A('v_pk_fma_f32 %s, %s, %s, %s op_sel:[0,1,0] op_sel_hi:[1,1,1]' % (vr(120 + 2 * e, 2), vr(U + 4 * nt + 2 * e, 2), rp, vr(TT + 4 * nt + 2 * e, 2)))
            for e in range(2):
                A('v_pk_fma_f32 %s, %s, %s, %s op_sel:[0,0,0] op_sel_hi:[1,0,1]' % (vr(120 + 2 * e, 2), vr(ACC + 8 * nt + 4 * tt + 2 * e, 2), rp, vr(120 + 2 * e, 2)))
            for e in range(2):
                A('v_cvt_pk_bf16_f32 v%d, v%d, v%d' % (o + 2 * tt + e, 120 + 2 * e, 121 + 2 * e))
            for e in range(2):
                A('v_pk_max_i16 v%d, v%d, 0' % (o + 2 * tt + e, o + 2 * tt + e))
        A('v_permlane16_swap_b32 v%d, v%d' % (o, o + 2))
        A('v_permlane16_swap_b32 v%d, v%d' % (o + 1, o + 3))
        A('buffer_store_dwordx4 %s, %s, %s, %s offen offset:%d sc1' % (vr(o, 4), vL16, SRD_WS, t0, (nt & 3) * 1024))
        if nt == 3:
            A('s_add_u32 %s, %s, 4096' % (t0, t0))
    A('s_lshl_b32 %s, %s, 4' % (t0, sT))
    A('s_add_u32 %s, %s, %s' % (t0, t0, sM))
    A('s_lshl_b32 %s, %s, 6' % (sPB, t0))
    A('s_add_u32 %s, %s, %d' % (sPB, sPB, WS_FBHID))
    A('s_lshl_b32 %s, %s, 8' % (t1, sT))
    A('s_lshl_b32 %s, %s, 2' % (t2, sM))
    A('s_add_u32 %s, %s, %s' % (t1, t1, t2))
    A('s_add_u32 %s, %s, %d' % (t5, t1, WS_FA + 192))


def g2_phase():
    GB = 80
    for i in range(2):
        t = A('ds_read_b128 %s, v5 offset:%d' % (vr(104 + 4 * i, 4), 3072 + 16 * i))
    group_poll_addr(192, WS_FBHID)
    red_addr(L_RED)
    A.wait(lg=t)
    for i in range(8):
        unpack(GB + 2 * i, 104 + i)
    A.wait(vm='all')
    flag_store(t5, False)
    stamp('hid pub')
    C = [16, 32, 48, 64]
    body = ksplit_gemm(28, WS_HID, 112 * 1024, lambda k, s: ar(8 * k + 4 * s, 4), 104, 34, C, None,
                       after_issue=lambda: flag_store(sPB, True))
    poll_dual('v10', 'v11', 'v12', 'hid')
    stamp('hid seen')
    body()
    stamp('g2 gemm')
    R = C[2]
    for p in range(2):
        for i in range(4 * p, 4 * p + 4):
            A('v_pk_fma_f32 %s, %s, %s, %s' % (vr(X2 + 2 * i, 2), vr(R + 2 * i, 2), vr(GB + 2 * i, 2), vr(X2 + 2 * i, 2)))
        for i in range(4 * p, 4 * p + 4):
            A('v_cvt_pk_bf16_f32 v%d, v%d, v%d' % (16 + i, X2 + 2 * i, X2 + 2 * i + 1))
        A('buffer_store_dwordx4 %s, %s, %s, 0 offen offset:%d' % (vr(16 + 4 * p, 4), vXO, SRD_OUT, 16 * p))


def epoch_update():
    SK = A.label('noep')
    A('s_or_b32 %s, %s, %s' % (t0, sLID, sW))
    A('s_cmp_lg_u32 %s, 0' % t0)
    A('s_cbranch_scc1 ' + SK)
    A('v_and_b32 v10, 15, %s' % vLANE)
    A('v_lshlrev_b32 v10, 12, v10')
    A('s_mov_b32 %s, %d' % (t2, WS_FBY))
    L, D = A.label('pep'), A.label('dep')
    A('s_mov_b32 %s, 0' % sCNT)
    A(L + ':')
    A('buffer_load_dword v11, v10, %s, %s offen sc1' % (SRD_WS, t2))
    A('s_add_u32 %s, %s, 1' % (sCNT, sCNT))
    A('s_waitcnt vmcnt(0)')
    A('v_cmp_ne_u32 vcc, %s, v11' % sTAG)
    A('s_cbranch_vccz ' + D)
    A('s_cmp_lt_u32 %s, %d' % (sCNT, LIMIT))
    A('s_cbranch_scc1 ' + L)
    A(D + ':')
    A('s_mov_b32 %s, %d' % (t2, WS_E))
    flag_store(t2, True)
    A(SK + ':')


def dump_stamps():
    if not OPT['stamps']:
        return
    A.wait(vm='all', force=True)
    stamp('end')
    A('s_lshl_b32 %s, %s, 2' % (t0, sLID))
    A('s_add_u32 %s, %s, %s' % (t0, t0, sW))
    A('s_lshl_b32 %s, %s, 7' % (t0, t0))
    A('s_add_u32 %s, %s, %d' % (t0, t0, WS_TS))
    A('s_mov_b64 exec, 1')
    for i in range(24):
        A('v_mov_b32 v10, s%d' % (STAMP0 + i))
        A('buffer_store_dword v10, off, %s, %s offset:%d' % (SRD_WS, t0, 4 * i))
    A('s_getreg_b32 %s, hwreg(HW_REG_XCC_ID)' % t1)
    A('v_mov_b32 v10, %s' % t1)
    A('buffer_store_dword v10, off, %s, %s offset:96' % (SRD_WS, t0))
    A('s_mov_b64 exec, -1')


def main():
    tx = prologue()
    A('s_lshl_b32 %s, %s, 8' % (t0, sT))
    A('s_add_u32 %s, %s, %d' % (t0, t0, WS_FA))
    A('v_lshlrev_b32 v11, 2, %s' % vLANE)
    tx = A('buffer_load_dword v5, v11, %s, %s offen sc1' % (SRD_WS, t0))
    base = A.vm
    mod_producer()
    A.vm = base
    A.vm_done = 0
    tp = prep_issue()
    wqkv_dma([0, 1, 2])
    get_tag()
    stamp('issued')
    ln1_stats(tx)
    prep_finish(tp)
    stamp('prep done')
    h_phase()
    stamp('h pub')
    qkv()
    FB, OK = attention()
    wo_phase()
    g1_phase()
    g2_phase()
    epoch_update()
    dump_stamps()
    A('L_exit:')
    A('s_endpgm')
    attention_fallback(FB, OK)
    A('L_codeend:')
    body, nops = A.finalize()
    hdr = open(os.path.join(os.path.dirname(os.path.abspath(__file__)), '..', 'cdna_kernels', NAME + '.s.ref')).read().split('; Override')[0]
    out = hdr
    out += '; @launch grid=(256,1,1) block=(256,1,1) lds=163840\n'
    out += '.amdgcn_target "amdgcn-amd-amdhsa--gfx950"\n.text\n.globl %s_kernel\n.p2align 8\n.type %s_kernel,@function\n%s_kernel:\n' % (NAME, NAME, NAME)
    out += '\n'.join(('' if l.endswith(':') else '    ') + l for l in body) + '\n'
    out += '''.section .rodata,"a"
.p2align 6
.amdhsa_kernel %s_kernel
  .amdhsa_next_free_vgpr 512
  .amdhsa_next_free_sgpr 96
  .amdhsa_accum_offset 256
  .amdhsa_group_segment_fixed_size 0
  .amdhsa_kernarg_size 88
  .amdhsa_user_sgpr_count 2
  .amdhsa_user_sgpr_kernarg_segment_ptr 1
  .amdhsa_system_sgpr_workgroup_id_x 1
  .amdhsa_float_denorm_mode_32 3
.end_amdhsa_kernel
''' % NAME
    open(sys.argv[1], 'w').write(out)
    if OPT['stamps']:
        open(sys.argv[1] + '.stamps', 'w').write('\n'.join(STAMP_NAMES))
    print('instructions', len(body), 'pad states', nops, file=sys.stderr)


main()
```

```python
import sys, os
from asmlib import Asm

NAME = 'adaLN_cond__sliding_block__dense_activation_relu__prompt'
OPT = dict(stamps=0, force_fallback=0, stop=99, diag=0, diagmul=0)
for a in sys.argv[2:]:
    k, v = a.split('=')
    OPT[k] = int(v)

WS_E = 0
WS_FA = 0x1000
WS_FBH = 0x8000
WS_FBKV = 0x10000
WS_FBO = 0x20000
WS_FBY = 0x30000
WS_FBHID = 0x40000
WS_MOD = 0x50000
WS_STAT = 0x80000
WS_TS = 0xC0000
WS_WOT = 0x100000
WS_W2T = 0x200000
WS_H = 0x400000
WS_O = 0x600000
WS_Y = 0x800000
WS_KV = 0xA00000
WS_HID = 0xE00000
WS_SIZE = 0x1600000

L_SCR = 98304
L_KV = 114688
L_MODL = 114688
L_UT = L_MODL + 4096
L_RED = L_MODL + 8192
L_RED2 = 0

sX, sJ, sW, sT, sM = 's3', 's4', 's5', 's6', 's7'
SRD_X, SRD_WQKV, SRD_WO, SRD_W1, SRD_W2, SRD_WS, SRD_OUT, SRD_WMOD, SRD_C = [
    's[%d:%d]' % (32 + 4 * i, 35 + 4 * i) for i in range(9)]
sTAG, sE = 's68', 's69'
sCT, sRT, sA, sB, sT0 = 's70', 's71', 's72', 's73', 's74'
sLID = 's75'
t0, t1, t2, t3, t4, t5 = 's76', 's77', 's78', 's79', 's80', 's81'
sCNT = 's82'
sMASK = 's[84:85]'
sLO, sHI = 's[86:87]', 's[88:89]'
sPB = 's83'
STAMP0 = 8

vLANE, vL16, vTAG = 'v1', 'v2', 'v3'

A = Asm()
nstamp = [0]


def vr(b, n=1, k='v'):
    return '%s%d' % (k, b) if n == 1 else '%s[%d:%d]' % (k, b, b + n - 1)


def ar(b, n=1):
    return vr(b, n, 'a')


def stamp(name):
    if OPT['diag']:
        nstamp[0] += 1
        if nstamp[0] == OPT['diag']:
            print('diag stamp:', name, file=sys.stderr)
            A.wait(lg='all')
            A('s_memrealtime s[90:91]')
            A('s_waitcnt lgkmcnt(0)')
            A('s_mov_b32 s97, s90')
        return
    if not OPT['stamps']:
        return
    i = nstamp[0]
    nstamp[0] += 1
    assert i < 22
    A.wait(lg='all')
    A('s_memtime s[90:91]')
    A('s_waitcnt lgkmcnt(0)')
    A('s_mov_b32 s%d, s90 ; stamp %d %s' % (STAMP0 + 2 + i, i, name))
    STAMP_NAMES.append(name)


STAMP_NAMES = []


def flag_store(soff, sc1):
    A('s_mov_b64 exec, 1')
    t = A('buffer_store_dword %s, off, %s, %s%s' % (vTAG, SRD_WS, soff, ' sc1' if sc1 else ''))
    A('s_mov_b64 exec, -1')
    return t


LIMIT = 1 << 17


def poll_dual(vA, vB, vT, name):
    L, D = A.label('p' + name), A.label('d' + name)
    A('s_mov_b32 %s, 0' % sCNT)
    A(L + ':')
    A('buffer_load_dword %s, %s, %s, 0 offen sc1' % (vT, vA, SRD_WS))
    A('s_add_u32 %s, %s, 1' % (sCNT, sCNT))
    A('s_waitcnt vmcnt(0)')
    A('v_cmp_ne_u32 vcc, %s, %s' % (sTAG, vT))
    A('s_and_b64 vcc, vcc, %s' % sMASK)
    A('s_cbranch_scc0 ' + D)
    A('s_cmp_lt_u32 %s, 24' % sCNT)
    A('s_cbranch_scc1 ' + L)
    flag_store(sPB, True)
    A('buffer_load_dword %s, %s, %s, 0 offen sc1' % (vT, vB, SRD_WS))
    A('s_waitcnt vmcnt(0)')
    A('v_cmp_ne_u32 vcc, %s, %s' % (sTAG, vT))
    A('s_and_b64 vcc, vcc, %s' % sMASK)
    A('s_cbranch_scc0 ' + D)
    A('s_cmp_lt_u32 %s, %d' % (sCNT, LIMIT))
    A('s_cbranch_scc1 ' + L)
    A(D + ':')
    A.vm_done = A.vm


def srd(dst, lo, size):
    b = int(dst[2:dst.index(':')])
    A('s_mov_b32 s%d, s%d' % (b, lo))
    A('s_and_b32 s%d, s%d, 0xffff' % (b + 1, lo + 1))
    A('s_mov_b32 s%d, 0x%x' % (b + 2, size))
    A('s_mov_b32 s%d, 0x20000' % (b + 3))


def unpack(dst, src):
    A('v_lshlrev_b32 v%d, 16, v%d' % (dst, src))
    A('v_and_b32 v%d, 0xffff0000, v%d' % (dst + 1, src))


def dma(voff, srdname, soff, ldsaddr_s):
    A('s_mov_b32 m0, %s' % ldsaddr_s)
    return A('buffer_load_dwordx4 %s, %s, %s offen lds' % (voff, srdname, soff))


MF32 = 'v_mfma_f32_32x32x16_bf16'
MF16 = 'v_mfma_f32_16x16x32_bf16'


def finish():
    A('s_branch L_end')


def prologue():
    A('s_cmp_ge_u32 s2, 256')
    A('s_cbranch_scc1 L_exit')
    A('s_load_dwordx16 s[8:23], s[0:1], 0')
    A('s_load_dwordx4 s[24:27], s[0:1], 64')
    A('s_load_dwordx2 s[28:29], s[0:1], 80')
    A('s_getpc_b64 s[30:31]')
    A('L_pc:')
    A('s_lshr_b32 %s, s2, 3' % sJ)
    A('s_and_b32 %s, s2, 7' % sX)
    A('s_lshl_b32 %s, %s, 11' % (t0, sJ))
    A('v_lshl_add_u32 v4, v0, 3, %s' % t0)
    A('v_min_u32 v4, L_codeend-L_pc-8, v4')
    A('global_load_dwordx2 v[6:7], v4, s[30:31]')
    A('v_lshrrev_b32 v5, 6, v0')
    A('v_and_b32 %s, 63, v0' % vLANE)
    A('v_readfirstlane_b32 %s, v5' % sW)
    A('v_lshlrev_b32 %s, 4, %s' % (vL16, vLANE))
    if OPT['stamps'] or OPT['diag']:
        A('s_memrealtime s[92:93]')
        A('s_memtime s[94:95]')
    A('v_and_b32 v8, 7, %s' % vLANE)
    A('v_lshrrev_b32 v9, 3, %s' % vLANE)
    A('v_lshlrev_b32 v10, 10, v8')
    A('v_lshl_add_u32 v10, v9, 4, v10')
    A('s_lshl_b32 %s, %s, 5' % (sLID, sX))
    A('s_add_u32 %s, %s, %s' % (sLID, sLID, sJ))
    A('s_lshl_b32 %s, %s, 13' % (t0, sLID))
    A('s_lshl_b32 %s, %s, 8' % (t1, sW))
    A('s_add_u32 %s, %s, %s' % (t0, t0, t1))
    A('s_waitcnt lgkmcnt(0)')
    A('s_load_dword %s, s[28:29], %d' % (sE, WS_E))
    srd(SRD_X, 8, 2097152)
    A('buffer_load_dwordx4 v[16:19], v10, %s, %s offen' % (SRD_X, t0))
    tx = A('buffer_load_dwordx4 v[20:23], v10, %s, %s offen offset:128' % (SRD_X, t0))
    srd(SRD_C, 20, 1024)
    srd(SRD_WMOD, 22, 3145728)
    srd(SRD_WS, 28, WS_SIZE)
    srd(SRD_WQKV, 10, 1572864)
    srd(SRD_WO, 12, 524288)
    srd(SRD_W1, 16, 1835008)
    srd(SRD_W2, 18, 1835008)
    srd(SRD_OUT, 24, 2097152)
    A('s_and_b32 %s, %s, 15' % (sM, sJ))
    A('s_lshr_b32 %s, %s, 4' % (t0, sJ))
    A('s_lshl_b32 %s, %s, 2' % (t0, t0))
    A('s_lshl_b32 %s, %s, 3' % (t1, sX))
    A('s_add_u32 %s, %s, %s' % (sT, t0, t1))
    A('s_add_u32 %s, %s, %s' % (sT, sT, sW))
    A('s_and_b32 %s, %s, 7' % (sCT, sJ))
    A('s_lshr_b32 %s, %s, 3' % (sRT, sJ))
    A('s_lshl_b32 %s, %s, 1' % (sT0, sRT))
    A('s_add_u32 %s, %s, %s' % (sT0, sT0, t1))
    A('s_and_b32 %s, %s, 1' % (sA, sW))
    A('s_lshr_b32 %s, %s, 1' % (sB, sW))
    A('s_mov_b32 s86, 0x0000ffff')
    A('s_mov_b32 s87, 0x0000ffff')
    A('s_mov_b32 s88, 0xffff0000')
    A('s_mov_b32 s89, 0xffff0000')
    return tx


def get_tag():
    A('s_waitcnt lgkmcnt(0)')
    A.lg_done = A.lg
    A('s_mul_i32 %s, %s, 1664525' % (sTAG, sE))
    A('s_add_u32 %s, %s, 1013904223' % (sTAG, sTAG))
    A('v_mov_b32 %s, %s' % (vTAG, sTAG))
    if OPT['diag']:
        A('s_mov_b32 s96, s92')
        A('s_mov_b32 s97, s92')
    if OPT['stamps']:
        A('s_mov_b32 s8, s92')
        A('s_mov_b32 s9, s94')


def mod_producer():
    SK = A.label('nomod')
    A('s_cmp_ge_u32 %s, 6' % sJ)
    A('s_cbranch_scc1 ' + SK)
    A('s_lshl_b32 %s, %s, 1' % (t0, sX))
    A('s_lshl_b32 %s, %s, 2' % (t1, sX))
    A('s_add_u32 %s, %s, 14' % (t1, t1))
    A('s_cmp_lt_u32 %s, 2' % sJ)
    A('s_cselect_b32 %s, %s, %s' % (t0, t0, t1))
    A('s_add_u32 %s, %s, %s' % (t5, t0, sJ))
    A('v_lshlrev_b32 v11, 2, %s' % vLANE)
    A('s_lshl_b32 %s, %s, 8' % (t1, sW))
    tc = A('buffer_load_dword v12, v11, %s, %s offen' % (SRD_C, t1))
    A('v_mul_u32_u24 v13, %d, v9' % (16 * 6144))
    A('v_lshl_add_u32 v13, v8, 4, v13')
    A('s_mul_i32 %s, %s, %d' % (t1, sW, 128 * 6144))
    A('s_lshl_b32 %s, %s, 7' % (t2, t5))
    A('s_add_u32 %s, %s, %s' % (t1, t1, t2))
    tw = []
    for i in range(16):
        tw.append(A('buffer_load_dwordx4 %s, v13, %s, %s offen' % (vr(64 + 4 * i, 4), SRD_WMOD, t1)))
        if i < 15:
            A('s_add_u32 %s, %s, 6144' % (t1, t1))
    A('s_lshl_b32 %s, %s, 9' % (t1, sW))
    A('s_add_u32 %s, %s, %d' % (t1, t1, L_SCR + 1024))
    A('v_lshl_add_u32 v14, %s, 3, %s' % (vLANE, t1))
    A('v_lshl_add_u32 v15, v9, 6, %s' % t1)
    for i in range(8):
        A('v_mov_b32 v%d, 0' % (56 + i))
    A.wait(vm=tc)
    unpack(40, 12)
    for i in (0, 1):
        A('v_mul_f32 v%d, 0xbfb8aa3b, v%d' % (42 + i, 40 + i))
    for i in (0, 1):
        A('v_exp_f32 v%d, v%d' % (42 + i, 42 + i))
    for i in (0, 1):
        A('v_add_f32 v%d, 1.0, v%d' % (42 + i, 42 + i))
    for i in (0, 1):
        A('v_rcp_f32 v%d, v%d' % (42 + i, 42 + i))
    for i in (0, 1):
        A('v_mul_f32 v%d, v%d, v%d' % (40 + i, 40 + i, 42 + i))
    A('v_cvt_pk_bf16_f32 v42, v40, v41')
    unpack(40, 42)
    get_tag()
    t = A('ds_write_b64 v14, v[40:41]')
    A.wait(lg=t)
    for i in range(4):
        t = A('ds_read_b128 %s, v15 offset:%d' % (vr(40 + 4 * i, 4), 16 * i))
    A.wait(lg=t)
    for i in range(16):
        A.wait(vm=tw[i])
        for d in range(4):
            unpack(128 + 2 * d, 64 + 4 * i + d)
        s = i & 1
        for d in range(4):
            A('v_pk_fma_f32 %s, %s, %s, %s op_sel:[0,%d,0] op_sel_hi:[1,%d,1]' % (
                vr(56 + 2 * d, 2), vr(128 + 2 * d, 2), vr(40 + (i & ~1), 2), vr(56 + 2 * d, 2), s, s))
    for i in range(4):
        A('v_permlane32_swap_b32 v%d, v%d' % (56 + i, 60 + i))
    for i in range(4):
        A('v_add_f32 v%d, v%d, v%d' % (56 + i, 56 + i, 60 + i))
    for i in range(2):
        A('v_permlane16_swap_b32 v%d, v%d' % (56 + i, 58 + i))
    for i in range(2):
        A('v_add_f32 v%d, v%d, v%d' % (56 + i, 56 + i, 58 + i))
    for i in range(2):
        A('v_add_f32_dpp v%d, v%d, v%d row_ror:8 row_mask:0xf bank_mask:0xf' % (58 + i, 56 + i, 56 + i))
    A('v_lshrrev_b32 v11, 4, %s' % vLANE)
    A('v_lshl_add_u32 v11, v8, 2, v11')
    A('s_lshl_b32 %s, %s, 8' % (t1, sW))
    A('s_add_u32 %s, %s, %d' % (t1, t1, L_SCR + 3072))
    A('v_lshl_add_u32 v11, v11, 3, %s' % t1)
    t = A('ds_write_b64 v11, v[58:59]')
    A('v_and_b32 v12, 31, %s' % vLANE)
    A('v_lshlrev_b32 v12, 3, v12')
    A('v_add_u32 v13, %d, v12' % (L_SCR + 3072))
    A.wait(lg=t)
    A('s_barrier')
    S2 = A.label('modpub')
    A('s_cmp_lg_u32 %s, 0' % sW)
    A('s_cbranch_scc1 ' + S2)
    for i in range(4):
        t = A('ds_read_b64 %s, v13 offset:%d' % (vr(40 + 2 * i, 2), 256 * i))
    A('s_lshr_b32 %s, %s, 3' % (t1, t5))
    A('s_cmp_eq_u32 %s, 1' % t1)
    A('s_cselect_b32 %s, 1.0, 0' % t2)
    A('s_cmp_eq_u32 %s, 4' % t1)
    A('s_cselect_b32 %s, 1.0, %s' % (t2, t2))
    A('s_lshl_b32 %s, %s, 8' % (t1, t5))
    A('s_add_u32 %s, %s, %d' % (t1, t1, WS_MOD))
    A.wait(lg=t)
    A('v_pk_add_f32 v[40:41], v[40:41], v[42:43]')
    A('v_pk_add_f32 v[44:45], v[44:45], v[46:47]')
    A('v_pk_add_f32 v[40:41], v[40:41], v[44:45]')
    A('v_cvt_pk_bf16_f32 v42, v40, v41')
    unpack(40, 42)
    A('v_add_f32 v40, %s, v40' % t2)
    A('v_add_f32 v41, %s, v41' % t2)
    A('v_cvt_pk_bf16_f32 v42, v40, v41')
    A('v_mov_b32 v43, %s' % sTAG)
    A('s_mov_b64 exec, 0xffffffff')
    A('buffer_store_dwordx2 v[42:43], v12, %s, %s offen sc1' % (SRD_WS, t1))
    A('s_mov_b64 exec, -1')
    A(S2 + ':')
    A(SK + ':')


def prep_issue():
    A('v_lshrrev_b32 v11, 2, %s' % vLANE)
    A('v_and_b32 v11, 7, v11')
    A('v_lshlrev_b32 v11, 10, v11')
    A('v_lshrrev_b32 v12, 5, %s' % vLANE)
    A('v_lshl_add_u32 v11, v12, 6, v11')
    A('v_and_b32 v12, 3, %s' % vLANE)
    A('v_lshl_add_u32 v11, v12, 4, v11')
    A('s_lshl_b32 %s, %s, 2' % (t0, sJ))
    A('s_add_u32 %s, %s, %s' % (t0, t0, sW))
    A('s_sub_u32 %s, %s, 16' % (t0, t0))
    A('s_lshl_b32 %s, %s, 14' % (t0, t0))
    A('s_cmp_lt_u32 %s, 4' % sJ)
    A('s_cselect_b32 %s, 0, %s' % (t0, t0))
    A('s_cselect_b32 %s, 0x40000000, 0' % t3)
    A('v_add_u32 v12, %s, v11' % t3)
    A('s_lshl_b32 %s, %s, 7' % (t1, sX))
    A('s_add_u32 %s, %s, %s' % (t0, t0, t1))
    A('s_lshl_b32 %s, %s, 11' % (t2, sW))
    A('s_add_u32 %s, %s, %d' % (t2, t2, L_KV))
    dma('v12', SRD_W2, t0, t2)
    A('s_add_u32 %s, %s, 8192' % (t0, t0))
    A('s_add_u32 %s, %s, 1024' % (t2, t2))
    dma('v12', SRD_W2, t0, t2)
    A('s_lshl_b32 %s, %s, 14' % (t0, sJ))
    A('s_cmp_lg_u32 %s, 3' % sW)
    A('s_cselect_b32 %s, 0x40000000, 0' % t3)
    A('v_add_u32 v13, %s, v11' % t3)
    A('s_add_u32 %s, %s, %s' % (t0, t0, t1))
    A('s_add_u32 %s, %s, %d' % (t2, t2, 8192 - 1024))
    dma('v13', SRD_WO, t0, t2)
    A('s_add_u32 %s, %s, 8192' % (t0, t0))
    A('s_add_u32 %s, %s, 1024' % (t2, t2))
    return dma('v13', SRD_WO, t0, t2)


def wqkv_dma(tiles):
    A('v_lshrrev_b32 v12, 2, %s' % vLANE)
    A('v_mul_u32_u24 v12, 3072, v12')
    A('v_and_b32 v13, 3, %s' % vLANE)
    A('v_lshl_add_u32 v12, v13, 4, v12')
    t = None
    for tile in tiles:
        col = {0: 1024, 1: 2048, 2: 0}[tile]
        A('s_mul_i32 %s, %s, %d' % (t0, sW, 128 * 3072))
        A('s_lshl_b32 %s, %s, 6' % (t1, sM))
        A('s_add_u32 %s, %s, %s' % (t0, t0, t1))
        A('s_add_u32 %s, %s, %d' % (t0, t0, col))
        A('s_lshl_b32 %s, %s, 13' % (t2, sW))
        A('s_add_u32 %s, %s, %d' % (t2, t2, tile * 32768))
        for i in range(8):
            t = dma('v12', SRD_WQKV, t0, t2)
            if i < 7:
                A('s_add_u32 %s, %s, %d' % (t0, t0, 16 * 3072))
                A('s_add_u32 %s, %s, 1024' % (t2, t2))
    return t


def ln1_stats(tx):
    A.wait(vm=tx, force=True)
    for i in range(8):
        unpack(24 + 2 * i, 16 + i)
    A('v_pk_add_f32 v[40:41], v[24:25], v[26:27]')
    A('v_pk_mul_f32 v[42:43], v[24:25], v[24:25]')
    A('v_pk_fma_f32 v[42:43], v[26:27], v[26:27], v[42:43]')
    for i in range(2, 8):
        A('v_pk_add_f32 v[40:41], v[40:41], %s' % vr(24 + 2 * i, 2))
        A('v_pk_fma_f32 v[42:43], %s, %s, v[42:43]' % (vr(24 + 2 * i, 2), vr(24 + 2 * i, 2)))
    A('v_add_f32 v40, v40, v41')
    A('v_add_f32 v42, v42, v43')
    A('v_permlane32_swap_b32 v40, v42')
    A('v_add_f32 v40, v40, v42')
    A('v_mov_b32 v41, v40')
    A('v_permlane16_swap_b32 v40, v41')
    A('v_add_f32 v40, v40, v41')
    A('v_add_f32_dpp v41, v40, v40 row_ror:8 row_mask:0xf bank_mask:0xf')
    A('v_lshrrev_b32 v12, 5, %s' % vLANE)
    A('v_lshl_add_u32 v12, v12, 3, v8')
    A('s_lshl_b32 %s, %s, 2' % (t0, sW))
    A('s_add_u32 %s, %s, %d' % (t0, t0, L_SCR))
    A('v_lshl_add_u32 v12, v12, 4, %s' % t0)
    t = A('ds_write_b32 v12, v41')
    A('v_lshlrev_b32 v13, 4, v8')
    A('v_add_u32 v13, %d, v13' % L_SCR)
    A.wait(lg=t)
    A('s_barrier')
    A('ds_read_b128 v[40:43], v13')
    t = A('ds_read_b128 v[44:47], v13 offset:128')
    A.wait(lg=t)
    A('v_pk_add_f32 v[40:41], v[40:41], v[42:43]')
    A('v_pk_add_f32 v[44:45], v[44:45], v[46:47]')
    A('v_add_f32 v40, v40, v41')
    A('v_add_f32 v44, v44, v45')
    A('v_mul_f32 v40, 0x3b000000, v40')
    A('v_mul_f32 v44, 0x3b000000, v44')
    A('v_fma_f32 v44, -v40, v40, v44')
    A('v_max_f32 v44, 0, v44')
    A('v_add_f32 v44, 0x3727c5ac, v44')
    A('v_rsq_f32 v42, v44')
    A('v_mul_f32 v43, -v40, v42')
    for i in range(8):
        A('v_pk_fma_f32 %s, %s, v[42:43], v[42:43] op_sel:[0,0,1] op_sel_hi:[1,0,1]' % (vr(24 + 2 * i, 2), vr(24 + 2 * i, 2)))


def prep_finish(tp):
    A('v_and_b32 v11, 1, %s' % vLANE)
    A('v_lshlrev_b32 v11, 5, v11')
    A('v_bfe_u32 v12, %s, 1, 1' % vLANE)
    A('v_lshl_add_u32 v11, v12, 3, v11')
    A('v_bfe_u32 v12, %s, 4, 1' % vLANE)
    A('v_lshl_add_u32 v11, v12, 4, v11')
    A('v_bfe_u32 v12, %s, 2, 2' % vLANE)
    A('v_lshl_add_u32 v11, v12, 6, v11')
    A('s_lshl_b32 %s, %s, 11' % (t2, sW))
    A('s_add_u32 %s, %s, %d' % (t2, t2, L_KV))
    A('v_add_u32 v11, %s, v11' % t2)
    A('v_lshrrev_b32 v12, 5, %s' % vLANE)
    A('v_lshl_add_u32 v13, v12, 10, v11')
    A('v_lshl_add_u32 v14, v12, 8, v11')
    A.wait(vm=tp)
    for nt in range(2):
        for half in range(2):
            A('ds_read_b64_tr_b16 %s, v13 offset:%d' % (vr(48 + 4 * nt + 2 * half, 2), nt * 512 + half * 256))
    for nt in range(2):
        for half in range(2):
            t = A('ds_read_b64_tr_b16 %s, v14 offset:%d' % (vr(56 + 4 * nt + 2 * half, 2), 8192 + nt * 512 + half * 1024))
    A('s_mul_i32 %s, %s, 112' % (t0, sX))
    A('s_lshl_b32 %s, %s, 2' % (t1, sJ))
    A('s_add_u32 %s, %s, %s' % (t0, t0, t1))
    A('s_add_u32 %s, %s, %s' % (t0, t0, sW))
    A('s_lshl_b32 %s, %s, 11' % (t0, t0))
    A('s_add_u32 %s, %s, %d' % (t0, t0, WS_W2T - 16 * 2048))
    A('s_cmp_lt_u32 %s, 4' % sJ)
    A('s_cselect_b32 %s, 0x40000000, 0' % t3)
    A('v_add_u32 v11, %s, %s' % (t3, vL16))
    A('s_lshl_b32 %s, %s, 11' % (t1, sLID))
    A('s_add_u32 %s, %s, %d' % (t1, t1, WS_WOT))
    A('s_cmp_lg_u32 %s, 3' % sW)
    A('s_cselect_b32 %s, 0x40000000, 0' % t3)
    A('v_add_u32 v12, %s, %s' % (t3, vL16))
    A.wait(lg=t)
    A('buffer_store_dwordx4 v[48:51], v11, %s, %s offen sc1' % (SRD_WS, t0))
    A('buffer_store_dwordx4 v[52:55], v11, %s, %s offen offset:1024 sc1' % (SRD_WS, t0))
    A('buffer_store_dwordx4 v[56:59], v12, %s, %s offen sc1' % (SRD_WS, t1))
    A('buffer_store_dwordx4 v[60:63], v12, %s, %s offen offset:1024 sc1' % (SRD_WS, t1))


def h_phase():
    A('v_and_b32 v11, 31, %s' % vLANE)
    A('v_lshlrev_b32 v11, 4, v11')
    A('v_lshrrev_b32 v12, 5, %s' % vLANE)
    A('v_lshl_add_u32 v11, v12, 11, v11')
    A('s_lshl_b32 %s, %s, 9' % (t0, sW))
    A('s_add_u32 %s, %s, %d' % (t1, t0, L_SCR + 4096))
    A('s_add_u32 %s, %s, %d' % (t0, t0, WS_MOD))
    A('v_lshl_add_u32 v12, %s, 3, %s' % (vLANE, t1))
    A('v_lshl_add_u32 v13, v9, 4, %s' % t1)
    A('v_lshlrev_b32 v14, 9, v9')
    A('v_lshl_add_u32 v14, v8, 4, v14')
    A('s_lshr_b32 %s, %s, 2' % (t2, sLID))
    A('s_lshl_b32 %s, %s, 15' % (t3, t2))
    A('s_and_b32 %s, %s, 3' % (t4, sJ))
    A('s_lshl_b32 %s, %s, 7' % (t5, t4))
    A('s_add_u32 %s, %s, %s' % (t3, t3, t5))
    A('s_lshl_b32 %s, %s, 13' % (t5, sW))
    A('s_add_u32 %s, %s, %s' % (t3, t3, t5))
    A('s_add_u32 %s, %s, %d' % (t3, t3, WS_H))
    A('s_lshl_b32 %s, %s, 8' % (t2, t2))
    A('s_lshl_b32 %s, %s, 4' % (t4, t4))
    A('s_add_u32 %s, %s, %s' % (t2, t2, t4))
    A('s_lshl_b32 %s, %s, 2' % (t4, sW))
    A('s_add_u32 %s, %s, %s' % (t2, t2, t4))
    A('s_add_u32 %s, %s, %d' % (t2, t2, WS_FA))
    A('s_lshl_b32 %s, %s, 7' % (sPB, sLID))
    A('s_add_u32 %s, %s, %s' % (sPB, sPB, t4))
    A('s_add_u32 %s, %s, %d' % (sPB, sPB, WS_FBH))
    L, D = A.label('pmod'), A.label('dmod')
    A('s_mov_b32 %s, 0' % sCNT)
    A(L + ':')
    A('buffer_load_dwordx4 v[40:43], v11, %s, %s offen sc1' % (SRD_WS, t0))
    A('s_add_u32 %s, %s, 1' % (sCNT, sCNT))
    A('s_waitcnt vmcnt(0)')
    A('v_cmp_ne_u32 vcc, %s, v41' % sTAG)
    A('v_cmp_ne_u32 %s, %s, v43' % (sMASK, sTAG))
    A('s_or_b64 vcc, vcc, %s' % sMASK)
    A('s_cbranch_scc0 ' + D)
    A('s_cmp_lt_u32 %s, %d' % (sCNT, LIMIT))
    A('s_cbranch_scc1 ' + L)
    A(D + ':')
    A.vm_done = A.vm
    stamp('mod seen')
    t = A('ds_write2_b32 v12, v40, v42 offset0:0 offset1:1')
    A.wait(lg=t)
    tr = []
    for i in range(2):
        A('ds_read_b128 %s, v13 offset:%d' % (vr(40 + 8 * i, 4), 128 * i))
        tr.append(A('ds_read_b128 %s, v13 offset:%d' % (vr(44 + 8 * i, 4), 256 + 128 * i)))
    for i in range(2):
        A.wait(lg=tr[i])
        for d in range(4):
            unpack(56, 40 + 8 * i + d)
            unpack(58, 44 + 8 * i + d)
            x = 24 + 8 * i + 2 * d
            A('v_pk_fma_f32 v[60:61], %s, v[58:59], v[56:57]' % vr(x, 2))
            A('v_cvt_pk_bf16_f32 v%d, v60, v61' % (16 + 4 * i + d))
        A('buffer_store_dwordx4 %s, v14, %s, %s offen sc1' % (vr(16 + 4 * i, 4), SRD_WS, t3))
        if i == 0:
            A('s_add_u32 %s, %s, 4096' % (t3, t3))
    A.wait(vm='all')
    flag_store(t2, False)


def qkv():
    A('s_lshl_b32 %s, %s, 8' % (t0, sT))
    A('s_add_u32 %s, %s, %d' % (t0, t0, WS_FA))
    A('v_lshl_add_u32 v10, %s, 2, %s' % (vLANE, t0))
    A('s_lshl_b32 %s, %s, 9' % (t0, sT))
    A('s_add_u32 %s, %s, %d' % (t0, t0, WS_FBH))
    A('v_bfe_u32 v11, %s, 2, 2' % vLANE)
    A('v_lshl_add_u32 v11, v11, 7, %s' % t0)
    A('v_and_b32 v12, 3, %s' % vLANE)
    A('v_lshl_add_u32 v11, v12, 2, v11')
    A('s_mov_b64 %s, 0xffff' % sMASK)
    A('v_lshlrev_b32 v13, 3, v12')
    A('v_bfe_u32 v12, %s, 4, 1' % vLANE)
    A('v_lshl_add_u32 v13, v12, 5, v13')
    A('v_bfe_u32 v12, %s, 2, 2' % vLANE)
    A('v_lshl_add_u32 v13, v12, 6, v13')
    A('v_lshrrev_b32 v12, 5, %s' % vLANE)
    A('v_lshl_add_u32 v13, v12, 9, v13')
    A('v_add_u32 v14, 65536, v13')
    A('s_barrier')
    RING = 4
    rd = {}

    def bread(s):
        b = 64 + 8 * (s % RING)
        for tile in range(2):
            for half in range(2):
                rd[s] = A('ds_read_b64_tr_b16 %s, v13 offset:%d' % (vr(b + 4 * tile + 2 * half, 2), tile * 32768 + s * 1024 + half * 256))
    for s in range(RING - 1):
        bread(s)
    A('s_lshl_b32 %s, %s, 15' % (t0, sT))
    A('s_add_u32 %s, %s, %d' % (t0, t0, WS_H))
    poll_dual('v10', 'v11', 'v15', 'h')
    stamp('h seen')
    ta = []
    for s in range(32):
        ta.append(A('buffer_load_dwordx4 %s, %s, %s, %s offen offset:%d sc1' % (vr(128 + 4 * s, 4), vL16, SRD_WS, t0, (s & 3) * 1024)))
        if s & 3 == 3 and s < 31:
            A('s_add_u32 %s, %s, 4096' % (t0, t0))
    flag_store(sPB, True)
    for s in range(32):
        b = 64 + 8 * (s % RING)
        if s + RING - 1 < 32:
            bread(s + RING - 1)
        A.wait(vm=ta[s], lg=rd[s])
        a = vr(128 + 4 * s, 4)
        A('%s v[16:31], %s, %s, %s' % (MF32, vr(b, 4), a, 'v[16:31]' if s else '0'))
        A('%s v[32:47], %s, %s, %s' % (MF32, a, vr(b + 4, 4), 'v[32:47]' if s else '0'))
    stamp('kv pass')
    rq = {}

    def qread(s):
        b = 64 + 4 * (s % 8)
        for half in range(2):
            rq[s] = A('ds_read_b64_tr_b16 %s, v14 offset:%d' % (vr(b + 2 * half, 2), s * 1024 + half * 256))
    for s in range(6):
        qread(s)
    A('s_lshl_b32 %s, %s, 4' % (t0, sT))
    A('s_add_u32 %s, %s, %s' % (t0, t0, sM))
    A('s_lshl_b32 %s, %s, 6' % (t4, t0))
    A('s_add_u32 %s, %s, %d' % (t4, t4, WS_FBKV))
    A('s_lshl_b32 %s, %s, 12' % (t0, t0))
    A('s_add_u32 %s, %s, %d' % (t0, t0, WS_KV))
    A('s_lshl_b32 %s, %s, 12' % (t1, sW))
    A('s_add_u32 %s, %s, %d' % (t1, t1, L_KV))
    A('v_add_u32 v4, %s, %s' % (t1, vL16))
    for p in range(4):
        for d in range(4):
            A('v_cvt_pk_bf16_f32 v%d, v%d, v%d' % (96 + 4 * p + d, 16 + 8 * p + 2 * d, 17 + 8 * p + 2 * d))
        tst = A('buffer_store_dwordx4 %s, %s, %s, %s offen offset:%d sc1' % (vr(96 + 4 * p, 4), vL16, SRD_WS, t0, p * 1024))
    A('s_lshl_b32 %s, %s, 12' % (t2, sCT))
    A('s_add_u32 %s, %s, %d' % (t2, t2, WS_FBH))
    A('v_and_b32 v10, 31, %s' % vLANE)
    A('v_lshlrev_b32 v10, 7, v10')
    A('v_lshlrev_b32 v11, 4, v0')
    A('s_mov_b32 %s, %d' % (t3, WS_MOD + 4096))
    A('s_mov_b32 %s, %d' % (t5, WS_MOD + 8192))

    def chk_loads():
        A('buffer_load_dwordx4 v[112:115], v10, %s, %s offen sc1' % (SRD_WS, t2))
        A('buffer_load_dwordx4 v[116:119], v11, %s, %s offen sc1' % (SRD_WS, t3))
        A('buffer_load_dwordx4 v[120:123], v11, %s, %s offen sc1' % (SRD_WS, t5))
    chk_loads()
    for p in range(4):
        A('ds_write_b128 v4, %s offset:%d' % (vr(96 + 4 * p, 4), 8 * 4096 + p * 1024))
    for s in range(32):
        if s + 6 < 32:
            qread(s + 6)
        A.wait(lg=rq[s])
        A('%s v[48:63], %s, %s, %s' % (MF32, vr(64 + 4 * (s % 8), 4), vr(128 + 4 * s, 4), 'v[48:63]' if s else '0'))
        if s == 20:
            A.wait(vm=tst)
            flag_store(t4, True)
    stamp('q pass')
    L, D = A.label('pchk'), A.label('dchk')
    A('s_mov_b32 %s, 0' % sCNT)
    A('s_waitcnt vmcnt(1)')
    A(L + ':')
    A('v_cmp_ne_u32 vcc, %s, v112' % sTAG)
    for r in (113, 114, 115, 117, 119, 121, 123):
        A('v_cmp_ne_u32 %s, %s, v%d' % (sMASK, sTAG, r))
        A('s_or_b64 vcc, vcc, %s' % sMASK)
    A('s_cbranch_scc0 ' + D)
    A('s_add_u32 %s, %s, 1' % (sCNT, sCNT))
    A('s_cmp_ge_u32 %s, %d' % (sCNT, LIMIT))
    A('s_cbranch_scc1 ' + D)
    vm_save = A.vm
    chk_loads()
    A.vm = vm_save
    A('s_waitcnt vmcnt(0)')
    A('s_branch ' + L)
    A(D + ':')
    A('v_mov_b32 v5, v116')
    A('v_mov_b32 v6, v118')
    A('v_mov_b32 v7, v120')
    A('v_mov_b32 v8, v122')
    A('s_mov_b32 %s, 0x3eb8aa3b' % t0)
    for i in range(16):
        A('v_mul_f32 v%d, %s, v%d' % (48 + i, t0, 48 + i))
    A.wait(lg='all')
    for i in range(8):
        A('v_cvt_pk_bf16_f32 v%d, v%d, v%d' % (96 + i, 48 + 2 * i, 49 + 2 * i))
    A('s_barrier')


W1V = 104


def w1_addr():
    for i in range(7):
        A('v_add_u32 v10, %d, %s' % (64 * i, vLANE))
        A('v_mul_u32_u24 v11, 4682, v10')
        A('v_lshrrev_b32 v11, 16, v11')
        A('v_mul_u32_u24 v12, 14, v11')
        A('v_sub_u32 v10, v10, v12')
        A('v_mul_u32_u24 v11, 3584, v11')
        A('v_lshl_add_u32 v%d, v10, 4, v11' % (W1V + i))


def w1_dma(g):
    A('s_mul_i32 %s, %s, %d' % (t0, sW, 32 * 3584))
    A('s_mul_i32 %s, %s, 224' % (t1, sM))
    A('s_add_u32 %s, %s, %s' % (t0, t0, t1))
    A('s_add_u32 %s, %s, %d' % (t0, t0, g * 128 * 3584))
    A('s_mul_i32 %s, %s, 7168' % (t1, sW))
    A('s_add_u32 %s, %s, %d' % (t1, t1, g * 4 * 7168))
    for i in range(7):
        t = dma('v%d' % (W1V + i), SRD_W1, t0, t1)
        if i < 6:
            A('s_add_u32 %s, %s, 1024' % (t1, t1))
    return t


vB0, vB1 = 'v111', 'v112'


def wfrag_addr():
    A('s_lshl_b32 %s, %s, 10' % (t0, sB))
    A('v_add_u32 %s, %s, %s' % (vB0, t0, vL16))
    A('v_xor_b32 %s, 1024, %s' % (vB1, vB0))


def wo_frag_loads():
    A('s_lshl_b32 %s, %s, 16' % (t0, sCT))
    A('s_lshl_b32 %s, %s, 14' % (t1, sW))
    A('s_add_u32 %s, %s, %s' % (t0, t0, t1))
    A('s_add_u32 %s, %s, %d' % (t0, t0, WS_WOT))
    for i in range(8):
        A('buffer_load_dwordx4 %s, %s, %s, %s offen offset:%d sc1' % (ar(192 + 8 * i, 4), vB0, SRD_WS, t0, (i & 1) * 2048))
        t = A('buffer_load_dwordx4 %s, %s, %s, %s offen offset:%d sc1' % (ar(196 + 8 * i, 4), vB1, SRD_WS, t0, (i & 1) * 2048))
        if i & 1:
            A('s_add_u32 %s, %s, 4096' % (t0, t0))
    return t


def w2_frag_loads(k0, k1):
    A('s_mul_i32 %s, %s, %d' % (t0, sCT, 112 * 2048))
    A('s_mul_i32 %s, %s, %d' % (t1, sW, 28 * 2048))
    A('s_add_u32 %s, %s, %s' % (t0, t0, t1))
    A('s_add_u32 %s, %s, %d' % (t0, t0, WS_W2T + k0 * 2048))
    t = None
    for i in range(k0, k1):
        o = ((i - k0) & 1) * 2048
        A('buffer_load_dwordx4 %s, %s, %s, %s offen offset:%d sc1' % (ar(8 * i, 4), vB0, SRD_WS, t0, o))
        t = A('buffer_load_dwordx4 %s, %s, %s, %s offen offset:%d sc1' % (ar(8 * i + 4, 4), vB1, SRD_WS, t0, o))
        if (i - k0) & 1:
            A('s_add_u32 %s, %s, 4096' % (t0, t0))
    return t


XT = 240
vXO = 'v113'


def xtile_load():
    A('s_add_u32 %s, %s, %s' % (t0, sT0, sA))
    A('s_lshl_b32 %s, %s, 15' % (t0, t0))
    A('s_lshl_b32 %s, %s, 7' % (t1, sCT))
    A('s_add_u32 %s, %s, %s' % (t0, t0, t1))
    A('s_lshl_b32 %s, %s, 6' % (t1, sB))
    A('s_add_u32 %s, %s, %s' % (t0, t0, t1))
    A('v_and_b32 v10, 31, %s' % vLANE)
    A('v_lshl_add_u32 v10, v10, 10, %s' % t0)
    A('v_lshrrev_b32 v11, 5, %s' % vLANE)
    A('v_lshl_add_u32 %s, v11, 5, v10' % vXO)
    A('buffer_load_dwordx4 %s, %s, %s, 0 offen' % (vr(XT, 4), vXO, SRD_X))
    return A('buffer_load_dwordx4 %s, %s, %s, 0 offen offset:16' % (vr(XT + 4, 4), vXO, SRD_X))


Q0, Q1 = 96, 100
MD, MFAR = 128, 144
S0, S1 = 160, 176
P0, P1 = 192, 200
O0, O1 = 208, 224
K0, K1 = 64, 68
V0, V1 = 72, 80


def kv_off(d, piece):
    return (8 - d) * 4096 + piece * 1024


def attention():
    w1_addr()
    wfrag_addr()
    w1_dma(0)
    w1_dma(1)
    A('v_and_b32 v10, 31, %s' % vLANE)
    A('v_lshrrev_b32 v11, 5, %s' % vLANE)
    A('v_lshlrev_b32 v11, 2, v11')
    A('v_sub_u32 v10, v10, v11')
    A('v_mov_b32 v12, 0xff800000')
    for r in range(16):
        key = (r & 3) + 8 * (r >> 2)
        A('v_cmp_le_i32 vcc, %d, v10' % key)
        A('v_cndmask_b32 v%d, v12, 0, vcc' % (MD + r))
        A('v_cndmask_b32 v%d, 0, v12, vcc' % (MFAR + r))
    for r in range(16):
        A('v_mov_b32 v%d, 0x3f803f80' % (V0 + r))
    for r in range(16):
        A('v_mov_b32 v%d, 0' % (O0 + r))
        A('v_mov_b32 v%d, 0' % (O1 + r))
    for r in range(4):
        A('v_mov_b32 v%d, 0' % (P1 + 4 + r))

    def cop(d):
        return vr(MD, 16) if d == 0 else vr(MFAR, 16) if d == 8 else '0'

    def rdK(h, d):
        return A('ds_read_b128 %s, v4 offset:%d' % (vr((K0, K1)[h], 4), kv_off(d, h)))

    def rdV(h, d):
        A('s_mov_b64 exec, %s' % (sLO, sHI)[h])
        A('ds_read_b128 %s, v4 offset:%d' % (vr((V0, V1)[h], 4), kv_off(d, 2)))
        t = A('ds_read_b128 %s, v4 offset:%d' % (vr((V0, V1)[h] + 4, 4), kv_off(d, 3)))
        A('s_mov_b64 exec, -1')
        return t

    def pipe_prologue(d):
        t = rdK(0, d)
        rdK(1, d)
        rdV(0, d)
        A.wait(lg=t)
        A('%s %s, %s, %s, %s' % (MF32, vr(S0, 16), vr(K0, 4), vr(Q0, 4), cop(d)))
        A.wait(lg='all')

    def half(h, d):
        S, P, O, V = (S0, S1)[h], (P0, P1)[h], (O0, O1)[h], (V0, V1)[h]
        oS, oP, oO, oV, oK, oQ = (S1, S0)[h], (P1, P0)[h], (O1, O0)[h], (V1, V0)[h], (K1, K0)[h], (Q1, Q0)[h]
        od = d if h == 0 else d + 1
        A.wait(lg='all')
        if od <= 8:
            A('%s %s, %s, %s, %s' % (MF32, vr(oS, 16), vr(oK, 4), vr(oQ, 4), cop(od)))
        for i in range(4):
            A('v_exp_f32 v%d, v%d' % (S + i, S + i))
            if i == 0 and d + 1 <= 8:
                rdK(h, d + 1)
        A('%s %s, %s, %s, %s' % (MF32, vr(oO, 16), vr(oV + 4, 4), vr(oP + 4, 4), vr(oO, 16)))
        if od <= 8:
            rdV(1 - h, od)
        for i in range(4, 8):
            A('v_exp_f32 v%d, v%d' % (S + i, S + i))
        for i in range(4):
            A('v_cvt_pk_bf16_f32 v%d, v%d, v%d' % (P + i, S + 2 * i, S + 2 * i + 1))
        for i in range(8, 10):
            A('v_exp_f32 v%d, v%d' % (S + i, S + i))
        A('%s %s, %s, %s, %s' % (MF32, vr(O, 16), vr(V, 4), vr(P, 4), vr(O, 16)))
        for i in range(10, 16):
            A('v_exp_f32 v%d, v%d' % (S + i, S + i))
        for i in range(4, 8):
            A('v_cvt_pk_bf16_f32 v%d, v%d, v%d' % (P + i, S + 2 * i, S + 2 * i + 1))

    pipe_prologue(0)
    IT = [A.label('it%d' % d) for d in range(9)]
    CHK = [A.label('chk%d' % d) for d in range(4)]
    REM, END = A.label('rem'), A.label('attend')
    for d in range(9):
        A(IT[d] + ':')
        half(0, d)
        half(1, d)
        if d < 4:
            A('s_cmp_eq_u32 %s, %d' % (sW, d))
            A('s_cbranch_scc1 ' + REM)
        if d < 8:
            A('s_cmp_eq_u32 %s, %d' % (sT, d))
            A('s_cbranch_scc1 ' + END)
    A('s_branch ' + END)
    A(REM + ':')
    stamp('local att')
    NOREM = A.label('norem')
    A('s_cmp_lt_u32 %s, 4' % sT)
    A('s_cbranch_scc1 ' + NOREM)
    A('s_sub_u32 %s, %s, 4' % (t0, sT))
    A('s_sub_u32 %s, %s, 8' % (t1, sT))
    A('s_cmp_lt_u32 %s, 8' % sT)
    A('s_cselect_b32 %s, %s, %s' % (t1, t0, t1))
    for t in (t0, t1):
        A('s_lshl_b32 %s, %s, 4' % (t, t))
        A('s_add_u32 %s, %s, %s' % (t, t, sM))
    A('v_mov_b32 v10, %s' % t0)
    A('v_mov_b32 v11, %s' % t1)
    A('v_cndmask_b32 v10, v10, v11, %s' % sLO)
    A('v_lshlrev_b32 v10, 6, v10')
    A('s_mov_b32 %s, %d' % (t2, WS_FBKV))
    L, D = A.label('pkv'), A.label('dkv')
    A('s_mov_b32 %s, 0' % sCNT)
    A(L + ':')
    A('buffer_load_dword v11, v10, %s, %s offen sc1' % (SRD_WS, t2))
    A('s_add_u32 %s, %s, 1' % (sCNT, sCNT))
    A('s_waitcnt vmcnt(0)')
    A('v_cmp_ne_u32 vcc, %s, v11' % sTAG)
    A('s_cbranch_vccz ' + D)
    A('s_cmp_lt_u32 %s, %d' % (sCNT, LIMIT))
    A('s_cbranch_scc1 ' + L)
    A(D + ':')
    stamp('kv seen')
    A('s_lshl_b32 %s, %s, 12' % (t2, sW))
    for t, slot in ((t0, 4), (t1, 0)):
        A('s_lshl_b32 %s, %s, 12' % (t, t))
        A('s_add_u32 %s, %s, %d' % (t, t, WS_KV))
        A('s_add_u32 m0, %s, %d' % (t2, L_KV + slot * 4096))
        for p in range(4):
            A('buffer_load_dwordx4 %s, %s, %s offen offset:%d sc1 lds' % (vL16, SRD_WS, t, p * 1024))
    A(NOREM + ':')
    tkv = A.vm
    A.vm_done = 0
    w1_dma(2)
    w1_dma(3)
    wo_frag_loads()
    xtile_load()
    A.wait(vm=tkv, lg='all', force=True)
    A('s_barrier')
    stamp('kv loaded')
    A('s_cmp_eq_u32 %s, %s' % (sT, sW))
    A('s_cbranch_scc1 ' + END)
    for d in range(4):
        if d < 3:
            A('s_cmp_lg_u32 %s, %d' % (sW, d))
            A('s_cbranch_scc1 ' + CHK[d])
        pipe_prologue(d + 1)
        A('s_branch ' + IT[d + 1])
        if d < 3:
            A(CHK[d] + ':')
    A(END + ':')
    A('%s %s, %s, %s, %s' % (MF32, vr(O1, 16), vr(V1 + 4, 4), vr(P1 + 4, 4), vr(O1, 16)))
    A('s_waitcnt lgkmcnt(0)')
    A.lg_done = A.lg
    stamp('att done')
    FB, OK = A.label('fb'), A.label('attok')
    A('s_mov_b32 %s, 0x1f800000' % t0)
    A('s_mov_b32 %s, 0x5f800000' % t1)
    A('s_mov_b32 %s, 0x7f000000' % t2)
    A('v_add_f32 v10, abs(v%d), abs(v%d)' % (O0, O0 + 1))
    for i in range(2, 8):
        A('v_add_f32 v10, v10, abs(v%d)' % (O0 + i))
    for i in range(8):
        A('v_add_f32 v10, v10, abs(v%d)' % (O1 + 8 + i))
    A('v_cmp_nlt_f32 vcc, v10, %s' % t2)
    for l in (O0 + 8, O1):
        A('v_cmp_nle_f32 %s, %s, v%d' % (sMASK, t0, l))
        A('s_or_b64 vcc, vcc, %s' % sMASK)
        A('v_cmp_nge_f32 %s, %s, v%d' % (sMASK, t1, l))
        A('s_or_b64 vcc, vcc, %s' % sMASK)
    if OPT['force_fallback']:
        A('s_branch ' + FB)
    A('s_cbranch_scc1 ' + FB)
    A(OK + ':')
    A('s_lshl_b32 %s, %s, 4' % (t0, sT))
    A('s_add_u32 %s, %s, %s' % (t0, t0, sM))
    A('s_lshl_b32 %s, %s, 6' % (sPB, t0))
    A('s_add_u32 %s, %s, %d' % (sPB, sPB, WS_FBO))
    A('s_lshl_b32 %s, %s, 11' % (t0, t0))
    A('s_add_u32 %s, %s, %d' % (t0, t0, WS_O))
    A('v_rcp_f32 v10, v%d' % (O0 + 8))
    A('v_rcp_f32 v12, v%d' % O1)
    for h, (src, rc) in enumerate(((O0, 10), (O1 + 8, 12))):
        for i in range(4):
            A('v_pk_mul_f32 %s, %s, %s op_sel_hi:[1,0]' % (vr(src + 2 * i, 2), vr(src + 2 * i, 2), vr(rc, 2)))
        for i in range(4):
            A('v_cvt_pk_bf16_f32 v%d, v%d, v%d' % (P0 + 4 * h + i, src + 2 * i, src + 2 * i + 1))
        A('buffer_store_dwordx4 %s, %s, %s, %s offen offset:%d sc1' % (vr(P0 + 4 * h, 4), vL16, SRD_WS, t0, h * 1024))
    A('s_lshl_b32 %s, %s, 8' % (t1, sT))
    A('s_lshl_b32 %s, %s, 2' % (t2, sM))
    A('s_add_u32 %s, %s, %s' % (t1, t1, t2))
    A('s_add_u32 %s, %s, %d' % (t1, t1, WS_FA + 64))
    A.wait(vm='all', force=True)
    flag_store(t1, False)
    stamp('o pub')
    return FB, OK


def attention_fallback(FB, OK):
    A(FB + ':')
    A('s_min_u32 %s, %s, 8' % (t3, sT))
    for h in range(2):
        Kp, Q, O, V = h, (Q0, Q1)[h], (O0, O1)[h], (V0, V1)[h]
        for ps in range(2):
            L, ND, NF = A.label('fl'), A.label('fnd'), A.label('fnf')
            A('s_mov_b32 %s, 0' % t4)
            A('v_add_u32 v10, %d, v4' % (8 * 4096))
            if ps == 0:
                A('v_mov_b32 v11, 0xff800000')
            else:
                for r in range(16):
                    A('v_mov_b32 v%d, 0' % (O + r))
            A(L + ':')
            A('ds_read_b128 %s, v10 offset:%d' % (vr(K0, 4), Kp * 1024))
            if ps == 1:
                A('s_mov_b64 exec, %s' % (sLO, sHI)[h])
                A('ds_read_b128 %s, v10 offset:2048' % vr(V, 4))
                A('ds_read_b128 %s, v10 offset:3072' % vr(V + 4, 4))
                A('s_mov_b64 exec, -1')
            A('s_waitcnt lgkmcnt(0)')
            A('%s %s, %s, %s, 0' % (MF32, vr(S0, 16), vr(K0, 4), vr(Q, 4)))
            A('s_nop 15')
            A('s_cmp_lg_u32 %s, 0' % t4)
            A('s_cbranch_scc1 ' + ND)
            for r in range(16):
                A('v_add_f32 v%d, v%d, v%d' % (S0 + r, S0 + r, MD + r))
            A(ND + ':')
            A('s_cmp_lg_u32 %s, 8' % t4)
            A('s_cbranch_scc1 ' + NF)
            for r in range(16):
                A('v_add_f32 v%d, v%d, v%d' % (S0 + r, S0 + r, MFAR + r))
            A(NF + ':')
            if ps == 0:
                for r in range(8):
                    A('v_max3_f32 v11, v11, v%d, v%d' % (S0 + 2 * r, S0 + 2 * r + 1))
            else:
                for r in range(16):
                    A('v_sub_f32 v%d, v%d, v11' % (S0 + r, S0 + r))
                for r in range(16):
                    A('v_exp_f32 v%d, v%d' % (S0 + r, S0 + r))
                for r in range(8):
                    A('v_cvt_pk_bf16_f32 v%d, v%d, v%d' % (P0 + r, S0 + 2 * r, S0 + 2 * r + 1))
                A('%s %s, %s, %s, %s' % (MF32, vr(O, 16), vr(V, 4), vr(P0, 4), vr(O, 16)))
                A('%s %s, %s, %s, %s' % (MF32, vr(O, 16), vr(V + 4, 4), vr(P0 + 4, 4), vr(O, 16)))
                A('s_nop 15')
            A('v_subrev_u32 v10, 4096, v10')
            A('s_add_u32 %s, %s, 1' % (t4, t4))
            A('s_cmp_le_u32 %s, %s' % (t4, t3))
            A('s_cbranch_scc1 ' + L)
            if ps == 0:
                A('v_mov_b32 v12, v11')
                A('v_permlane32_swap_b32 v11, v12')
                A('v_max_f32 v11, v11, v12')
    A('s_branch ' + OK)


def group_poll_addr(kindoff, fb):
    A('v_lshrrev_b32 v12, 5, %s' % vLANE)
    A('v_add_u32 v12, %s, v12' % sT0)
    A('v_and_b32 v13, 31, %s' % vLANE)
    A('v_lshlrev_b32 v10, 8, v12')
    A('v_lshl_add_u32 v10, v13, 2, v10')
    A('v_add_u32 v10, %d, v10' % (WS_FA + kindoff))
    A('v_and_b32 v13, 15, %s' % vLANE)
    A('v_lshl_add_u32 v11, v12, 4, v13')
    A('v_lshlrev_b32 v11, 6, v11')
    A('v_add_u32 v11, %d, v11' % fb)
    A('s_lshl_b32 %s, %s, 2' % (t0, sW))
    A('s_lshl_b32 s84, 15, %s' % t0)
    A('s_mov_b32 s85, s84')


def red_addr(base):
    A('s_xor_b32 %s, %s, 1' % (t0, sW))
    A('s_lshl_b32 %s, %s, 1' % (t0, t0))
    A('s_add_u32 %s, %s, %s' % (t0, t0, sB))
    A('s_lshl_b32 %s, %s, 12' % (t0, t0))
    A('s_xor_b32 %s, %s, 16384' % (t1, t0))
    A('s_add_u32 %s, %s, %d' % (t0, t0, base))
    A('s_add_u32 %s, %s, %d' % (t1, t1, base))
    A('v_add_u32 v14, %s, %s' % (t0, vL16))
    A('v_add_u32 v13, %s, %s' % (t1, vL16))
    A('s_lshl_b32 %s, %s, 13' % (t0, sW))
    A('s_xor_b32 %s, %s, 16384' % (t1, t0))
    A('s_add_u32 %s, %s, %d' % (t0, t0, base))
    A('s_add_u32 %s, %s, %d' % (t1, t1, base))
    A('v_add_u32 v15, %s, %s' % (t0, vL16))
    A('v_add_u32 v9, %s, %s' % (t1, vL16))


def ksplit_gemm(nks, wsbase, tstride, breg, ring_base, ring_n, C, PART, after_issue=None):
    A('s_add_u32 %s, %s, %s' % (t3, sT0, sA))
    A('s_xor_b32 %s, %s, 1' % (t2, t3))
    A('s_mul_i32 %s, %s, %d' % (t4, sW, nks * 1024))
    for t in (t2, t3):
        A('s_mul_i32 %s, %s, %d' % (t, t, tstride))
        A('s_add_u32 %s, %s, %s' % (t, t, t4))
        A('s_add_u32 %s, %s, %d' % (t, t, wsbase))
    return lambda: _ksplit_body(nks, breg, ring_base, ring_n, C, PART, after_issue)


def _ksplit_body(nks, breg, ring_base, ring_n, C, PART, after_issue):
    ta = {}

    def aload(i):
        st, k = divmod(i, nks)
        so = (t2, t3)[st]
        ta[i] = A('buffer_load_dwordx4 %s, %s, %s, %s offen offset:%d sc1' % (vr(ring_base + 4 * (i % ring_n), 4), vL16, SRD_WS, so, (k & 3) * 1024))
        if k & 3 == 3:
            A('s_add_u32 %s, %s, 4096' % (so, so))
    n = 2 * nks
    first = min(ring_n, n)
    for i in range(first):
        aload(i)
    if first == n and after_issue:
        after_issue()
    tw = tr = None
    wq = []
    for i in range(n):
        st, k = divmod(i, nks)
        A.wait(vm=ta[i])
        a = vr(ring_base + 4 * (i % ring_n), 4)
        for s in range(2):
            c = vr(C[2 * st + s], 16)
            A('%s %s, %s, %s, %s' % (MF32, c, breg(k, s), a, c if k else '0'))
            if wq:
                wq.pop(0)()
        if i + ring_n < n:
            aload(i + ring_n)
            if i + ring_n == n - 1 and after_issue:
                after_issue()
        if st == 1 and k == 0:
            for s in range(2):
                for g in range(4):
                    wq.append(lambda s=s, g=g: A('ds_write_b128 %s, %s offset:%d' % (('v14', 'v13')[s], vr(C[s] + 4 * g, 4), g * 1024)))
        if st == 1 and k == 5:
            assert not wq
            A.wait(lg='all')
            A('s_barrier')
            for p in range(2):
                for g in range(4):
                    tr = A('ds_read_b128 %s, v15 offset:%d' % (vr(C[p] + 4 * g, 4), p * 4096 + g * 1024))
    A.wait(lg=tr)
    for g in range(8):
        A('v_pk_add_f32 %s, %s, %s' % (vr(C[0] + 2 * g, 2), vr(C[0] + 2 * g, 2), vr(C[1] + 2 * g, 2)))
    for g in range(4):
        tw = A('ds_write_b128 v15, %s offset:%d' % (vr(C[3] + 4 * g, 4), g * 1024))
    for g in range(8):
        A('v_pk_add_f32 %s, %s, %s' % (vr(C[2] + 2 * g, 2), vr(C[2] + 2 * g, 2), vr(C[0] + 2 * g, 2)))
    A.wait(lg=tw)
    A('s_barrier')
    for g in range(4):
        tr = A('ds_read_b128 %s, v9 offset:%d' % (vr(C[1] + 4 * g, 4), g * 1024))
    for g in range(4):
        A.wait(lg=tr - 3 + g)
        for e in range(2):
            r = 4 * g + 2 * e
            A('v_pk_add_f32 %s, %s, %s' % (vr(C[2] + r, 2), vr(C[2] + r, 2), vr(C[1] + r, 2)))


X2 = 240
GA, G2 = 208, 224


def wo_phase():
    A('s_barrier')
    A('v_lshlrev_b32 v10, 3, v0')
    A('v_add_u32 v10, %d, v10' % L_MODL)
    A('ds_write2_b32 v10, v5, v6 offset0:0 offset1:1')
    A('v_add_u32 v10, 2048, v10')
    t = A('ds_write2_b32 v10, v7, v8 offset0:0 offset1:1')
    A('s_lshl_b32 %s, %s, 7' % (t0, sCT))
    A('s_lshl_b32 %s, %s, 6' % (t1, sB))
    A('s_add_u32 %s, %s, %s' % (t0, t0, t1))
    A('s_add_u32 %s, %s, %d' % (t0, t0, L_MODL))
    A('v_lshrrev_b32 v11, 5, %s' % vLANE)
    A.wait(lg=t)
    A('v_lshl_add_u32 v5, v11, 5, %s' % t0)
    A('s_barrier')
    for i in range(2):
        A('ds_read_b128 %s, v5 offset:%d' % (vr(64 + 4 * i, 4), 16 * i))
        t = A('ds_read_b128 %s, v5 offset:%d' % (vr(72 + 4 * i, 4), 2048 + 16 * i))
    group_poll_addr(64, WS_FBO)
    red_addr(L_RED)
    A.wait(lg=t)
    for i in range(8):
        unpack(GA + 2 * i, 64 + i)
        unpack(G2 + 2 * i, 72 + i)
    for i in range(7, -1, -1):
        A('v_and_b32 v%d, 0xffff0000, v%d' % (X2 + 2 * i + 1, XT + i))
        A('v_lshlrev_b32 v%d, 16, v%d' % (X2 + 2 * i, XT + i))
    C = [16, 32, 48, 64]
    body = ksplit_gemm(8, WS_O, 32768, lambda k, s: ar(192 + 8 * k + 4 * s, 4), 128, 16, C, None,
                       after_issue=lambda: (flag_store(sPB, True), w2_frag_loads(0, W2A)))
    poll_dual('v10', 'v11', 'v12', 'o')
    stamp('o seen')
    body()
    stamp('wo gemm')
    R = C[2]
    for i in range(8):
        A('v_pk_fma_f32 %s, %s, %s, %s' % (vr(X2 + 2 * i, 2), vr(R + 2 * i, 2), vr(GA + 2 * i, 2), vr(X2 + 2 * i, 2)))
    for i in range(8):
        A('v_pk_mul_f32 %s, %s, %s' % (vr(16 + 2 * i, 2), vr(X2 + 2 * i, 2), vr(G2 + 2 * i, 2)))
    A('s_add_u32 %s, %s, %s' % (t3, sT0, sA))
    A('s_lshl_b32 %s, %s, 1' % (t4, sCT))
    A('s_add_u32 %s, %s, %s' % (t4, t4, sB))
    A('s_lshl_b32 %s, %s, 15' % (t0, t3))
    A('s_lshl_b32 %s, %s, 10' % (t1, t4))
    A('s_add_u32 %s, %s, %s' % (t0, t0, t1))
    A('s_add_u32 %s, %s, %d' % (t0, t0, WS_Y))
    A('v_and_b32 v10, 15, %s' % vLANE)
    A('v_lshlrev_b32 v10, 4, v10')
    A('v_bfe_u32 v11, %s, 4, 1' % vLANE)
    A('v_lshl_add_u32 v10, v11, 14, v10')
    A('v_lshrrev_b32 v11, 5, %s' % vLANE)
    A('v_lshl_add_u32 v10, v11, 9, v10')
    for p in range(2):
        for e in range(2):
            for d in range(2):
                r = 16 + 8 * e + 4 * p + 2 * d
                A('v_cvt_pk_bf16_f32 v%d, v%d, v%d' % (32 + 4 * p + 2 * e + d, r, r + 1))
        A('buffer_store_dwordx4 %s, v10, %s, %s offen offset:%d sc1' % (vr(32 + 4 * p, 4), SRD_WS, t0, p * 256))
    A('v_pk_add_f32 v[40:41], %s, %s' % (vr(X2, 2), vr(X2 + 2, 2)))
    A('v_pk_mul_f32 v[42:43], %s, %s' % (vr(X2, 2), vr(X2, 2)))
    A('v_pk_fma_f32 v[42:43], %s, %s, v[42:43]' % (vr(X2 + 2, 2), vr(X2 + 2, 2)))
    for i in range(2, 8):
        A('v_pk_add_f32 v[40:41], v[40:41], %s' % vr(X2 + 2 * i, 2))
        A('v_pk_fma_f32 v[42:43], %s, %s, v[42:43]' % (vr(X2 + 2 * i, 2), vr(X2 + 2 * i, 2)))
    A('v_add_f32 v40, v40, v41')
    A('v_add_f32 v42, v42, v43')
    A('s_lshl_b32 %s, %s, 4' % (t0, t3))
    A('s_add_u32 %s, %s, %s' % (t0, t0, t4))
    A('s_lshl_b32 %s, %s, 6' % (sPB, t0))
    A('s_add_u32 %s, %s, %d' % (sPB, sPB, WS_FBY))
    A('s_lshl_b32 %s, %s, 8' % (t0, t0))
    A('s_add_u32 %s, %s, %d' % (t0, t0, WS_STAT))
    A('v_permlane32_swap_b32 v40, v42')
    A('v_add_f32 v40, v40, v42')
    A('v_lshlrev_b32 v6, 2, %s' % vLANE)
    A('buffer_store_dword v40, v6, %s, %s offen sc1' % (SRD_WS, t0))
    A('s_lshl_b32 %s, %s, 8' % (t1, t3))
    A('s_lshl_b32 %s, %s, 2' % (t2, t4))
    A('s_add_u32 %s, %s, %s' % (t1, t1, t2))
    A('s_add_u32 %s, %s, %d' % (t5, t1, WS_FA + 128))
    ut_compute()
    A.wait(vm='all')
    flag_store(t5, False)
    stamp('y pub')


W2A = 8
W2B = 28


def g1_addr():
    A('v_lshrrev_b32 v10, 5, %s' % vLANE)
    A('v_lshlrev_b32 v10, 4, v10')
    A('v_bfe_u32 v11, %s, 4, 1' % vLANE)
    A('v_lshl_add_u32 v10, v11, 2, v10')
    A('v_bfe_u32 v11, %s, 2, 2' % vLANE)
    A('v_add_u32 v10, v10, v11')
    A('v_mul_u32_u24 v10, 224, v10')
    A('v_and_b32 v11, 3, %s' % vLANE)
    A('v_lshl_add_u32 v7, v11, 3, v10')
    A('v_add_u32 v8, 57344, v7')


def ut_compute():
    g1_addr()
    A('s_lshl_b32 %s, %s, 5' % (t0, sW))
    A('s_add_u32 %s, %s, 128' % (t1, t0))
    A('s_min_u32 %s, %s, 192' % (t1, t1))
    A('v_add_u32 v16, %s, v7' % t0)
    A('v_add_u32 v17, %s, v8' % t0)
    A('v_add_u32 v18, %s, v7' % t1)
    A('v_add_u32 v19, %s, v8' % t1)
    A('v_and_b32 v10, 1, %s' % vLANE)
    A('v_lshlrev_b32 v11, 10, v10')
    A('v_sub_u32 v11, %d, v11' % (L_MODL + 2048))
    A('v_lshrrev_b32 v12, 5, %s' % vLANE)
    A('v_lshl_add_u32 v11, v12, 5, v11')
    A('v_bfe_u32 v12, %s, 4, 1' % vLANE)
    A('v_lshl_add_u32 v20, v12, 3, v11')
    A('v_lshrrev_b32 v12, 4, %s' % vLANE)
    A('v_lshlrev_b32 v12, 4, v12')
    A('v_lshl_add_u32 v12, v10, 9, v12')
    A('s_lshl_b32 %s, %s, 1' % (t0, t0))
    A('s_lshl_b32 %s, %s, 1' % (t1, t1))
    A('s_add_u32 %s, %s, %d' % (t0, t0, L_UT))
    A('s_add_u32 %s, %s, %d' % (t1, t1, L_UT))
    A('v_add_u32 v21, %s, v12' % t0)
    A('v_add_u32 v22, %s, v12' % t1)
    rd = {}

    def rds(ks):
        b = 128 + 12 * (ks % 3)
        o = (ks & 7) * 7168
        A('ds_read2_b64 %s, v20 offset0:%d offset1:%d' % (vr(b, 4), 8 * ks, 8 * ks + 2))
        for n in range(2):
            for half in range(2):
                rd[ks] = A('ds_read_b64_tr_b16 %s, v%d offset:%d' % (vr(b + 4 + 4 * n + 2 * half, 2), 16 + 2 * n + (ks >> 3), o + half * 8 * 224))
    rds(0)
    rds(1)
    for ks in range(16):
        if ks + 2 < 16:
            rds(ks + 2)
        A.wait(lg=rd[ks])
        b = 128 + 12 * (ks % 3)
        for n in range(2):
            c = vr(24 + 4 * n, 4)
            A('%s %s, %s, %s, %s' % (MF16, c, vr(b + 4 + 4 * n, 4), vr(b, 4), c if ks else '0'))
    A('ds_write_b128 v21, v[24:27]')
    A('ds_write_b128 v22, v[28:31]')


def g1_phase():
    ACC, BF, YA, ST = 16, 72, 112, 100
    A('v_mov_b32 v100, %s' % vB0)
    A('v_mov_b32 v101, %s' % vB1)
    A('v_mov_b32 v102, %s' % vXO)
    globals().update(vB0='v100', vB1='v101', vXO='v102')
    A('s_lshl_b32 %s, %s, 8' % (t0, sT))
    A('s_add_u32 %s, %s, %d' % (t0, t0, WS_FA + 128))
    A('v_and_b32 v12, 31, %s' % vLANE)
    A('v_lshl_add_u32 v10, v12, 2, %s' % t0)
    A('s_lshl_b32 %s, %s, 10' % (t0, sT))
    A('s_add_u32 %s, %s, %d' % (t0, t0, WS_FBY))
    A('v_and_b32 v12, 15, %s' % vLANE)
    A('v_lshl_add_u32 v11, v12, 6, %s' % t0)
    A('s_mov_b64 %s, 0xffff' % sMASK)
    rd = {}

    def bread(ks, nt):
        for half in range(2):
            rd[ks, nt] = A('ds_read_b64_tr_b16 %s, v%d offset:%d' % (vr(BF + 4 * nt + 2 * half, 2), 7 + (ks >> 3), (ks & 7) * 7168 + half * 8 * 224 + nt * 32))
    A.wait(lg='all')
    A('s_barrier')
    for nt in range(7):
        bread(0, nt)
    A('s_lshl_b32 %s, %s, 15' % (t2, sT))
    A('s_add_u32 %s, %s, %d' % (t2, t2, WS_Y))
    A('s_add_u32 %s, %s, 16384' % (t3, t2))
    A('s_lshl_b32 %s, %s, 12' % (t4, sT))
    A('s_add_u32 %s, %s, %d' % (t4, t4, WS_STAT))
    poll_dual('v10', 'v11', 'v12', 'y')
    stamp('y seen')
    ta = {}
    for ks in range(16):
        for tt in range(2):
            so = (t2, t3)[tt]
            ta[ks, tt] = A('buffer_load_dwordx4 %s, %s, %s, %s offen offset:%d sc1' % (vr(YA + 8 * ks + 4 * tt, 4), vL16, SRD_WS, so, (ks & 3) * 1024))
            if ks & 3 == 3:
                A('s_add_u32 %s, %s, 4096' % (so, so))
    flag_store(sPB, True)
    tst = None
    for ks in range(16):
        A.wait(vm=ta[ks, 1])
        for nt in range(7):
            A.wait(lg=rd[ks, nt])
            for tt in range(2):
                c = vr(ACC + 8 * nt + 4 * tt, 4)
                A('%s %s, %s, %s, %s' % (MF16, c, vr(BF + 4 * nt, 4), vr(YA + 8 * ks + 4 * tt, 4), c if ks else '0'))
            if ks < 15:
                bread(ks + 1, nt)
        if ks == 2:
            for p in range(16):
                tst = A('buffer_load_dword v%d, v6, %s, %s offen offset:%d sc1' % (YA + p, SRD_WS, t4, p * 256))
        if ks == 6:
            w2_frag_loads(W2A, 18)
        if ks == 12:
            w2_frag_loads(18, 28)
    stamp('g1 gemm')
    A('v_lshrrev_b32 v10, 4, %s' % vLANE)
    A('v_lshlrev_b32 v10, 4, v10')
    A('v_add_u32 v10, %d, v10' % L_UT)
    U, TT = 144, 176
    tu = []
    for nt in range(7):
        A('ds_read_b128 %s, v10 offset:%d' % (vr(U + 4 * nt, 4), nt * 64))
        tu.append(A('ds_read_b128 %s, v10 offset:%d' % (vr(TT + 4 * nt, 4), 512 + nt * 64)))
    A.wait(vm=tst)
    for n in (8, 4, 2):
        for i in range(0, n, 2):
            A('v_pk_add_f32 %s, %s, %s' % (vr(YA + i, 2), vr(YA + i, 2), vr(YA + n + i, 2)))
    A('v_add_f32 v112, v112, v113')
    A('v_mul_f32 v112, 0x3b000000, v112')
    A('v_mov_b32 v113, v112')
    A('v_permlane32_swap_b32 v112, v113')
    A('v_fma_f32 v113, -v112, v112, v113')
    A('v_max_f32 v113, 0, v113')
    A('v_add_f32 v113, 0x3727c5ac, v113')
    A('v_rsq_f32 v114, v113')
    A('v_mul_f32 v115, -v112, v114')
    A('v_mov_b32 v116, v114')
    A('v_mov_b32 v117, v115')
    A('v_permlane16_swap_b32 v114, v116')
    A('v_permlane16_swap_b32 v115, v117')
    A('s_mul_i32 %s, %s, 112' % (t0, sT))
    A('s_mul_i32 %s, %s, 7' % (t1, sM))
    A('s_add_u32 %s, %s, %s' % (t0, t0, t1))
    A('s_lshl_b32 %s, %s, 10' % (t0, t0))
    A('s_add_u32 %s, %s, %d' % (t0, t0, WS_HID))
    for nt in range(7):
        A.wait(lg=tu[nt])
        o = 208 + 4 * nt
        for tt in range(2):
            rp = vr(114 + 2 * tt, 2)
            for e in range(2):
                A('v_pk_fma_f32 %s, %s, %s, %s op_sel:[0,1,0] op_sel_hi:[1,1,1]' % (vr(120 + 2 * e, 2), vr(U + 4 * nt + 2 * e, 2), rp, vr(TT + 4 * nt + 2 * e, 2)))
            for e in range(2):
                A('v_pk_fma_f32 %s, %s, %s, %s op_sel:[0,0,0] op_sel_hi:[1,0,1]' % (vr(120 + 2 * e, 2), vr(ACC + 8 * nt + 4 * tt + 2 * e, 2), rp, vr(120 + 2 * e, 2)))
            for e in range(2):
                A('v_cvt_pk_bf16_f32 v%d, v%d, v%d' % (o + 2 * tt + e, 120 + 2 * e, 121 + 2 * e))
            for e in range(2):
                A('v_pk_max_i16 v%d, v%d, 0' % (o + 2 * tt + e, o + 2 * tt + e))
        A('v_permlane16_swap_b32 v%d, v%d' % (o, o + 2))
        A('v_permlane16_swap_b32 v%d, v%d' % (o + 1, o + 3))
        A('buffer_store_dwordx4 %s, %s, %s, %s offen offset:%d sc1' % (vr(o, 4), vL16, SRD_WS, t0, (nt & 3) * 1024))
        if nt == 3:
            A('s_add_u32 %s, %s, 4096' % (t0, t0))
    A('s_lshl_b32 %s, %s, 4' % (t0, sT))
    A('s_add_u32 %s, %s, %s' % (t0, t0, sM))
    A('s_lshl_b32 %s, %s, 6' % (sPB, t0))
    A('s_add_u32 %s, %s, %d' % (sPB, sPB, WS_FBHID))
    A('s_lshl_b32 %s, %s, 8' % (t1, sT))
    A('s_lshl_b32 %s, %s, 2' % (t2, sM))
    A('s_add_u32 %s, %s, %s' % (t1, t1, t2))
    A('s_add_u32 %s, %s, %d' % (t5, t1, WS_FA + 192))


def g2_phase():
    GB = 80
    for i in range(2):
        t = A('ds_read_b128 %s, v5 offset:%d' % (vr(104 + 4 * i, 4), 3072 + 16 * i))
    group_poll_addr(192, WS_FBHID)
    red_addr(L_RED)
    A.wait(lg=t)
    for i in range(8):
        unpack(GB + 2 * i, 104 + i)
    A.wait(vm='all')
    flag_store(t5, False)
    stamp('hid pub')
    C = [16, 32, 48, 64]
    body = ksplit_gemm(28, WS_HID, 112 * 1024, lambda k, s: ar(8 * k + 4 * s, 4), 104, 34, C, None,
                       after_issue=lambda: flag_store(sPB, True))
    poll_dual('v10', 'v11', 'v12', 'hid')
    stamp('hid seen')
    body()
    stamp('g2 gemm')
    R = C[2]
    for p in range(2):
        for i in range(4 * p, 4 * p + 4):
            A('v_pk_fma_f32 %s, %s, %s, %s' % (vr(X2 + 2 * i, 2), vr(R + 2 * i, 2), vr(GB + 2 * i, 2), vr(X2 + 2 * i, 2)))
        for i in range(4 * p, 4 * p + 4):
            A('v_cvt_pk_bf16_f32 v%d, v%d, v%d' % (16 + i, X2 + 2 * i, X2 + 2 * i + 1))
        A('buffer_store_dwordx4 %s, %s, %s, 0 offen offset:%d' % (vr(16 + 4 * p, 4), vXO, SRD_OUT, 16 * p))


def epoch_update():
    SK = A.label('noep')
    A('s_or_b32 %s, %s, %s' % (t0, sLID, sW))
    A('s_cmp_lg_u32 %s, 0' % t0)
    A('s_cbranch_scc1 ' + SK)
    A('v_and_b32 v10, 15, %s' % vLANE)
    A('v_lshlrev_b32 v10, 12, v10')
    A('s_mov_b32 %s, %d' % (t2, WS_FBY))
    L, D = A.label('pep'), A.label('dep')
    A('s_mov_b32 %s, 0' % sCNT)
    A(L + ':')
    A('buffer_load_dword v11, v10, %s, %s offen sc1' % (SRD_WS, t2))
    A('s_add_u32 %s, %s, 1' % (sCNT, sCNT))
    A('s_waitcnt vmcnt(0)')
    A('v_cmp_ne_u32 vcc, %s, v11' % sTAG)
    A('s_cbranch_vccz ' + D)
    A('s_cmp_lt_u32 %s, %d' % (sCNT, LIMIT))
    A('s_cbranch_scc1 ' + L)
    A(D + ':')
    A('s_mov_b32 %s, %d' % (t2, WS_E))
    flag_store(t2, True)
    A(SK + ':')


def dump_stamps():
    if not OPT['stamps']:
        return
    A.wait(vm='all', force=True)
    A('s_memrealtime s[92:93]')
    stamp('end')
    A('s_lshl_b32 %s, %s, 2' % (t0, sLID))
    A('s_add_u32 %s, %s, %s' % (t0, t0, sW))
    A('s_lshl_b32 %s, %s, 7' % (t0, t0))
    A('s_add_u32 %s, %s, %d' % (t0, t0, WS_TS))
    A('s_mov_b64 exec, 1')
    for i in range(24):
        A('v_mov_b32 v10, s%d' % (STAMP0 + i))
        A('buffer_store_dword v10, off, %s, %s offset:%d' % (SRD_WS, t0, 4 * i))
    A('v_mov_b32 v10, s92')
    A('buffer_store_dword v10, off, %s, %s offset:100' % (SRD_WS, t0))
    A('s_getreg_b32 %s, hwreg(HW_REG_XCC_ID)' % t1)
    A('v_mov_b32 v10, %s' % t1)
    A('buffer_store_dword v10, off, %s, %s offset:96' % (SRD_WS, t0))
    A('s_mov_b64 exec, -1')


def main():
    tx = prologue()
    A('s_lshl_b32 %s, %s, 8' % (t0, sT))
    A('s_add_u32 %s, %s, %d' % (t0, t0, WS_FA))
    A('v_lshlrev_b32 v11, 2, %s' % vLANE)
    tx = A('buffer_load_dword v5, v11, %s, %s offen sc1' % (SRD_WS, t0))
    base = A.vm
    mod_producer()
    A.vm = base
    A.vm_done = 0
    tp = prep_issue()
    wqkv_dma([0, 1, 2])
    get_tag()
    stamp('issued')
    ln1_stats(tx)
    prep_finish(tp)
    stamp('prep done')
    h_phase()
    stamp('h pub')
    qkv()
    FB, OK = attention()
    wo_phase()
    g1_phase()
    g2_phase()
    epoch_update()
    dump_stamps()
    if OPT['diag']:
        A('s_waitcnt vmcnt(0) lgkmcnt(0)')
        A('s_sub_u32 s97, s97, s96')
        A('s_mul_i32 s97, s97, %d' % OPT['diagmul'])
        A('s_add_u32 s96, s96, s97')
        A('s_add_u32 s96, s96, 6000')
        A('L_diag:')
        A('s_memrealtime s[92:93]')
        A('s_waitcnt lgkmcnt(0)')
        A('s_sub_u32 s92, s92, s96')
        A('s_cmp_lt_i32 s92, 0')
        A('s_cbranch_scc1 L_diag')
    A('L_exit:')
    A('s_endpgm')
    attention_fallback(FB, OK)
    A('L_codeend:')
    body, nops = A.finalize()
    hdr = open(os.path.join(os.path.dirname(os.path.abspath(__file__)), '..', 'cdna_kernels', NAME + '.s.ref')).read().split('; Override')[0]
    out = hdr
    out += '; @launch grid=(256,1,1) block=(256,1,1) lds=163840\n'
    out += '.amdgcn_target "amdgcn-amd-amdhsa--gfx950"\n.text\n.globl %s_kernel\n.p2align 8\n.type %s_kernel,@function\n%s_kernel:\n' % (NAME, NAME, NAME)
    out += '\n'.join(('' if l.endswith(':') else '    ') + l for l in body) + '\n'
    out += '''.section .rodata,"a"
.p2align 6
.amdhsa_kernel %s_kernel
  .amdhsa_next_free_vgpr 512
  .amdhsa_next_free_sgpr 100
  .amdhsa_accum_offset 256
  .amdhsa_group_segment_fixed_size 0
  .amdhsa_kernarg_size 88
  .amdhsa_user_sgpr_count 2
  .amdhsa_user_sgpr_kernarg_segment_ptr 1
  .amdhsa_system_sgpr_workgroup_id_x 1
  .amdhsa_float_denorm_mode_32 3
.end_amdhsa_kernel
''' % NAME
    open(sys.argv[1], 'w').write(out)
    if OPT['stamps']:
        open(sys.argv[1] + '.stamps', 'w').write('\n'.join(STAMP_NAMES))
    print('instructions', len(body), 'pad states', nops, file=sys.stderr)


main()
```

```python
import sys, os
from asmlib import Asm

NAME = 'adaLN_cond__sliding_block__dense_activation_relu__prompt'
OPT = dict(stamps=0, force_fallback=0, stop=99, diag=0, diagmul=0, ex=0)
for a in sys.argv[2:]:
    k, v = a.split('=')
    OPT[k] = int(v)

WS_E = 0
WS_FA = 0x1000
WS_FBH = 0x8000
WS_FBKV = 0x10000
WS_FBO = 0x20000
WS_FBY = 0x30000
WS_FBHID = 0x40000
WS_MOD = 0x50000
WS_STAT = 0x80000
WS_TS = 0xC0000
WS_WOT = 0x100000
WS_W2T = 0x200000
WS_H = 0x400000
WS_O = 0x600000
WS_Y = 0x800000
WS_KV = 0xA00000
WS_HID = 0xE00000
WS_SIZE = 0x1600000

L_SCR = 98304
L_KV = 114688
L_MODL = 114688
L_UT = L_MODL + 4096
L_RED = L_MODL + 8192
L_RED2 = 0

sX, sJ, sW, sT, sM = 's3', 's4', 's5', 's6', 's7'
SRD_X, SRD_WQKV, SRD_WO, SRD_W1, SRD_W2, SRD_WS, SRD_OUT, SRD_WMOD, SRD_C = [
    's[%d:%d]' % (32 + 4 * i, 35 + 4 * i) for i in range(9)]
sTAG, sE = 's68', 's69'
sCT, sRT, sA, sB, sT0 = 's70', 's71', 's72', 's73', 's74'
sLID = 's75'
t0, t1, t2, t3, t4, t5 = 's76', 's77', 's78', 's79', 's80', 's81'
sCNT = 's82'
sMASK = 's[84:85]'
sLO, sHI = 's[86:87]', 's[88:89]'
sPB = 's83'
STAMP0 = 8

vLANE, vL16, vTAG = 'v1', 'v2', 'v3'

A = Asm()
nstamp = [0]


def vr(b, n=1, k='v'):
    return '%s%d' % (k, b) if n == 1 else '%s[%d:%d]' % (k, b, b + n - 1)


def ar(b, n=1):
    return vr(b, n, 'a')


def stamp(name):
    if OPT['diag']:
        nstamp[0] += 1
        if nstamp[0] == OPT['diag']:
            print('diag stamp:', name, file=sys.stderr)
            A.wait(lg='all')
            A('s_memrealtime s[90:91]')
            A('s_waitcnt lgkmcnt(0)')
            A('s_mov_b32 s97, s90')
        return
    if not OPT['stamps']:
        return
    i = nstamp[0]
    nstamp[0] += 1
    assert i < 22
    A.wait(lg='all')
    A('s_memtime s[90:91]')
    A('s_waitcnt lgkmcnt(0)')
    A('s_mov_b32 s%d, s90 ; stamp %d %s' % (STAMP0 + 2 + i, i, name))
    STAMP_NAMES.append(name)


STAMP_NAMES = []


def flag_store(soff, sc1):
    A('s_mov_b64 exec, 1')
    t = A('buffer_store_dword %s, off, %s, %s%s' % (vTAG, SRD_WS, soff, ' sc1' if sc1 else ''))
    A('s_mov_b64 exec, -1')
    return t


LIMIT = 1 << 17


def poll_dual(vA, vB, vT, name):
    L, D = A.label('p' + name), A.label('d' + name)
    A('s_mov_b32 %s, 0' % sCNT)
    A(L + ':')
    A('buffer_load_dword %s, %s, %s, 0 offen sc1' % (vT, vA, SRD_WS))
    A('s_add_u32 %s, %s, 1' % (sCNT, sCNT))
    A('s_waitcnt vmcnt(0)')
    A('v_cmp_ne_u32 vcc, %s, %s' % (sTAG, vT))
    A('s_and_b64 vcc, vcc, %s' % sMASK)
    A('s_cbranch_scc0 ' + D)
    A('s_cmp_lt_u32 %s, 24' % sCNT)
    A('s_cbranch_scc1 ' + L)
    flag_store(sPB, True)
    A('buffer_load_dword %s, %s, %s, 0 offen sc1' % (vT, vB, SRD_WS))
    A('s_waitcnt vmcnt(0)')
    A('v_cmp_ne_u32 vcc, %s, %s' % (sTAG, vT))
    A('s_and_b64 vcc, vcc, %s' % sMASK)
    A('s_cbranch_scc0 ' + D)
    A('s_cmp_lt_u32 %s, %d' % (sCNT, LIMIT))
    A('s_cbranch_scc1 ' + L)
    A(D + ':')
    A.vm_done = A.vm


def srd(dst, lo, size):
    b = int(dst[2:dst.index(':')])
    A('s_mov_b32 s%d, s%d' % (b, lo))
    A('s_and_b32 s%d, s%d, 0xffff' % (b + 1, lo + 1))
    A('s_mov_b32 s%d, 0x%x' % (b + 2, size))
    A('s_mov_b32 s%d, 0x20000' % (b + 3))


def unpack(dst, src):
    A('v_lshlrev_b32 v%d, 16, v%d' % (dst, src))
    A('v_and_b32 v%d, 0xffff0000, v%d' % (dst + 1, src))


def dma(voff, srdname, soff, ldsaddr_s):
    A('s_mov_b32 m0, %s' % ldsaddr_s)
    return A('buffer_load_dwordx4 %s, %s, %s offen lds' % (voff, srdname, soff))


MF32 = 'v_mfma_f32_32x32x16_bf16'
MF16 = 'v_mfma_f32_16x16x32_bf16'


def finish():
    A('s_branch L_end')


def prologue():
    A('s_cmp_ge_u32 s2, 256')
    A('s_cbranch_scc1 L_exit')
    A('s_load_dwordx16 s[8:23], s[0:1], 0')
    A('s_load_dwordx4 s[24:27], s[0:1], 64')
    A('s_load_dwordx2 s[28:29], s[0:1], 80')
    A('s_getpc_b64 s[30:31]')
    A('L_pc:')
    A('s_lshr_b32 %s, s2, 3' % sJ)
    A('s_and_b32 %s, s2, 7' % sX)
    A('s_lshl_b32 %s, %s, 11' % (t0, sJ))
    A('v_lshl_add_u32 v4, v0, 3, %s' % t0)
    A('v_min_u32 v4, L_codeend-L_pc-8, v4')
    A('global_load_dwordx2 v[6:7], v4, s[30:31]')
    A('v_lshrrev_b32 v5, 6, v0')
    A('v_and_b32 %s, 63, v0' % vLANE)
    A('v_readfirstlane_b32 %s, v5' % sW)
    A('v_lshlrev_b32 %s, 4, %s' % (vL16, vLANE))
    if OPT['stamps'] or OPT['diag']:
        A('s_memrealtime s[92:93]')
        A('s_memtime s[94:95]')
    A('v_and_b32 v8, 7, %s' % vLANE)
    A('v_lshrrev_b32 v9, 3, %s' % vLANE)
    A('v_lshlrev_b32 v10, 10, v8')
    A('v_lshl_add_u32 v10, v9, 4, v10')
    A('s_lshl_b32 %s, %s, 5' % (sLID, sX))
    A('s_add_u32 %s, %s, %s' % (sLID, sLID, sJ))
    A('s_lshl_b32 %s, %s, 13' % (t0, sLID))
    A('s_lshl_b32 %s, %s, 8' % (t1, sW))
    A('s_add_u32 %s, %s, %s' % (t0, t0, t1))
    A('s_waitcnt lgkmcnt(0)')
    A('s_load_dword %s, s[28:29], %d' % (sE, WS_E))
    srd(SRD_X, 8, 2097152)
    A('buffer_load_dwordx4 v[16:19], v10, %s, %s offen' % (SRD_X, t0))
    tx = A('buffer_load_dwordx4 v[20:23], v10, %s, %s offen offset:128' % (SRD_X, t0))
    srd(SRD_C, 20, 1024)
    srd(SRD_WMOD, 22, 3145728)
    srd(SRD_WS, 28, WS_SIZE)
    srd(SRD_WQKV, 10, 1572864)
    srd(SRD_WO, 12, 524288)
    srd(SRD_W1, 16, 1835008)
    srd(SRD_W2, 18, 1835008)
    srd(SRD_OUT, 24, 2097152)
    A('s_and_b32 %s, %s, 15' % (sM, sJ))
    A('s_lshr_b32 %s, %s, 4' % (t0, sJ))
    A('s_lshl_b32 %s, %s, 2' % (t0, t0))
    A('s_lshl_b32 %s, %s, 3' % (t1, sX))
    A('s_add_u32 %s, %s, %s' % (sT, t0, t1))
    A('s_add_u32 %s, %s, %s' % (sT, sT, sW))
    A('s_and_b32 %s, %s, 7' % (sCT, sJ))
    A('s_lshr_b32 %s, %s, 3' % (sRT, sJ))
    A('s_lshl_b32 %s, %s, 1' % (sT0, sRT))
    A('s_add_u32 %s, %s, %s' % (sT0, sT0, t1))
    A('s_and_b32 %s, %s, 1' % (sA, sW))
    A('s_lshr_b32 %s, %s, 1' % (sB, sW))
    A('s_mov_b32 s86, 0x0000ffff')
    A('s_mov_b32 s87, 0x0000ffff')
    A('s_mov_b32 s88, 0xffff0000')
    A('s_mov_b32 s89, 0xffff0000')
    return tx


def get_tag():
    A('s_waitcnt lgkmcnt(0)')
    A.lg_done = A.lg
    A('s_mul_i32 %s, %s, 1664525' % (sTAG, sE))
    A('s_add_u32 %s, %s, 1013904223' % (sTAG, sTAG))
    A('v_mov_b32 %s, %s' % (vTAG, sTAG))
    if OPT['diag']:
        A('s_mov_b32 s96, s92')
        A('s_mov_b32 s97, s92')
    if OPT['stamps']:
        A('s_mov_b32 s8, s92')
        A('s_mov_b32 s9, s94')


def mod_producer():
    SK = A.label('nomod')
    A('s_cmp_ge_u32 %s, 6' % sJ)
    A('s_cbranch_scc1 ' + SK)
    A('s_lshl_b32 %s, %s, 1' % (t0, sX))
    A('s_lshl_b32 %s, %s, 2' % (t1, sX))
    A('s_add_u32 %s, %s, 14' % (t1, t1))
    A('s_cmp_lt_u32 %s, 2' % sJ)
    A('s_cselect_b32 %s, %s, %s' % (t0, t0, t1))
    A('s_add_u32 %s, %s, %s' % (t5, t0, sJ))
    A('v_lshlrev_b32 v11, 2, %s' % vLANE)
    A('s_lshl_b32 %s, %s, 8' % (t1, sW))
    tc = A('buffer_load_dword v12, v11, %s, %s offen' % (SRD_C, t1))
    A('v_mul_u32_u24 v13, %d, v9' % (16 * 6144))
    A('v_lshl_add_u32 v13, v8, 4, v13')
    A('s_mul_i32 %s, %s, %d' % (t1, sW, 128 * 6144))
    A('s_lshl_b32 %s, %s, 7' % (t2, t5))
    A('s_add_u32 %s, %s, %s' % (t1, t1, t2))
    tw = []
    for i in range(16):
        tw.append(A('buffer_load_dwordx4 %s, v13, %s, %s offen' % (vr(64 + 4 * i, 4), SRD_WMOD, t1)))
        if i < 15:
            A('s_add_u32 %s, %s, 6144' % (t1, t1))
    A('s_lshl_b32 %s, %s, 9' % (t1, sW))
    A('s_add_u32 %s, %s, %d' % (t1, t1, L_SCR + 1024))
    A('v_lshl_add_u32 v14, %s, 3, %s' % (vLANE, t1))
    A('v_lshl_add_u32 v15, v9, 6, %s' % t1)
    for i in range(8):
        A('v_mov_b32 v%d, 0' % (56 + i))
    A.wait(vm=tc)
    unpack(40, 12)
    for i in (0, 1):
        A('v_mul_f32 v%d, 0xbfb8aa3b, v%d' % (42 + i, 40 + i))
    for i in (0, 1):
        A('v_exp_f32 v%d, v%d' % (42 + i, 42 + i))
    for i in (0, 1):
        A('v_add_f32 v%d, 1.0, v%d' % (42 + i, 42 + i))
    for i in (0, 1):
        A('v_rcp_f32 v%d, v%d' % (42 + i, 42 + i))
    for i in (0, 1):
        A('v_mul_f32 v%d, v%d, v%d' % (40 + i, 40 + i, 42 + i))
    A('v_cvt_pk_bf16_f32 v42, v40, v41')
    unpack(40, 42)
    get_tag()
    t = A('ds_write_b64 v14, v[40:41]')
    A.wait(lg=t)
    for i in range(4):
        t = A('ds_read_b128 %s, v15 offset:%d' % (vr(40 + 4 * i, 4), 16 * i))
    A.wait(lg=t)
    for i in range(16):
        A.wait(vm=tw[i])
        for d in range(4):
            unpack(128 + 2 * d, 64 + 4 * i + d)
        s = i & 1
        for d in range(4):
            A('v_pk_fma_f32 %s, %s, %s, %s op_sel:[0,%d,0] op_sel_hi:[1,%d,1]' % (
                vr(56 + 2 * d, 2), vr(128 + 2 * d, 2), vr(40 + (i & ~1), 2), vr(56 + 2 * d, 2), s, s))
    for i in range(4):
        A('v_permlane32_swap_b32 v%d, v%d' % (56 + i, 60 + i))
    for i in range(4):
        A('v_add_f32 v%d, v%d, v%d' % (56 + i, 56 + i, 60 + i))
    for i in range(2):
        A('v_permlane16_swap_b32 v%d, v%d' % (56 + i, 58 + i))
    for i in range(2):
        A('v_add_f32 v%d, v%d, v%d' % (56 + i, 56 + i, 58 + i))
    for i in range(2):
        A('v_add_f32_dpp v%d, v%d, v%d row_ror:8 row_mask:0xf bank_mask:0xf' % (58 + i, 56 + i, 56 + i))
    A('v_lshrrev_b32 v11, 4, %s' % vLANE)
    A('v_lshl_add_u32 v11, v8, 2, v11')
    A('s_lshl_b32 %s, %s, 8' % (t1, sW))
    A('s_add_u32 %s, %s, %d' % (t1, t1, L_SCR + 3072))
    A('v_lshl_add_u32 v11, v11, 3, %s' % t1)
    t = A('ds_write_b64 v11, v[58:59]')
    A('v_and_b32 v12, 31, %s' % vLANE)
    A('v_lshlrev_b32 v12, 3, v12')
    A('v_add_u32 v13, %d, v12' % (L_SCR + 3072))
    A.wait(lg=t)
    A('s_barrier')
    S2 = A.label('modpub')
    A('s_cmp_lg_u32 %s, 0' % sW)
    A('s_cbranch_scc1 ' + S2)
    for i in range(4):
        t = A('ds_read_b64 %s, v13 offset:%d' % (vr(40 + 2 * i, 2), 256 * i))
    A('s_lshr_b32 %s, %s, 3' % (t1, t5))
    A('s_cmp_eq_u32 %s, 1' % t1)
    A('s_cselect_b32 %s, 1.0, 0' % t2)
    A('s_cmp_eq_u32 %s, 4' % t1)
    A('s_cselect_b32 %s, 1.0, %s' % (t2, t2))
    A('s_lshl_b32 %s, %s, 8' % (t1, t5))
    A('s_add_u32 %s, %s, %d' % (t1, t1, WS_MOD))
    A.wait(lg=t)
    A('v_pk_add_f32 v[40:41], v[40:41], v[42:43]')
    A('v_pk_add_f32 v[44:45], v[44:45], v[46:47]')
    A('v_pk_add_f32 v[40:41], v[40:41], v[44:45]')
    A('v_cvt_pk_bf16_f32 v42, v40, v41')
    unpack(40, 42)
    A('v_add_f32 v40, %s, v40' % t2)
    A('v_add_f32 v41, %s, v41' % t2)
    A('v_cvt_pk_bf16_f32 v42, v40, v41')
    A('v_mov_b32 v43, %s' % sTAG)
    A('s_mov_b64 exec, 0xffffffff')
    A('buffer_store_dwordx2 v[42:43], v12, %s, %s offen sc1' % (SRD_WS, t1))
    A('s_mov_b64 exec, -1')
    A(S2 + ':')
    A(SK + ':')


def prep_issue():
    A('v_lshrrev_b32 v11, 2, %s' % vLANE)
    A('v_and_b32 v11, 7, v11')
    A('v_lshlrev_b32 v11, 10, v11')
    A('v_lshrrev_b32 v12, 5, %s' % vLANE)
    A('v_lshl_add_u32 v11, v12, 6, v11')
    A('v_and_b32 v12, 3, %s' % vLANE)
    A('v_lshl_add_u32 v11, v12, 4, v11')
    A('s_lshl_b32 %s, %s, 2' % (t0, sJ))
    A('s_add_u32 %s, %s, %s' % (t0, t0, sW))
    A('s_sub_u32 %s, %s, 16' % (t0, t0))
    A('s_lshl_b32 %s, %s, 14' % (t0, t0))
    A('s_cmp_lt_u32 %s, 4' % sJ)
    A('s_cselect_b32 %s, 0, %s' % (t0, t0))
    A('s_cselect_b32 %s, 0x40000000, 0' % t3)
    A('v_add_u32 v12, %s, v11' % t3)
    A('s_lshl_b32 %s, %s, 7' % (t1, sX))
    A('s_add_u32 %s, %s, %s' % (t0, t0, t1))
    A('s_lshl_b32 %s, %s, 11' % (t2, sW))
    A('s_add_u32 %s, %s, %d' % (t2, t2, L_KV))
    dma('v12', SRD_W2, t0, t2)
    A('s_add_u32 %s, %s, 8192' % (t0, t0))
    A('s_add_u32 %s, %s, 1024' % (t2, t2))
    dma('v12', SRD_W2, t0, t2)
    A('s_lshl_b32 %s, %s, 14' % (t0, sJ))
    A('s_cmp_lg_u32 %s, 3' % sW)
    A('s_cselect_b32 %s, 0x40000000, 0' % t3)
    A('v_add_u32 v13, %s, v11' % t3)
    A('s_add_u32 %s, %s, %s' % (t0, t0, t1))
    A('s_add_u32 %s, %s, %d' % (t2, t2, 8192 - 1024))
    dma('v13', SRD_WO, t0, t2)
    A('s_add_u32 %s, %s, 8192' % (t0, t0))
    A('s_add_u32 %s, %s, 1024' % (t2, t2))
    return dma('v13', SRD_WO, t0, t2)


def wqkv_dma(tiles):
    A('v_lshrrev_b32 v12, 2, %s' % vLANE)
    A('v_mul_u32_u24 v12, 3072, v12')
    A('v_and_b32 v13, 3, %s' % vLANE)
    A('v_lshl_add_u32 v12, v13, 4, v12')
    t = None
    for tile in tiles:
        col = {0: 1024, 1: 2048, 2: 0}[tile]
        A('s_mul_i32 %s, %s, %d' % (t0, sW, 128 * 3072))
        A('s_lshl_b32 %s, %s, 6' % (t1, sM))
        A('s_add_u32 %s, %s, %s' % (t0, t0, t1))
        A('s_add_u32 %s, %s, %d' % (t0, t0, col))
        A('s_lshl_b32 %s, %s, 13' % (t2, sW))
        A('s_add_u32 %s, %s, %d' % (t2, t2, tile * 32768))
        for i in range(8):
            t = dma('v12', SRD_WQKV, t0, t2)
            if i < 7:
                A('s_add_u32 %s, %s, %d' % (t0, t0, 16 * 3072))
                A('s_add_u32 %s, %s, 1024' % (t2, t2))
    return t


def ln1_stats(tx):
    A.wait(vm=tx, force=True)
    for i in range(8):
        unpack(24 + 2 * i, 16 + i)
    A('v_pk_add_f32 v[40:41], v[24:25], v[26:27]')
    A('v_pk_mul_f32 v[42:43], v[24:25], v[24:25]')
    A('v_pk_fma_f32 v[42:43], v[26:27], v[26:27], v[42:43]')
    for i in range(2, 8):
        A('v_pk_add_f32 v[40:41], v[40:41], %s' % vr(24 + 2 * i, 2))
        A('v_pk_fma_f32 v[42:43], %s, %s, v[42:43]' % (vr(24 + 2 * i, 2), vr(24 + 2 * i, 2)))
    A('v_add_f32 v40, v40, v41')
    A('v_add_f32 v42, v42, v43')
    A('v_permlane32_swap_b32 v40, v42')
    A('v_add_f32 v40, v40, v42')
    A('v_mov_b32 v41, v40')
    A('v_permlane16_swap_b32 v40, v41')
    A('v_add_f32 v40, v40, v41')
    A('v_add_f32_dpp v41, v40, v40 row_ror:8 row_mask:0xf bank_mask:0xf')
    A('v_lshrrev_b32 v12, 5, %s' % vLANE)
    A('v_lshl_add_u32 v12, v12, 3, v8')
    A('s_lshl_b32 %s, %s, 2' % (t0, sW))
    A('s_add_u32 %s, %s, %d' % (t0, t0, L_SCR))
    A('v_lshl_add_u32 v12, v12, 4, %s' % t0)
    t = A('ds_write_b32 v12, v41')
    A('v_lshlrev_b32 v13, 4, v8')
    A('v_add_u32 v13, %d, v13' % L_SCR)
    A.wait(lg=t)
    A('s_barrier')
    A('ds_read_b128 v[40:43], v13')
    t = A('ds_read_b128 v[44:47], v13 offset:128')
    A.wait(lg=t)
    A('v_pk_add_f32 v[40:41], v[40:41], v[42:43]')
    A('v_pk_add_f32 v[44:45], v[44:45], v[46:47]')
    A('v_add_f32 v40, v40, v41')
    A('v_add_f32 v44, v44, v45')
    A('v_mul_f32 v40, 0x3b000000, v40')
    A('v_mul_f32 v44, 0x3b000000, v44')
    A('v_fma_f32 v44, -v40, v40, v44')
    A('v_max_f32 v44, 0, v44')
    A('v_add_f32 v44, 0x3727c5ac, v44')
    A('v_rsq_f32 v42, v44')
    A('v_mul_f32 v43, -v40, v42')
    for i in range(8):
        A('v_pk_fma_f32 %s, %s, v[42:43], v[42:43] op_sel:[0,0,1] op_sel_hi:[1,0,1]' % (vr(24 + 2 * i, 2), vr(24 + 2 * i, 2)))


def prep_finish(tp):
    A('v_and_b32 v11, 1, %s' % vLANE)
    A('v_lshlrev_b32 v11, 5, v11')
    A('v_bfe_u32 v12, %s, 1, 1' % vLANE)
    A('v_lshl_add_u32 v11, v12, 3, v11')
    A('v_bfe_u32 v12, %s, 4, 1' % vLANE)
    A('v_lshl_add_u32 v11, v12, 4, v11')
    A('v_bfe_u32 v12, %s, 2, 2' % vLANE)
    A('v_lshl_add_u32 v11, v12, 6, v11')
    A('s_lshl_b32 %s, %s, 11' % (t2, sW))
    A('s_add_u32 %s, %s, %d' % (t2, t2, L_KV))
    A('v_add_u32 v11, %s, v11' % t2)
    A('v_lshrrev_b32 v12, 5, %s' % vLANE)
    A('v_lshl_add_u32 v13, v12, 10, v11')
    A('v_lshl_add_u32 v14, v12, 8, v11')
    A.wait(vm=tp)
    for nt in range(2):
        for half in range(2):
            A('ds_read_b64_tr_b16 %s, v13 offset:%d' % (vr(48 + 4 * nt + 2 * half, 2), nt * 512 + half * 256))
    for nt in range(2):
        for half in range(2):
            t = A('ds_read_b64_tr_b16 %s, v14 offset:%d' % (vr(56 + 4 * nt + 2 * half, 2), 8192 + nt * 512 + half * 1024))
    A('s_mul_i32 %s, %s, 112' % (t0, sX))
    A('s_lshl_b32 %s, %s, 2' % (t1, sJ))
    A('s_add_u32 %s, %s, %s' % (t0, t0, t1))
    A('s_add_u32 %s, %s, %s' % (t0, t0, sW))
    A('s_lshl_b32 %s, %s, 11' % (t0, t0))
    A('s_add_u32 %s, %s, %d' % (t0, t0, WS_W2T - 16 * 2048))
    A('s_cmp_lt_u32 %s, 4' % sJ)
    A('s_cselect_b32 %s, 0x40000000, 0' % t3)
    A('v_add_u32 v11, %s, %s' % (t3, vL16))
    A('s_lshl_b32 %s, %s, 11' % (t1, sLID))
    A('s_add_u32 %s, %s, %d' % (t1, t1, WS_WOT))
    A('s_cmp_lg_u32 %s, 3' % sW)
    A('s_cselect_b32 %s, 0x40000000, 0' % t3)
    A('v_add_u32 v12, %s, %s' % (t3, vL16))
    A.wait(lg=t)
    A('buffer_store_dwordx4 v[48:51], v11, %s, %s offen sc1' % (SRD_WS, t0))
    A('buffer_store_dwordx4 v[52:55], v11, %s, %s offen offset:1024 sc1' % (SRD_WS, t0))
    A('buffer_store_dwordx4 v[56:59], v12, %s, %s offen sc1' % (SRD_WS, t1))
    A('buffer_store_dwordx4 v[60:63], v12, %s, %s offen offset:1024 sc1' % (SRD_WS, t1))


def h_phase():
    A('v_and_b32 v11, 31, %s' % vLANE)
    A('v_lshlrev_b32 v11, 4, v11')
    A('v_lshrrev_b32 v12, 5, %s' % vLANE)
    A('v_lshl_add_u32 v11, v12, 11, v11')
    A('s_lshl_b32 %s, %s, 9' % (t0, sW))
    A('s_add_u32 %s, %s, %d' % (t1, t0, L_SCR + 4096))
    A('s_add_u32 %s, %s, %d' % (t0, t0, WS_MOD))
    A('v_lshl_add_u32 v12, %s, 3, %s' % (vLANE, t1))
    A('v_lshl_add_u32 v13, v9, 4, %s' % t1)
    A('v_lshlrev_b32 v14, 9, v9')
    A('v_lshl_add_u32 v14, v8, 4, v14')
    A('s_lshr_b32 %s, %s, 2' % (t2, sLID))
    A('s_lshl_b32 %s, %s, 15' % (t3, t2))
    A('s_and_b32 %s, %s, 3' % (t4, sJ))
    A('s_lshl_b32 %s, %s, 7' % (t5, t4))
    A('s_add_u32 %s, %s, %s' % (t3, t3, t5))
    A('s_lshl_b32 %s, %s, 13' % (t5, sW))
    A('s_add_u32 %s, %s, %s' % (t3, t3, t5))
    A('s_add_u32 %s, %s, %d' % (t3, t3, WS_H))
    A('s_lshl_b32 %s, %s, 8' % (t2, t2))
    A('s_lshl_b32 %s, %s, 4' % (t4, t4))
    A('s_add_u32 %s, %s, %s' % (t2, t2, t4))
    A('s_lshl_b32 %s, %s, 2' % (t4, sW))
    A('s_add_u32 %s, %s, %s' % (t2, t2, t4))
    A('s_add_u32 %s, %s, %d' % (t2, t2, WS_FA))
    A('s_lshl_b32 %s, %s, 7' % (sPB, sLID))
    A('s_add_u32 %s, %s, %s' % (sPB, sPB, t4))
    A('s_add_u32 %s, %s, %d' % (sPB, sPB, WS_FBH))
    L, D = A.label('pmod'), A.label('dmod')
    A('s_mov_b32 %s, 0' % sCNT)
    A(L + ':')
    A('buffer_load_dwordx4 v[40:43], v11, %s, %s offen sc1' % (SRD_WS, t0))
    A('s_add_u32 %s, %s, 1' % (sCNT, sCNT))
    A('s_waitcnt vmcnt(0)')
    A('v_cmp_ne_u32 vcc, %s, v41' % sTAG)
    A('v_cmp_ne_u32 %s, %s, v43' % (sMASK, sTAG))
    A('s_or_b64 vcc, vcc, %s' % sMASK)
    A('s_cbranch_scc0 ' + D)
    A('s_cmp_lt_u32 %s, %d' % (sCNT, LIMIT))
    A('s_cbranch_scc1 ' + L)
    A(D + ':')
    A.vm_done = A.vm
    stamp('mod seen')
    t = A('ds_write2_b32 v12, v40, v42 offset0:0 offset1:1')
    A.wait(lg=t)
    tr = []
    for i in range(2):
        A('ds_read_b128 %s, v13 offset:%d' % (vr(40 + 8 * i, 4), 128 * i))
        tr.append(A('ds_read_b128 %s, v13 offset:%d' % (vr(44 + 8 * i, 4), 256 + 128 * i)))
    for i in range(2):
        A.wait(lg=tr[i])
        for d in range(4):
            unpack(56, 40 + 8 * i + d)
            unpack(58, 44 + 8 * i + d)
            x = 24 + 8 * i + 2 * d
            A('v_pk_fma_f32 v[60:61], %s, v[58:59], v[56:57]' % vr(x, 2))
            A('v_cvt_pk_bf16_f32 v%d, v60, v61' % (16 + 4 * i + d))
        A('buffer_store_dwordx4 %s, v14, %s, %s offen sc1' % (vr(16 + 4 * i, 4), SRD_WS, t3))
        if i == 0:
            A('s_add_u32 %s, %s, 4096' % (t3, t3))
    A.wait(vm='all')
    flag_store(t2, False)


def qkv():
    A('s_lshl_b32 %s, %s, 8' % (t0, sT))
    A('s_add_u32 %s, %s, %d' % (t0, t0, WS_FA))
    A('v_lshl_add_u32 v10, %s, 2, %s' % (vLANE, t0))
    A('s_lshl_b32 %s, %s, 9' % (t0, sT))
    A('s_add_u32 %s, %s, %d' % (t0, t0, WS_FBH))
    A('v_bfe_u32 v11, %s, 2, 2' % vLANE)
    A('v_lshl_add_u32 v11, v11, 7, %s' % t0)
    A('v_and_b32 v12, 3, %s' % vLANE)
    A('v_lshl_add_u32 v11, v12, 2, v11')
    A('s_mov_b64 %s, 0xffff' % sMASK)
    A('v_lshlrev_b32 v13, 3, v12')
    A('v_bfe_u32 v12, %s, 4, 1' % vLANE)
    A('v_lshl_add_u32 v13, v12, 5, v13')
    A('v_bfe_u32 v12, %s, 2, 2' % vLANE)
    A('v_lshl_add_u32 v13, v12, 6, v13')
    A('v_lshrrev_b32 v12, 5, %s' % vLANE)
    A('v_lshl_add_u32 v13, v12, 9, v13')
    A('v_add_u32 v14, 65536, v13')
    A('s_barrier')
    RING = 4
    rd = {}

    def bread(s):
        b = 64 + 8 * (s % RING)
        for tile in range(2):
            for half in range(2):
                rd[s] = A('ds_read_b64_tr_b16 %s, v13 offset:%d' % (vr(b + 4 * tile + 2 * half, 2), tile * 32768 + s * 1024 + half * 256))
    for s in range(RING - 1):
        bread(s)
    A('s_lshl_b32 %s, %s, 15' % (t0, sT))
    A('s_add_u32 %s, %s, %d' % (t0, t0, WS_H))
    poll_dual('v10', 'v11', 'v15', 'h')
    stamp('h seen')
    ta = []
    for s in range(32):
        ta.append(A('buffer_load_dwordx4 %s, %s, %s, %s offen offset:%d sc1' % (vr(128 + 4 * s, 4), vL16, SRD_WS, t0, (s & 3) * 1024)))
        if s & 3 == 3 and s < 31:
            A('s_add_u32 %s, %s, 4096' % (t0, t0))
    flag_store(sPB, True)
    for s in range(32):
        b = 64 + 8 * (s % RING)
        if s + RING - 1 < 32:
            bread(s + RING - 1)
        A.wait(vm=ta[s], lg=rd[s])
        a = vr(128 + 4 * s, 4)
        A('%s v[16:31], %s, %s, %s' % (MF32, vr(b, 4), a, 'v[16:31]' if s else '0'))
        A('%s v[32:47], %s, %s, %s' % (MF32, a, vr(b + 4, 4), 'v[32:47]' if s else '0'))
    stamp('kv pass')
    rq = {}

    def qread(s):
        b = 64 + 4 * (s % 8)
        for half in range(2):
            rq[s] = A('ds_read_b64_tr_b16 %s, v14 offset:%d' % (vr(b + 2 * half, 2), s * 1024 + half * 256))
    for s in range(6):
        qread(s)
    A('s_lshl_b32 %s, %s, 4' % (t0, sT))
    A('s_add_u32 %s, %s, %s' % (t0, t0, sM))
    A('s_lshl_b32 %s, %s, 6' % (t4, t0))
    A('s_add_u32 %s, %s, %d' % (t4, t4, WS_FBKV))
    A('s_lshl_b32 %s, %s, 12' % (t0, t0))
    A('s_add_u32 %s, %s, %d' % (t0, t0, WS_KV))
    A('s_lshl_b32 %s, %s, 12' % (t1, sW))
    A('s_add_u32 %s, %s, %d' % (t1, t1, L_KV))
    A('v_add_u32 v4, %s, %s' % (t1, vL16))
    for p in range(4):
        for d in range(4):
            A('v_cvt_pk_bf16_f32 v%d, v%d, v%d' % (96 + 4 * p + d, 16 + 8 * p + 2 * d, 17 + 8 * p + 2 * d))
        tst = A('buffer_store_dwordx4 %s, %s, %s, %s offen offset:%d sc1' % (vr(96 + 4 * p, 4), vL16, SRD_WS, t0, p * 1024))
    A('s_lshl_b32 %s, %s, 12' % (t2, sCT))
    A('s_add_u32 %s, %s, %d' % (t2, t2, WS_FBH))
    A('v_and_b32 v10, 31, %s' % vLANE)
    A('v_lshlrev_b32 v10, 7, v10')
    A('v_lshlrev_b32 v11, 4, v0')
    A('s_mov_b32 %s, %d' % (t3, WS_MOD + 4096))
    A('s_mov_b32 %s, %d' % (t5, WS_MOD + 8192))

    def chk_loads():
        A('buffer_load_dwordx4 v[112:115], v10, %s, %s offen sc1' % (SRD_WS, t2))
        A('buffer_load_dwordx4 v[116:119], v11, %s, %s offen sc1' % (SRD_WS, t3))
        A('buffer_load_dwordx4 v[120:123], v11, %s, %s offen sc1' % (SRD_WS, t5))
    chk_loads()
    for p in range(4):
        A('ds_write_b128 v4, %s offset:%d' % (vr(96 + 4 * p, 4), 8 * 4096 + p * 1024))
    for s in range(32):
        if s + 6 < 32:
            qread(s + 6)
        A.wait(lg=rq[s])
        A('%s v[48:63], %s, %s, %s' % (MF32, vr(64 + 4 * (s % 8), 4), vr(128 + 4 * s, 4), 'v[48:63]' if s else '0'))
        if s == 20:
            A.wait(vm=tst)
            flag_store(t4, True)
    stamp('q pass')
    L, D = A.label('pchk'), A.label('dchk')
    A('s_mov_b32 %s, 0' % sCNT)
    A('s_waitcnt vmcnt(1)')
    A(L + ':')
    A('v_cmp_ne_u32 vcc, %s, v112' % sTAG)
    for r in (113, 114, 115, 117, 119, 121, 123):
        A('v_cmp_ne_u32 %s, %s, v%d' % (sMASK, sTAG, r))
        A('s_or_b64 vcc, vcc, %s' % sMASK)
    A('s_cbranch_scc0 ' + D)
    A('s_add_u32 %s, %s, 1' % (sCNT, sCNT))
    A('s_cmp_ge_u32 %s, %d' % (sCNT, LIMIT))
    A('s_cbranch_scc1 ' + D)
    vm_save = A.vm
    chk_loads()
    A.vm = vm_save
    A('s_waitcnt vmcnt(0)')
    A('s_branch ' + L)
    A(D + ':')
    A('v_mov_b32 v5, v116')
    A('v_mov_b32 v6, v118')
    A('v_mov_b32 v7, v120')
    A('v_mov_b32 v8, v122')
    A('s_mov_b32 %s, 0x3eb8aa3b' % t0)
    for i in range(16):
        A('v_mul_f32 v%d, %s, v%d' % (48 + i, t0, 48 + i))
    A.wait(lg='all')
    for i in range(8):
        A('v_cvt_pk_bf16_f32 v%d, v%d, v%d' % (96 + i, 48 + 2 * i, 49 + 2 * i))
    A('s_barrier')


W1V = 104


def w1_addr():
    for i in range(7):
        A('v_add_u32 v10, %d, %s' % (64 * i, vLANE))
        A('v_mul_u32_u24 v11, 4682, v10')
        A('v_lshrrev_b32 v11, 16, v11')
        A('v_mul_u32_u24 v12, 14, v11')
        A('v_sub_u32 v10, v10, v12')
        A('v_mul_u32_u24 v11, 3584, v11')
        A('v_lshl_add_u32 v%d, v10, 4, v11' % (W1V + i))


def w1_dma(g):
    A('s_mul_i32 %s, %s, %d' % (t0, sW, 32 * 3584))
    A('s_mul_i32 %s, %s, 224' % (t1, sM))
    A('s_add_u32 %s, %s, %s' % (t0, t0, t1))
    A('s_add_u32 %s, %s, %d' % (t0, t0, g * 128 * 3584))
    A('s_mul_i32 %s, %s, 7168' % (t1, sW))
    A('s_add_u32 %s, %s, %d' % (t1, t1, g * 4 * 7168))
    for i in range(7):
        t = dma('v%d' % (W1V + i), SRD_W1, t0, t1)
        if i < 6:
            A('s_add_u32 %s, %s, 1024' % (t1, t1))
    return t


vB0, vB1 = 'v111', 'v112'


def wfrag_addr():
    A('s_lshl_b32 %s, %s, 10' % (t0, sB))
    A('v_add_u32 %s, %s, %s' % (vB0, t0, vL16))
    A('v_xor_b32 %s, 1024, %s' % (vB1, vB0))


def wo_frag_loads():
    A('s_lshl_b32 %s, %s, 16' % (t0, sCT))
    A('s_lshl_b32 %s, %s, 14' % (t1, sW))
    A('s_add_u32 %s, %s, %s' % (t0, t0, t1))
    A('s_add_u32 %s, %s, %d' % (t0, t0, WS_WOT))
    for i in range(8):
        A('buffer_load_dwordx4 %s, %s, %s, %s offen offset:%d sc1' % (ar(192 + 8 * i, 4), vB0, SRD_WS, t0, (i & 1) * 2048))
        t = A('buffer_load_dwordx4 %s, %s, %s, %s offen offset:%d sc1' % (ar(196 + 8 * i, 4), vB1, SRD_WS, t0, (i & 1) * 2048))
        if i & 1:
            A('s_add_u32 %s, %s, 4096' % (t0, t0))
    return t


def w2_frag_loads(k0, k1):
    A('s_mul_i32 %s, %s, %d' % (t0, sCT, 112 * 2048))
    A('s_mul_i32 %s, %s, %d' % (t1, sW, 28 * 2048))
    A('s_add_u32 %s, %s, %s' % (t0, t0, t1))
    A('s_add_u32 %s, %s, %d' % (t0, t0, WS_W2T + k0 * 2048))
    t = None
    for i in range(k0, k1):
        o = ((i - k0) & 1) * 2048
        A('buffer_load_dwordx4 %s, %s, %s, %s offen offset:%d sc1' % (ar(8 * i, 4), vB0, SRD_WS, t0, o))
        t = A('buffer_load_dwordx4 %s, %s, %s, %s offen offset:%d sc1' % (ar(8 * i + 4, 4), vB1, SRD_WS, t0, o))
        if (i - k0) & 1:
            A('s_add_u32 %s, %s, 4096' % (t0, t0))
    return t


XT = 240
vXO = 'v113'


def xtile_load():
    A('s_add_u32 %s, %s, %s' % (t0, sT0, sA))
    A('s_lshl_b32 %s, %s, 15' % (t0, t0))
    A('s_lshl_b32 %s, %s, 7' % (t1, sCT))
    A('s_add_u32 %s, %s, %s' % (t0, t0, t1))
    A('s_lshl_b32 %s, %s, 6' % (t1, sB))
    A('s_add_u32 %s, %s, %s' % (t0, t0, t1))
    A('v_and_b32 v10, 31, %s' % vLANE)
    A('v_lshl_add_u32 v10, v10, 10, %s' % t0)
    A('v_lshrrev_b32 v11, 5, %s' % vLANE)
    A('v_lshl_add_u32 %s, v11, 5, v10' % vXO)
    A('buffer_load_dwordx4 %s, %s, %s, 0 offen' % (vr(XT, 4), vXO, SRD_X))
    return A('buffer_load_dwordx4 %s, %s, %s, 0 offen offset:16' % (vr(XT + 4, 4), vXO, SRD_X))


Q0, Q1 = 96, 100
MD, MFAR = 128, 144
S0, S1 = 160, 176
P0, P1 = 192, 200
O0, O1 = 208, 224
K0, K1 = 64, 68
V0, V1 = 72, 80


def kv_off(d, piece):
    return (8 - d) * 4096 + piece * 1024


def attention():
    w1_addr()
    wfrag_addr()
    w1_dma(0)
    w1_dma(1)
    A('v_and_b32 v10, 31, %s' % vLANE)
    A('v_lshrrev_b32 v11, 5, %s' % vLANE)
    A('v_lshlrev_b32 v11, 2, v11')
    A('v_sub_u32 v10, v10, v11')
    A('v_mov_b32 v12, 0xff800000')
    for r in range(16):
        key = (r & 3) + 8 * (r >> 2)
        A('v_cmp_le_i32 vcc, %d, v10' % key)
        A('v_cndmask_b32 v%d, v12, 0, vcc' % (MD + r))
        A('v_cndmask_b32 v%d, 0, v12, vcc' % (MFAR + r))
    for r in range(16):
        A('v_mov_b32 v%d, 0x3f803f80' % (V0 + r))
    for r in range(16):
        A('v_mov_b32 v%d, 0' % (O0 + r))
        A('v_mov_b32 v%d, 0' % (O1 + r))
    for r in range(4):
        A('v_mov_b32 v%d, 0' % (P1 + 4 + r))

    def cop(d):
        return vr(MD, 16) if d == 0 else vr(MFAR, 16) if d == 8 else '0'

    def rdK(h, d):
        return A('ds_read_b128 %s, v4 offset:%d' % (vr((K0, K1)[h], 4), kv_off(d, h)))

    def rdV(h, d):
        A('s_mov_b64 exec, %s' % (sLO, sHI)[h])
        A('ds_read_b128 %s, v4 offset:%d' % (vr((V0, V1)[h], 4), kv_off(d, 2)))
        t = A('ds_read_b128 %s, v4 offset:%d' % (vr((V0, V1)[h] + 4, 4), kv_off(d, 3)))
        A('s_mov_b64 exec, -1')
        return t

    def pipe_prologue(d):
        t = rdK(0, d)
        rdK(1, d)
        rdV(0, d)
        A.wait(lg=t)
        A('%s %s, %s, %s, %s' % (MF32, vr(S0, 16), vr(K0, 4), vr(Q0, 4), cop(d)))
        A.wait(lg='all')

    def half(h, d):
        S, P, O, V = (S0, S1)[h], (P0, P1)[h], (O0, O1)[h], (V0, V1)[h]
        oS, oP, oO, oV, oK, oQ = (S1, S0)[h], (P1, P0)[h], (O1, O0)[h], (V1, V0)[h], (K1, K0)[h], (Q1, Q0)[h]
        od = d if h == 0 else d + 1
        A.wait(lg='all')
        if od <= 8:
            A('%s %s, %s, %s, %s' % (MF32, vr(oS, 16), vr(oK, 4), vr(oQ, 4), cop(od)))
        for i in range(4):
            A('v_exp_f32 v%d, v%d' % (S + i, S + i))
            if i == 0 and d + 1 <= 8:
                rdK(h, d + 1)
        A('%s %s, %s, %s, %s' % (MF32, vr(oO, 16), vr(oV + 4, 4), vr(oP + 4, 4), vr(oO, 16)))
        if od <= 8:
            rdV(1 - h, od)
        for i in range(4, 8):
            A('v_exp_f32 v%d, v%d' % (S + i, S + i))
        for i in range(4):
            A('v_cvt_pk_bf16_f32 v%d, v%d, v%d' % (P + i, S + 2 * i, S + 2 * i + 1))
        for i in range(8, 10):
            A('v_exp_f32 v%d, v%d' % (S + i, S + i))
        A('%s %s, %s, %s, %s' % (MF32, vr(O, 16), vr(V, 4), vr(P, 4), vr(O, 16)))
        for i in range(10, 16):
            A('v_exp_f32 v%d, v%d' % (S + i, S + i))
        for i in range(4, 8):
            A('v_cvt_pk_bf16_f32 v%d, v%d, v%d' % (P + i, S + 2 * i, S + 2 * i + 1))

    pipe_prologue(0)
    IT = [A.label('it%d' % d) for d in range(9)]
    CHK = [A.label('chk%d' % d) for d in range(4)]
    REM, END = A.label('rem'), A.label('attend')
    for d in range(9):
        A(IT[d] + ':')
        half(0, d)
        half(1, d)
        if d < 4:
            A('s_cmp_eq_u32 %s, %d' % (sW, d))
            A('s_cbranch_scc1 ' + REM)
        if d < 8:
            A('s_cmp_eq_u32 %s, %d' % (sT, d))
            A('s_cbranch_scc1 ' + END)
    A('s_branch ' + END)
    A(REM + ':')
    stamp('local att')
    NOREM = A.label('norem')
    A('s_cmp_lt_u32 %s, 4' % sT)
    A('s_cbranch_scc1 ' + NOREM)
    A('s_sub_u32 %s, %s, 4' % (t0, sT))
    A('s_sub_u32 %s, %s, 8' % (t1, sT))
    A('s_cmp_lt_u32 %s, 8' % sT)
    A('s_cselect_b32 %s, %s, %s' % (t1, t0, t1))
    for t in (t0, t1):
        A('s_lshl_b32 %s, %s, 4' % (t, t))
        A('s_add_u32 %s, %s, %s' % (t, t, sM))
    A('v_mov_b32 v10, %s' % t0)
    A('v_mov_b32 v11, %s' % t1)
    A('v_cndmask_b32 v10, v10, v11, %s' % sLO)
    A('v_lshlrev_b32 v10, 6, v10')
    A('s_mov_b32 %s, %d' % (t2, WS_FBKV))
    L, D = A.label('pkv'), A.label('dkv')
    A('s_mov_b32 %s, 0' % sCNT)
    A(L + ':')
    A('buffer_load_dword v11, v10, %s, %s offen sc1' % (SRD_WS, t2))
    A('s_add_u32 %s, %s, 1' % (sCNT, sCNT))
    A('s_waitcnt vmcnt(0)')
    A('v_cmp_ne_u32 vcc, %s, v11' % sTAG)
    A('s_cbranch_vccz ' + D)
    A('s_cmp_lt_u32 %s, %d' % (sCNT, LIMIT))
    A('s_cbranch_scc1 ' + L)
    A(D + ':')
    stamp('kv seen')
    A('s_lshl_b32 %s, %s, 12' % (t2, sW))
    for t, slot in ((t0, 4), (t1, 0)):
        A('s_lshl_b32 %s, %s, 12' % (t, t))
        A('s_add_u32 %s, %s, %d' % (t, t, WS_KV))
        A('s_add_u32 m0, %s, %d' % (t2, L_KV + slot * 4096))
        for p in range(4):
            A('buffer_load_dwordx4 %s, %s, %s offen offset:%d sc1 lds' % (vL16, SRD_WS, t, p * 1024))
    A(NOREM + ':')
    tkv = A.vm
    A.vm_done = 0
    w1_dma(2)
    w1_dma(3)
    wo_frag_loads()
    xtile_load()
    A.wait(vm=tkv, lg='all', force=True)
    A('s_barrier')
    stamp('kv loaded')
    A('s_cmp_eq_u32 %s, %s' % (sT, sW))
    A('s_cbranch_scc1 ' + END)
    for d in range(4):
        if d < 3:
            A('s_cmp_lg_u32 %s, %d' % (sW, d))
            A('s_cbranch_scc1 ' + CHK[d])
        pipe_prologue(d + 1)
        A('s_branch ' + IT[d + 1])
        if d < 3:
            A(CHK[d] + ':')
    A(END + ':')
    A('%s %s, %s, %s, %s' % (MF32, vr(O1, 16), vr(V1 + 4, 4), vr(P1 + 4, 4), vr(O1, 16)))
    A('s_waitcnt lgkmcnt(0)')
    A.lg_done = A.lg
    stamp('att done')
    FB, OK = A.label('fb'), A.label('attok')
    A('s_mov_b32 %s, 0x1f800000' % t0)
    A('s_mov_b32 %s, 0x5f800000' % t1)
    A('s_mov_b32 %s, 0x7f000000' % t2)
    A('v_add_f32 v10, abs(v%d), abs(v%d)' % (O0, O0 + 1))
    for i in range(2, 8):
        A('v_add_f32 v10, v10, abs(v%d)' % (O0 + i))
    for i in range(8):
        A('v_add_f32 v10, v10, abs(v%d)' % (O1 + 8 + i))
    A('v_cmp_nlt_f32 vcc, v10, %s' % t2)
    for l in (O0 + 8, O1):
        A('v_cmp_nle_f32 %s, %s, v%d' % (sMASK, t0, l))
        A('s_or_b64 vcc, vcc, %s' % sMASK)
        A('v_cmp_nge_f32 %s, %s, v%d' % (sMASK, t1, l))
        A('s_or_b64 vcc, vcc, %s' % sMASK)
    if OPT['force_fallback']:
        A('s_branch ' + FB)
    A('s_cbranch_scc1 ' + FB)
    A(OK + ':')
    A('s_lshl_b32 %s, %s, 4' % (t0, sT))
    A('s_add_u32 %s, %s, %s' % (t0, t0, sM))
    A('s_lshl_b32 %s, %s, 6' % (sPB, t0))
    A('s_add_u32 %s, %s, %d' % (sPB, sPB, WS_FBO))
    A('s_lshl_b32 %s, %s, 11' % (t0, t0))
    A('s_add_u32 %s, %s, %d' % (t0, t0, WS_O))
    A('v_rcp_f32 v10, v%d' % (O0 + 8))
    A('v_rcp_f32 v12, v%d' % O1)
    for h, (src, rc) in enumerate(((O0, 10), (O1 + 8, 12))):
        for i in range(4):
            A('v_pk_mul_f32 %s, %s, %s op_sel_hi:[1,0]' % (vr(src + 2 * i, 2), vr(src + 2 * i, 2), vr(rc, 2)))
        for i in range(4):
            A('v_cvt_pk_bf16_f32 v%d, v%d, v%d' % (P0 + 4 * h + i, src + 2 * i, src + 2 * i + 1))
        A('buffer_store_dwordx4 %s, %s, %s, %s offen offset:%d sc1' % (vr(P0 + 4 * h, 4), vL16, SRD_WS, t0, h * 1024))
    A('s_lshl_b32 %s, %s, 8' % (t1, sT))
    A('s_lshl_b32 %s, %s, 2' % (t2, sM))
    A('s_add_u32 %s, %s, %s' % (t1, t1, t2))
    A('s_add_u32 %s, %s, %d' % (t1, t1, WS_FA + 64))
    A.wait(vm='all', force=True)
    flag_store(t1, False)
    stamp('o pub')
    return FB, OK


def attention_fallback(FB, OK):
    A(FB + ':')
    A('s_min_u32 %s, %s, 8' % (t3, sT))
    for h in range(2):
        Kp, Q, O, V = h, (Q0, Q1)[h], (O0, O1)[h], (V0, V1)[h]
        for ps in range(2):
            L, ND, NF = A.label('fl'), A.label('fnd'), A.label('fnf')
            A('s_mov_b32 %s, 0' % t4)
            A('v_add_u32 v10, %d, v4' % (8 * 4096))
            if ps == 0:
                A('v_mov_b32 v11, 0xff800000')
            else:
                for r in range(16):
                    A('v_mov_b32 v%d, 0' % (O + r))
            A(L + ':')
            A('ds_read_b128 %s, v10 offset:%d' % (vr(K0, 4), Kp * 1024))
            if ps == 1:
                A('s_mov_b64 exec, %s' % (sLO, sHI)[h])
                A('ds_read_b128 %s, v10 offset:2048' % vr(V, 4))
                A('ds_read_b128 %s, v10 offset:3072' % vr(V + 4, 4))
                A('s_mov_b64 exec, -1')
            A('s_waitcnt lgkmcnt(0)')
            A('%s %s, %s, %s, 0' % (MF32, vr(S0, 16), vr(K0, 4), vr(Q, 4)))
            A('s_nop 15')
            A('s_cmp_lg_u32 %s, 0' % t4)
            A('s_cbranch_scc1 ' + ND)
            for r in range(16):
                A('v_add_f32 v%d, v%d, v%d' % (S0 + r, S0 + r, MD + r))
            A(ND + ':')
            A('s_cmp_lg_u32 %s, 8' % t4)
            A('s_cbranch_scc1 ' + NF)
            for r in range(16):
                A('v_add_f32 v%d, v%d, v%d' % (S0 + r, S0 + r, MFAR + r))
            A(NF + ':')
            if ps == 0:
                for r in range(8):
                    A('v_max3_f32 v11, v11, v%d, v%d' % (S0 + 2 * r, S0 + 2 * r + 1))
            else:
                for r in range(16):
                    A('v_sub_f32 v%d, v%d, v11' % (S0 + r, S0 + r))
                for r in range(16):
                    A('v_exp_f32 v%d, v%d' % (S0 + r, S0 + r))
                for r in range(8):
                    A('v_cvt_pk_bf16_f32 v%d, v%d, v%d' % (P0 + r, S0 + 2 * r, S0 + 2 * r + 1))
                A('%s %s, %s, %s, %s' % (MF32, vr(O, 16), vr(V, 4), vr(P0, 4), vr(O, 16)))
                A('%s %s, %s, %s, %s' % (MF32, vr(O, 16), vr(V + 4, 4), vr(P0 + 4, 4), vr(O, 16)))
                A('s_nop 15')
            A('v_subrev_u32 v10, 4096, v10')
            A('s_add_u32 %s, %s, 1' % (t4, t4))
            A('s_cmp_le_u32 %s, %s' % (t4, t3))
            A('s_cbranch_scc1 ' + L)
            if ps == 0:
                A('v_mov_b32 v12, v11')
                A('v_permlane32_swap_b32 v11, v12')
                A('v_max_f32 v11, v11, v12')
    A('s_branch ' + OK)


def group_poll_addr(kindoff, fb):
    A('v_lshrrev_b32 v12, 5, %s' % vLANE)
    A('v_add_u32 v12, %s, v12' % sT0)
    A('v_and_b32 v13, 31, %s' % vLANE)
    A('v_lshlrev_b32 v10, 8, v12')
    A('v_lshl_add_u32 v10, v13, 2, v10')
    A('v_add_u32 v10, %d, v10' % (WS_FA + kindoff))
    A('v_and_b32 v13, 15, %s' % vLANE)
    A('v_lshl_add_u32 v11, v12, 4, v13')
    A('v_lshlrev_b32 v11, 6, v11')
    A('v_add_u32 v11, %d, v11' % fb)
    A('s_lshl_b32 %s, %s, 2' % (t0, sW))
    A('s_lshl_b32 s84, 15, %s' % t0)
    A('s_mov_b32 s85, s84')


def red_addr(base):
    A('s_xor_b32 %s, %s, 1' % (t0, sW))
    A('s_lshl_b32 %s, %s, 1' % (t0, t0))
    A('s_add_u32 %s, %s, %s' % (t0, t0, sB))
    A('s_lshl_b32 %s, %s, 12' % (t0, t0))
    A('s_xor_b32 %s, %s, 16384' % (t1, t0))
    A('s_add_u32 %s, %s, %d' % (t0, t0, base))
    A('s_add_u32 %s, %s, %d' % (t1, t1, base))
    A('v_add_u32 v14, %s, %s' % (t0, vL16))
    A('v_add_u32 v13, %s, %s' % (t1, vL16))
    A('s_lshl_b32 %s, %s, 13' % (t0, sW))
    A('s_xor_b32 %s, %s, 16384' % (t1, t0))
    A('s_add_u32 %s, %s, %d' % (t0, t0, base))
    A('s_add_u32 %s, %s, %d' % (t1, t1, base))
    A('v_add_u32 v15, %s, %s' % (t0, vL16))
    A('v_add_u32 v9, %s, %s' % (t1, vL16))


def ksplit_gemm(nks, wsbase, tstride, breg, ring_base, ring_n, C, PART, after_issue=None):
    A('s_add_u32 %s, %s, %s' % (t3, sT0, sA))
    A('s_xor_b32 %s, %s, 1' % (t2, t3))
    A('s_mul_i32 %s, %s, %d' % (t4, sW, nks * 1024))
    for t in (t2, t3):
        A('s_mul_i32 %s, %s, %d' % (t, t, tstride))
        A('s_add_u32 %s, %s, %s' % (t, t, t4))
        A('s_add_u32 %s, %s, %d' % (t, t, wsbase))
    return lambda: _ksplit_body(nks, breg, ring_base, ring_n, C, PART, after_issue)


def _ksplit_body(nks, breg, ring_base, ring_n, C, PART, after_issue):
    ta = {}

    def aload(i):
        st, k = divmod(i, nks)
        so = (t2, t3)[st]
        ta[i] = A('buffer_load_dwordx4 %s, %s, %s, %s offen offset:%d sc1' % (vr(ring_base + 4 * (i % ring_n), 4), vL16, SRD_WS, so, (k & 3) * 1024))
        if k & 3 == 3:
            A('s_add_u32 %s, %s, 4096' % (so, so))
    n = 2 * nks
    first = min(ring_n, n)
    for i in range(first):
        aload(i)
    if first == n and after_issue:
        after_issue()
    tw = tr = None
    wq = []
    for i in range(n):
        st, k = divmod(i, nks)
        A.wait(vm=ta[i])
        a = vr(ring_base + 4 * (i % ring_n), 4)
        for s in range(2):
            c = vr(C[2 * st + s], 16)
            A('%s %s, %s, %s, %s' % (MF32, c, breg(k, s), a, c if k else '0'))
            if wq:
                wq.pop(0)()
        if i + ring_n < n:
            aload(i + ring_n)
            if i + ring_n == n - 1 and after_issue:
                after_issue()
        if st == 1 and k == 0:
            for s in range(2):
                for g in range(4):
                    wq.append(lambda s=s, g=g: A('ds_write_b128 %s, %s offset:%d' % (('v14', 'v13')[s], vr(C[s] + 4 * g, 4), g * 1024)))
        if st == 1 and k == 5:
            assert not wq
            A.wait(lg='all')
            A('s_barrier')
            for p in range(2):
                for g in range(4):
                    tr = A('ds_read_b128 %s, v15 offset:%d' % (vr(C[p] + 4 * g, 4), p * 4096 + g * 1024))
    A.wait(lg=tr)
    for g in range(8):
        A('v_pk_add_f32 %s, %s, %s' % (vr(C[0] + 2 * g, 2), vr(C[0] + 2 * g, 2), vr(C[1] + 2 * g, 2)))
    for g in range(4):
        tw = A('ds_write_b128 v15, %s offset:%d' % (vr(C[3] + 4 * g, 4), g * 1024))
    for g in range(8):
        A('v_pk_add_f32 %s, %s, %s' % (vr(C[2] + 2 * g, 2), vr(C[2] + 2 * g, 2), vr(C[0] + 2 * g, 2)))
    A.wait(lg=tw)
    A('s_barrier')
    for g in range(4):
        tr = A('ds_read_b128 %s, v9 offset:%d' % (vr(C[1] + 4 * g, 4), g * 1024))
    for g in range(4):
        A.wait(lg=tr - 3 + g)
        for e in range(2):
            r = 4 * g + 2 * e
            A('v_pk_add_f32 %s, %s, %s' % (vr(C[2] + r, 2), vr(C[2] + r, 2), vr(C[1] + r, 2)))


X2 = 240
GA, G2 = 208, 224


def wo_phase():
    A('s_barrier')
    A('v_lshlrev_b32 v10, 3, v0')
    A('v_add_u32 v10, %d, v10' % L_MODL)
    A('ds_write2_b32 v10, v5, v6 offset0:0 offset1:1')
    A('v_add_u32 v10, 2048, v10')
    t = A('ds_write2_b32 v10, v7, v8 offset0:0 offset1:1')
    A('s_lshl_b32 %s, %s, 7' % (t0, sCT))
    A('s_lshl_b32 %s, %s, 6' % (t1, sB))
    A('s_add_u32 %s, %s, %s' % (t0, t0, t1))
    A('s_add_u32 %s, %s, %d' % (t0, t0, L_MODL))
    A('v_lshrrev_b32 v11, 5, %s' % vLANE)
    A.wait(lg=t)
    A('v_lshl_add_u32 v5, v11, 5, %s' % t0)
    A('s_barrier')
    for i in range(2):
        A('ds_read_b128 %s, v5 offset:%d' % (vr(64 + 4 * i, 4), 16 * i))
        t = A('ds_read_b128 %s, v5 offset:%d' % (vr(72 + 4 * i, 4), 2048 + 16 * i))
    group_poll_addr(64, WS_FBO)
    red_addr(L_RED)
    A.wait(lg=t)
    for i in range(8):
        unpack(GA + 2 * i, 64 + i)
        unpack(G2 + 2 * i, 72 + i)
    for i in range(7, -1, -1):
        A('v_and_b32 v%d, 0xffff0000, v%d' % (X2 + 2 * i + 1, XT + i))
        A('v_lshlrev_b32 v%d, 16, v%d' % (X2 + 2 * i, XT + i))
    C = [16, 32, 48, 64]
    body = ksplit_gemm(8, WS_O, 32768, lambda k, s: ar(192 + 8 * k + 4 * s, 4), 128, 16, C, None,
                       after_issue=lambda: (flag_store(sPB, True), w2_frag_loads(0, W2A)))
    poll_dual('v10', 'v11', 'v12', 'o')
    stamp('o seen')
    body()
    stamp('wo gemm')
    R = C[2]
    for i in range(8):
        A('v_pk_fma_f32 %s, %s, %s, %s' % (vr(X2 + 2 * i, 2), vr(R + 2 * i, 2), vr(GA + 2 * i, 2), vr(X2 + 2 * i, 2)))
    for i in range(8):
        A('v_pk_mul_f32 %s, %s, %s' % (vr(16 + 2 * i, 2), vr(X2 + 2 * i, 2), vr(G2 + 2 * i, 2)))
    A('s_add_u32 %s, %s, %s' % (t3, sT0, sA))
    A('s_lshl_b32 %s, %s, 1' % (t4, sCT))
    A('s_add_u32 %s, %s, %s' % (t4, t4, sB))
    A('s_lshl_b32 %s, %s, 15' % (t0, t3))
    A('s_lshl_b32 %s, %s, 10' % (t1, t4))
    A('s_add_u32 %s, %s, %s' % (t0, t0, t1))
    A('s_add_u32 %s, %s, %d' % (t0, t0, WS_Y))
    A('v_and_b32 v10, 15, %s' % vLANE)
    A('v_lshlrev_b32 v10, 4, v10')
    A('v_bfe_u32 v11, %s, 4, 1' % vLANE)
    A('v_lshl_add_u32 v10, v11, 14, v10')
    A('v_lshrrev_b32 v11, 5, %s' % vLANE)
    A('v_lshl_add_u32 v10, v11, 9, v10')
    for p in range(2):
        for e in range(2):
            for d in range(2):
                r = 16 + 8 * e + 4 * p + 2 * d
                A('v_cvt_pk_bf16_f32 v%d, v%d, v%d' % (32 + 4 * p + 2 * e + d, r, r + 1))
        A('buffer_store_dwordx4 %s, v10, %s, %s offen offset:%d sc1' % (vr(32 + 4 * p, 4), SRD_WS, t0, p * 256))
    A('v_pk_add_f32 v[40:41], %s, %s' % (vr(X2, 2), vr(X2 + 2, 2)))
    A('v_pk_mul_f32 v[42:43], %s, %s' % (vr(X2, 2), vr(X2, 2)))
    A('v_pk_fma_f32 v[42:43], %s, %s, v[42:43]' % (vr(X2 + 2, 2), vr(X2 + 2, 2)))
    for i in range(2, 8):
        A('v_pk_add_f32 v[40:41], v[40:41], %s' % vr(X2 + 2 * i, 2))
        A('v_pk_fma_f32 v[42:43], %s, %s, v[42:43]' % (vr(X2 + 2 * i, 2), vr(X2 + 2 * i, 2)))
    A('v_add_f32 v40, v40, v41')
    A('v_add_f32 v42, v42, v43')
    A('s_lshl_b32 %s, %s, 4' % (t0, t3))
    A('s_add_u32 %s, %s, %s' % (t0, t0, t4))
    A('s_lshl_b32 %s, %s, 6' % (sPB, t0))
    A('s_add_u32 %s, %s, %d' % (sPB, sPB, WS_FBY))
    A('s_lshl_b32 %s, %s, 8' % (t0, t0))
    A('s_add_u32 %s, %s, %d' % (t0, t0, WS_STAT))
    A('v_permlane32_swap_b32 v40, v42')
    A('v_add_f32 v40, v40, v42')
    A('v_lshlrev_b32 v6, 2, %s' % vLANE)
    A('buffer_store_dword v40, v6, %s, %s offen sc1' % (SRD_WS, t0))
    A('s_lshl_b32 %s, %s, 8' % (t1, t3))
    A('s_lshl_b32 %s, %s, 2' % (t2, t4))
    A('s_add_u32 %s, %s, %s' % (t1, t1, t2))
    A('s_add_u32 %s, %s, %d' % (t5, t1, WS_FA + 128))
    ut_compute()
    A.wait(vm='all')
    flag_store(t5, False)
    stamp('y pub')


W2A = 8
W2B = 28


def g1_addr():
    A('v_lshrrev_b32 v10, 5, %s' % vLANE)
    A('v_lshlrev_b32 v10, 4, v10')
    A('v_bfe_u32 v11, %s, 4, 1' % vLANE)
    A('v_lshl_add_u32 v10, v11, 2, v10')
    A('v_bfe_u32 v11, %s, 2, 2' % vLANE)
    A('v_add_u32 v10, v10, v11')
    A('v_mul_u32_u24 v10, 224, v10')
    A('v_and_b32 v11, 3, %s' % vLANE)
    A('v_lshl_add_u32 v7, v11, 3, v10')
    A('v_add_u32 v8, 57344, v7')


def ut_compute():
    g1_addr()
    A('s_lshl_b32 %s, %s, 5' % (t0, sW))
    A('s_add_u32 %s, %s, 128' % (t1, t0))
    A('s_min_u32 %s, %s, 192' % (t1, t1))
    A('v_add_u32 v16, %s, v7' % t0)
    A('v_add_u32 v17, %s, v8' % t0)
    A('v_add_u32 v18, %s, v7' % t1)
    A('v_add_u32 v19, %s, v8' % t1)
    A('v_and_b32 v10, 1, %s' % vLANE)
    A('v_lshlrev_b32 v11, 10, v10')
    A('v_sub_u32 v11, %d, v11' % (L_MODL + 2048))
    A('v_lshrrev_b32 v12, 5, %s' % vLANE)
    A('v_lshl_add_u32 v11, v12, 5, v11')
    A('v_bfe_u32 v12, %s, 4, 1' % vLANE)
    A('v_lshl_add_u32 v20, v12, 3, v11')
    A('v_lshrrev_b32 v12, 4, %s' % vLANE)
    A('v_lshlrev_b32 v12, 4, v12')
    A('v_lshl_add_u32 v12, v10, 9, v12')
    A('s_lshl_b32 %s, %s, 1' % (t0, t0))
    A('s_lshl_b32 %s, %s, 1' % (t1, t1))
    A('s_add_u32 %s, %s, %d' % (t0, t0, L_UT))
    A('s_add_u32 %s, %s, %d' % (t1, t1, L_UT))
    A('v_add_u32 v21, %s, v12' % t0)
    A('v_add_u32 v22, %s, v12' % t1)
    rd = {}

    def rds(ks):
        b = 128 + 12 * (ks % 3)
        o = (ks & 7) * 7168
        A('ds_read2_b64 %s, v20 offset0:%d offset1:%d' % (vr(b, 4), 8 * ks, 8 * ks + 2))
        for n in range(2):
            for half in range(2):
                rd[ks] = A('ds_read_b64_tr_b16 %s, v%d offset:%d' % (vr(b + 4 + 4 * n + 2 * half, 2), 16 + 2 * n + (ks >> 3), o + half * 8 * 224))
    rds(0)
    rds(1)
    for ks in range(16):
        if ks + 2 < 16:
            rds(ks + 2)
        A.wait(lg=rd[ks])
        b = 128 + 12 * (ks % 3)
        for n in range(2):
            c = vr(24 + 4 * n, 4)
            A('%s %s, %s, %s, %s' % (MF16, c, vr(b + 4 + 4 * n, 4), vr(b, 4), c if ks else '0'))
    A('ds_write_b128 v21, v[24:27]')
    A('ds_write_b128 v22, v[28:31]')


def g1_phase():
    ACC, BF, YA, ST = 16, 72, 112, 100
    A('v_mov_b32 v100, %s' % vB0)
    A('v_mov_b32 v101, %s' % vB1)
    A('v_mov_b32 v102, %s' % vXO)
    globals().update(vB0='v100', vB1='v101', vXO='v102')
    A('s_lshl_b32 %s, %s, 8' % (t0, sT))
    A('s_add_u32 %s, %s, %d' % (t0, t0, WS_FA + 128))
    A('v_and_b32 v12, 31, %s' % vLANE)
    A('v_lshl_add_u32 v10, v12, 2, %s' % t0)
    A('s_lshl_b32 %s, %s, 10' % (t0, sT))
    A('s_add_u32 %s, %s, %d' % (t0, t0, WS_FBY))
    A('v_and_b32 v12, 15, %s' % vLANE)
    A('v_lshl_add_u32 v11, v12, 6, %s' % t0)
    A('s_mov_b64 %s, 0xffff' % sMASK)
    rd = {}

    def bread(ks, nt):
        for half in range(2):
            rd[ks, nt] = A('ds_read_b64_tr_b16 %s, v%d offset:%d' % (vr(BF + 4 * nt + 2 * half, 2), 7 + (ks >> 3), (ks & 7) * 7168 + half * 8 * 224 + nt * 32))
    A.wait(lg='all')
    A('s_barrier')
    for nt in range(7):
        bread(0, nt)
    A('s_lshl_b32 %s, %s, 15' % (t2, sT))
    A('s_add_u32 %s, %s, %d' % (t2, t2, WS_Y))
    A('s_add_u32 %s, %s, 16384' % (t3, t2))
    A('s_lshl_b32 %s, %s, 12' % (t4, sT))
    A('s_add_u32 %s, %s, %d' % (t4, t4, WS_STAT))
    poll_dual('v10', 'v11', 'v12', 'y')
    stamp('y seen')
    ta = {}
    for ks in range(16):
        for tt in range(2):
            so = (t2, t3)[tt]
            ta[ks, tt] = A('buffer_load_dwordx4 %s, %s, %s, %s offen offset:%d sc1' % (vr(YA + 8 * ks + 4 * tt, 4), vL16, SRD_WS, so, (ks & 3) * 1024))
            if ks & 3 == 3:
                A('s_add_u32 %s, %s, 4096' % (so, so))
    flag_store(sPB, True)
    tst = None
    for ks in range(16):
        A.wait(vm=ta[ks, 1])
        for nt in range(7):
            A.wait(lg=rd[ks, nt])
            for tt in range(2):
                c = vr(ACC + 8 * nt + 4 * tt, 4)
                A('%s %s, %s, %s, %s' % (MF16, c, vr(BF + 4 * nt, 4), vr(YA + 8 * ks + 4 * tt, 4), c if ks else '0'))
            if ks < 15:
                bread(ks + 1, nt)
        if ks == 2:
            for p in range(16):
                tst = A('buffer_load_dword v%d, v6, %s, %s offen offset:%d sc1' % (YA + p, SRD_WS, t4, p * 256))
        if ks == 6:
            w2_frag_loads(W2A, 18)
        if ks == 12:
            w2_frag_loads(18, 28)
    stamp('g1 gemm')
    A('v_lshrrev_b32 v10, 4, %s' % vLANE)
    A('v_lshlrev_b32 v10, 4, v10')
    A('v_add_u32 v10, %d, v10' % L_UT)
    U, TT = 144, 176
    tu = []
    for nt in range(7):
        A('ds_read_b128 %s, v10 offset:%d' % (vr(U + 4 * nt, 4), nt * 64))
        tu.append(A('ds_read_b128 %s, v10 offset:%d' % (vr(TT + 4 * nt, 4), 512 + nt * 64)))
    A.wait(vm=tst)
    for n in (8, 4, 2):
        for i in range(0, n, 2):
            A('v_pk_add_f32 %s, %s, %s' % (vr(YA + i, 2), vr(YA + i, 2), vr(YA + n + i, 2)))
    A('v_add_f32 v112, v112, v113')
    A('v_mul_f32 v112, 0x3b000000, v112')
    A('v_mov_b32 v113, v112')
    A('v_permlane32_swap_b32 v112, v113')
    A('v_fma_f32 v113, -v112, v112, v113')
    A('v_max_f32 v113, 0, v113')
    A('v_add_f32 v113, 0x3727c5ac, v113')
    A('v_rsq_f32 v114, v113')
    A('v_mul_f32 v115, -v112, v114')
    A('v_mov_b32 v116, v114')
    A('v_mov_b32 v117, v115')
    A('v_permlane16_swap_b32 v114, v116')
    A('v_permlane16_swap_b32 v115, v117')
    A('s_mul_i32 %s, %s, 112' % (t0, sT))
    A('s_mul_i32 %s, %s, 7' % (t1, sM))
    A('s_add_u32 %s, %s, %s' % (t0, t0, t1))
    A('s_lshl_b32 %s, %s, 10' % (t0, t0))
    A('s_add_u32 %s, %s, %d' % (t0, t0, WS_HID))
    for nt in range(7):
        A.wait(lg=tu[nt])
        o = 208 + 4 * nt
        for tt in range(2):
            rp = vr(114 + 2 * tt, 2)
            for e in range(2):
                A('v_pk_fma_f32 %s, %s, %s, %s op_sel:[0,1,0] op_sel_hi:[1,1,1]' % (vr(120 + 2 * e, 2), vr(U + 4 * nt + 2 * e, 2), rp, vr(TT + 4 * nt + 2 * e, 2)))
            for e in range(2):
                A('v_pk_fma_f32 %s, %s, %s, %s op_sel:[0,0,0] op_sel_hi:[1,0,1]' % (vr(120 + 2 * e, 2), vr(ACC + 8 * nt + 4 * tt + 2 * e, 2), rp, vr(120 + 2 * e, 2)))
            for e in range(2):
                A('v_cvt_pk_bf16_f32 v%d, v%d, v%d' % (o + 2 * tt + e, 120 + 2 * e, 121 + 2 * e))
            for e in range(2):
                A('v_pk_max_i16 v%d, v%d, 0' % (o + 2 * tt + e, o + 2 * tt + e))
        A('v_permlane16_swap_b32 v%d, v%d' % (o, o + 2))
        A('v_permlane16_swap_b32 v%d, v%d' % (o + 1, o + 3))
        A('buffer_store_dwordx4 %s, %s, %s, %s offen offset:%d sc1' % (vr(o, 4), vL16, SRD_WS, t0, (nt & 3) * 1024))
        if nt == 3:
            A('s_add_u32 %s, %s, 4096' % (t0, t0))
    A('s_lshl_b32 %s, %s, 4' % (t0, sT))
    A('s_add_u32 %s, %s, %s' % (t0, t0, sM))
    A('s_lshl_b32 %s, %s, 6' % (sPB, t0))
    A('s_add_u32 %s, %s, %d' % (sPB, sPB, WS_FBHID))
    A('s_lshl_b32 %s, %s, 8' % (t1, sT))
    A('s_lshl_b32 %s, %s, 2' % (t2, sM))
    A('s_add_u32 %s, %s, %s' % (t1, t1, t2))
    A('s_add_u32 %s, %s, %d' % (t5, t1, WS_FA + 192))


def g2_phase():
    GB = 80
    for i in range(2):
        t = A('ds_read_b128 %s, v5 offset:%d' % (vr(104 + 4 * i, 4), 3072 + 16 * i))
    group_poll_addr(192, WS_FBHID)
    red_addr(L_RED)
    A.wait(lg=t)
    for i in range(8):
        unpack(GB + 2 * i, 104 + i)
    A.wait(vm='all')
    flag_store(t5, False)
    stamp('hid pub')
    C = [16, 32, 48, 64]
    body = ksplit_gemm(28, WS_HID, 112 * 1024, lambda k, s: ar(8 * k + 4 * s, 4), 104, 34, C, None,
                       after_issue=lambda: flag_store(sPB, True))
    poll_dual('v10', 'v11', 'v12', 'hid')
    stamp('hid seen')
    body()
    stamp('g2 gemm')
    R = C[2]
    for p in range(2):
        for i in range(4 * p, 4 * p + 4):
            A('v_pk_fma_f32 %s, %s, %s, %s' % (vr(X2 + 2 * i, 2), vr(R + 2 * i, 2), vr(GB + 2 * i, 2), vr(X2 + 2 * i, 2)))
        for i in range(4 * p, 4 * p + 4):
            A('v_cvt_pk_bf16_f32 v%d, v%d, v%d' % (16 + i, X2 + 2 * i, X2 + 2 * i + 1))
        A('buffer_store_dwordx4 %s, %s, %s, 0 offen offset:%d' % (vr(16 + 4 * p, 4), vXO, SRD_OUT, 16 * p))


def epoch_update():
    SK = A.label('noep')
    A('s_or_b32 %s, %s, %s' % (t0, sLID, sW))
    A('s_cmp_lg_u32 %s, 0' % t0)
    A('s_cbranch_scc1 ' + SK)
    A('v_and_b32 v10, 15, %s' % vLANE)
    A('v_lshlrev_b32 v10, 12, v10')
    A('s_mov_b32 %s, %d' % (t2, WS_FBY))
    L, D = A.label('pep'), A.label('dep')
    A('s_mov_b32 %s, 0' % sCNT)
    A(L + ':')
    A('buffer_load_dword v11, v10, %s, %s offen sc1' % (SRD_WS, t2))
    A('s_add_u32 %s, %s, 1' % (sCNT, sCNT))
    A('s_waitcnt vmcnt(0)')
    A('v_cmp_ne_u32 vcc, %s, v11' % sTAG)
    A('s_cbranch_vccz ' + D)
    A('s_cmp_lt_u32 %s, %d' % (sCNT, LIMIT))
    A('s_cbranch_scc1 ' + L)
    A(D + ':')
    A('s_mov_b32 %s, %d' % (t2, WS_E))
    flag_store(t2, True)
    A(SK + ':')


def dump_stamps():
    if not OPT['stamps']:
        return
    A.wait(vm='all', force=True)
    A('s_memrealtime s[92:93]')
    stamp('end')
    A('s_lshl_b32 %s, %s, 2' % (t0, sLID))
    A('s_add_u32 %s, %s, %s' % (t0, t0, sW))
    A('s_lshl_b32 %s, %s, 7' % (t0, t0))
    A('s_add_u32 %s, %s, %d' % (t0, t0, WS_TS))
    A('s_mov_b64 exec, 1')
    for i in range(24):
        A('v_mov_b32 v10, s%d' % (STAMP0 + i))
        A('buffer_store_dword v10, off, %s, %s offset:%d' % (SRD_WS, t0, 4 * i))
    A('v_mov_b32 v10, s92')
    A('buffer_store_dword v10, off, %s, %s offset:100' % (SRD_WS, t0))
    A('s_getreg_b32 %s, hwreg(HW_REG_XCC_ID)' % t1)
    A('v_mov_b32 v10, %s' % t1)
    A('buffer_store_dword v10, off, %s, %s offset:96' % (SRD_WS, t0))
    A('s_mov_b64 exec, -1')


def main():
    tx = prologue()
    A('s_lshl_b32 %s, %s, 8' % (t0, sT))
    A('s_add_u32 %s, %s, %d' % (t0, t0, WS_FA))
    A('v_lshlrev_b32 v11, 2, %s' % vLANE)
    tx = A('buffer_load_dword v5, v11, %s, %s offen sc1' % (SRD_WS, t0))
    base = A.vm
    mod_producer()
    A.vm = base
    A.vm_done = 0
    tp = prep_issue()
    wqkv_dma([0, 1, 2])
    get_tag()
    if OPT['ex'] in (2, 3):
        SKX = A.label('skx')
        A('s_or_b32 s98, %s, %s' % (sLID, sW))
        A('s_cmp_lg_u32 s98, 0')
        A('s_cbranch_scc1 ' + SKX)
        A('v_mov_b32 v15, s96')
        A('s_mov_b32 s98, 0x7000')
        A.lines.append('buffer_store_dword v15, off, %s, s98 sc1' % SRD_WS)
        A('s_waitcnt vmcnt(0)')
        A(SKX + ':')
    stamp('issued')
    ln1_stats(tx)
    prep_finish(tp)
    stamp('prep done')
    h_phase()
    stamp('h pub')
    qkv()
    FB, OK = attention()
    wo_phase()
    g1_phase()
    g2_phase()
    epoch_update()
    dump_stamps()
    if OPT['diag']:
        A('s_waitcnt vmcnt(0) lgkmcnt(0)')
        if OPT['ex'] in (1, 3):
            A('s_mov_b32 s92, 0x7000')
            A('buffer_load_dword v10, off, %s, s92 sc1' % SRD_WS)
            A('s_waitcnt vmcnt(0)')
            A('v_readfirstlane_b32 s96, v10')
            A('s_nop 4')
            A('s_mov_b32 s97, s96')
        if OPT['ex'] in (2, 4):
            A('s_endpgm')
        A('s_sub_u32 s97, s97, s96')
        A('s_mul_i32 s97, s97, %d' % OPT['diagmul'])
        A('s_add_u32 s96, s96, s97')
        A('s_add_u32 s96, s96, 6000')
        A('s_mov_b32 s98, 0')
        A('L_diag:')
        A('s_memrealtime s[92:93]')
        A('s_add_u32 s98, s98, 1')
        A('s_cmp_gt_u32 s98, 0x8000')
        A('s_cbranch_scc1 L_exit')
        A('s_waitcnt lgkmcnt(0)')
        A('s_sub_u32 s92, s92, s96')
        A('s_cmp_lt_i32 s92, 0')
        A('s_cbranch_scc1 L_diag')
    A('L_exit:')
    A('s_endpgm')
    attention_fallback(FB, OK)
    A('L_codeend:')
    body, nops = A.finalize()
    hdr = open(os.path.join(os.path.dirname(os.path.abspath(__file__)), '..', 'cdna_kernels', NAME + '.s.ref')).read().split('; Override')[0]
    out = hdr
    if OPT['ex'] in (0, 3):
        out += '; @launch grid=(256,1,1) block=(256,1,1) lds=163840\n'
    if OPT['ex'] in (1, 4):
        out += '; @launch kernel=ta_kernel grid=(1,1,1) block=(64,1,1) lds=0\n'
    if OPT['ex'] in (1, 2, 4):
        out += '; @launch kernel=%s_kernel grid=(256,1,1) block=(256,1,1) lds=163840\n' % NAME
    if OPT['ex'] in (2, 4):
        out += '; @launch kernel=tb_kernel grid=(1,1,1) block=(64,1,1) lds=0\n'
    out += '.amdgcn_target "amdgcn-amd-amdhsa--gfx950"\n.text\n.globl %s_kernel\n.p2align 8\n.type %s_kernel,@function\n%s_kernel:\n' % (NAME, NAME, NAME)
    out += '\n'.join(('' if l.endswith(':') else '    ') + l for l in body) + '\n'
    if OPT['ex'] in (1, 2, 4):
        out += '''.p2align 8
ta_kernel:
    s_memrealtime s[8:9]
    s_load_dwordx2 s[4:5], s[0:1], 80
    s_cmp_lg_u32 s2, 0
    s_cbranch_scc1 L_ta_end
    s_waitcnt lgkmcnt(0)
    v_mov_b32 v1, s8
    v_mov_b32 v2, 0x7000
    global_store_dword v2, v1, s[4:5]
L_ta_end:
    s_endpgm
.p2align 8
tb_kernel:
    s_load_dwordx2 s[4:5], s[0:1], 80
    s_cmp_lg_u32 s2, 0
    s_cbranch_scc1 L_tb_end
    s_waitcnt lgkmcnt(0)
    s_load_dword s6, s[4:5], 0x7000
    s_waitcnt lgkmcnt(0)
    s_add_u32 s6, s6, 6000
    s_mov_b32 s7, 0
L_tb:
    s_memrealtime s[8:9]
    s_add_u32 s7, s7, 1
    s_cmp_gt_u32 s7, 0x8000
    s_cbranch_scc1 L_tb_end
    s_waitcnt lgkmcnt(0)
    s_sub_u32 s10, s8, s6
    s_cmp_lt_i32 s10, 0
    s_cbranch_scc1 L_tb
L_tb_end:
    s_endpgm
.section .rodata,"a"
'''
        for kn in ('ta', 'tb'):
            out += '''.p2align 6
.amdhsa_kernel %s_kernel
  .amdhsa_next_free_vgpr 8
  .amdhsa_next_free_sgpr 16
  .amdhsa_accum_offset 8
  .amdhsa_group_segment_fixed_size 0
  .amdhsa_kernarg_size 88
  .amdhsa_user_sgpr_count 2
  .amdhsa_user_sgpr_kernarg_segment_ptr 1
  .amdhsa_system_sgpr_workgroup_id_x 1
.end_amdhsa_kernel
''' % kn
    out += '''.section .rodata,"a"
.p2align 6
.amdhsa_kernel %s_kernel
  .amdhsa_next_free_vgpr 512
  .amdhsa_next_free_sgpr 100
  .amdhsa_accum_offset 256
  .amdhsa_group_segment_fixed_size 0
  .amdhsa_kernarg_size 88
  .amdhsa_user_sgpr_count 2
  .amdhsa_user_sgpr_kernarg_segment_ptr 1
  .amdhsa_system_sgpr_workgroup_id_x 1
  .amdhsa_float_denorm_mode_32 3
.end_amdhsa_kernel
''' % NAME
    open(sys.argv[1], 'w').write(out)
    if OPT['stamps']:
        open(sys.argv[1] + '.stamps', 'w').write('\n'.join(STAMP_NAMES))
    print('instructions', len(body), 'pad states', nops, file=sys.stderr)


main()
```

```python
import sys, os
from asmlib import Asm

NAME = 'adaLN_cond__sliding_block__dense_activation_relu__prompt'
OPT = dict(stamps=0, force_fallback=0, force_remote=0, diag=0,
           ph=1, po=1, py=1, phid=0,
           n1=6, n2=4,
           qd=6,
           aw1=12,
           w2a=6, w2b=6, w2c=8, w2d=6,
           wbl2=0, outsc=0, nobg=0)
for a in sys.argv[2:]:
    k, v = a.split('=')
    assert k in OPT, k
    OPT[k] = int(v)

WS_E = 0
WS_FA = 0x1000
WS_XA = 0x6000
WS_XB = 0x8000
WS_FKV = 0x10000
WS_MOD = 0x50000
WS_STAT = 0x80000
WS_TS = 0xC0000
WS_WOT = 0x100000
WS_W2T = 0x200000
WS_H = 0x400000
WS_O = 0x600000
WS_Y = 0x800000
WS_KV = 0xA00000
WS_HID = 0xE00000
WS_SIZE = 0x1600000
OOB = 0x40000000

L_SCR = 98304
L_KV = 114688
L_MODL = 114688
L_GAB = L_MODL + 2048
L_UT = L_MODL + 4096
L_RED = L_MODL + 8192

sX, sJ, sW, sT, sM = 's3', 's4', 's5', 's6', 's7'
SRD_X, SRD_WQKV, SRD_WO, SRD_W1, SRD_W2, SRD_WS, SRD_OUT, SRD_WMOD, SRD_C = [
    's[%d:%d]' % (32 + 4 * i, 35 + 4 * i) for i in range(9)]
sTAG, sE = 's68', 's69'
sCT, sG, sA, sB, sT0 = 's70', 's71', 's72', 's73', 's74'
sLID = 's75'
t0, t1, t2, t3, t4, t5 = 's76', 's77', 's78', 's79', 's80', 's81'
sCNT = 's82'
sXC = 's83'
sMASK = 's[84:85]'
sLO, sHI = 's[86:87]', 's[88:89]'
sDG, sDL = 's0', 's1'
sFG = 's2'
sM2 = 's[98:99]'
STAMP0 = 8

vLANE, vL16, vTAG = 'v1', 'v2', 'v3'

A = Asm()
nstamp = [0]
STAMP_NAMES = []
LOCAL = [True]
LIMIT = 1 << 17
MF32 = 'v_mfma_f32_32x32x16_bf16'
MF16 = 'v_mfma_f32_16x16x32_bf16'


def vr(b, n=1, k='v'):
    return '%s%d' % (k, b) if n == 1 else '%s[%d:%d]' % (k, b, b + n - 1)


def ar(b, n=1):
    return vr(b, n, 'a')


def S(fmt, *a):
    return A(fmt % a)


def stamp(name):
    if OPT['diag']:
        nstamp[0] += 1
        if nstamp[0] == OPT['diag']:
            print('diag stamp:', name, file=sys.stderr)
            A.wait(lg='all')
            A('s_memrealtime s[90:91]')
            A('s_waitcnt lgkmcnt(0)')
            A('s_mov_b32 s97, s90')
        return
    if not OPT['stamps']:
        return
    i = nstamp[0]
    nstamp[0] += 1
    assert i < 22
    A.wait(lg='all')
    A('s_memtime s[90:91]')
    A('s_waitcnt lgkmcnt(0)')
    A('s_mov_b32 s%d, s90 ; stamp %d %s' % (STAMP0 + 2 + i, i, name))
    if LOCAL[0]:
        STAMP_NAMES.append(name)


def sc(buf):
    return '' if (LOCAL[0] and OPT['p' + buf]) else ' sc1'


def flag_store(soff, sc1, val=vTAG):
    A('s_mov_b64 exec, 1')
    t = S('buffer_store_dword %s, off, %s, %s%s', val, SRD_WS, soff, ' sc1' if sc1 else '')
    A('s_mov_b64 exec, -1')
    return t


def poll(vA, vT, name, mask=sMASK):
    L, D = A.label('p' + name), A.label('d' + name)
    S('s_mov_b32 %s, 0', sCNT)
    A(L + ':')
    S('buffer_load_dword %s, %s, %s, 0 offen sc1', vT, vA, SRD_WS)
    S('s_add_u32 %s, %s, 1', sCNT, sCNT)
    A('s_waitcnt vmcnt(0)')
    S('v_cmp_ne_u32 vcc, %s, %s', sTAG, vT)
    S('s_and_b64 vcc, vcc, %s', mask)
    A('s_cbranch_scc0 ' + D)
    S('s_cmp_lt_u32 %s, %d', sCNT, LIMIT)
    A('s_cbranch_scc1 ' + L)
    A(D + ':')
    A.vm_done = A.vm


def srd(dst, lo, size):
    b = int(dst[2:dst.index(':')])
    S('s_mov_b32 s%d, s%d', b, lo)
    S('s_and_b32 s%d, s%d, 0xffff', b + 1, lo + 1)
    S('s_mov_b32 s%d, 0x%x', b + 2, size)
    S('s_mov_b32 s%d, 0x20000', b + 3)


def unpack(dst, src):
    S('v_lshlrev_b32 v%d, 16, v%d', dst, src)
    S('v_and_b32 v%d, 0xffff0000, v%d', dst + 1, src)


def tagcheck(r, tmp, dst):
    S('v_perm_b32 v%d, v%d, v%d, s96', tmp, r + 1, r)
    S('v_perm_b32 v%d, v%d, v%d, s96', tmp + 1, r + 3, r + 2)
    S('v_lshl_or_b32 v%d, v%d, 16, v%d', tmp, tmp + 1, tmp)
    S('v_cmp_ne_u32 %s, %s, v%d', dst, sTAG, tmp)


class Stream:
    def __init__(self):
        self.q = []

    def add(self, f):
        self.q.append(f)

    def drip(self, n=1):
        t = None
        for _ in range(n):
            if self.q:
                t = self.q.pop(0)()
        return t

    def __len__(self):
        return len(self.q)


vWQ = 'v62'


def wqkv_stream(tiles):
    st = Stream()
    for tile in tiles:
        col = {0: 1024, 1: 2048, 2: 0}[tile]
        for i in range(8):
            def f(tile=tile, col=col, i=i):
                if i == 0:
                    S('s_mul_i32 %s, %s, %d', sDG, sW, 128 * 3072)
                    S('s_lshl_b32 %s, %s, 6', sDL, sM)
                    S('s_add_u32 %s, %s, %s', sDG, sDG, sDL)
                    S('s_add_u32 %s, %s, %d', sDG, sDG, col)
                    S('s_sub_u32 %s, %s, %s', sDL, sW, sG)
                    S('s_and_b32 %s, %s, 3', sDL, sDL)
                    S('s_lshl_b32 %s, %s, 13', sDL, sDL)
                    S('s_add_u32 m0, %s, %d', sDL, tile * 32768)
                else:
                    S('s_add_u32 m0, %s, %d', sDL, tile * 32768 + i * 1024)
                    S('s_add_u32 %s, %s, %d', sDG, sDG, 16 * 3072)
                return S('buffer_load_dwordx4 %s, %s, %s offen lds', vWQ, SRD_WQKV, sDG)
            st.add(f)
    return st


def prologue():
    A('s_cmp_ge_u32 s2, 256')
    A('s_cbranch_scc1 L_exit')
    A('s_load_dwordx16 s[8:23], s[0:1], 0')
    A('s_load_dwordx4 s[24:27], s[0:1], 64')
    A('s_load_dwordx2 s[28:29], s[0:1], 80')
    A('s_getpc_b64 s[30:31]')
    A('L_pc:')
    S('s_lshr_b32 %s, s2, 3', sJ)
    S('s_and_b32 %s, s2, 7', sX)
    S('s_lshl_b32 %s, %s, 11', t0, sJ)
    S('v_lshl_add_u32 v4, v0, 3, %s', t0)
    A('v_min_u32 v4, L_localend-L_pc-8, v4')
    A('global_load_dwordx2 v[6:7], v4, s[30:31]')
    A('v_lshrrev_b32 v5, 6, v0')
    S('v_and_b32 %s, 63, v0', vLANE)
    S('v_readfirstlane_b32 %s, v5', sW)
    S('v_lshlrev_b32 %s, 4, %s', vL16, vLANE)
    if OPT['stamps'] or OPT['diag']:
        A('s_memrealtime s[92:93]')
        A('s_memtime s[94:95]')
    S('v_and_b32 v8, 7, %s', vLANE)
    S('v_lshrrev_b32 v9, 3, %s', vLANE)
    A('v_lshlrev_b32 v10, 10, v8')
    A('v_lshl_add_u32 v10, v9, 4, v10')
    S('s_lshl_b32 %s, %s, 5', sLID, sX)
    S('s_add_u32 %s, %s, %s', sLID, sLID, sJ)
    S('s_lshl_b32 %s, %s, 13', t0, sLID)
    S('s_lshl_b32 %s, %s, 8', t1, sW)
    S('s_add_u32 %s, %s, %s', t0, t0, t1)
    S('s_lshl_b32 %s, %s, 1', t1, sX)
    S('s_lshl_b32 %s, %s, 2', t2, sX)
    S('s_add_u32 %s, %s, 14', t2, t2)
    S('s_cmp_lt_u32 %s, 8', sJ)
    S('s_cselect_b32 %s, %s, %s', t1, t1, t2)
    S('s_lshr_b32 %s, %s, 2', t2, sJ)
    S('s_add_u32 %s, %s, %s', t5, t1, t2)
    S('s_and_b32 %s, %s, 3', t4, sJ)
    S('s_lshl_b32 %s, %s, 2', t1, t4)
    S('s_add_u32 %s, %s, %s', t1, t1, sW)
    S('s_lshl_b32 %s, %s, 6', t2, t1)
    S('s_mul_i32 %s, %s, %d', t1, t1, 32 * 6144)
    S('s_lshl_b32 %s, %s, 7', t3, t5)
    S('s_add_u32 %s, %s, %s', t1, t1, t3)
    S('s_cmp_lt_u32 %s, 24', sJ)
    S('s_cselect_b32 %s, 0, 0x%x', t3, OOB)
    S('s_cselect_b32 %s, %s, 0', t1, t1)
    A('v_lshlrev_b32 v11, 3, v9')
    S('v_mul_u32_u24 v13, %d, v9', 4 * 6144)
    A('v_lshl_add_u32 v13, v8, 4, v13')
    S('v_add_u32 v13, %s, v13', t3)
    A('s_waitcnt lgkmcnt(0)')
    S('s_load_dword %s, s[28:29], %d', sE, WS_E)
    srd(SRD_C, 20, 1024)
    S('buffer_load_dwordx2 v[14:15], v11, %s, %s offen', SRD_C, t2)
    srd(SRD_WMOD, 22, 3145728)
    for i in range(4):
        tw = S('buffer_load_dwordx4 %s, v13, %s, %s offen nt', vr(64 + 4 * i, 4), SRD_WMOD, t1)
        if i < 3:
            S('s_add_u32 %s, %s, 6144', t1, t1)
    srd(SRD_X, 8, 2097152)
    S('buffer_load_dwordx4 v[16:19], v10, %s, %s offen', SRD_X, t0)
    tx = S('buffer_load_dwordx4 v[20:23], v10, %s, %s offen offset:128', SRD_X, t0)
    srd(SRD_WS, 28, WS_SIZE)
    srd(SRD_WQKV, 10, 1572864)
    S('s_and_b32 %s, %s, 15', sM, sJ)
    S('s_and_b32 %s, %s, 3', sG, sJ)
    S('s_lshr_b32 %s, %s, 4', t0, sJ)
    S('s_lshl_b32 %s, %s, 2', t0, t0)
    S('s_lshl_b32 %s, %s, 3', t1, sX)
    S('s_add_u32 %s, %s, %s', sT, t0, t1)
    S('s_add_u32 %s, %s, %s', sT, sT, sW)
    S('s_lshl_b32 %s, %s, 8', t0, sT)
    S('s_add_u32 %s, %s, %d', t0, t0, WS_FA)
    S('v_and_b32 v11, 1, %s', vLANE)
    S('v_lshl_add_u32 v11, v11, 7, %s', t0)
    S('s_lshl_b32 %s, %s, 7', t0, sX)
    S('s_add_u32 %s, %s, %d', t0, t0, WS_XA)
    S('v_writelane_b32 v11, %s, 2', t0)
    A('s_mov_b64 exec, 7')
    S('buffer_load_dword v5, v11, %s, 0 offen sc1', SRD_WS)
    A('s_mov_b64 exec, -1')
    S('v_lshrrev_b32 v12, 2, %s', vLANE)
    A('v_mul_u32_u24 v12, 3072, v12')
    S('v_and_b32 v11, 3, %s', vLANE)
    S('v_lshl_add_u32 %s, v11, 4, v12', vWQ)
    return tw, tx


def late_setup():
    srd(SRD_WO, 12, 524288)
    srd(SRD_W1, 16, 1835008)
    srd(SRD_W2, 18, 1835008)
    srd(SRD_OUT, 24, 2097152)
    S('s_and_b32 %s, %s, 7', sCT, sJ)
    S('s_lshr_b32 %s, %s, 3', t0, sJ)
    S('s_lshl_b32 %s, %s, 1', t0, t0)
    S('s_lshl_b32 %s, %s, 3', t1, sX)
    S('s_add_u32 %s, %s, %s', sT0, t0, t1)
    S('s_xor_b32 %s, %s, %s', sA, sW, sCT)
    S('s_and_b32 %s, %s, 1', sA, sA)
    S('s_lshr_b32 %s, %s, 1', sB, sW)
    A('s_mov_b32 s86, 0x0000ffff')
    A('s_mov_b32 s87, 0x0000ffff')
    A('s_mov_b32 s88, 0xffff0000')
    A('s_mov_b32 s89, 0xffff0000')
    S('s_getreg_b32 %s, hwreg(HW_REG_XCC_ID, 0, 4)', sXC)


H_V, H_S = 'v63', 's100'


def h_addr():
    A('v_lshlrev_b32 v12, 9, v9')
    S('v_lshl_add_u32 %s, v8, 4, v12', H_V)
    S('s_lshr_b32 %s, %s, 2', t0, sLID)
    S('s_lshl_b32 %s, %s, 15', t0, t0)
    S('s_lshl_b32 %s, %s, 7', t1, sG)
    S('s_add_u32 %s, %s, %s', t0, t0, t1)
    S('s_lshl_b32 %s, %s, 13', t1, sW)
    S('s_add_u32 %s, %s, %s', t0, t0, t1)
    S('s_add_u32 %s, %s, %d', H_S, t0, WS_H)


def prep_issue():
    S('v_bfe_u32 v11, %s, 2, 3', vLANE)
    A('v_lshlrev_b32 v11, 10, v11')
    S('v_lshrrev_b32 v12, 5, %s', vLANE)
    A('v_lshl_add_u32 v11, v12, 6, v11')
    S('v_and_b32 v12, 3, %s', vLANE)
    A('v_lshl_add_u32 v11, v12, 4, v11')
    S('s_lshl_b32 %s, %s, 2', t0, sJ)
    S('s_add_u32 %s, %s, %s', t0, t0, sW)
    S('s_sub_u32 %s, %s, 16', t0, t0)
    S('s_lshl_b32 %s, %s, 14', t0, t0)
    S('s_cmp_lt_u32 %s, 4', sJ)
    S('s_cselect_b32 %s, 0, %s', t0, t0)
    S('s_cselect_b32 %s, 0x%x, 0', t3, OOB)
    S('v_add_u32 v12, %s, v11', t3)
    S('s_lshl_b32 %s, %s, 7', t1, sX)
    S('s_add_u32 %s, %s, %s', t0, t0, t1)
    S('s_lshl_b32 %s, %s, 11', t2, sW)
    S('s_add_u32 m0, %s, %d', t2, L_KV)
    S('buffer_load_dwordx4 v12, %s, %s offen nt lds', SRD_W2, t0)
    S('s_add_u32 m0, %s, %d', t2, L_KV + 1024)
    S('s_add_u32 %s, %s, 8192', t0, t0)
    S('buffer_load_dwordx4 v12, %s, %s offen nt lds', SRD_W2, t0)
    S('s_lshl_b32 %s, %s, 14', t0, sJ)
    S('s_cmp_lg_u32 %s, 3', sW)
    S('s_cselect_b32 %s, 0x%x, 0', t3, OOB)
    S('v_add_u32 v13, %s, v11', t3)
    S('s_add_u32 m0, %s, %d', t2, L_KV + 8192)
    S('s_add_u32 %s, %s, %s', t0, t0, t1)
    S('buffer_load_dwordx4 v13, %s, %s offen nt lds', SRD_WO, t0)
    S('s_add_u32 m0, %s, %d', t2, L_KV + 8192 + 1024)
    S('s_add_u32 %s, %s, 8192', t0, t0)
    return S('buffer_load_dwordx4 v13, %s, %s offen nt lds', SRD_WO, t0)


def first_compute(tw, tx):
    A.wait(vm=tw - 4)
    unpack(40, 14)
    unpack(42, 15)
    for i in range(4):
        S('v_mul_f32 v%d, 0xbfb8aa3b, v%d', 44 + i, 40 + i)
    for i in range(4):
        S('v_exp_f32 v%d, v%d', 44 + i, 44 + i)
    for i in range(4):
        S('v_add_f32 v%d, 1.0, v%d', 44 + i, 44 + i)
    for i in range(4):
        S('v_rcp_f32 v%d, v%d', 44 + i, 44 + i)
    for i in range(4):
        S('v_mul_f32 v%d, v%d, v%d', 40 + i, 40 + i, 44 + i)
    A('v_cvt_pk_bf16_f32 v44, v40, v41')
    A('v_cvt_pk_bf16_f32 v45, v42, v43')
    unpack(40, 44)
    unpack(42, 45)
    for i in range(4):
        A.wait(vm=tw - 3 + i)
        for d in range(4):
            unpack(80 + 2 * d, 64 + 4 * i + d)
        s = i & 1
        for d in range(4):
            if i == 0:
                S('v_pk_mul_f32 %s, %s, v[40:41] op_sel_hi:[1,0]', vr(48 + 2 * d, 2), vr(80 + 2 * d, 2))
            else:
                S('v_pk_fma_f32 %s, %s, %s, %s op_sel:[0,%d,0] op_sel_hi:[1,%d,1]',
                  vr(48 + 2 * d, 2), vr(80 + 2 * d, 2), vr(40 + (i & ~1), 2), vr(48 + 2 * d, 2), s, s)
    for i in range(4):
        S('v_permlane32_swap_b32 v%d, v%d', 48 + i, 52 + i)
    for i in range(2):
        S('v_pk_add_f32 %s, %s, %s', vr(48 + 2 * i, 2), vr(48 + 2 * i, 2), vr(52 + 2 * i, 2))
    S('v_lshrrev_b32 v11, 4, %s', vLANE)
    A('v_lshl_add_u32 v11, v8, 2, v11')
    for i in range(2):
        S('v_permlane16_swap_b32 v%d, v%d', 48 + i, 50 + i)
    A('v_pk_add_f32 v[48:49], v[48:49], v[50:51]')
    S('s_lshl_b32 %s, %s, 8', t1, sW)
    S('s_add_u32 %s, %s, %d', t1, t1, L_SCR + 1024)
    S('v_lshl_add_u32 v11, v11, 3, %s', t1)
    for i in range(2):
        S('v_add_f32_dpp v%d, v%d, v%d row_ror:8 row_mask:0xf bank_mask:0xf', 50 + i, 48 + i, 48 + i)
    A('s_waitcnt lgkmcnt(0)')
    A('ds_write_b64 v11, v[50:51]')
    S('s_mul_i32 %s, %s, 1664525', sTAG, sE)
    S('s_add_u32 %s, %s, 1013904223', sTAG, sTAG)
    S('v_mov_b32 %s, %s', vTAG, sTAG)
    if OPT['diag']:
        A('s_mov_b32 s101, s92')
        A('s_mov_b32 s97, s92')
    if OPT['stamps']:
        A('s_mov_b32 s8, s92')
        A('s_mov_b32 s9, s94')
    A.wait(vm=tx)
    for i in range(8):
        unpack(24 + 2 * i, 16 + i)
    A('v_pk_add_f32 v[40:41], v[24:25], v[26:27]')
    A('v_pk_mul_f32 v[42:43], v[24:25], v[24:25]')
    A('v_pk_fma_f32 v[42:43], v[26:27], v[26:27], v[42:43]')
    for i in range(2, 8):
        S('v_pk_add_f32 v[40:41], v[40:41], %s', vr(24 + 2 * i, 2))
        S('v_pk_fma_f32 v[42:43], %s, %s, v[42:43]', vr(24 + 2 * i, 2), vr(24 + 2 * i, 2))
    A('v_add_f32 v40, v40, v41')
    A('v_add_f32 v42, v42, v43')
    S('v_lshrrev_b32 v12, 5, %s', vLANE)
    A('v_lshl_add_u32 v12, v12, 3, v8')
    A('v_permlane32_swap_b32 v40, v42')
    A('v_add_f32 v40, v40, v42')
    A('v_mov_b32 v41, v40')
    S('s_lshl_b32 %s, %s, 2', t0, sW)
    S('s_add_u32 %s, %s, %d', t0, t0, L_SCR)
    A('v_permlane16_swap_b32 v40, v41')
    A('v_add_f32 v40, v40, v41')
    S('v_lshl_add_u32 v12, v12, 4, %s', t0)
    A('v_lshlrev_b32 v13, 4, v8')
    A('v_add_f32_dpp v41, v40, v40 row_ror:8 row_mask:0xf bank_mask:0xf')
    t = A('ds_write_b32 v12, v41')
    S('v_add_u32 v13, %d, v13', L_SCR)
    S('v_and_b32 v14, 15, %s', vLANE)
    A('v_lshlrev_b32 v14, 4, v14')
    S('v_add_u32 v15, %d, v14', L_SCR + 1024)
    A.wait(lg=t)
    A('s_barrier')
    NP, NX = A.label('nopub'), A.label('noxc')
    vm0 = A.vm
    S('s_cmp_lg_u32 %s, 0', sW)
    A('s_cbranch_scc1 ' + NP)
    S('s_cmp_ge_u32 %s, 24', sJ)
    A('s_cbranch_scc1 ' + NP)
    for i in range(4):
        t = S('ds_read_b128 %s, v15 offset:%d', vr(64 + 4 * i, 4), 256 * i)
    S('s_mul_i32 %s, %s, 12288', t1, t4)
    S('s_lshl_b32 %s, %s, 8', t2, t5)
    S('s_add_u32 %s, %s, %s', t1, t1, t2)
    S('s_add_u32 %s, %s, %d', t1, t1, WS_MOD)
    for i in range(4):
        S('s_mov_b32 s%d, 0x%08x', 90 + i, 0x07060500 + i)
    A.wait(lg=t)
    for e in range(2):
        S('v_pk_add_f32 %s, %s, %s', vr(64 + 2 * e, 2), vr(64 + 2 * e, 2), vr(68 + 2 * e, 2))
        S('v_pk_add_f32 %s, %s, %s', vr(72 + 2 * e, 2), vr(72 + 2 * e, 2), vr(76 + 2 * e, 2))
    for e in range(2):
        S('v_pk_add_f32 %s, %s, %s', vr(64 + 2 * e, 2), vr(64 + 2 * e, 2), vr(72 + 2 * e, 2))
    for i in range(4):
        S('v_add_u32 v%d, 0x80, v%d', 64 + i, 64 + i)
    for i in range(4):
        S('v_perm_b32 v%d, v%d, %s, s%d', 64 + i, 64 + i, vTAG, 90 + i)
    A('s_mov_b64 exec, 0xffff')
    S('buffer_store_dwordx4 v[64:67], v14, %s, %s offen sc1', SRD_WS, t1)
    A('s_mov_b64 exec, -1')
    A(NP + ':')
    S('s_add_u32 %s, %s, %s', sXC, sXC, sTAG)
    S('s_add_u32 %s, %s, 1', sXC, sXC)
    if OPT['force_remote']:
        S('s_and_b32 %s, %s, 1', t0, sJ)
        S('s_add_u32 %s, %s, %s', sXC, sTAG, t0)
        S('s_add_u32 %s, %s, 1', sXC, sXC)
    S('v_mov_b32 v4, %s', sXC)
    S('s_cmp_lg_u32 %s, 1', sW)
    A('s_cbranch_scc1 ' + NX)
    S('s_lshl_b32 %s, %s, 2', t0, sLID)
    S('s_add_u32 %s, %s, %d', t0, t0, WS_XA)
    flag_store(t0, False, 'v4')
    A(NX + ':')
    A.vm = vm0
    A.lg_done = A.lg


def ln1_finish():
    A('ds_read_b128 v[40:43], v13')
    t = A('ds_read_b128 v[44:47], v13 offset:128')
    A.wait(lg=t)
    A('v_pk_add_f32 v[40:41], v[40:41], v[42:43]')
    A('v_pk_add_f32 v[44:45], v[44:45], v[46:47]')
    A('v_add_f32 v40, v40, v41')
    A('v_add_f32 v44, v44, v45')
    A('v_mul_f32 v40, 0x3b000000, v40')
    A('v_mul_f32 v44, 0x3b000000, v44')
    A('v_fma_f32 v44, -v40, v40, v44')
    A('v_max_f32 v44, 0, v44')
    A('v_add_f32 v44, 0x3727c5ac, v44')
    A('v_rsq_f32 v42, v44')
    A('v_mul_f32 v43, -v40, v42')
    for i in range(8):
        S('v_pk_fma_f32 %s, %s, v[42:43], v[42:43] op_sel:[0,0,1] op_sel_hi:[1,0,1]', vr(24 + 2 * i, 2), vr(24 + 2 * i, 2))


def prep_finish(tp):
    S('v_and_b32 v11, 1, %s', vLANE)
    A('v_lshlrev_b32 v11, 5, v11')
    S('v_bfe_u32 v12, %s, 1, 1', vLANE)
    A('v_lshl_add_u32 v11, v12, 3, v11')
    S('v_bfe_u32 v12, %s, 4, 1', vLANE)
    A('v_lshl_add_u32 v11, v12, 4, v11')
    S('v_bfe_u32 v12, %s, 2, 2', vLANE)
    A('v_lshl_add_u32 v11, v12, 6, v11')
    S('s_lshl_b32 %s, %s, 11', t2, sW)
    S('s_add_u32 %s, %s, %d', t2, t2, L_KV)
    S('v_add_u32 v11, %s, v11', t2)
    S('v_lshrrev_b32 v12, 5, %s', vLANE)
    A('v_lshl_add_u32 v13, v12, 10, v11')
    A('v_lshl_add_u32 v14, v12, 8, v11')
    A.wait(vm=tp)
    for nt in range(2):
        for half in range(2):
            S('ds_read_b64_tr_b16 %s, v13 offset:%d', vr(80 + 4 * nt + 2 * half, 2), nt * 512 + half * 256)
    for nt in range(2):
        for half in range(2):
            t = S('ds_read_b64_tr_b16 %s, v14 offset:%d', vr(88 + 4 * nt + 2 * half, 2), 8192 + nt * 512 + half * 1024)
    S('s_mul_i32 %s, %s, 112', t0, sX)
    S('s_lshl_b32 %s, %s, 2', t1, sJ)
    S('s_add_u32 %s, %s, %s', t0, t0, t1)
    S('s_add_u32 %s, %s, %s', t0, t0, sW)
    S('s_lshl_b32 %s, %s, 11', t0, t0)
    S('s_add_u32 %s, %s, %d', t0, t0, WS_W2T - 16 * 2048)
    S('s_cmp_lt_u32 %s, 4', sJ)
    S('s_cselect_b32 %s, 0x%x, 0', t3, OOB)
    S('v_add_u32 v11, %s, %s', t3, vL16)
    S('s_lshl_b32 %s, %s, 11', t1, sLID)
    S('s_add_u32 %s, %s, %d', t1, t1, WS_WOT)
    S('s_cmp_lg_u32 %s, 3', sW)
    S('s_cselect_b32 %s, 0x%x, 0', t3, OOB)
    S('v_add_u32 v12, %s, %s', t3, vL16)
    A.wait(lg=t)
    S('buffer_store_dwordx4 v[80:83], v11, %s, %s offen sc1', SRD_WS, t0)
    S('buffer_store_dwordx4 v[84:87], v11, %s, %s offen offset:1024 sc1', SRD_WS, t0)
    S('buffer_store_dwordx4 v[88:91], v12, %s, %s offen sc1', SRD_WS, t1)
    S('buffer_store_dwordx4 v[92:95], v12, %s, %s offen offset:1024 sc1', SRD_WS, t1)


def sum_partials(base, addend):
    for i in range(16):
        S('v_and_b32 v%d, 0xffffff00, v%d', base + i, base + i)
    for e in range(2):
        S('v_pk_add_f32 %s, %s, %s', vr(base + 2 * e, 2), vr(base + 2 * e, 2), vr(base + 4 + 2 * e, 2))
        S('v_pk_add_f32 %s, %s, %s', vr(base + 8 + 2 * e, 2), vr(base + 8 + 2 * e, 2), vr(base + 12 + 2 * e, 2))
    for e in range(2):
        S('v_pk_add_f32 %s, %s, %s', vr(base + 2 * e, 2), vr(base + 2 * e, 2), vr(base + 8 + 2 * e, 2))
    for e in range(2):
        S('v_cvt_pk_bf16_f32 v%d, v%d, v%d', base + 4 + e, base + 2 * e, base + 2 * e + 1)
    for e in range(2):
        unpack(base + 8 + 2 * e, base + 4 + e)
    for i in range(4):
        S('v_add_f32 v%d, %s, v%d', base + 8 + i, addend, base + 8 + i)
    for e in range(2):
        S('v_cvt_pk_bf16_f32 v%d, v%d, v%d', base + e, base + 8 + 2 * e, base + 9 + 2 * e)


def mod_poll():
    S('v_and_b32 v10, 31, %s', vLANE)
    A('v_lshlrev_b32 v11, 4, v10')
    S('v_lshrrev_b32 v12, 5, %s', vLANE)
    A('v_lshl_add_u32 v11, v12, 11, v11')
    A('v_cvt_f32_u32 v15, v12')
    S('s_lshl_b32 %s, %s, 9', t0, sW)
    S('s_add_u32 %s, %s, %d', t1, t0, L_SCR + 4096)
    S('v_add_u32 v11, %s, v11', t0)
    S('v_lshl_add_u32 v12, %s, 3, %s', vLANE, t1)
    S('v_lshl_add_u32 v13, v9, 4, %s', t1)
    for i, t in enumerate((t0, t1, t3, t4)):
        S('s_mov_b32 %s, %d', t, WS_MOD + 12288 * i)
    S('s_lshl_b32 %s, %s, 7', t5, sX)
    S('s_add_u32 %s, %s, %d', t5, t5, WS_XA)
    S('v_lshl_add_u32 v14, v10, 2, %s', t5)
    A('s_mov_b32 s96, 0x0c0c0400')
    S('s_lshr_b32 %s, %s, 2', t2, sLID)
    S('s_lshl_b32 %s, %s, 8', t2, t2)
    S('s_lshl_b32 %s, %s, 4', t5, sG)
    S('s_add_u32 %s, %s, %s', t2, t2, t5)
    S('s_lshl_b32 %s, %s, 2', t5, sW)
    S('s_add_u32 %s, %s, %s', t2, t2, t5)
    S('s_add_u32 %s, %s, %d', t2, t2, WS_FA)
    L, D = A.label('pmod'), A.label('dmod')
    S('s_mov_b32 %s, 0', sCNT)
    A(L + ':')
    for i, t in enumerate((t0, t1, t3, t4)):
        S('buffer_load_dwordx4 %s, v11, %s, %s offen sc1', vr(40 + 4 * i, 4), SRD_WS, t)
    S('buffer_load_dword v58, v14, %s, 0 offen sc1', SRD_WS)
    S('s_add_u32 %s, %s, 1', sCNT, sCNT)
    for i in range(4):
        S('s_waitcnt vmcnt(%d)', 4 - i)
        tagcheck(40 + 4 * i, 56, 'vcc' if i == 0 else sMASK)
        if i:
            S('s_or_b64 vcc, vcc, %s', sMASK)
    A('s_waitcnt vmcnt(0)')
    A('s_cbranch_scc0 ' + D)
    S('s_cmp_lt_u32 %s, %d', sCNT, LIMIT)
    A('s_cbranch_scc1 ' + L)
    A(D + ':')
    A.vm_done = A.vm
    stamp('mod seen')
    S('v_cmp_ne_u32 vcc, %s, v58', sXC)
    sum_partials(40, 'v15')
    A('s_cbranch_vccnz L_xcslow')
    A('L_local:')


def xc_slow():
    A('L_xcslow:')
    S('s_mov_b32 %s, 0', sCNT)
    A('L_xc1:')
    S('buffer_load_dword v58, v14, %s, 0 offen sc1', SRD_WS)
    S('s_add_u32 %s, %s, 1', sCNT, sCNT)
    A('s_waitcnt vmcnt(0)')
    S('v_cmp_ne_u32 vcc, %s, v58', sXC)
    A('s_cbranch_vccz L_local')
    S('s_cmp_lt_u32 %s, 32', sCNT)
    A('s_cbranch_scc1 L_xc1')
    S('s_lshl_b32 %s, %s, 6', t0, sLID)
    S('s_add_u32 %s, %s, %d', t0, t0, WS_XB)
    flag_store(t0, True, 'v4')
    S('s_lshl_b32 %s, %s, 11', t0, sX)
    S('s_add_u32 %s, %s, %d', t0, t0, WS_XB)
    S('v_lshl_add_u32 v59, v10, 6, %s', t0)
    S('buffer_load_dword v57, v59, %s, 0 offen sc1', SRD_WS)
    A('s_waitcnt vmcnt(0)')
    S('v_cmp_ne_u32 vcc, %s, v57', sXC)
    A('s_cbranch_vccz L_local')
    S('s_add_u32 %s, %s, 1', t0, sTAG)
    S('v_subrev_u32 v56, %s, v57', t0)
    A('v_cmp_le_u32 vcc, 16, v56')
    A('s_cbranch_vccz L_remote')
    S('s_cmp_lt_u32 %s, %d', sCNT, LIMIT)
    A('s_cbranch_scc1 L_xc1')
    A('L_remote:')


def h_phase(wst):
    t = A('ds_write_b64 v12, v[40:41]')
    A.wait(lg=t)
    tr = []
    for i in range(2):
        S('ds_read_b128 %s, v13 offset:%d', vr(40 + 8 * i, 4), 128 * i)
        tr.append(S('ds_read_b128 %s, v13 offset:%d', vr(44 + 8 * i, 4), 256 + 128 * i))
    S('s_add_u32 %s, %s, 4096', t3, H_S)
    for i in range(2):
        A.wait(lg=tr[i])
        for d in range(4):
            unpack(56, 40 + 8 * i + d)
            unpack(58, 44 + 8 * i + d)
            x = 24 + 8 * i + 2 * d
            S('v_pk_fma_f32 v[60:61], %s, v[58:59], v[56:57]', vr(x, 2))
            S('v_cvt_pk_bf16_f32 v%d, v60, v61', 16 + 4 * i + d)
        ts = S('buffer_store_dwordx4 %s, %s, %s, %s offen%s', vr(16 + 4 * i, 4), H_V, SRD_WS, (H_S, t3)[i], sc('h'))
    wst.drip(min(3, len(wst)))
    S('s_lshl_b32 %s, %s, 8', t0, sT)
    S('s_add_u32 %s, %s, %d', t0, t0, WS_FA)
    S('v_lshl_add_u32 v10, %s, 2, %s', vLANE, t0)
    S('s_mov_b64 %s, 0xffff', sMASK)
    S('v_and_b32 v12, 3, %s', vLANE)
    A('v_lshlrev_b32 v13, 3, v12')
    S('v_bfe_u32 v12, %s, 4, 1', vLANE)
    A('v_lshl_add_u32 v13, v12, 5, v13')
    S('v_bfe_u32 v12, %s, 2, 2', vLANE)
    A('v_lshl_add_u32 v13, v12, 6, v13')
    S('v_lshrrev_b32 v12, 5, %s', vLANE)
    A('v_lshl_add_u32 v13, v12, 9, v13')
    A('v_add_u32 v14, 65536, v13')
    A.wait(vm=ts)
    flag_store(t2, not LOCAL[0])
    wst.drip(99)
    stamp('h pub')


Q0, Q1 = 96, 100
MD, MFAR = 16, 32
S0, S1 = 160, 176
P0, P1 = 192, 200
O0, O1 = 208, 224
K0, K1 = 64, 68
V0, V1 = 72, 80
W1V = 104
vB0, vB1, vXO = 'v111', 'v112', 'v113'
vKV = 'v4'
MR = 5
XT = 240


def w1_addr():
    for i in range(7):
        S('v_add_u32 v10, %d, %s', 64 * i, vLANE)
        A('v_mul_u32_u24 v11, 4682, v10')
        A('v_lshrrev_b32 v11, 16, v11')
        A('v_mul_u32_u24 v12, %d, v11' % (3584 - 14 * 16))
        S('v_lshl_add_u32 v%d, v10, 4, v12', W1V + i)


def w1_stream():
    st = Stream()
    for g in range(4):
        for i in range(7):
            def f(g=g, i=i):
                if i == 0:
                    S('s_add_u32 %s, %s, %d', sDG, sG, g)
                    S('s_and_b32 %s, %s, 3', sDG, sDG)
                    S('s_lshl_b32 %s, %s, 2', sDG, sDG)
                    S('s_add_u32 %s, %s, %s', sDG, sDG, sW)
                    S('s_mul_i32 %s, %s, %d', sDG, sDG, 32 * 3584)
                    S('s_mul_i32 %s, %s, 224', sDL, sM)
                    S('s_add_u32 %s, %s, %s', sDG, sDG, sDL)
                    S('s_mul_i32 %s, %s, 7168', sDL, sW)
                S('s_add_u32 m0, %s, %d', sDL, g * 4 * 7168 + i * 1024)
                return S('buffer_load_dwordx4 v%d, %s, %s offen lds', W1V + i, SRD_W1, sDG)
            st.add(f)
    return st


def frag_stream(base, ctmul, nks, areg):
    st = Stream()
    for i in range(nks):
        for s in range(2):
            def f(i=i, s=s):
                if i == 0 and s == 0:
                    S('s_mul_i32 %s, %s, %d', sFG, sCT, ctmul // (nks * 2048))
                    S('s_add_u32 %s, %s, %s', sFG, sFG, sW)
                    S('s_mul_i32 %s, %s, %d', sFG, sFG, nks * 2048)
                    S('s_add_u32 %s, %s, %d', sFG, sFG, base)
                elif s == 0 and i & 1 == 0:
                    S('s_add_u32 %s, %s, 4096', sFG, sFG)
                return S('buffer_load_dwordx4 %s, %s, %s, %s offen offset:%d sc1', ar(areg + 8 * i + 4 * s, 4), (vB0, vB1)[s], SRD_WS, sFG, (i & 1) * 2048)
            st.add(f)
    return st


def touch(voff, soff, off=0):
    return S('buffer_load_dwordx4 v[124:127], %s, %s, %s offen offset:%d sc1', voff, SRD_WS, soff, off)


def qkv(w1):
    RING = 4
    rd = {}

    def bread(s):
        b = 64 + 8 * (s % RING)
        for tile in range(2):
            for half in range(2):
                rd[s] = S('ds_read_b64_tr_b16 %s, v13 offset:%d', vr(b + 4 * tile + 2 * half, 2), tile * 32768 + s * 1024 + half * 256)
    S('s_lshl_b32 %s, %s, 15', t1, sT)
    S('s_add_u32 %s, %s, %d', t1, t1, WS_H)
    S('s_lshl_b32 %s, %s, 13', t3, sG)
    S('s_add_u32 %s, %s, %s', t0, t1, t3)
    poll('v10', 'v15', 'h')
    stamp('h seen')
    ta = []

    def aload(s):
        if s and s & 7 == 0:
            S('s_add_u32 %s, %s, 8192', t3, t3)
            S('s_and_b32 %s, %s, 0x7fff', t3, t3)
            S('s_add_u32 %s, %s, %s', t0, t1, t3)
        elif s & 7 == 4:
            S('s_add_u32 %s, %s, 4096', t0, t0)
        ta.append(S('buffer_load_dwordx4 %s, %s, %s, %s offen offset:%d sc1', vr(128 + 4 * s, 4), vL16, SRD_WS, t0, (s & 3) * 1024))
    AH = 10
    for s in range(AH):
        aload(s)
    A('s_barrier')
    for s in range(RING - 1):
        bread(s)
    for s in range(32):
        b = 64 + 8 * (s % RING)
        if s + RING - 1 < 32:
            bread(s + RING - 1)
        A.wait(vm=ta[s], lg=rd[s])
        a = vr(128 + 4 * s, 4)
        S('%s v[16:31], %s, %s, %s', MF32, vr(b, 4), a, 'v[16:31]' if s else '0')
        if s + AH < 32:
            aload(s + AH)
        S('%s v[32:47], %s, %s, %s', MF32, a, vr(b + 4, 4), 'v[32:47]' if s else '0')
        if s == 24:
            S('s_lshl_b32 %s, %s, 4', t0, sT)
            S('s_add_u32 %s, %s, %s', t0, t0, sM)
            S('s_lshl_b32 %s, %s, 6', t4, t0)
            S('s_add_u32 %s, %s, %d', t4, t4, WS_FKV)
        if s == 25:
            S('s_lshl_b32 %s, %s, 12', t0, t0)
            S('s_add_u32 %s, %s, %d', t0, t0, WS_KV)
            S('s_lshl_b32 %s, %s, 12', t1, sW)
            S('s_add_u32 %s, %s, %d', t1, t1, L_KV)
            S('v_add_u32 %s, %s, %s', vKV, t1, vL16)
    stamp('kv pass')
    for p in range(4):
        for d in range(4):
            S('v_cvt_pk_bf16_f32 v%d, v%d, v%d', 96 + 4 * p + d, 16 + 8 * p + 2 * d, 17 + 8 * p + 2 * d)
        tst = S('buffer_store_dwordx4 %s, %s, %s, %s offen offset:%d sc1', vr(96 + 4 * p, 4), vL16, SRD_WS, t0, p * 1024)
    wq = wqkv_stream([2])
    twq = wq.drip(8)
    for p in range(4):
        tl = S('ds_write_b128 %s, %s offset:%d', vKV, vr(96 + 4 * p, 4), 8 * 4096 + p * 1024)
    A('v_lshlrev_b32 v10, 4, v0')
    S('v_lshrrev_b32 v11, 4, %s', vLANE)
    A('v_mul_u32_u24 v11, 12288, v11')
    S('v_bfe_u32 v12, %s, 3, 1', vLANE)
    A('v_mul_u32_u24 v12, 6144, v12')
    A('v_add_u32 v11, v11, v12')
    A('v_lshl_add_u32 v11, v8, 4, v11')
    S('s_lshl_b32 %s, %s, 8', t2, sCT)
    S('s_lshl_b32 %s, %s, 7', t3, sB)
    S('s_add_u32 %s, %s, %s', t2, t2, t3)
    S('s_add_u32 %s, %s, %d', t2, t2, WS_MOD + 4096)

    def mr_loads():
        for i in range(4):
            S('s_mov_b32 %s, %d', t3, WS_MOD + 6144 + 12288 * i)
            S('buffer_load_dwordx4 %s, v10, %s, %s offen sc1', vr(64 + 4 * i, 4), SRD_WS, t3)
        return S('buffer_load_dwordx4 v[80:83], v11, %s, %s offen sc1', SRD_WS, t2)
    S('v_and_b32 v15, 31, %s', vLANE)
    S('v_lshrrev_b32 v12, 5, %s', vLANE)
    A('v_lshlrev_b32 v12, 2, v12')
    A('v_sub_u32 v15, v15, v12')
    A('v_mov_b32 v12, 0xff800000')
    for r in range(16):
        key = (r & 3) + 8 * (r >> 2)
        m = ('vcc', sMASK)[r & 1]
        S('v_cmp_le_i32 %s, %d, v15', m, key)
        if r:
            pm = ('vcc', sMASK)[(r - 1) & 1]
            S('v_cndmask_b32 v%d, v12, 0, %s', MD + r - 1, pm)
            S('v_cndmask_b32 v%d, 0, v12, %s', MFAR + r - 1, pm)
    S('v_cndmask_b32 v%d, v12, 0, %s', MD + 15, sMASK)
    S('v_cndmask_b32 v%d, 0, v12, %s', MFAR + 15, sMASK)
    S('s_sub_u32 %s, %s, 4', t0, sT)
    S('s_sub_u32 %s, %s, 8', t1, sT)
    for t in (t0, t1):
        S('s_lshl_b32 %s, %s, 4', t, t)
        S('s_add_u32 %s, %s, %s', t, t, sM)
        S('s_max_i32 %s, %s, 0', t, t)
    A('v_lshlrev_b32 v9, 7, v8')
    S('v_bfe_u32 v12, %s, 4, 1', vLANE)
    A('v_lshlrev_b32 v12, 6, v12')
    S('v_and_b32 v15, 15, %s', vLANE)
    A('v_add_u32 v12, v12, v15')
    S('s_lshl_b32 %s, %s, 7', t3, sCT)
    S('v_add_u32 v12, %s, v12', t3)
    A('s_mov_b32 vcc_lo, 0')
    A('s_mov_b32 vcc_hi, -1')
    A('v_cndmask_b32 v9, v9, v12, vcc')
    S('v_writelane_b32 v9, %s, 0', t0)
    S('v_writelane_b32 v9, %s, 1', t1)
    A('v_lshlrev_b32 v9, 6, v9')
    S('v_add_u32 v9, %d, v9', WS_FKV)
    A.wait(vm=tst)
    flag_store(t4, True)
    stamp('kv pub')
    tmr = mr_loads()
    A.wait(lg=tl)
    w1_addr_done = False
    S('s_cmp_ge_u32 %s, 4', sT)
    A('s_cselect_b32 s98, 1, 0')
    S('s_cselect_b32 %s, 0, 0x%x', t4, OOB)
    S('v_add_u32 v114, %s, %s', t4, vL16)
    S('s_cmp_ge_u32 %s, 8', sT)
    A('s_cselect_b32 s98, 3, s98')
    S('s_cselect_b32 %s, 0, 0x%x', t4, OOB)
    S('v_add_u32 v115, %s, %s', t4, vL16)
    A('s_mov_b32 s99, 0')
    for t in (t0, t1):
        S('s_lshl_b32 %s, %s, 12', t, t)
        S('s_add_u32 %s, %s, %d', t, t, WS_KV)
    S('v_mov_b32 v116, v10')
    S('v_mov_b32 v117, v11')
    w1_addr()
    S('s_lshl_b32 %s, %s, 10', t4, sB)
    S('v_add_u32 %s, %s, %s', vB0, t4, vL16)
    S('v_xor_b32 %s, 1024, %s', vB1, vB0)
    A.wait(vm=tmr)
    L, D = A.label('pmr'), A.label('dmr')
    S('s_mov_b32 %s, 0', sCNT)
    A(L + ':')
    for i in range(5):
        tagcheck(64 + 4 * i, 84, 'vcc' if i == 0 else sMASK)
        if i:
            S('s_or_b64 vcc, vcc, %s', sMASK)
    A('s_cbranch_scc0 ' + D)
    S('s_add_u32 %s, %s, 1', sCNT, sCNT)
    S('s_cmp_ge_u32 %s, %d', sCNT, LIMIT)
    A('s_cbranch_scc1 ' + D)
    vm_save = A.vm
    A('v_mov_b32 v10, v116')
    A('v_mov_b32 v11, v117')
    mr_loads()
    A.vm = vm_save
    A('s_waitcnt vmcnt(0)')
    A('s_branch ' + L)
    A(D + ':')
    tpoll = S('buffer_load_dword v118, v9, %s, 0 offen sc1', SRD_WS)
    A('s_barrier')
    stamp('wq ready')
    rq = {}

    def qread(s):
        b = 84 + 4 * (s % 5)
        for half in range(2):
            rq[s] = S('ds_read_b64_tr_b16 %s, v14 offset:%d', vr(b + 2 * half, 2), s * 1024 + half * 256)
    for s in range(4):
        qread(s)
    S('s_cmp_ge_u32 %s, 2', sW)
    S('s_cselect_b32 %s, 1.0, 0', t4)
    fill = []
    Asave = A.lines
    A.lines = fill
    sum_partials(64, t4)
    S('v_mov_b32 v%d, v64', MR)
    S('v_mov_b32 v%d, v65', MR + 1)
    for i in range(4):
        S('v_and_b32 v%d, 0xffffff00, v%d', 80 + i, 80 + i)
    A('v_permlane32_swap_b32 v80, v81')
    A('v_permlane32_swap_b32 v82, v83')
    A('v_add_f32 v80, v80, v81')
    A('v_add_f32 v82, v82, v83')
    A('v_permlane16_swap_b32 v80, v82')
    A('v_add_f32 v80, v80, v82')
    A('v_cvt_pk_bf16_f32 v80, v80, v80')
    S('v_lshlrev_b32 v%d, 16, v80', MR + 2)
    A.lines = Asave

    def kv_dma():
        S('s_lshl_b32 %s, %s, 12', t2, sW)
        for t, slot, v in ((t0, 4, 'v114'), (t1, 0, 'v115')):
            S('s_add_u32 m0, %s, %d', t2, L_KV + slot * 4096)
            for p in range(4):
                tk = S('buffer_load_dwordx4 %s, %s, %s offen offset:%d sc1 lds', v, SRD_WS, t, p * 1024)
        return tk
    LATE = A.label('kvlate')
    S('s_mov_b32 %s, 1', t5)
    nd = 0
    for s in range(32):
        if s + 4 < 32:
            qread(s + 4)
        A.wait(lg=rq[s])
        S('%s v[48:63], %s, %s, %s', MF32, vr(84 + 4 * (s % 5), 4), vr(128 + 4 * s, 4), 'v[48:63]' if s else '0')
        for _ in range(3):
            if fill:
                A.lines.append(fill.pop(0))
        if s == 14:
            A.wait(vm=tpoll)
            S('v_cmp_ne_u32 vcc, %s, v118', sTAG)
            S('s_and_b64 vcc, vcc, %s', sM2)
            A('s_cbranch_scc1 ' + LATE)
            tkv = kv_dma()
            S('s_mov_b32 %s, 0', t5)
            A(LATE + ':')
        if s > 14 and s % 2 == 0 and nd < OPT['qd']:
            w1.drip(1)
            nd += 1
    assert not fill
    stamp('q pass')
    OKK = A.label('kvok')
    S('s_cmp_eq_u32 %s, 0', t5)
    A('s_cbranch_scc1 ' + OKK)
    vm_save, vd = A.vm, A.vm_done
    poll('v9', 'v118', 'kv', sM2)
    kv_dma()
    A('s_waitcnt vmcnt(0)')
    A.vm, A.vm_done = vm_save, vd
    A(OKK + ':')
    S('s_mov_b32 %s, 0x3eb8aa3b', t0)
    for r in range(16):
        S('v_mov_b32 v%d, 0x3f803f80', V0 + r)
    for i in range(16):
        S('v_mul_f32 v%d, %s, v%d', 48 + i, t0, 48 + i)
    for i in range(8):
        S('v_cvt_pk_bf16_f32 v%d, v%d, v%d', 96 + i, 48 + 2 * i, 49 + 2 * i)
    PR = A.label('prepok')
    S('v_cmp_ne_u32 vcc, %s, v118', sTAG)
    A('s_cmp_eq_u32 vcc_hi, 0')
    A('s_cbranch_scc1 ' + PR)
    A('s_mov_b32 s84, 0')
    A('s_mov_b32 s85, -1')
    vm_save, vd = A.vm, A.vm_done
    poll('v9', 'v118', 'prep')
    A.vm, A.vm_done = vm_save, vd
    A(PR + ':')
    A.wait(vm=tkv)
    A('s_barrier')
    stamp('kv loaded')


def kv_off(d, piece):
    return (8 - d) * 4096 + piece * 1024


def xo_addr():
    S('s_add_u32 %s, %s, %s', t0, sT0, sA)
    S('s_lshl_b32 %s, %s, 15', t0, t0)
    S('s_lshl_b32 %s, %s, 7', t1, sCT)
    S('s_add_u32 %s, %s, %s', t0, t0, t1)
    S('s_lshl_b32 %s, %s, 6', t1, sB)
    S('s_add_u32 %s, %s, %s', t0, t0, t1)
    S('v_and_b32 v10, 31, %s', vLANE)
    S('v_lshl_add_u32 v10, v10, 10, %s', t0)
    S('v_lshrrev_b32 v11, 5, %s', vLANE)
    S('v_lshl_add_u32 %s, v11, 5, v10', vXO)


vYO = 'v114'
sOO, sYO, sSO = 's100', 's60', 's61'


def pub_addr():
    S('s_lshl_b32 %s, %s, 4', t0, sT)
    S('s_add_u32 %s, %s, %s', t0, t0, sM)
    S('s_lshl_b32 %s, %s, 11', t0, t0)
    S('s_add_u32 %s, %s, %d', sOO, t0, WS_O)
    S('s_add_u32 %s, %s, %s', t3, sT0, sA)
    S('s_lshl_b32 %s, %s, 1', t4, sCT)
    S('s_add_u32 %s, %s, %s', t4, t4, sB)
    S('s_lshl_b32 %s, %s, 15', t0, t3)
    S('s_lshl_b32 %s, %s, 10', t1, t4)
    S('s_add_u32 %s, %s, %s', t0, t0, t1)
    S('s_add_u32 %s, %s, %d', sYO, t0, WS_Y)
    S('s_lshl_b32 %s, %s, 4', t0, t3)
    S('s_add_u32 %s, %s, %s', t0, t0, t4)
    S('s_lshl_b32 %s, %s, 8', t0, t0)
    S('s_add_u32 %s, %s, %d', sSO, t0, WS_STAT)
    S('v_and_b32 v10, 15, %s', vLANE)
    A('v_lshlrev_b32 v10, 4, v10')
    S('v_bfe_u32 v11, %s, 4, 1', vLANE)
    A('v_lshl_add_u32 v10, v11, 14, v10')
    S('v_lshrrev_b32 v11, 5, %s', vLANE)
    S('v_lshl_add_u32 %s, v11, 9, v10', vYO)
    S('v_lshlrev_b32 v8, 2, %s', vLANE)


def attention(w1):
    bg = Stream()
    wo = frag_stream(WS_WOT, 65536, 8, 192)
    for _ in range(OPT['aw1']):
        if len(w1):
            bg.add(w1.q.pop(0))
    if LOCAL[0] and OPT['po']:
        bg.add(lambda: touch(vL16, sOO))
        bg.add(lambda: touch(vL16, sOO, 1024))
    if not OPT['nobg'] & 4:
        bg.q += wo.q
    bg.add(lambda: S('buffer_load_dwordx4 %s, %s, %s, 0 offen', vr(XT, 4), vXO, SRD_X))
    bg.add(lambda: S('buffer_load_dwordx4 %s, %s, %s, 0 offen offset:16', vr(XT + 4, 4), vXO, SRD_X))

    def cop(d):
        return vr(MD, 16) if d == 0 else vr(MFAR, 16) if d == 8 else '0'

    def rdK(h, d):
        return S('ds_read_b128 %s, %s offset:%d', vr((K0, K1)[h], 4), vKV, kv_off(d, h))

    def rdV(h, d):
        if d:
            S('s_cmp_lt_u32 %s, %d', sT, d)
            S('s_cselect_b64 exec, -1, %s', (sLO, sHI)[h])
        else:
            S('s_mov_b64 exec, %s', (sLO, sHI)[h])
        S('ds_read_b128 %s, %s offset:%d', vr((V0, V1)[h], 4), vKV, kv_off(d, 2))
        t = S('ds_read_b128 %s, %s offset:%d', vr((V0, V1)[h] + 4, 4), vKV, kv_off(d, 3))
        A('s_mov_b64 exec, -1')
        return t

    t = rdK(0, 0)
    rdK(1, 0)
    rdV(0, 0)
    assert OPT['aw1'] >= 2
    bg.drip(2)
    A.wait(lg=t)
    S('%s %s, %s, %s, %s', MF32, vr(S0, 16), vr(K0, 4), vr(Q0, 4), cop(0))
    xo_addr()
    pub_addr()

    def half(h, d):
        S_, P, O, V = (S0, S1)[h], (P0, P1)[h], (O0, O1)[h], (V0, V1)[h]
        oS, oP, oO, oV, oK, oQ = (S1, S0)[h], (P1, P0)[h], (O1, O0)[h], (V1, V0)[h], (K1, K0)[h], (Q1, Q0)[h]
        od = d if h == 0 else d + 1
        A.wait(lg='all')
        if od <= 8:
            S('%s %s, %s, %s, %s', MF32, vr(oS, 16), vr(oK, 4), vr(oQ, 4), cop(od))
        for i in range(4):
            S('v_exp_f32 v%d, v%d', S_ + i, S_ + i)
            if i == 0 and d + 1 <= 8:
                rdK(h, d + 1)
        if d or h:
            S('%s %s, %s, %s, %s', MF32, vr(oO, 16), vr(oV + 4, 4), vr(oP + 4, 4), vr(oO, 16))
        if od <= 8:
            rdV(1 - h, od)
        for i in range(4, 8):
            S('v_exp_f32 v%d, v%d', S_ + i, S_ + i)
            if i == 5:
                bg.drip(1)
        for i in range(4):
            S('v_cvt_pk_bf16_f32 v%d, v%d, v%d', P + i, S_ + 2 * i, S_ + 2 * i + 1)
        for i in range(8, 10):
            S('v_exp_f32 v%d, v%d', S_ + i, S_ + i)
        S('%s %s, %s, %s, %s', MF32, vr(O, 16), vr(V, 4), vr(P, 4), vr(O, 16) if d else '0')
        for i in range(10, 16):
            S('v_exp_f32 v%d, v%d', S_ + i, S_ + i)
            if i == 12:
                bg.drip(1)
        for i in range(4, 8):
            S('v_cvt_pk_bf16_f32 v%d, v%d, v%d', P + i, S_ + 2 * i, S_ + 2 * i + 1)

    for d in range(9):
        half(0, d)
        half(1, d)
    S('%s %s, %s, %s, %s', MF32, vr(O1, 16), vr(V1 + 4, 4), vr(P1 + 4, 4), vr(O1, 16))
    bg.drip(99)
    stamp('att done')
    FB, OK = A.label('fb'), A.label('attok')
    S('s_mov_b32 %s, 0x1f800000', t0)
    S('s_mov_b32 %s, 0x5f800000', t1)
    S('s_mov_b32 %s, 0x7f000000', t2)
    S('v_add_f32 v10, abs(v%d), abs(v%d)', O0, O0 + 1)
    for i in range(2, 8):
        S('v_add_f32 v10, v10, abs(v%d)', O0 + i)
    S('v_cmp_nle_f32 vcc, %s, v%d', t0, O0 + 8)
    S('v_cmp_nge_f32 %s, %s, v%d', sMASK, t1, O0 + 8)
    S('s_or_b64 vcc, vcc, %s', sMASK)
    for i in range(8):
        S('v_add_f32 v10, v10, abs(v%d)', O1 + 8 + i)
    S('v_cmp_nle_f32 %s, %s, v%d', sMASK, t0, O1)
    S('v_cmp_nge_f32 %s, %s, v%d', sM2, t1, O1)
    S('s_or_b64 vcc, vcc, %s', sMASK)
    S('v_cmp_ngt_f32 %s, %s, v10', sMASK, t2)
    S('s_or_b64 vcc, vcc, %s', sM2)
    S('s_or_b64 vcc, vcc, %s', sMASK)
    if OPT['force_fallback']:
        A('s_branch ' + FB)
    A('s_cbranch_scc1 ' + FB)
    A(OK + ':')
    S('v_rcp_f32 v10, v%d', O0 + 8)
    S('v_rcp_f32 v12, v%d', O1)
    for h, (src, rc) in enumerate(((O0, 10), (O1 + 8, 12))):
        for i in range(4):
            S('v_pk_mul_f32 %s, %s, %s op_sel_hi:[1,0]', vr(src + 2 * i, 2), vr(src + 2 * i, 2), vr(rc, 2))
        for i in range(4):
            S('v_cvt_pk_bf16_f32 v%d, v%d, v%d', P0 + 4 * h + i, src + 2 * i, src + 2 * i + 1)
        ts = S('buffer_store_dwordx4 %s, %s, %s, %s offen offset:%d%s', vr(P0 + 4 * h, 4), vL16, SRD_WS, sOO, h * 1024, sc('o'))
    return FB, OK, ts


def attention_fallback(FB, OK):
    A(FB + ':')
    S('s_min_u32 %s, %s, 8', t3, sT)
    for r in range(16):
        S('v_mov_b32 v%d, 0x3f803f80', V0 + r)
    for h in range(2):
        Kp, Q, O, V = h, (Q0, Q1)[h], (O0, O1)[h], (V0, V1)[h]
        for ps in range(2):
            L, ND, NF = A.label('fl'), A.label('fnd'), A.label('fnf')
            S('s_mov_b32 %s, 0', t4)
            S('v_add_u32 v10, %d, %s', 8 * 4096, vKV)
            if ps == 0:
                A('v_mov_b32 v11, 0xff800000')
            else:
                for r in range(16):
                    S('v_mov_b32 v%d, 0', O + r)
            A(L + ':')
            S('ds_read_b128 %s, v10 offset:%d', vr(K0, 4), Kp * 1024)
            if ps == 1:
                S('s_mov_b64 exec, %s', (sLO, sHI)[h])
                S('ds_read_b128 %s, v10 offset:2048', vr(V, 4))
                S('ds_read_b128 %s, v10 offset:3072', vr(V + 4, 4))
                A('s_mov_b64 exec, -1')
            A('s_waitcnt lgkmcnt(0)')
            S('%s %s, %s, %s, 0', MF32, vr(S0, 16), vr(K0, 4), vr(Q, 4))
            A('s_nop 15')
            S('s_cmp_lg_u32 %s, 0', t4)
            A('s_cbranch_scc1 ' + ND)
            for r in range(16):
                S('v_add_f32 v%d, v%d, v%d', S0 + r, S0 + r, MD + r)
            A(ND + ':')
            S('s_cmp_lg_u32 %s, 8', t4)
            A('s_cbranch_scc1 ' + NF)
            for r in range(16):
                S('v_add_f32 v%d, v%d, v%d', S0 + r, S0 + r, MFAR + r)
            A(NF + ':')
            if ps == 0:
                for r in range(8):
                    S('v_max3_f32 v11, v11, v%d, v%d', S0 + 2 * r, S0 + 2 * r + 1)
            else:
                for r in range(16):
                    S('v_sub_f32 v%d, v%d, v11', S0 + r, S0 + r)
                for r in range(16):
                    S('v_exp_f32 v%d, v%d', S0 + r, S0 + r)
                for r in range(8):
                    S('v_cvt_pk_bf16_f32 v%d, v%d, v%d', P0 + r, S0 + 2 * r, S0 + 2 * r + 1)
                S('%s %s, %s, %s, %s', MF32, vr(O, 16), vr(V, 4), vr(P0, 4), vr(O, 16))
                S('%s %s, %s, %s, %s', MF32, vr(O, 16), vr(V + 4, 4), vr(P0 + 4, 4), vr(O, 16))
                A('s_nop 15')
            A('v_subrev_u32 v10, 4096, v10')
            S('s_add_u32 %s, %s, 1', t4, t4)
            S('s_cmp_le_u32 %s, %s', t4, t3)
            A('s_cbranch_scc1 ' + L)
            if ps == 0:
                A('v_mov_b32 v12, v11')
                A('v_permlane32_swap_b32 v11, v12')
                A('v_max_f32 v11, v11, v12')
    A('s_branch ' + OK)


def group_poll_addr(kindoff):
    S('v_lshrrev_b32 v12, 5, %s', vLANE)
    S('v_add_u32 v12, %s, v12', sT0)
    S('v_and_b32 v13, 31, %s', vLANE)
    A('v_lshlrev_b32 v10, 8, v12')
    A('v_lshl_add_u32 v10, v13, 2, v10')
    S('v_add_u32 v10, %d, v10', WS_FA + kindoff)
    S('s_lshl_b32 %s, %s, 2', t0, sW)
    S('s_lshl_b32 s84, 15, %s', t0)
    A('s_mov_b32 s85, s84')


def red_addr(base):
    S('s_xor_b32 %s, %s, 1', t0, sW)
    S('s_lshl_b32 %s, %s, 1', t0, t0)
    S('s_add_u32 %s, %s, %s', t0, t0, sB)
    S('s_lshl_b32 %s, %s, 12', t0, t0)
    S('s_xor_b32 %s, %s, 16384', t1, t0)
    S('s_add_u32 %s, %s, %d', t0, t0, base)
    S('s_add_u32 %s, %s, %d', t1, t1, base)
    S('v_add_u32 v14, %s, %s', t0, vL16)
    S('v_add_u32 v13, %s, %s', t1, vL16)
    S('s_lshl_b32 %s, %s, 13', t0, sW)
    S('s_xor_b32 %s, %s, 16384', t1, t0)
    S('s_add_u32 %s, %s, %d', t0, t0, base)
    S('s_add_u32 %s, %s, %d', t1, t1, base)
    S('v_add_u32 v15, %s, %s', t0, vL16)
    S('v_add_u32 v9, %s, %s', t1, vL16)


def ksplit_setup(nks, wsbase, tstride):
    S('s_add_u32 %s, %s, %s', t3, sT0, sA)
    S('s_xor_b32 %s, %s, 1', t2, t3)
    S('s_mul_i32 %s, %s, %d', t4, sW, nks * 1024)
    for t in (t2, t3):
        S('s_mul_i32 %s, %s, %d', t, t, tstride)
        S('s_add_u32 %s, %s, %s', t, t, t4)
        S('s_add_u32 %s, %s, %d', t, t, wsbase)


def ksplit_body(nks, breg, ring_base, ring_n, ahead, C, pre=None, post=None, npost=0, btick=None):
    ta = {}

    def aload(i):
        st, k = divmod(i, nks)
        so = (t2, t3)[st]
        ta[i] = S('buffer_load_dwordx4 %s, %s, %s, %s offen offset:%d sc1', vr(ring_base + 4 * (i % ring_n), 4), vL16, SRD_WS, so, (k & 3) * 1024)
        if k & 3 == 3:
            S('s_add_u32 %s, %s, 4096', so, so)
    n = 2 * nks
    assert ahead < ring_n or n <= ring_n
    for i in range(min(ahead, n)):
        aload(i)
    tw = tr = None
    wq = []
    for i in range(n):
        st, k = divmod(i, nks)
        tk = ta[i]
        if btick and st == 0 and k in btick:
            tk = max(tk, btick[k])
        A.wait(vm=tk)
        a = vr(ring_base + 4 * (i % ring_n), 4)
        for s in range(2):
            c = vr(C[2 * st + s], 16)
            S('%s %s, %s, %s, %s', MF32, c, breg(k, s), a, c if k else '0')
            if wq:
                wq.pop(0)()
            if s == 0:
                if i + ahead < n:
                    aload(i + ahead)
                elif post and npost > 0:
                    post.drip(2)
                    npost -= 2
            elif pre and len(pre):
                kk = nks - (len(pre) + 1) // 2
                btick[kk] = pre.drip(1)
        if st == 1 and k == 0:
            for s in range(2):
                for g in range(4):
                    wq.append(lambda s=s, g=g: S('ds_write_b128 %s, %s offset:%d', ('v14', 'v13')[s], vr(C[s] + 4 * g, 4), g * 1024))
        if st == 1 and k == 5:
            assert not wq
            A.wait(lg='all')
            A('s_barrier')
            for p in range(2):
                for g in range(4):
                    tr = S('ds_read_b128 %s, v15 offset:%d', vr(C[p] + 4 * g, 4), p * 4096 + g * 1024)
    if post and npost > 0:
        post.drip(npost)
    A.wait(lg=tr)
    for g in range(8):
        S('v_pk_add_f32 %s, %s, %s', vr(C[0] + 2 * g, 2), vr(C[0] + 2 * g, 2), vr(C[1] + 2 * g, 2))
    for g in range(4):
        tw = S('ds_write_b128 v15, %s offset:%d', vr(C[3] + 4 * g, 4), g * 1024)
    for g in range(8):
        S('v_pk_add_f32 %s, %s, %s', vr(C[2] + 2 * g, 2), vr(C[2] + 2 * g, 2), vr(C[0] + 2 * g, 2))
    A.wait(lg=tw)
    A('s_barrier')
    for g in range(4):
        tr = S('ds_read_b128 %s, v9 offset:%d', vr(C[1] + 4 * g, 4), g * 1024)
    for g in range(4):
        A.wait(lg=tr - 3 + g)
        for e in range(2):
            r = 4 * g + 2 * e
            S('v_pk_add_f32 %s, %s, %s', vr(C[2] + r, 2), vr(C[2] + r, 2), vr(C[1] + r, 2))


X2 = 240
GA, G2 = 208, 224
vGAB = 'v5'


def wo_phase(ts, w1, w2):
    w1.drip(4)
    S('s_lshl_b32 %s, %s, 8', t1, sT)
    S('s_lshl_b32 %s, %s, 2', t2, sM)
    S('s_add_u32 %s, %s, %s', t1, t1, t2)
    S('s_add_u32 %s, %s, %d', t5, t1, WS_FA + 64)
    S('s_lshl_b32 %s, %s, 8', t0, sG)
    A('v_lshlrev_b32 v10, 3, v0')
    S('v_subrev_u32 v11, %s, v10', t0)
    A('v_and_b32 v11, 1023, v11')
    A('v_and_b32 v10, 1024, v10')
    A('v_add_u32 v16, v10, v11')
    S('v_add_u32 v16, %d, v16', L_MODL)
    S('v_and_b32 v10, 15, %s', vLANE)
    A('v_lshlrev_b32 v10, 4, v10')
    S('v_lshrrev_b32 v11, 5, %s', vLANE)
    A('v_lshl_add_u32 v10, v11, 2, v10')
    S('v_bfe_u32 v12, %s, 4, 1', vLANE)
    A('v_lshl_add_u32 v10, v12, 3, v10')
    S('s_lshl_b32 %s, %s, 8', t1, sW)
    S('s_add_u32 %s, %s, %d', t1, t1, L_GAB)
    S('v_add_u32 v17, %s, v10', t1)
    S('v_lshl_add_u32 v18, v11, 6, %s', t1)
    S('s_lshl_b32 %s, %s, 7', t1, sCT)
    S('s_lshl_b32 %s, %s, 6', t2, sB)
    S('s_add_u32 %s, %s, %s', t1, t1, t2)
    S('s_sub_u32 %s, %s, %s', t1, t1, t0)
    S('s_and_b32 %s, %s, 1023', t1, t1)
    S('s_add_u32 %s, %s, %d', t1, t1, L_MODL + 1024)
    S('v_lshl_add_u32 v19, v11, 5, %s', t1)
    A.wait(vm=ts)
    flag_store(t5, not LOCAL[0])
    stamp('o pub')
    w1.drip(99)
    if LOCAL[0] and OPT['py']:
        touch(vYO, sYO)
        touch(vYO, sYO, 256)
        S('buffer_load_dword v124, v8, %s, %s offen sc1', SRD_WS, sSO)
    A('s_barrier')
    S('ds_write2_b32 v16, v%d, v%d offset0:0 offset1:1', MR, MR + 1)
    t = S('ds_write_b32 v17, v%d', MR + 2)
    group_poll_addr(64)
    red_addr(L_RED)
    for i in range(7, -1, -1):
        S('v_and_b32 v%d, 0xffff0000, v%d', X2 + 2 * i + 1, XT + i)
        S('v_lshlrev_b32 v%d, 16, v%d', X2 + 2 * i, XT + i)
    A.wait(lg=t)
    S('v_mov_b32 %s, v18', vGAB)
    A('v_mov_b32 v6, v19')
    C = [16, 32, 48, 64]
    ksplit_setup(8, WS_O, 32768)
    for i in range(4):
        S('ds_read_b128 %s, %s offset:%d', vr(GA + 4 * i, 4), vGAB, 16 * i)
    poll('v10', 'v12', 'o')
    stamp('o seen')
    ksplit_body(8, lambda k, s: ar(192 + 8 * k + 4 * s, 4), 128, 16, 12, C, post=w2, npost=2 * OPT['w2a'])
    stamp('wo gemm')
    R = C[2]
    for i in range(2):
        t = S('ds_read_b128 %s, v6 offset:%d', vr(80 + 4 * i, 4), 16 * i)
    for i in range(8):
        S('v_pk_fma_f32 %s, %s, %s, %s', vr(X2 + 2 * i, 2), vr(R + 2 * i, 2), vr(GA + 2 * i, 2), vr(X2 + 2 * i, 2))
    S('v_pk_add_f32 v[40:41], %s, %s', vr(X2, 2), vr(X2 + 2, 2))
    S('v_pk_mul_f32 v[42:43], %s, %s', vr(X2, 2), vr(X2, 2))
    S('v_pk_fma_f32 v[42:43], %s, %s, v[42:43]', vr(X2 + 2, 2), vr(X2 + 2, 2))
    for i in range(2, 8):
        S('v_pk_add_f32 v[40:41], v[40:41], %s', vr(X2 + 2 * i, 2))
        S('v_pk_fma_f32 v[42:43], %s, %s, v[42:43]', vr(X2 + 2 * i, 2), vr(X2 + 2 * i, 2))
    A('v_add_f32 v40, v40, v41')
    A('v_add_f32 v42, v42, v43')
    A.wait(lg=t)
    unpack(G2, 80)
    A('v_permlane32_swap_b32 v40, v42')
    A('v_add_f32 v40, v40, v42')
    S('buffer_store_dword v40, v8, %s, %s offen%s', SRD_WS, sSO, sc('y'))
    for i in range(1, 8):
        unpack(G2 + 2 * i, 80 + i)
    for p in range(2):
        for e in range(2):
            for d in range(2):
                i = 4 * e + 2 * p + d
                S('v_pk_mul_f32 %s, %s, %s', vr(16 + 2 * i, 2), vr(X2 + 2 * i, 2), vr(G2 + 2 * i, 2))
        for e in range(2):
            for d in range(2):
                r = 16 + 8 * e + 4 * p + 2 * d
                S('v_cvt_pk_bf16_f32 v%d, v%d, v%d', 32 + 4 * p + 2 * e + d, r, r + 1)
        ts = S('buffer_store_dwordx4 %s, %s, %s, %s offen offset:%d%s', vr(32 + 4 * p, 4), vYO, SRD_WS, sYO, p * 256, sc('y'))
    w2.drip(4 if OPT['w2b'] >= 2 else 0)
    S('s_add_u32 %s, %s, %s', t3, sT0, sA)
    S('s_lshl_b32 %s, %s, 1', t4, sCT)
    S('s_add_u32 %s, %s, %s', t4, t4, sB)
    S('s_lshl_b32 %s, %s, 8', t1, t3)
    S('s_lshl_b32 %s, %s, 2', t2, t4)
    S('s_add_u32 %s, %s, %s', t1, t1, t2)
    S('s_add_u32 %s, %s, %d', t5, t1, WS_FA + 128)

    def pub():
        A.wait(vm=ts)
        flag_store(t5, not LOCAL[0])
        w2.drip(max(0, 2 * OPT['w2b'] - 4))
    ut_compute(pub)
    stamp('y pub')


vT1, vT2 = 6, 7


def ut_compute(pub):
    S('v_lshrrev_b32 v10, 5, %s', vLANE)
    A('v_lshlrev_b32 v10, 4, v10')
    S('v_bfe_u32 v11, %s, 4, 1', vLANE)
    A('v_lshl_add_u32 v10, v11, 2, v10')
    S('v_bfe_u32 v11, %s, 2, 2', vLANE)
    A('v_add_u32 v10, v10, v11')
    A('v_mul_u32_u24 v10, 224, v10')
    S('v_and_b32 v11, 3, %s', vLANE)
    S('v_lshl_add_u32 v%d, v11, 3, v10', vT1)
    S('v_add_u32 v%d, 57344, v%d', vT2, vT1)
    S('s_lshl_b32 %s, %s, 5', t0, sW)
    S('s_add_u32 %s, %s, 128', t1, t0)
    S('s_min_u32 %s, %s, 192', t1, t1)
    S('v_add_u32 v16, %s, v%d', t0, vT1)
    S('v_add_u32 v17, %s, v%d', t0, vT2)
    S('v_add_u32 v18, %s, v%d', t1, vT1)
    S('v_add_u32 v19, %s, v%d', t1, vT2)
    S('v_and_b32 v10, 1, %s', vLANE)
    A('v_lshlrev_b32 v11, 10, v10')
    S('v_sub_u32 v11, %d, v11', L_MODL + 1024)
    S('v_lshrrev_b32 v12, 5, %s', vLANE)
    A('v_lshl_add_u32 v11, v12, 5, v11')
    S('v_bfe_u32 v12, %s, 4, 1', vLANE)
    A('v_lshl_add_u32 v20, v12, 3, v11')
    rd = {}

    def rds(ks):
        b = 128 + 12 * (ks % 3)
        o = (ks & 7) * 7168
        S('ds_read2_b64 %s, v20 offset0:%d offset1:%d', vr(b, 4), 8 * ks, 8 * ks + 2)
        for n in range(2):
            for half in range(2):
                rd[ks] = S('ds_read_b64_tr_b16 %s, v%d offset:%d', vr(b + 4 + 4 * n + 2 * half, 2), 16 + 2 * n + (ks >> 3), o + half * 8 * 224)
    rds(0)
    rds(1)
    S('v_lshrrev_b32 v12, 4, %s', vLANE)
    A('v_lshlrev_b32 v12, 4, v12')
    A('v_lshl_add_u32 v12, v10, 9, v12')
    S('s_lshl_b32 %s, %s, 1', t0, t0)
    S('s_lshl_b32 %s, %s, 1', t1, t1)
    S('s_add_u32 %s, %s, %d', t0, t0, L_UT)
    S('s_add_u32 %s, %s, %d', t1, t1, L_UT)
    S('v_add_u32 v21, %s, v12', t0)
    S('v_add_u32 v22, %s, v12', t1)
    at = 2 if (LOCAL[0] and OPT['py']) else 9
    for ks in range(16):
        if ks + 2 < 16:
            rds(ks + 2)
        A.wait(lg=rd[ks])
        b = 128 + 12 * (ks % 3)
        for n in range(2):
            c = vr(24 + 4 * n, 4)
            S('%s %s, %s, %s, %s', MF16, c, vr(b + 4 + 4 * n, 4), vr(b, 4), c if ks else '0')
        if ks == at:
            pub()
    A('ds_write_b128 v21, v[24:27]')
    A('ds_write_b128 v22, v[28:31]')


def g1_phase(w2):
    global vB0, vB1, vXO
    ACC, BF, YA = 16, 72, 112
    S('v_mov_b32 v100, %s', vB0)
    S('v_mov_b32 v101, %s', vB1)
    S('v_mov_b32 v102, %s', vXO)
    vB0, vB1, vXO = 'v100', 'v101', 'v102'
    S('s_lshl_b32 %s, %s, 8', t0, sT)
    S('s_add_u32 %s, %s, %d', t0, t0, WS_FA + 128)
    S('v_and_b32 v12, 31, %s', vLANE)
    S('v_lshl_add_u32 v10, v12, 2, %s', t0)
    S('s_mov_b64 %s, 0xffff', sMASK)
    rd = {}

    def bread(ks, nt):
        for half in range(2):
            rd[ks, nt] = S('ds_read_b64_tr_b16 %s, v%d offset:%d', vr(BF + 4 * nt + 2 * half, 2), vT1 + (ks >> 3), (ks & 7) * 7168 + half * 8 * 224 + nt * 32)
    A.wait(lg='all')
    for nt in range(7):
        bread(0, nt)
    S('s_lshl_b32 %s, %s, 15', t1, sT)
    S('s_add_u32 %s, %s, %d', t1, t1, WS_Y)
    S('s_lshl_b32 %s, %s, 12', t0, sG)
    S('s_add_u32 %s, %s, %s', t2, t1, t0)
    S('s_add_u32 %s, %s, 16384', t3, t2)
    S('s_lshl_b32 %s, %s, 12', t4, sT)
    S('s_add_u32 %s, %s, %d', t4, t4, WS_STAT)
    S('s_mul_i32 %s, %s, 112', sOO, sT)
    S('s_mul_i32 %s, %s, 7', t5, sM)
    S('s_add_u32 %s, %s, %s', sOO, sOO, t5)
    S('s_lshl_b32 %s, %s, 10', sOO, sOO)
    S('s_add_u32 %s, %s, %d', sOO, sOO, WS_HID)
    S('s_add_u32 %s, %s, 4096', sYO, sOO)
    poll('v10', 'v12', 'y')
    stamp('y seen')
    ta = {}
    aq = Stream()
    for ks in range(16):
        for tt in range(2):
            def f(ks=ks, tt=tt):
                if ks and ks & 3 == 0 and tt == 0:
                    S('s_add_u32 %s, %s, 4096', t0, t0)
                    S('s_and_b32 %s, %s, 0x3fff', t0, t0)
                    S('s_add_u32 %s, %s, %s', t2, t1, t0)
                    S('s_add_u32 %s, %s, 16384', t3, t2)
                ta[ks, tt] = S('buffer_load_dwordx4 %s, %s, %s, %s offen offset:%d sc1', vr(YA + 8 * ks + 4 * tt, 4), vL16, SRD_WS, (t2, t3)[tt], (ks & 3) * 1024)
            aq.add(f)
    tst = {}
    for p in range(16):
        def f(p=p):
            tst[0] = S('buffer_load_dword v%d, v8, %s, %s offen offset:%d sc1', YA + p, SRD_WS, t4, p * 256)
        aq.add(f)
    if LOCAL[0] and OPT['phid']:
        for i in range(7):
            aq.add(lambda i=i: S('buffer_load_dwordx4 v[104:107], %s, %s, %s offen offset:%d sc1', vL16, SRD_WS, (sOO, sYO)[i >> 2], (i & 3) * 1024))
    for _ in range(2 * OPT['w2c']):
        if len(w2):
            aq.add(w2.q.pop(0))
    aq.drip(10)
    rate = [3, 3, 3, 3, 3, 3, 4, 7, 7, 4] + [4] * 6
    for ks in range(16):
        A.wait(vm=ta[ks, 1])
        n = rate[ks]
        for nt in range(7):
            A.wait(lg=rd[ks, nt])
            for tt in range(2):
                c = vr(ACC + 8 * nt + 4 * tt, 4)
                S('%s %s, %s, %s, %s', MF16, c, vr(BF + 4 * nt, 4), vr(YA + 8 * ks + 4 * tt, 4), c if ks else '0')
            if ks < 15:
                bread(ks + 1, nt)
            if (nt + 1) * n // 7 > nt * n // 7:
                aq.drip(1)
        if ks == 13:
            A('s_barrier')
    aq.drip(99)
    stamp('g1 gemm')
    S('v_lshrrev_b32 v10, 4, %s', vLANE)
    A('v_lshlrev_b32 v10, 4, v10')
    S('v_add_u32 v10, %d, v10', L_UT)
    U, TT = 144, 176
    tu = []
    for nt in range(7):
        S('ds_read_b128 %s, v10 offset:%d', vr(U + 4 * nt, 4), nt * 64)
        tu.append(S('ds_read_b128 %s, v10 offset:%d', vr(TT + 4 * nt, 4), 512 + nt * 64))
    A.wait(vm=tst[0])
    for n in (8, 4, 2):
        for i in range(0, n, 2):
            S('v_pk_add_f32 %s, %s, %s', vr(YA + i, 2), vr(YA + i, 2), vr(YA + n + i, 2))
    A('v_add_f32 v112, v112, v113')
    A('v_mul_f32 v112, 0x3b000000, v112')
    A('v_mov_b32 v113, v112')
    A('v_permlane32_swap_b32 v112, v113')
    A('v_fma_f32 v113, -v112, v112, v113')
    A('v_max_f32 v113, 0, v113')
    A('v_add_f32 v113, 0x3727c5ac, v113')
    A('v_rsq_f32 v114, v113')
    A('v_mul_f32 v115, -v112, v114')
    A('v_mov_b32 v116, v114')
    A('v_mov_b32 v117, v115')
    A('v_permlane16_swap_b32 v114, v116')
    A('v_permlane16_swap_b32 v115, v117')
    for nt in range(7):
        A.wait(lg=tu[nt])
        o = 208 + 4 * nt
        for tt in range(2):
            rp = vr(114 + 2 * tt, 2)
            for e in range(2):
                S('v_pk_fma_f32 %s, %s, %s, %s op_sel:[0,1,0] op_sel_hi:[1,1,1]', vr(120 + 2 * e, 2), vr(U + 4 * nt + 2 * e, 2), rp, vr(TT + 4 * nt + 2 * e, 2))
            for e in range(2):
                S('v_pk_fma_f32 %s, %s, %s, %s op_sel:[0,0,0] op_sel_hi:[1,0,1]', vr(120 + 2 * e, 2), vr(ACC + 8 * nt + 4 * tt + 2 * e, 2), rp, vr(120 + 2 * e, 2))
            for e in range(2):
                S('v_cvt_pk_bf16_f32 v%d, v%d, v%d', o + 2 * tt + e, 120 + 2 * e, 121 + 2 * e)
            for e in range(2):
                S('v_pk_max_i16 v%d, v%d, 0', o + 2 * tt + e, o + 2 * tt + e)
        S('v_permlane16_swap_b32 v%d, v%d', o, o + 2)
        S('v_permlane16_swap_b32 v%d, v%d', o + 1, o + 3)
        ts = S('buffer_store_dwordx4 %s, %s, %s, %s offen offset:%d%s', vr(o, 4), vL16, SRD_WS, (sOO, sYO)[nt >> 2], (nt & 3) * 1024, sc('hid'))
    return ts


def g2_phase(ts, w2):
    GB = 80
    w2.drip(4 if OPT['w2d'] >= 2 else 0)
    S('s_lshl_b32 %s, %s, 8', t1, sT)
    S('s_lshl_b32 %s, %s, 2', t2, sM)
    S('s_add_u32 %s, %s, %s', t1, t1, t2)
    S('s_add_u32 %s, %s, %d', t5, t1, WS_FA + 192)
    for i in range(4):
        S('ds_read_b128 %s, %s offset:%d', vr(GB + 4 * i, 4), vGAB, 128 + 16 * i)
    group_poll_addr(192)
    red_addr(L_RED)
    ksplit_setup(28, WS_HID, 112 * 1024)
    A.wait(vm=ts)
    flag_store(t5, not LOCAL[0])
    w2.drip(max(0, 2 * OPT['w2d'] - 4))
    stamp('hid pub')
    C = [16, 32, 48, 64]
    poll('v10', 'v12', 'hid')
    stamp('hid seen')
    post = Stream()
    if LOCAL[0] and OPT['wbl2']:
        def f():
            SK = A.label('nowb')
            S('s_or_b32 %s, %s, %s', t0, sJ, sW)
            S('s_cmp_lg_u32 %s, 0', t0)
            A('s_cbranch_scc1 ' + SK)
            A.lines.append('buffer_wbl2 sc1')
            A(SK + ':')
        post.add(lambda: None)
    ksplit_body(28, lambda k, s: ar(8 * k + 4 * s, 4), 104, 34, 12, C, pre=w2, btick={})
    stamp('g2 gemm')
    R = C[2]
    for p in range(2):
        for i in range(4 * p, 4 * p + 4):
            S('v_pk_fma_f32 %s, %s, %s, %s', vr(X2 + 2 * i, 2), vr(R + 2 * i, 2), vr(GB + 2 * i, 2), vr(X2 + 2 * i, 2))
        for i in range(4 * p, 4 * p + 4):
            S('v_cvt_pk_bf16_f32 v%d, v%d, v%d', 16 + i, X2 + 2 * i, X2 + 2 * i + 1)
        S('buffer_store_dwordx4 %s, %s, %s, 0 offen offset:%d%s', vr(16 + 4 * p, 4), vXO, SRD_OUT, 16 * p, ('', ' sc1', ' nt')[OPT['outsc']])


def epoch_update():
    SK, GO = A.label('noep'), A.label('epgo')
    S('s_or_b32 %s, %s, %s', t0, sLID, sW)
    S('s_cmp_lg_u32 %s, 0', t0)
    A('s_cbranch_scc1 ' + SK)
    vm_save, vd = A.vm, A.vm_done
    S('s_mov_b64 %s, 0xff00', sMASK)
    S('v_cmp_ne_u32 vcc, %s, v118', sTAG)
    S('s_and_b64 vcc, vcc, %s', sMASK)
    A('s_cbranch_scc0 ' + GO)
    poll('v9', 'v118', 'ep')
    A(GO + ':')
    S('s_mov_b32 %s, %d', t2, WS_E)
    flag_store(t2, True)
    A.vm, A.vm_done = vm_save, vd
    A(SK + ':')


def dump_stamps():
    if OPT['diag']:
        D = A.label('diag')
        A('s_waitcnt vmcnt(0) lgkmcnt(0)')
        A('s_add_u32 s97, s97, 6000')
        A('s_mov_b32 s98, 0')
        A(D + ':')
        A('s_memrealtime s[92:93]')
        A('s_add_u32 s98, s98, 1')
        A('s_cmp_gt_u32 s98, 0x8000')
        A('s_cbranch_scc1 L_exit')
        A('s_waitcnt lgkmcnt(0)')
        A('s_sub_u32 s92, s92, s97')
        A('s_cmp_lt_i32 s92, 0')
        A('s_cbranch_scc1 ' + D)
    if not OPT['stamps']:
        return
    A.wait(vm='all', force=True)
    A('s_memrealtime s[92:93]')
    stamp('end')
    S('s_lshl_b32 %s, %s, 2', t0, sLID)
    S('s_add_u32 %s, %s, %s', t0, t0, sW)
    S('s_lshl_b32 %s, %s, 7', t0, t0)
    S('s_add_u32 %s, %s, %d', t0, t0, WS_TS)
    A('s_mov_b64 exec, 1')
    for i in range(24):
        S('v_mov_b32 v10, s%d', STAMP0 + i)
        S('buffer_store_dword v10, off, %s, %s offset:%d', SRD_WS, t0, 4 * i)
    A('v_mov_b32 v10, s92')
    S('buffer_store_dword v10, off, %s, %s offset:100', SRD_WS, t0)
    S('s_getreg_b32 %s, hwreg(HW_REG_XCC_ID)', t1)
    S('v_mov_b32 v10, %s', t1)
    S('buffer_store_dword v10, off, %s, %s offset:96', SRD_WS, t0)
    S('v_mov_b32 v10, %d', int(LOCAL[0]))
    S('buffer_store_dword v10, off, %s, %s offset:104', SRD_WS, t0)
    A('s_mov_b64 exec, -1')


def rest(wq):
    global vB0, vB1, vXO
    vB0, vB1, vXO = 'v111', 'v112', 'v113'
    wst = Stream()
    wst.q = list(wq)
    h_phase(wst)
    w1 = w1_stream()
    w2 = frag_stream(WS_W2T, 112 * 2048, 28, 0)
    if OPT['nobg'] & 1:
        w1.q = w1.q[:8]
    if OPT['nobg'] & 2:
        w2.q = []
    qkv(w1)
    epoch_update()
    FB, OK, ts = attention(w1)
    wo_phase(ts, w1, w2)
    ts = g1_phase(w2)
    g2_phase(ts, w2)
    dump_stamps()
    return FB, OK


def main():
    tw, tx = prologue()
    wst = wqkv_stream([0, 1])
    h_addr()
    if OPT['ph']:
        S('s_add_u32 %s, %s, 4096', t0, H_S)
        touch(H_V, H_S)
        touch(H_V, t0)
    wst.drip(OPT['n1'])
    late_setup()
    first_compute(tw, tx)
    stamp('mod pub')
    ln1_finish()
    tp = prep_issue()
    wst.drip(OPT['n2'])
    prep_finish(tp)
    stamp('prep done')
    mod_poll()
    st = (A.vm, A.vm_done, A.lg, A.lg_done, nstamp[0])
    FB, OK = rest(wst.q)
    A('L_exit:')
    A('s_endpgm')
    A('L_localend:')
    attention_fallback(FB, OK)
    xc_slow()
    LOCAL[0] = False
    A.vm, A.vm_done, A.lg, A.lg_done, nstamp[0] = st
    FB, OK = rest(wst.q)
    A('s_endpgm')
    attention_fallback(FB, OK)
    body, nops = A.finalize()
    hdr = open(os.path.join(os.path.dirname(os.path.abspath(__file__)), '..', 'cdna_kernels', NAME + '.s.ref')).read().split('; Override')[0]
    out = hdr
    out += '; @launch grid=(256,1,1) block=(256,1,1) lds=163840\n'
    out += '.amdgcn_target "amdgcn-amd-amdhsa--gfx950"\n.text\n.globl %s_kernel\n.p2align 8\n.type %s_kernel,@function\n%s_kernel:\n' % (NAME, NAME, NAME)
    out += '\n'.join(('' if l.endswith(':') else '    ') + l for l in body) + '\n'
    out += '''.section .rodata,"a"
.p2align 6
.amdhsa_kernel %s_kernel
  .amdhsa_next_free_vgpr 512
  .amdhsa_next_free_sgpr 102
  .amdhsa_accum_offset 256
  .amdhsa_group_segment_fixed_size 0
  .amdhsa_kernarg_size 88
  .amdhsa_user_sgpr_count 2
  .amdhsa_user_sgpr_kernarg_segment_ptr 1
  .amdhsa_system_sgpr_workgroup_id_x 1
  .amdhsa_float_denorm_mode_32 3
.end_amdhsa_kernel
''' % NAME
    open(sys.argv[1], 'w').write(out)
    if OPT['stamps']:
        open(sys.argv[1] + '.stamps', 'w').write('\n'.join(STAMP_NAMES))
    print('instructions', len(body), 'pad states', nops, file=sys.stderr)


main()
```

```python
import sys, os
from asmlib import Asm

NAME = 'adaLN_cond__sliding_block__dense_activation_relu__prompt'
OPT = dict(stamps=0, force_fallback=0, force_remote=0, diag=0,
           ph=1, po=1, py=1, phid=0,
           n1=4, n2=4,
           qd=4,
           aw1=12,
           w2a=12, w2b=10, w2c=16, w2d=10,
           fine=0, dref=-1, qchk=12, wbl2=0, outsc=0, nobg=0, rot=1)
for a in sys.argv[2:]:
    k, v = a.split('=')
    assert k in OPT, k
    OPT[k] = int(v)

WS_E = 0
WS_FA = 0x1000
WS_XA = 0x6000
WS_XB = 0x8000
WS_FP = 0xC000
WS_FKV = 0x10000
WS_MOD = 0x50000
WS_STAT = 0x80000
WS_TS = 0xC0000
WS_WOT = 0x100000
WS_W2T = 0x200000
WS_H = 0x400000
WS_O = 0x600000
WS_Y = 0x800000
WS_KV = 0xA00000
WS_HID = 0xE00000
WS_SIZE = 0x1600000
OOB = 0x40000000

L_SCR = 98304
L_KV = 114688
L_MODL = 114688
L_GAB = L_MODL + 2048
L_UT = L_MODL + 4096
L_RED = L_MODL + 8192

sX, sJ, sW, sT, sM = 's3', 's4', 's5', 's6', 's7'
SRD_X, SRD_WQKV, SRD_WO, SRD_W1, SRD_W2, SRD_WS, SRD_OUT, SRD_WMOD, SRD_C = [
    's[%d:%d]' % (32 + 4 * i, 35 + 4 * i) for i in range(9)]
sTAG, sE = 's68', 's69'
sCT, sG, sOWN, sTS, sT0 = 's70', 's71', 's72', 's73', 's74'
sLID = 's75'
t0, t1, t2, t3, t4, t5 = 's76', 's77', 's78', 's79', 's80', 's81'
sCNT = 's82'
sXC = 's83'
sMASK = 's[84:85]'
sLO, sHI = 's[86:87]', 's[88:89]'
sDG, sDL = 's0', 's1'
sFG = 's2'
sM2 = 's[98:99]'
STAMP0 = 8

vLANE, vL16, vTAG = 'v1', 'v2', 'v3'

A = Asm()
nstamp = [0]
STAMP_NAMES = []
P0DONE = [False]
ALLN = [0]
FINE = {2: (4, 10), 3: (10, 15), 4: (15, 20)}
LOCAL = [True]
LIMIT = 1 << 17
MF32 = 'v_mfma_f32_32x32x16_bf16'
MF16 = 'v_mfma_f32_16x16x32_bf16'


def vr(b, n=1, k='v'):
    return '%s%d' % (k, b) if n == 1 else '%s[%d:%d]' % (k, b, b + n - 1)


def ar(b, n=1):
    return vr(b, n, 'a')


def S(fmt, *a):
    return A(fmt % a)


def stamp(name):
    if OPT['diag']:
        if name.startswith('.'):
            return
        nstamp[0] += 1
        if nstamp[0] == OPT['diag']:
            print('diag stamp:', name, file=sys.stderr)
            A.wait(lg='all')
            A('s_memrealtime s[90:91]')
            A('s_waitcnt lgkmcnt(0)')
            A('s_mov_b32 s97, s90')
        return
    if not OPT['stamps']:
        return
    fine = name.startswith('.')
    if OPT['fine'] == 1:
        if name == 'h seen':
            for q in range(nstamp[0]):
                A('v_readlane_b32 s%d, v255, %d' % (STAMP0 + 2 + q, q))
            P0DONE[0] = True
        elif not P0DONE[0]:
            A('s_memtime s[90:91]' if OPT['stamps'] == 1 else 's_memrealtime s[90:91]')
            A('s_waitcnt lgkmcnt(0)')
            A('v_writelane_b32 v255, s90, %d' % nstamp[0])
            A.lg_done = A.lg
            nstamp[0] += 1
            if LOCAL[0]:
                STAMP_NAMES.append(name)
            return
        elif name != 'end':
            return
    elif OPT['fine'] > 1:
        if name != 'end' and not (FINE[OPT['fine']][0] <= ALLN[0] <= FINE[OPT['fine']][1]):
            if not fine:
                ALLN[0] += 1
            return
        if not fine:
            ALLN[0] += 1
    elif fine:
        return
    i = nstamp[0]
    nstamp[0] += 1
    assert i < 22
    A.wait(lg='all')
    A('s_memtime s[90:91]' if OPT['stamps'] == 1 else 's_memrealtime s[90:91]')
    A('s_waitcnt lgkmcnt(0)')
    A('s_mov_b32 s%d, s90 ; stamp %d %s' % (STAMP0 + 2 + i, i, name))
    if LOCAL[0]:
        STAMP_NAMES.append(name)


def sc(buf):
    return '' if (LOCAL[0] and OPT['p' + buf]) else ' sc1'


def flag_store(soff, sc1, val=vTAG):
    A('s_mov_b64 exec, 1')
    t = S('buffer_store_dword %s, off, %s, %s%s', val, SRD_WS, soff, ' sc1' if sc1 else '')
    A('s_mov_b64 exec, -1')
    return t


def poll(vA, vT, name, mask=sMASK):
    L, D = A.label('p' + name), A.label('d' + name)
    S('s_mov_b32 %s, 0', sCNT)
    A(L + ':')
    S('buffer_load_dword %s, %s, %s, 0 offen sc1', vT, vA, SRD_WS)
    S('s_add_u32 %s, %s, 1', sCNT, sCNT)
    A('s_waitcnt vmcnt(0)')
    S('v_cmp_ne_u32 vcc, %s, %s', sTAG, vT)
    S('s_and_b64 vcc, vcc, %s', mask)
    A('s_cbranch_scc0 ' + D)
    S('s_cmp_lt_u32 %s, %d', sCNT, LIMIT)
    A('s_cbranch_scc1 ' + L)
    A(D + ':')
    A.vm_done = A.vm


def srd(dst, lo, size):
    b = int(dst[2:dst.index(':')])
    S('s_mov_b32 s%d, s%d', b, lo)
    S('s_and_b32 s%d, s%d, 0xffff', b + 1, lo + 1)
    S('s_mov_b32 s%d, 0x%x', b + 2, size)
    S('s_mov_b32 s%d, 0x20000', b + 3)


def unpack(dst, src):
    S('v_lshlrev_b32 v%d, 16, v%d', dst, src)
    S('v_and_b32 v%d, 0xffff0000, v%d', dst + 1, src)


def tagcheck(r, tmp, dst):
    S('v_perm_b32 v%d, v%d, v%d, s96', tmp, r + 1, r)
    S('v_perm_b32 v%d, v%d, v%d, s96', tmp + 1, r + 3, r + 2)
    S('v_lshl_or_b32 v%d, v%d, 16, v%d', tmp, tmp + 1, tmp)
    S('v_cmp_ne_u32 %s, %s, v%d', dst, sTAG, tmp)


class Stream:
    def __init__(self):
        self.q = []
        self.ready = False

    def add(self, f, pre=None):
        self.q.append((f, pre))

    def pre(self):
        if self.q and not self.ready:
            if self.q[0][1]:
                self.q[0][1]()
            self.ready = True

    def go(self):
        if self.q:
            assert self.ready
            self.ready = False
            return self.q.pop(0)[0]()

    def drip(self, n=1):
        t = None
        for _ in range(n):
            if self.q:
                self.pre()
                t = self.go()
        return t

    def __len__(self):
        return len(self.q)


vWQ = 'v62'
vPS, sPS = 'v61', 's64'


def capture(f):
    save, A.lines = A.lines, []
    f()
    out, A.lines = A.lines, save
    return out


def wqkv_stream(tiles):
    st = Stream()
    for n, tile in enumerate(tiles):
        for i in range(8):
            def f(tile=tile, i=i):
                if i == 0:
                    S('s_mul_i32 %s, %s, %d', sDG, sW, 128 * 3072)
                    S('s_lshl_b32 %s, %s, 6', sDL, sM)
                    S('s_add_u32 %s, %s, %s', sDG, sDG, sDL)
                    S('s_lshl_b32 %s, %s, 13', sDL, sW)
                    if tile == 2:
                        S('s_add_u32 %s, %s, 65536', sDL, sDL)
                    else:
                        S('s_lshr_b32 s65, %s, 1', sJ)
                        A('s_cmp_eq_u32 s65, 11')
                        S('s_cselect_b32 s65, %d, %d', 1 - tile, tile)
                        A('s_lshl_b32 s66, s65, 10')
                        S('s_add_u32 %s, %s, s66', sDG, sDG)
                        S('s_add_u32 %s, %s, 1024', sDG, sDG)
                        A('s_lshl_b32 s66, s65, 15')
                        S('s_add_u32 %s, %s, s66', sDL, sDL)
                    S('s_mov_b32 m0, %s', sDL)
                else:
                    S('s_add_u32 m0, %s, %d', sDL, i * 1024)
                    S('s_add_u32 %s, %s, %d', sDG, sDG, 16 * 3072)
                return S('buffer_load_dwordx4 %s, %s, %s offen lds', vWQ, SRD_WQKV, sDG)
            st.add(f)
    return st


H_V, H_S = 'v63', 's100'


def touch(voff, soff, off=0):
    return S('buffer_load_dwordx4 v[124:127], %s, %s, %s offen offset:%d sc1', voff, SRD_WS, soff, off)


def prologue():
    A('s_cmp_ge_u32 s2, 256')
    A('s_cbranch_scc1 L_exit')
    A('s_load_dwordx16 s[8:23], s[0:1], 0')
    A('s_load_dwordx4 s[24:27], s[0:1], 64')
    A('s_load_dwordx2 s[28:29], s[0:1], 80')
    A('s_getpc_b64 s[30:31]')
    A('L_pc:')
    S('s_lshr_b32 %s, s2, 3', sJ)
    S('s_and_b32 %s, s2, 7', sX)
    S('s_lshl_b32 %s, %s, 11', t0, sJ)
    S('v_lshl_add_u32 v4, v0, 3, %s', t0)
    A('v_lshrrev_b32 v5, 6, v0')
    A('v_min_u32 v4, L_localend-L_pc-8, v4')
    S('v_readfirstlane_b32 %s, v5', sW)
    A('global_load_dwordx2 v[6:7], v4, s[30:31]')
    S('v_and_b32 %s, 63, v0', vLANE)
    if OPT['stamps'] or OPT['diag']:
        A('s_memrealtime s[92:93]')
        A('s_memtime s[94:95]')
    S('v_and_b32 v8, 7, %s', vLANE)
    S('v_lshrrev_b32 v9, 3, %s', vLANE)
    S('s_lshl_b32 %s, %s, 1', t1, sX)
    S('s_lshl_b32 %s, %s, 2', t2, sX)
    S('s_add_u32 %s, %s, 14', t2, t2)
    S('s_cmp_lt_u32 %s, 8', sJ)
    S('s_cselect_b32 %s, %s, %s', t1, t1, t2)
    S('s_lshr_b32 %s, %s, 2', t2, sJ)
    S('s_add_u32 %s, %s, %s', t5, t1, t2)
    S('s_and_b32 %s, %s, 3', sG, sJ)
    S('s_lshl2_add_u32 %s, %s, %s', t1, sG, sW)
    S('s_lshl_b32 %s, %s, 6', t2, t1)
    S('s_mul_i32 %s, %s, %d', t1, t1, 32 * 6144)
    S('s_lshl_b32 %s, %s, 7', t3, t5)
    S('s_add_u32 %s, %s, %s', t1, t1, t3)
    S('s_cmp_lt_u32 %s, 24', sJ)
    S('s_cselect_b32 %s, 0, 0x%x', t3, OOB)
    S('s_cselect_b32 %s, %s, 0', t1, t1)
    A('v_lshlrev_b32 v11, 3, v9')
    S('v_mul_u32_u24 v13, %d, v9', 4 * 6144)
    A('v_lshl_add_u32 v13, v8, 4, v13')
    S('v_add_u32 v13, %s, v13', t3)
    for b, size in ((64, 1024), (60, 3145728), (32, 2097152), (52, WS_SIZE)):
        S('s_mov_b32 s%d, 0x%x', b + 2, size)
        S('s_mov_b32 s%d, 0x20000', b + 3)
    A('v_lshlrev_b32 v10, 10, v8')
    A('v_lshl_add_u32 v10, v9, 4, v10')
    S('s_lshl_b32 %s, %s, 5', sLID, sX)
    S('s_add_u32 %s, %s, %s', sLID, sLID, sJ)
    S('s_lshl_b32 %s, %s, 13', t0, sLID)
    S('s_lshl_b32 %s, %s, 8', t3, sW)
    S('s_add_u32 %s, %s, %s', t0, t0, t3)
    A('s_waitcnt lgkmcnt(0)')
    stamp('.kernarg')
    A('s_mov_b64 s[64:65], s[20:21]')
    A('s_mov_b64 s[60:61], s[22:23]')
    S('buffer_load_dwordx2 v[14:15], v11, %s, %s offen', SRD_C, t2)
    for i in range(4):
        tw = S('buffer_load_dwordx4 %s, v13, %s, %s offen nt', vr(64 + 4 * i, 4), SRD_WMOD, t1)
        if i < 3:
            S('s_add_u32 %s, %s, 6144', t1, t1)
    S('s_load_dword %s, s[28:29], %d', sE, WS_E)
    A('s_barrier')
    A('s_mov_b64 s[32:33], s[8:9]')
    S('buffer_load_dwordx4 v[16:19], v10, %s, %s offen', SRD_X, t0)
    tx = S('buffer_load_dwordx4 v[20:23], v10, %s, %s offen offset:128', SRD_X, t0)
    A('s_mov_b64 s[52:53], s[28:29]')
    S('s_and_b32 %s, %s, 15', sM, sJ)
    S('s_lshr_b32 %s, %s, 4', t0, sJ)
    S('s_lshl2_add_u32 %s, %s, %s', t0, t0, sW)
    S('s_lshl3_add_u32 %s, %s, %s', sT, sX, t0)
    S('s_lshl_b32 %s, %s, 8', t0, sT)
    S('s_add_u32 %s, %s, %d', t0, t0, WS_FA)
    S('v_lshl_add_u32 v11, %s, 7, %s', vLANE, t0)
    S('s_lshl_b32 %s, %s, 7', t0, sX)
    S('s_add_u32 %s, %s, %d', t0, t0, WS_XA)
    S('v_writelane_b32 v11, %s, 2', t0)
    A('s_mov_b64 exec, 7')
    S('buffer_load_dword v5, v11, %s, 0 offen sc1', SRD_WS)
    A('s_mov_b64 exec, -1')
    A('v_lshlrev_b32 v12, 9, v9')
    S('v_lshl_add_u32 %s, v8, 4, v12', H_V)
    S('s_lshr_b32 %s, %s, 2', t0, sLID)
    S('s_lshl2_add_u32 %s, %s, %s', t0, t0, sW)
    S('s_lshl_b32 %s, %s, 13', t0, t0)
    S('s_lshl_b32 %s, %s, 7', t1, sG)
    S('s_add_u32 %s, %s, %s', t0, t0, t1)
    S('s_add_u32 %s, %s, %d', H_S, t0, WS_H)
    if OPT['ph']:
        S('v_lshlrev_b32 v12, 9, %s', vLANE)
        A('s_mov_b64 exec, 0xffff')
        S('buffer_load_dword v124, v12, %s, %s offen sc1', SRD_WS, H_S)
        A('s_mov_b64 exec, -1')
    srd(SRD_WQKV, 10, 1572864)
    S('v_lshrrev_b32 v12, 2, %s', vLANE)
    A('v_mul_u32_u24 v12, 3072, v12')
    S('v_and_b32 v11, 3, %s', vLANE)
    S('v_lshl_add_u32 %s, v11, 4, v12', vWQ)
    S('v_lshlrev_b32 %s, 4, %s', vL16, vLANE)
    return tw, tx


def late_setup():
    srd(SRD_W1, 16, 1835008)
    srd(SRD_OUT, 24, 2097152)
    S('s_lshl1_add_u32 %s, %s, %s', t0, sJ, sW)
    S('s_add_u32 %s, %s, 40', t1, sJ)
    S('s_cmp_lt_u32 %s, 2', sW)
    S('s_cselect_b32 s67, %s, %s', t0, t1)
    A('s_cmp_lt_u32 s67, 56')
    A('s_cselect_b64 s[48:49], s[18:19], s[12:13]')
    A('s_cselect_b32 s50, 7, 2')
    A('s_lshl_b32 s50, s50, 18')
    A('s_mov_b32 s51, 0x20000')
    S('s_and_b32 %s, %s, 7', sCT, sJ)
    S('s_lshr_b32 %s, %s, 3', t0, sJ)
    S('s_lshl_b32 %s, %s, 1', t0, t0)
    S('s_lshl3_add_u32 %s, %s, %s', sT0, sX, t0)
    if OPT['rot']:
        S('s_lshl1_add_u32 %s, %s, %s', sOWN, sCT, sW)
        S('s_and_b32 %s, %s, 3', sOWN, sOWN)
    else:
        S('s_mov_b32 %s, %s', sOWN, sW)
    S('s_lshl1_add_u32 %s, %s, %s', sTS, sT0, sOWN)
    A('s_mov_b32 s86, 0x0000ffff')
    A('s_mov_b32 s87, 0x0000ffff')
    A('s_mov_b32 s88, 0xffff0000')
    A('s_mov_b32 s89, 0xffff0000')
    A('s_mov_b32 s96, 0x0c0c0400')
    S('s_getreg_b32 %s, hwreg(HW_REG_XCC_ID, 0, 4)', sXC)


def mod_partial(tw):
    S('v_lshrrev_b32 v11, 4, %s', vLANE)
    A('v_lshl_add_u32 v11, v8, 2, v11')
    S('s_lshl_b32 %s, %s, 8', t1, sW)
    S('s_add_u32 %s, %s, %d', t1, t1, L_SCR + 1024)
    S('v_lshl_add_u32 v11, v11, 3, %s', t1)
    S('v_and_b32 v12, 0xf0, %s', vL16)
    S('v_add_u32 v13, %d, v12', L_SCR + 1024)
    S('s_mul_i32 %s, %s, 12288', t1, sG)
    S('s_lshl_b32 %s, %s, 8', t2, t5)
    S('s_add_u32 %s, %s, %s', t1, t1, t2)
    S('s_add_u32 %s, %s, %d', t1, t1, WS_MOD)
    stamp('.setup+E')
    A.wait(vm=tw - 4)
    stamp('.c')
    unpack(40, 14)
    unpack(42, 15)
    for i in range(4):
        S('v_mul_f32 v%d, 0xbfb8aa3b, v%d', 44 + i, 40 + i)
    for i in range(4):
        S('v_exp_f32 v%d, v%d', 44 + i, 44 + i)
    for i in range(4):
        S('v_add_f32 v%d, 1.0, v%d', 44 + i, 44 + i)
    for i in range(4):
        S('v_rcp_f32 v%d, v%d', 44 + i, 44 + i)
    for i in range(2):
        S('v_pk_mul_f32 %s, %s, %s', vr(40 + 2 * i, 2), vr(40 + 2 * i, 2), vr(44 + 2 * i, 2))
    A('v_cvt_pk_bf16_f32 v44, v40, v41')
    A('v_cvt_pk_bf16_f32 v45, v42, v43')
    unpack(40, 44)
    unpack(42, 45)
    for i in range(4):
        A.wait(vm=tw - 3 + i)
        for d in range(4):
            unpack(80 + 2 * d, 64 + 4 * i + d)
        s = i & 1
        for d in range(4):
            if i == 0:
                S('v_pk_mul_f32 %s, %s, v[40:41] op_sel_hi:[1,0]', vr(48 + 2 * d, 2), vr(80 + 2 * d, 2))
            else:
                S('v_pk_fma_f32 %s, %s, %s, %s op_sel:[0,%d,0] op_sel_hi:[1,%d,1]',
                  vr(48 + 2 * d, 2), vr(80 + 2 * d, 2), vr(40 + (i & ~1), 2), vr(48 + 2 * d, 2), s, s)
    stamp('.fma')
    for i in range(4):
        S('v_permlane32_swap_b32 v%d, v%d', 48 + i, 52 + i)
    for i in range(2):
        S('v_pk_add_f32 %s, %s, %s', vr(48 + 2 * i, 2), vr(48 + 2 * i, 2), vr(52 + 2 * i, 2))
    A('s_waitcnt lgkmcnt(0)')
    S('s_mul_i32 %s, %s, 1664525', sTAG, sE)
    for i in range(2):
        S('v_permlane16_swap_b32 v%d, v%d', 48 + i, 50 + i)
    A('v_pk_add_f32 v[48:49], v[48:49], v[50:51]')
    S('s_add_u32 %s, %s, 1013904223', sTAG, sTAG)
    S('v_mov_b32 %s, %s', vTAG, sTAG)
    for i in range(2):
        S('v_add_f32_dpp v%d, v%d, v%d row_ror:8 row_mask:0xf bank_mask:0xf', 50 + i, 48 + i, 48 + i)
    t = A('ds_write_b64 v11, v[50:51]')
    if OPT['diag']:
        A('s_mov_b32 s97, s92')
    if OPT['stamps']:
        A('s_mov_b32 s8, s92')
        A('s_mov_b32 s9, s94' if OPT['stamps'] == 1 else 's_mov_b32 s9, s92')
    for i in range(4):
        S('s_mov_b32 s%d, 0x%08x', 90 + i, 0x07060500 + i)
    S('s_add_u32 %s, %s, %s', sXC, sXC, sTAG)
    S('s_add_u32 %s, %s, 1', sXC, sXC)
    if OPT['force_remote']:
        S('s_and_b32 %s, %s, 1', t0, sJ)
        S('s_add_u32 %s, %s, %s', sXC, sTAG, t0)
        S('s_add_u32 %s, %s, 1', sXC, sXC)
    S('v_mov_b32 v4, %s', sXC)
    S('s_cmp_ge_u32 %s, 24', sJ)
    S('s_cselect_b32 %s, 1, %s', t0, sW)
    S('s_cmp_lg_u32 %s, 0', t0)
    A.wait(lg=t)
    A('s_barrier')
    NP, NX = A.label('nopub'), A.label('noxc')
    vm0 = A.vm
    A('s_cbranch_scc1 ' + NP)
    for i in range(4):
        t = S('ds_read_b128 %s, v13 offset:%d', vr(64 + 4 * i, 4), 256 * i)
    A('s_mov_b64 exec, 0xffff')
    A.wait(lg=t)
    for e in range(2):
        S('v_pk_add_f32 %s, %s, %s', vr(64 + 2 * e, 2), vr(64 + 2 * e, 2), vr(68 + 2 * e, 2))
        S('v_pk_add_f32 %s, %s, %s', vr(72 + 2 * e, 2), vr(72 + 2 * e, 2), vr(76 + 2 * e, 2))
    for e in range(2):
        S('v_pk_add_f32 %s, %s, %s', vr(64 + 2 * e, 2), vr(64 + 2 * e, 2), vr(72 + 2 * e, 2))
    for i in range(4):
        S('v_add_u32 v%d, 0x80, v%d', 64 + i, 64 + i)
    for i in range(4):
        S('v_perm_b32 v%d, v%d, %s, s%d', 64 + i, 64 + i, vTAG, 90 + i)
    S('buffer_store_dwordx4 v[64:67], v12, %s, %s offen sc1', SRD_WS, t1)
    A('s_mov_b64 exec, -1')
    A(NP + ':')
    S('s_cmp_lg_u32 %s, 1', sW)
    A('s_cbranch_scc1 ' + NX)
    S('s_lshl_b32 %s, %s, 2', t0, sLID)
    S('s_add_u32 %s, %s, %d', t0, t0, WS_XA)
    flag_store(t0, False, 'v4')
    A(NX + ':')
    A.lg_done = A.lg
    return vm0


def ln1(tx, vm0, wst):
    n = vm0 - tx
    A.vm = vm0
    EX = A.label('xw')
    S('s_waitcnt vmcnt(%d)', n + 1)
    S('s_cmp_lt_u32 %s, 2', sW)
    A('s_cbranch_scc1 ' + EX + 'a')
    S('s_waitcnt vmcnt(%d)', n)
    A(EX + 'a:')
    S('s_cmp_lt_u32 %s, 24', sJ)
    A('s_cbranch_scc1 ' + EX + 'b')
    S('s_waitcnt vmcnt(%d)', n)
    A(EX + 'b:')
    stamp('.x')
    for i in range(8):
        unpack(24 + 2 * i, 16 + i)
    A('v_pk_add_f32 v[40:41], v[24:25], v[26:27]')
    A('v_pk_mul_f32 v[42:43], v[24:25], v[24:25]')
    A('v_pk_fma_f32 v[42:43], v[26:27], v[26:27], v[42:43]')
    for i in range(2, 8):
        S('v_pk_add_f32 v[40:41], v[40:41], %s', vr(24 + 2 * i, 2))
        S('v_pk_fma_f32 v[42:43], %s, %s, v[42:43]', vr(24 + 2 * i, 2), vr(24 + 2 * i, 2))
    A('v_add_f32 v40, v40, v41')
    A('v_add_f32 v42, v42, v43')
    S('v_lshrrev_b32 v12, 5, %s', vLANE)
    A('v_lshl_add_u32 v12, v12, 3, v8')
    A('v_permlane32_swap_b32 v40, v42')
    A('v_add_f32 v40, v40, v42')
    A('v_mov_b32 v41, v40')
    S('s_lshl_b32 %s, %s, 2', t0, sW)
    S('s_add_u32 %s, %s, %d', t0, t0, L_SCR)
    A('v_permlane16_swap_b32 v40, v41')
    A('v_add_f32 v40, v40, v41')
    S('v_lshl_add_u32 v12, v12, 4, %s', t0)
    A('v_lshlrev_b32 v13, 4, v8')
    A('v_add_f32_dpp v41, v40, v40 row_ror:8 row_mask:0xf bank_mask:0xf')
    t = A('ds_write_b32 v12, v41')
    S('v_add_u32 v13, %d, v13', L_SCR)
    A.wait(lg=t)
    A('s_barrier')
    stamp('.bar2')
    A('ds_read_b128 v[40:43], v13')
    t = A('ds_read_b128 v[44:47], v13 offset:128')
    wst.drip(OPT['n2'])
    stamp('.n2')
    A.wait(lg=t)
    A('v_pk_add_f32 v[40:41], v[40:41], v[42:43]')
    A('v_pk_add_f32 v[44:45], v[44:45], v[46:47]')
    A('v_add_f32 v40, v40, v41')
    A('v_add_f32 v44, v44, v45')
    A('v_mul_f32 v40, 0x3b000000, v40')
    A('v_mul_f32 v44, 0x3b000000, v44')
    A('v_fma_f32 v44, -v40, v40, v44')
    A('v_max_f32 v44, 0, v44')
    A('v_add_f32 v44, 0x3727c5ac, v44')
    A('v_rsq_f32 v42, v44')
    A('v_mul_f32 v43, -v40, v42')
    for i in range(8):
        S('v_pk_fma_f32 %s, %s, v[42:43], v[42:43] op_sel:[0,0,1] op_sel_hi:[1,0,1]', vr(24 + 2 * i, 2), vr(24 + 2 * i, 2))


def prep_addr():
    S('s_cmp_eq_u32 %s, 3', sW)
    S('s_cselect_b32 %s, 0x%x, 0', t3, OOB)
    S('s_cmp_eq_u32 %s, 2', sW)
    S('s_cselect_b32 %s, %s, 24', t0, sJ)
    S('s_cmp_lt_u32 %s, 24', t0)
    S('s_cselect_b32 %s, 0x%x, %s', t3, OOB, t3)
    A('v_lshlrev_b32 v96, 10, v9')
    A('v_lshl_add_u32 v96, v8, 4, v96')
    S('v_add_u32 v96, %s, v96', t3)
    S('v_add_u32 v99, %s, %s', t3, vL16)
    A('s_cmp_lt_u32 s67, 56')
    S('s_cselect_b32 %s, 0, 56', t0)
    S('s_cselect_b32 %s, 56, 16', t1)
    S('s_cselect_b32 %s, 2, 1', t3)
    S('s_cselect_b32 %s, 10, 11', t4)
    assert (WS_W2T, WS_WOT) == (2 << 20, 1 << 20)
    S('s_lshl_b32 %s, %s, 20', t2, t3)
    S('s_lshl_b32 %s, %s, 10', t3, t3)
    S('s_sub_u32 %s, s67, %s', t0, t0)
    S('s_mul_i32 %s, %s, %s', t1, t1, sX)
    S('s_add_u32 %s, %s, %s', t1, t1, t0)
    S('s_lshl_b32 %s, %s, 12', t1, t1)
    S('s_add_u32 %s, %s, %s', sPS, t1, t2)
    S('s_lshl_b32 %s, %s, 15', t0, t0)
    S('s_lshl_b32 %s, %s, 7', t1, sX)
    S('s_add_u32 s67, %s, %s', t0, t1)
    S('v_lshrrev_b32 v97, 5, %s', vLANE)
    S('v_lshlrev_b32 v97, %s, v97', t4)
    S('v_bfe_u32 v98, %s, 2, 3', vLANE)
    A('v_lshl_add_u32 v97, v98, 7, v97')
    S('v_and_b32 v98, 3, %s', vLANE)
    A('v_lshl_add_u32 v97, v98, 5, v97')
    S('s_lshl_b32 %s, %s, 12', t0, sW)
    S('s_add_u32 %s, %s, %d', t0, t0, L_KV)
    S('v_add_u32 v97, %s, v97', t0)
    S('v_add_u32 v98, %s, v97', t3)


def prep_dma():
    S('s_lshl_b32 %s, %s, 12', t0, sW)
    for i in range(4):
        S('s_add_u32 m0, %s, %d', t0, L_KV + 1024 * i)
        if i:
            A('s_add_u32 s67, s67, 8192')
        S('buffer_load_dwordx4 v96, %s, s67 offen nt lds', SRD_W2)


def sum_partials(base, addend):
    for i in range(16):
        S('v_and_b32 v%d, 0xffffff00, v%d', base + i, base + i)
    for e in range(2):
        S('v_pk_add_f32 %s, %s, %s', vr(base + 2 * e, 2), vr(base + 2 * e, 2), vr(base + 4 + 2 * e, 2))
        S('v_pk_add_f32 %s, %s, %s', vr(base + 8 + 2 * e, 2), vr(base + 8 + 2 * e, 2), vr(base + 12 + 2 * e, 2))
    for e in range(2):
        S('v_pk_add_f32 %s, %s, %s', vr(base + 2 * e, 2), vr(base + 2 * e, 2), vr(base + 8 + 2 * e, 2))
    for e in range(2):
        S('v_cvt_pk_bf16_f32 v%d, v%d, v%d', base + 4 + e, base + 2 * e, base + 2 * e + 1)
    for e in range(2):
        unpack(base + 8 + 2 * e, base + 4 + e)
    for i in range(4):
        S('v_add_f32 v%d, %s, v%d', base + 8 + i, addend, base + 8 + i)
    for e in range(2):
        S('v_cvt_pk_bf16_f32 v%d, v%d, v%d', base + e, base + 8 + 2 * e, base + 9 + 2 * e)


def mod_poll():
    S('v_and_b32 v10, 31, %s', vLANE)
    A('v_lshlrev_b32 v11, 4, v10')
    S('v_lshrrev_b32 v12, 5, %s', vLANE)
    A('v_lshl_add_u32 v11, v12, 11, v11')
    A('v_cvt_f32_u32 v15, v12')
    S('s_lshl_b32 %s, %s, 9', t0, sW)
    S('s_add_u32 %s, %s, %d', t1, t0, L_SCR + 4096)
    S('v_add_u32 v11, %s, v11', t0)
    S('v_lshl_add_u32 v12, %s, 3, %s', vLANE, t1)
    S('v_lshl_add_u32 v13, v9, 4, %s', t1)
    for i, t in enumerate((t0, t1, t3, t4)):
        S('s_mov_b32 %s, %d', t, WS_MOD + 12288 * i)
    S('s_lshl_b32 %s, %s, 7', t5, sX)
    S('s_add_u32 %s, %s, %d', t5, t5, WS_XA)
    S('v_lshl_add_u32 v14, v10, 2, %s', t5)
    S('s_lshr_b32 %s, %s, 2', t2, sLID)
    S('s_lshl4_add_u32 %s, %s, %s', t2, t2, sG)
    S('s_lshl2_add_u32 %s, %s, %s', t2, t2, sW)
    S('s_lshl2_add_u32 %s, %s, %d', t2, t2, WS_FA)
    L, D = A.label('pmod'), A.label('dmod')
    S('s_mov_b32 %s, 0', sCNT)
    A(L + ':')
    for i, t in enumerate((t0, t1, t3, t4)):
        S('buffer_load_dwordx4 %s, v11, %s, %s offen sc1', vr(40 + 4 * i, 4), SRD_WS, t)
    S('buffer_load_dword v58, v14, %s, 0 offen sc1', SRD_WS)
    S('s_add_u32 %s, %s, 1', sCNT, sCNT)
    for i in range(4):
        S('s_waitcnt vmcnt(%d)', 4 - i)
        tagcheck(40 + 4 * i, 56, ('vcc', sMASK, sM2, 's[90:91]')[i])
    S('s_or_b64 vcc, vcc, %s', sMASK)
    S('s_or_b64 vcc, vcc, %s', sM2)
    A('s_waitcnt vmcnt(0)')
    A('s_or_b64 vcc, vcc, s[90:91]')
    A('s_cbranch_scc0 ' + D)
    S('s_cmp_lt_u32 %s, %d', sCNT, LIMIT)
    A('s_cbranch_scc1 ' + L)
    A(D + ':')
    A.vm_done = A.vm
    stamp('mod seen')
    S('v_cmp_ne_u32 vcc, %s, v58', sXC)
    sum_partials(40, 'v15')
    A('s_cbranch_vccnz L_xcslow')
    A('L_local:')


def xc_slow():
    A('L_xcslow:')
    S('s_mov_b32 %s, 0', sCNT)
    A('L_xc1:')
    S('buffer_load_dword v58, v14, %s, 0 offen sc1', SRD_WS)
    S('s_add_u32 %s, %s, 1', sCNT, sCNT)
    A('s_waitcnt vmcnt(0)')
    S('v_cmp_ne_u32 vcc, %s, v58', sXC)
    A('s_cbranch_vccz L_local')
    S('s_cmp_lt_u32 %s, 32', sCNT)
    A('s_cbranch_scc1 L_xc1')
    S('s_lshl_b32 %s, %s, 6', t0, sLID)
    S('s_add_u32 %s, %s, %d', t0, t0, WS_XB)
    flag_store(t0, True, 'v4')
    S('s_lshl_b32 %s, %s, 11', t0, sX)
    S('s_add_u32 %s, %s, %d', t0, t0, WS_XB)
    S('v_lshl_add_u32 v59, v10, 6, %s', t0)
    S('buffer_load_dword v57, v59, %s, 0 offen sc1', SRD_WS)
    A('s_waitcnt vmcnt(0)')
    S('v_cmp_ne_u32 vcc, %s, v57', sXC)
    A('s_cbranch_vccz L_local')
    S('s_add_u32 %s, %s, 1', t0, sTAG)
    S('v_subrev_u32 v56, %s, v57', t0)
    A('v_cmp_le_u32 vcc, 16, v56')
    A('s_cbranch_vccz L_remote')
    S('s_cmp_lt_u32 %s, %d', sCNT, LIMIT)
    A('s_cbranch_scc1 L_xc1')
    A('L_remote:')


def h_phase(wst):
    t = A('ds_write_b64 v12, v[40:41]')
    S('s_add_u32 %s, %s, 4096', t3, H_S)
    A.wait(lg=t)
    tr = []
    for i in range(2):
        S('ds_read_b128 %s, v13 offset:%d', vr(40 + 8 * i, 4), 128 * i)
        tr.append(S('ds_read_b128 %s, v13 offset:%d', vr(44 + 8 * i, 4), 256 + 128 * i))
    for i in range(2):
        A.wait(lg=tr[i])
        for d in range(4):
            unpack(56, 40 + 8 * i + d)
            unpack(58, 44 + 8 * i + d)
            x = 24 + 8 * i + 2 * d
            S('v_pk_fma_f32 v[60:61], %s, v[58:59], v[56:57]', vr(x, 2))
            S('v_cvt_pk_bf16_f32 v%d, v60, v61', 16 + 4 * i + d)
        ts = S('buffer_store_dwordx4 %s, %s, %s, %s offen%s', vr(16 + 4 * i, 4), H_V, SRD_WS, (H_S, t3)[i], sc('h'))
    stamp('.h st')
    wst.drip(min(2, len(wst)))
    S('v_mov_b32 %s, v99', vPS)
    S('s_lshl_b32 %s, %s, 8', t0, sT)
    S('s_add_u32 %s, %s, %d', t0, t0, WS_FA)
    S('v_lshl_add_u32 v10, %s, 2, %s', vLANE, t0)
    S('s_mov_b64 %s, 0xffff', sMASK)
    S('v_and_b32 v12, 3, %s', vLANE)
    A('v_lshlrev_b32 v13, 3, v12')
    S('v_bfe_u32 v12, %s, 4, 1', vLANE)
    A('v_lshl_add_u32 v13, v12, 5, v13')
    S('v_bfe_u32 v12, %s, 2, 2', vLANE)
    A('v_lshl_add_u32 v13, v12, 6, v13')
    S('v_lshrrev_b32 v12, 5, %s', vLANE)
    A('v_lshl_add_u32 v13, v12, 9, v13')
    A('v_add_u32 v14, 65536, v13')
    A.wait(vm=ts)
    flag_store(t2, not LOCAL[0])
    stamp('h pub')
    wst.drip(99)
    prep_dma()
    stamp('.dma iss')


Q0, Q1 = 96, 100
MD, MFAR = 16, 32
S0, S1 = 160, 176
P0, P1 = 192, 200
O0, O1 = 208, 224
K0, K1 = 64, 68
V0, V1 = 72, 80
W1V = 104
vXO, vOO = 'v5', 'v6'
vKV = 'v4'
MRD = 128
XT = 240
sOO, sYO, sSO = 's100', 's60', 's61'


def w1_addr():
    S('s_and_b32 %s, %s, 1', t4, sM)
    S('s_lshl_b32 %s, %s, 1', t4, t4)
    for i in range(7):
        S('v_add_u32 v10, %d, %s', 64 * i, vLANE)
        A('v_mul_u32_u24 v11, 4682, v10')
        A('v_lshrrev_b32 v11, 16, v11')
        A('v_mad_i32_i24 v10, v11, -14, v10')
        S('v_add_u32 v10, %s, v10', t4)
        A('v_subrev_u32 v12, 14, v10')
        A('v_min_u32 v10, v10, v12')
        A('v_and_b32 v12, 3, v11')
        A('v_bfe_u32 v15, v11, 2, 1')
        A('v_lshl_add_u32 v12, v15, 4, v12')
        A('v_bfe_u32 v15, v11, 3, 1')
        A('v_lshl_add_u32 v12, v15, 2, v12')
        A('v_and_b32 v15, 16, v11')
        A('v_lshl_add_u32 v12, v15, 1, v12')
        A('v_mul_u32_u24 v12, 3584, v12')
        S('v_lshl_add_u32 v%d, v10, 4, v12', W1V + i)


def w1_stream():
    st = Stream()
    for g in range(4):
        for i in range(7):
            def pre(g=g, i=i):
                if i == 0 and g == 0:
                    S('s_lshr_b32 %s, %s, 1', sDG, sW)
                    S('s_and_b32 %s, %s, 1', sDL, sW)
                    S('s_lshl3_add_u32 %s, %s, %s', sDG, sDG, sDL)
                    S('s_mul_i32 %s, %s, %d', sDG, sDG, 8 * 3584)
                    S('s_mul_i32 %s, %s, 224', sDL, sM)
                    S('s_add_u32 %s, %s, %s', sDG, sDG, sDL)
                    S('s_mul_i32 %s, %s, 7168', sDL, sW)
                elif i == 0:
                    S('s_add_u32 %s, %s, %d', sDG, sDG, 128 * 3584)
                S('s_add_u32 m0, %s, %d', sDL, g * 4 * 7168 + i * 1024)

            def f(i=i):
                return S('buffer_load_dwordx4 v%d, %s, %s offen lds', W1V + i, SRD_W1, sDG)
            st.add(f, pre)
    return st


def frag_stream(base, nks, areg):
    st = Stream()
    for i in range(nks):
        for s in range(4):
            def pre(i=i, s=s):
                if i == 0 and s == 0:
                    S('s_lshl2_add_u32 %s, %s, %s', sFG, sCT, sW)
                    S('s_mul_i32 %s, %s, %d', sFG, sFG, nks * 4096)
                    S('s_add_u32 %s, %s, %d', sFG, sFG, base)
                elif s == 0:
                    S('s_add_u32 %s, %s, 4096', sFG, sFG)

            def f(i=i, s=s):
                return S('buffer_load_dwordx4 %s, %s, %s, %s offen offset:%d sc1', ar(areg + 16 * i + 4 * s, 4), vL16, SRD_WS, sFG, s * 1024)
            st.add(f, pre)
    return st


def qkv(w1):
    RING = 4
    rd = {}

    def bread(s, tile):
        b = 64 + 8 * (s % RING)
        for half in range(2):
            rd[s] = S('ds_read_b64_tr_b16 %s, v13 offset:%d', vr(b + 4 * tile + 2 * half, 2), tile * 32768 + s * 1024 + half * 256)
    S('s_lshl_b32 %s, %s, 15', t0, sT)
    S('s_add_u32 %s, %s, %d', t0, t0, WS_H)
    poll('v10', 'v15', 'h')
    stamp('h seen')
    ta = []

    def aload(s):
        if s and s & 3 == 0:
            S('s_add_u32 %s, %s, 4096', t0, t0)
        ta.append(S('buffer_load_dwordx4 %s, %s, %s, %s offen offset:%d sc1', vr(128 + 4 * s, 4), vL16, SRD_WS, t0, (s & 3) * 1024))
    AH = 10
    for s in range(AH):
        aload(s)
    for nt in range(4):
        for half in range(2):
            S('ds_read_b64_tr_b16 %s, v%d offset:%d', vr(112 + 4 * nt + 2 * half, 2), 97 + half, nt * 8)
    A('s_barrier')
    for s in range(RING - 1):
        bread(s, 0)
        bread(s, 1)
    S('s_lshl4_add_u32 %s, %s, %s', t2, sT, sM)
    S('s_lshl_b32 %s, %s, 6', t4, t2)
    S('s_add_u32 %s, %s, %d', t4, t4, WS_FKV)
    S('s_lshl_b32 %s, %s, 12', t2, t2)
    S('s_add_u32 %s, %s, %d', t2, t2, WS_KV)
    S('s_lshl_b32 %s, %s, 12', t1, sW)
    S('s_add_u32 %s, %s, %d', t1, t1, L_KV)
    S('v_add_u32 %s, %s, %s', vKV, t1, vL16)
    for s in range(32):
        b = 64 + 8 * (s % RING)
        A.wait(vm=ta[s], lg=rd[s])
        a = vr(128 + 4 * s, 4)
        S('%s v[16:31], %s, %s, %s', MF32, vr(b, 4), a, 'v[16:31]' if s else '0')
        if s + AH < 32:
            aload(s + AH)
        if s + RING - 1 < 32:
            bread(s + RING - 1, 0)
        S('%s v[32:47], %s, %s, %s', MF32, a, vr(b + 4, 4), 'v[32:47]' if s else '0')
        if s + RING - 1 < 32:
            bread(s + RING - 1, 1)
    stamp('kv pass')
    for p in range(4):
        for d in range(4):
            S('v_cvt_pk_bf16_f32 v%d, v%d, v%d', 96 + 4 * p + d, 16 + 8 * p + 2 * d, 17 + 8 * p + 2 * d)
        tkvs = S('buffer_store_dwordx4 %s, %s, %s, %s offen offset:%d sc1', vr(96 + 4 * p, 4), vL16, SRD_WS, t2, p * 1024)
    wq = wqkv_stream([2])
    wq.drip(4)
    for p in range(4):
        tl = S('ds_write_b128 %s, %s offset:%d', vKV, vr(96 + 4 * p, 4), 8 * 4096 + p * 1024)
    S('v_and_b32 v15, 31, %s', vLANE)
    S('v_lshrrev_b32 v12, 5, %s', vLANE)
    A('v_lshlrev_b32 v12, 2, v12')
    A('v_sub_u32 v15, v15, v12')
    A('v_mov_b32 v12, 0xff800000')
    ms = ('vcc', sMASK, sM2)
    for r in range(18):
        if r < 16:
            S('v_cmp_le_i32 %s, %d, v15', ms[r % 3], (r & 3) + 8 * (r >> 2))
        if r >= 2:
            S('v_cndmask_b32 v%d, v12, 0, %s', MD + r - 2, ms[(r - 2) % 3])
            S('v_cndmask_b32 v%d, 0, v12, %s', MFAR + r - 2, ms[(r - 2) % 3])
    S('s_sub_u32 %s, %s, 4', t0, sT)
    S('s_sub_u32 %s, %s, 8', t1, sT)
    for t in (t0, t1):
        S('s_lshl4_add_u32 %s, %s, %s', t, t, sM)
        S('s_max_i32 %s, %s, 0', t, t)
    S('v_mov_b32 v9, %s', t0)
    S('v_writelane_b32 v9, %s, 1', t1)
    A('v_lshlrev_b32 v9, 6, v9')
    S('v_add_u32 v9, %d, v9', WS_FKV)
    S('s_cmp_ge_u32 %s, 4', sT)
    A('s_cselect_b32 s98, 1, 0')
    S('s_cselect_b32 %s, 0, 0x%x', t3, OOB)
    S('v_add_u32 v6, %s, %s', t3, vL16)
    S('s_cmp_ge_u32 %s, 8', sT)
    A('s_cselect_b32 s98, 3, s98')
    S('s_cselect_b32 %s, 0, 0x%x', t3, OOB)
    S('v_add_u32 v7, %s, %s', t3, vL16)
    A('s_mov_b32 s99, 0')
    for t in (t0, t1):
        S('s_lshl_b32 %s, %s, 12', t, t)
        S('s_add_u32 %s, %s, %d', t, t, WS_KV)
    A.wait(vm=tkvs, lg=tl)
    flag_store(t4, True)
    stamp('kv pub')
    twq = wq.drip(4)
    for p in range(4):
        tps = S('buffer_store_dwordx4 %s, %s, %s, %s offen offset:%d sc1', vr(112 + 4 * p, 4), vPS, SRD_WS, sPS, p * 1024)
    w1_addr()
    A.wait(vm=twq)
    A('s_barrier')
    stamp('wq ready')
    tpoll = S('buffer_load_dword v111, v9, %s, 0 offen sc1', SRD_WS)
    rq = {}

    def qread(s):
        b = 64 + 4 * (s % 8)
        for half in range(2):
            rq[s] = S('ds_read_b64_tr_b16 %s, v14 offset:%d', vr(b + 2 * half, 2), s * 1024 + half * 256)
    for s in range(5):
        qread(s)

    def kv_dma():
        S('s_lshl_b32 %s, %s, 12', t2, sW)
        for t, slot, v in ((t0, 4, 'v6'), (t1, 0, 'v7')):
            S('s_add_u32 m0, %s, %d', t2, L_KV + slot * 4096)
            for p in range(4):
                tk = S('buffer_load_dwordx4 %s, %s, %s offen offset:%d sc1 lds', v, SRD_WS, t, p * 1024)
        return tk
    LATE = A.label('kvlate')
    S('s_mov_b32 %s, 1', t5)
    nd = 0
    for s in range(32):
        A.wait(lg=rq[s])
        S('%s v[48:63], %s, %s, %s', MF32, vr(64 + 4 * (s % 8), 4), vr(128 + 4 * s, 4), 'v[48:63]' if s else '0')
        if s + 5 < 32:
            qread(s + 5)
        if s == OPT['qchk']:
            A.wait(vm=tpoll)
            S('v_cmp_ne_u32 vcc, %s, v111', sTAG)
            S('s_and_b64 vcc, vcc, %s', sM2)
            A('s_cbranch_scc1 ' + LATE)
            tkv = kv_dma()
            S('s_mov_b32 %s, 0', t5)
            A(LATE + ':')
        if s > OPT['qchk'] and s % 2 == 0 and nd < OPT['qd']:
            w1.drip(1)
            nd += 1
    stamp('q pass')
    OKK = A.label('kvok')
    S('s_cmp_eq_u32 %s, 0', t5)
    A('s_cbranch_scc1 ' + OKK)
    vm_save, vd = A.vm, A.vm_done
    poll('v9', 'v111', 'kv', sM2)
    kv_dma()
    A('s_waitcnt vmcnt(0)')
    A.vm, A.vm_done = vm_save, vd
    A(OKK + ':')
    S('s_mov_b32 %s, 0x3eb8aa3b', t0)
    S('s_mov_b32 %s, 0x3eb8aa3b', t1)
    for r in range(16):
        S('v_mov_b32 v%d, 0x3f803f80', V0 + r)
    for i in range(8):
        S('v_pk_mul_f32 %s, %s, s[76:77]', vr(48 + 2 * i, 2), vr(48 + 2 * i, 2))
    for i in range(8):
        S('v_cvt_pk_bf16_f32 v%d, v%d, v%d', 96 + i, 48 + 2 * i, 49 + 2 * i)
    late_addr()
    A.wait(vm=tkv)
    A('s_barrier')
    stamp('kv loaded')
    NF = A.label('nofp')
    S('s_cmp_lg_u32 %s, 3', sW)
    A('s_cbranch_scc1 ' + NF)
    S('s_lshl_b32 %s, %s, 6', t0, sLID)
    S('s_add_u32 %s, %s, %d', t0, t0, WS_FP)
    vm_save = A.vm
    flag_store(t0, True)
    A.vm = vm_save
    A(NF + ':')


def late_addr():
    S('s_lshl_b32 %s, %s, 14', t0, sTS)
    S('s_lshl_b32 %s, %s, 7', t1, sCT)
    S('s_add_u32 %s, %s, %s', t0, t0, t1)
    S('v_and_b32 v10, 15, %s', vLANE)
    S('v_lshl_add_u32 v11, v10, 10, %s', t0)
    S('v_lshrrev_b32 v12, 4, %s', vLANE)
    S('v_lshl_add_u32 %s, v12, 5, v11', vXO)
    S('s_lshl_b32 %s, %s, 15', t0, sT)
    S('s_lshl_b32 %s, %s, 10', t1, sM)
    S('s_add_u32 %s, %s, %s', t0, t0, t1)
    S('s_add_u32 %s, %s, %d', sOO, t0, WS_O)
    A('v_lshlrev_b32 v11, 4, v10')
    A('v_and_b32 v15, 1, v12')
    A('v_lshl_add_u32 v11, v15, 14, v11')
    S('v_lshrrev_b32 v15, 5, %s', vLANE)
    S('v_lshl_add_u32 %s, v15, 8, v11', vOO)
    S('s_lshl3_add_u32 %s, %s, %s', t0, sTS, sCT)
    S('s_lshl_b32 %s, %s, 11', t1, t0)
    S('s_add_u32 %s, %s, %d', sYO, t1, WS_Y)
    S('s_lshl_b32 %s, %s, 7', t1, t0)
    S('s_add_u32 %s, %s, %d', sSO, t1, WS_STAT)
    A('v_lshlrev_b32 v11, 2, v10')
    A('v_lshl_add_u32 v7, v15, 6, v11')
    A('v_lshlrev_b32 v112, 4, v0')
    A('v_mul_u32_u24 v113, 12288, v12')
    S('v_bfe_u32 v11, %s, 3, 1', vLANE)
    A('v_mul_u32_u24 v11, 6144, v11')
    A('v_add_u32 v113, v113, v11')
    A('v_lshl_add_u32 v113, v8, 4, v113')
    S('s_and_b32 %s, %s, 1', t0, sW)
    S('s_lshl1_add_u32 %s, %s, %s', t0, sCT, t0)
    S('s_lshl_b32 %s, %s, 7', t0, t0)
    S('s_add_u32 %s, %s, %d', t0, t0, WS_MOD + 4096)
    S('v_add_u32 v113, %s, v113', t0)
    S('v_add_u32 v112, %d, v112', WS_MOD + 6144)
    S('s_mul_i32 %s, %s, 7', t0, sW)
    S('s_sub_u32 %s, %s, 32', t0, t0)
    S('v_mov_b32 v11, %s', t0)
    A('v_cmp_gt_u32 vcc, 8, v10')
    A('v_min_u32 v10, 14, v10')
    S('s_lshl_b32 %s, %s, 5', t0, sCT)
    S('s_add_u32 %s, %s, 24', t0, t0)
    A('v_cndmask_b32 v11, v11, 0, vcc')
    S('v_add3_u32 v11, v11, v10, %s', t0)
    A('v_lshlrev_b32 v10, 5, v8')
    S('s_or_b32 %s, %s, %s', t0, sLID, sW)
    S('s_cmp_eq_u32 %s, 0', t0)
    A('s_cselect_b32 vcc_lo, 0xff0000, 0')
    A('s_mov_b32 vcc_hi, 0')
    A('v_cndmask_b32 v11, v11, v10, vcc')
    A('v_lshlrev_b32 v11, 6, v11')
    S('v_add_u32 v114, %d, v11', WS_FP)


def mr_load(i):
    if i < 4:
        S('s_mov_b32 s65, %d', 12288 * i)
        return S('buffer_load_dwordx4 %s, v112, %s, s65 offen sc1', vr(MRD + 4 * i, 4), SRD_WS)
    return S('buffer_load_dwordx4 %s, v113, %s, 0 offen sc1', vr(MRD + 16, 4), SRD_WS)


def kv_off(d, piece):
    return (8 - d) * 4096 + piece * 1024


def attention(w1):
    bg = Stream()
    wo = frag_stream(WS_WOT, 4, 192)
    tk = {}
    RET, RETB = A.label('fpretry'), A.label('fpback')

    def fp_load():
        tk[0] = S('buffer_load_dword v115, v114, %s, 0 offen sc1', SRD_WS)

    def fp_check():
        A.wait(vm=tk[0])
        S('v_cmp_ne_u32 vcc, %s, v115', sTAG)
        A('s_cbranch_vccnz ' + RET)
        A(RETB + ':')
    n = 0
    while n < OPT['aw1'] and len(w1):
        bg.q.append(w1.q.pop(0))
        n += 1
        if n == OPT['aw1'] - 5:
            bg.add(fp_load)
    if n < OPT['aw1'] - 5:
        bg.add(fp_load)
    if LOCAL[0] and OPT['po']:
        bg.add(lambda: touch(vOO, sOO))
        bg.add(lambda: touch(vOO, sOO, 512))
    bg.add(fp_check)
    if not OPT['nobg'] & 4:
        bg.q += wo.q
    for i in range(5):
        bg.add(lambda i=i: mr_load(i))
    bg.add(lambda: S('buffer_load_dwordx4 %s, %s, %s, 0 offen', vr(XT, 4), vXO, SRD_X))
    bg.add(lambda: S('buffer_load_dwordx4 %s, %s, %s, 0 offen offset:16', vr(XT + 4, 4), vXO, SRD_X))

    def cop(d):
        return vr(MD, 16) if d == 0 else vr(MFAR, 16) if d == 8 else '0'

    def rdK(h, d):
        return S('ds_read_b128 %s, %s offset:%d', vr((K0, K1)[h], 4), vKV, kv_off(d, h))

    def rdV(h, d):
        if d:
            S('s_cselect_b64 exec, -1, %s', (sLO, sHI)[h])
        else:
            S('s_mov_b64 exec, %s', (sLO, sHI)[h])
        S('ds_read_b128 %s, %s offset:%d', vr((V0, V1)[h], 4), vKV, kv_off(d, 2))
        t = S('ds_read_b128 %s, %s offset:%d', vr((V0, V1)[h] + 4, 4), vKV, kv_off(d, 3))
        A('s_mov_b64 exec, -1')
        return t

    t = rdK(0, 0)
    rdK(1, 0)
    rdV(0, 0)
    bg.drip(2)
    A.wait(lg=t)
    S('%s %s, %s, %s, %s', MF32, vr(S0, 16), vr(K0, 4), vr(Q0, 4), cop(0))
    bg.drip(2)
    bg.pre()
    A.wait(lg='all')

    def half(h, d):
        S_, P, O, V = (S0, S1)[h], (P0, P1)[h], (O0, O1)[h], (V0, V1)[h]
        oS, oP, oO, oV, oK, oQ = (S1, S0)[h], (P1, P0)[h], (O1, O0)[h], (V1, V0)[h], (K1, K0)[h], (Q1, Q0)[h]
        od = d if h == 0 else d + 1
        if od <= 8:
            S('%s %s, %s, %s, %s', MF32, vr(oS, 16), vr(oK, 4), vr(oQ, 4), cop(od))
            if od:
                S('s_cmp_lt_u32 %s, %d', sT, od)
        if d + 1 <= 8:
            rdK(h, d + 1)
        bg.go()
        for i in range(4):
            S('v_exp_f32 v%d, v%d', S_ + i, S_ + i)
        if d or h:
            S('%s %s, %s, %s, %s', MF32, vr(oO, 16), vr(oV + 4, 4), vr(oP + 4, 4), vr(oO, 16))
        if od <= 8:
            rdV(1 - h, od)
        bg.pre()
        for i in range(4, 8):
            S('v_exp_f32 v%d, v%d', S_ + i, S_ + i)
        for i in range(4):
            S('v_cvt_pk_bf16_f32 v%d, v%d, v%d', P + i, S_ + 2 * i, S_ + 2 * i + 1)
        for i in range(8, 12):
            S('v_exp_f32 v%d, v%d', S_ + i, S_ + i)
        S('%s %s, %s, %s, %s', MF32, vr(O, 16), vr(V, 4), vr(P, 4), vr(O, 16) if d else '0')
        A.wait(lg='all')
        bg.go()
        bg.pre()
        for i in range(12, 16):
            S('v_exp_f32 v%d, v%d', S_ + i, S_ + i)
        for i in range(4, 8):
            S('v_cvt_pk_bf16_f32 v%d, v%d, v%d', P + i, S_ + 2 * i, S_ + 2 * i + 1)

    for d in range(9):
        half(0, d)
        half(1, d)
    bg.drip(99)
    S('%s %s, %s, %s, %s', MF32, vr(O1, 16), vr(V1 + 4, 4), vr(P1 + 4, 4), vr(O1, 16))
    stamp('att done')
    FB, OK = A.label('fb'), A.label('attok')
    S('s_mov_b32 %s, 0x1f800000', t0)
    S('s_mov_b32 %s, 0x5f800000', t1)
    S('s_mov_b32 %s, 0x7f000000', t2)
    S('v_add_f32 v10, abs(v%d), abs(v%d)', O0, O0 + 1)
    for i in range(2, 8):
        S('v_add_f32 v10, v10, abs(v%d)', O0 + i)
    S('v_cmp_nle_f32 vcc, %s, v%d', t0, O0 + 8)
    S('v_cmp_nge_f32 %s, %s, v%d', sMASK, t1, O0 + 8)
    for i in range(8):
        S('v_add_f32 v10, v10, abs(v%d)', O1 + 8 + i)
    S('s_or_b64 vcc, vcc, %s', sMASK)
    S('v_cmp_nle_f32 %s, %s, v%d', sMASK, t0, O1)
    S('v_cmp_nge_f32 %s, %s, v%d', sM2, t1, O1)
    S('v_cmp_ngt_f32 s[90:91], %s, v10', t2)
    S('v_rcp_f32 v10, v%d', O0 + 8)
    S('v_rcp_f32 v12, v%d', O1)
    S('s_or_b64 vcc, vcc, %s', sMASK)
    S('s_or_b64 vcc, vcc, %s', sM2)
    A('s_or_b64 vcc, vcc, s[90:91]')
    if OPT['force_fallback']:
        A('s_branch ' + FB)
    A('s_cbranch_scc1 ' + FB)
    A(OK + ':')
    for h, (src, rc) in enumerate(((O0, 10), (O1 + 8, 12))):
        for i in range(4):
            S('v_pk_mul_f32 %s, %s, %s op_sel_hi:[1,0]', vr(src + 2 * i, 2), vr(src + 2 * i, 2), vr(rc, 2))
        for i in range(4):
            S('v_cvt_pk_bf16_f32 v%d, v%d, v%d', P0 + 4 * h + i, src + 2 * i, src + 2 * i + 1)
        ts = S('buffer_store_dwordx4 %s, %s, %s, %s offen offset:%d%s', vr(P0 + 4 * h, 4), vOO, SRD_WS, sOO, h * 512, sc('o'))
    return (FB, OK, RET, RETB), ts


def out_of_line(FB, OK, RET, RETB):
    A(RET + ':')
    A('s_cselect_b32 s66, 1, 0')
    poll('v114', 'v115', 'fp', '-1')
    A('s_cmp_lg_u32 s66, 0')
    A('s_branch ' + RETB)
    A(FB + ':')
    S('s_min_u32 %s, %s, 8', t3, sT)
    for r in range(16):
        S('v_mov_b32 v%d, 0x3f803f80', V0 + r)
    for h in range(2):
        Kp, Q, O, V = h, (Q0, Q1)[h], (O0, O1)[h], (V0, V1)[h]
        for ps in range(2):
            L, ND, NF = A.label('fl'), A.label('fnd'), A.label('fnf')
            S('s_mov_b32 %s, 0', t4)
            S('v_add_u32 v10, %d, %s', 8 * 4096, vKV)
            if ps == 0:
                A('v_mov_b32 v11, 0xff800000')
            else:
                for r in range(16):
                    S('v_mov_b32 v%d, 0', O + r)
            A(L + ':')
            S('ds_read_b128 %s, v10 offset:%d', vr(K0, 4), Kp * 1024)
            if ps == 1:
                S('s_mov_b64 exec, %s', (sLO, sHI)[h])
                S('ds_read_b128 %s, v10 offset:2048', vr(V, 4))
                S('ds_read_b128 %s, v10 offset:3072', vr(V + 4, 4))
                A('s_mov_b64 exec, -1')
            A('s_waitcnt lgkmcnt(0)')
            S('%s %s, %s, %s, 0', MF32, vr(S0, 16), vr(K0, 4), vr(Q, 4))
            A('s_nop 15')
            S('s_cmp_lg_u32 %s, 0', t4)
            A('s_cbranch_scc1 ' + ND)
            for r in range(16):
                S('v_add_f32 v%d, v%d, v%d', S0 + r, S0 + r, MD + r)
            A(ND + ':')
            S('s_cmp_lg_u32 %s, 8', t4)
            A('s_cbranch_scc1 ' + NF)
            for r in range(16):
                S('v_add_f32 v%d, v%d, v%d', S0 + r, S0 + r, MFAR + r)
            A(NF + ':')
            if ps == 0:
                for r in range(8):
                    S('v_max3_f32 v11, v11, v%d, v%d', S0 + 2 * r, S0 + 2 * r + 1)
            else:
                for r in range(16):
                    S('v_sub_f32 v%d, v%d, v11', S0 + r, S0 + r)
                for r in range(16):
                    S('v_exp_f32 v%d, v%d', S0 + r, S0 + r)
                for r in range(8):
                    S('v_cvt_pk_bf16_f32 v%d, v%d, v%d', P0 + r, S0 + 2 * r, S0 + 2 * r + 1)
                S('%s %s, %s, %s, %s', MF32, vr(O, 16), vr(V, 4), vr(P0, 4), vr(O, 16))
                S('%s %s, %s, %s, %s', MF32, vr(O, 16), vr(V + 4, 4), vr(P0 + 4, 4), vr(O, 16))
                A('s_nop 15')
            A('v_subrev_u32 v10, 4096, v10')
            S('s_add_u32 %s, %s, 1', t4, t4)
            S('s_cmp_le_u32 %s, %s', t4, t3)
            A('s_cbranch_scc1 ' + L)
            if ps == 0:
                A('v_mov_b32 v12, v11')
                A('v_permlane32_swap_b32 v11, v12')
                A('v_max_f32 v11, v11, v12')
    S('v_rcp_f32 v10, v%d', O0 + 8)
    S('v_rcp_f32 v12, v%d', O1)
    A('s_nop 1')
    A('s_branch ' + OK)


def group_poll_addr(kindoff):
    S('s_lshl_b32 %s, %s, 8', t0, sT0)
    S('s_add_u32 %s, %s, %d', t0, t0, WS_FA + kindoff)
    S('v_lshrrev_b32 v12, 5, %s', vLANE)
    S('v_lshl_add_u32 v12, v12, 8, %s', t0)
    S('v_and_b32 v10, 31, %s', vLANE)
    A('v_lshl_add_u32 v10, v10, 2, v12')
    S('s_lshl_b32 %s, %s, 2', t0, sW)
    S('s_lshl_b32 s84, 15, %s', t0)
    A('s_mov_b32 s85, s84')


vRW = (13, 14, 15)
vRR = 9


def red_addr():
    for s in range(4):
        S('s_add_u32 %s, %s, %d', t0, sW, s + 1)
        S('s_and_b32 %s, %s, 3', t0, t0)
        S('s_lshl_b32 %s, %s, 13', t0, t0)
        S('s_add_u32 %s, %s, %d', t0, t0, L_RED + (4096 if s == 1 else 0))
        S('v_add_u32 v%d, %s, %s', (vRW + (vRR,))[s], t0, vL16)


STG = (t1, t2, t3, t4)


def ring_setup(nks, wsbase):
    S('s_mul_i32 %s, %s, %d', t0, sT0, 8 * nks * 1024)
    S('s_mul_i32 %s, %s, %d', t5, sW, nks * 1024)
    S('s_add_u32 %s, %s, %s', t0, t0, t5)
    S('s_add_u32 %s, %s, %d', t0, t0, wsbase)
    for s in range(4):
        S('s_add_u32 %s, %s, %d', STG[s], sOWN, s + 1)
        S('s_and_b32 %s, %s, 3', STG[s], STG[s])
        S('s_mul_i32 %s, %s, %d', STG[s], STG[s], 4 * nks * 1024)
        S('s_add_u32 %s, %s, %s', STG[s], STG[s], t0)


CA, CB, CO, CR = 16, 32, 48, 64


def ring_gemm(nks, areg, ring_base, ring_n, ahead, split=(), vL8=None, pre=None, post=None, npost=0, extra=None):
    ta = {}
    aq = Stream()
    n = 4 * nks
    for i in range(n):
        st, k = divmod(i, nks)
        r = ring_base + 4 * (i % ring_n)

        def pr(st=st, k=k):
            if k and k & 3 == 0:
                S('s_add_u32 %s, %s, 4096', STG[st], STG[st])

        def f(i=i, st=st, k=k, r=r):
            if k in split:
                for hf in range(2):
                    ta[i] = S('buffer_load_dwordx2 %s, %s, %s, %s offen offset:%d sc1', vr(r + 2 * hf, 2), vL8, SRD_WS, STG[st], (k & 3) * 1024 + 512 * hf)
            else:
                ta[i] = S('buffer_load_dwordx4 %s, %s, %s, %s offen offset:%d sc1', vr(r, 4), vL16, SRD_WS, STG[st], (k & 3) * 1024)
        aq.add(f, pr)
    assert ahead < ring_n or n <= ring_n
    aq.drip(ahead)
    btick = {}
    acc = (CA, CB, CA, CO)
    long_ = nks >= 8
    tRB = tRA = None
    for i in range(n):
        st, k = divmod(i, nks)
        tk = ta[i]
        assert not pre or len(pre) <= 4 * (nks - 1 - i) or not len(pre)
        if st == 0 and k in btick:
            tk = max(tk, btick[k])
        lgw = None
        slots = [[], [], [], []]
        if st >= 1:
            pa = acc[st - 1]
            wr = lambda g: (lambda: S('ds_write_b128 v%d, %s offset:%d', vRW[st - 1], vr(pa + 4 * g, 4), g * 1024))
            if long_:
                if 1 <= k <= 4:
                    slots[3].append(wr(k - 1))
            else:
                if k < 3:
                    slots[3].append(wr(k + (k > 1)))
                if k == 2:
                    slots[0].append(wr(2))
        if st == 2 and k == 0:
            for g in range(4):
                slots[g].append(lambda g=g: S('ds_read_b128 %s, v%d offset:%d', vr(CO + 4 * g, 4), vRR, g * 1024))
        if st == 3 and k == 0:
            for g in range(4):
                slots[g].append(lambda g=g: S('ds_read_b128 %s, v%d offset:%d', vr(CR + 4 * g, 4), vRR, 4096 + g * 1024))
        if st >= 2 and k == 0 or (long_ and st == 3 and k == 7):
            A.wait(vm=tk, lg='all')
            A('s_barrier')
        if long_ and st == 3 and k == 7:
            for g in range(4):
                slots[g].append(lambda g=g: S('ds_read_b128 %s, v%d offset:%d', vr(CB + 4 * g, 4), vRR, g * 1024))
        if long_ and st == 3 and k in (10, 11, 12, 13):
            lgw = 'all'
            for g in range(4):
                r = 4 * (k - 10) + g
                slots[g].append(lambda r=r: S('v_add_f32 v%d, v%d, v%d', CR + r, CR + r, CB + r))
        if extra:
            extra(st, k, slots)
        A.wait(vm=tk, lg=lgw)
        a = vr(ring_base + 4 * (i % ring_n), 4)
        for nt in range(4):
            c = vr(acc[st] + 4 * nt, 4)
            S('%s %s, %s, %s, %s', MF16, c, ar(areg + 16 * k + 4 * nt, 4), a, c if (k or st == 3) else '0')
            if nt == 0:
                aq.pre()
            if nt == 1:
                if len(aq):
                    aq.go()
                elif post and npost > 0:
                    post.drip(1)
                    npost -= 1
            if nt == 2:
                if pre and len(pre):
                    kk = nks - (len(pre) + 3) // 4
                    btick[kk] = pre.drip(1)
                elif not len(aq) and post and npost > 0:
                    post.drip(1)
                    npost -= 1
            for f in slots[nt]:
                f()
    if post and npost > 0:
        post.drip(npost)
    if not long_:
        A.wait(lg='all')
        A('s_barrier')
        for g in range(4):
            tr = S('ds_read_b128 %s, v%d offset:%d', vr(CB + 4 * g, 4), vRR, g * 1024)
    for g in range(8):
        S('v_pk_add_f32 %s, %s, %s', vr(CO + 2 * g, 2), vr(CO + 2 * g, 2), vr(CR + 2 * g, 2))
    if not long_:
        for g in range(4):
            A.wait(lg=tr - 3 + g)
            for e in range(2):
                r = 4 * g + 2 * e
                S('v_pk_add_f32 %s, %s, %s', vr(CO + r, 2), vr(CO + r, 2), vr(CB + r, 2))


X2 = 240
GA, G2 = 208, 224
vGAB = 'v4'


def wo_phase(ts, w1, w2):
    w1.drip(3)
    S('s_lshl_b32 %s, %s, 6', t1, sT)
    S('s_add_u32 %s, %s, %s', t1, t1, sM)
    S('s_lshl2_add_u32 %s, %s, %d', t5, t1, WS_FA + 64)
    group_poll_addr(64)
    red_addr()
    A('v_lshlrev_b32 v16, 3, v0')
    S('v_add_u32 v16, %d, v16', L_MODL)
    S('v_bfe_u32 v11, %s, 3, 1', vLANE)
    A('v_lshlrev_b32 v11, 8, v11')
    A('v_lshl_add_u32 v11, v8, 4, v11')
    S('v_lshrrev_b32 v12, 5, %s', vLANE)
    A('v_lshl_add_u32 v11, v12, 2, v11')
    S('v_bfe_u32 v12, %s, 4, 1', vLANE)
    A('v_lshl_add_u32 v11, v12, 3, v11')
    S('s_and_b32 %s, %s, 1', t1, sW)
    S('s_lshl_b32 %s, %s, 7', t1, t1)
    S('s_add_u32 %s, %s, %d', t1, t1, L_GAB)
    S('v_add_u32 v17, %s, v11', t1)
    A.wait(vm=ts)
    flag_store(t5, not LOCAL[0])
    stamp('o pub')
    w1.drip(99)
    if LOCAL[0] and OPT['py']:
        touch(vL16, sYO)
        touch(vL16, sYO, 1024)
        S('buffer_load_dword v124, v7, %s, %s offen sc1', SRD_WS, sSO)
    L, D = A.label('pmr'), A.label('dmr')
    S('s_mov_b32 %s, 0', sCNT)
    A(L + ':')
    for i in range(5):
        tagcheck(MRD + 4 * i, 148, 'vcc' if i == 0 else ('s[90:91]', sM2)[i & 1])
        if i >= 2:
            S('s_or_b64 vcc, vcc, %s', ('s[90:91]', sM2)[(i - 1) & 1])
    A('s_or_b64 vcc, vcc, s[90:91]')
    A('s_cbranch_scc0 ' + D)
    S('s_add_u32 %s, %s, 1', sCNT, sCNT)
    S('s_cmp_ge_u32 %s, %d', sCNT, LIMIT)
    A('s_cbranch_scc1 ' + D)
    vm_save = A.vm
    for i in range(5):
        mr_load(i)
    A.vm = vm_save
    A('s_waitcnt vmcnt(0)')
    A('s_branch ' + L)
    A(D + ':')
    S('s_cmp_ge_u32 %s, 2', sW)
    S('s_cselect_b32 %s, 1.0, 0', t4)
    sum_partials(MRD, t4)
    g = MRD + 16
    for i in range(4):
        S('v_and_b32 v%d, 0xffffff00, v%d', g + i, g + i)
    S('v_lshrrev_b32 v12, 4, %s', vLANE)
    S('v_permlane32_swap_b32 v%d, v%d', g, g + 1)
    S('v_permlane32_swap_b32 v%d, v%d', g + 2, g + 3)
    S('v_add_f32 v%d, v%d, v%d', g, g, g + 1)
    S('v_add_f32 v%d, v%d, v%d', g + 2, g + 2, g + 3)
    S('s_lshl_b32 %s, %s, 7', t1, sCT)
    S('s_add_u32 %s, %s, %d', t1, t1, L_MODL + 1024)
    S('v_permlane16_swap_b32 v%d, v%d', g, g + 2)
    S('v_add_f32 v%d, v%d, v%d', g, g, g + 2)
    S('v_cvt_pk_bf16_f32 v%d, v%d, v%d', g, g, g)
    S('v_lshlrev_b32 v%d, 16, v%d', g, g)
    A('s_barrier')
    S('ds_write_b64 v16, %s', vr(MRD, 2))
    t = S('ds_write_b32 v17, v%d', g)
    S('v_lshlrev_b32 %s, 6, v12', vGAB)
    S('v_add_u32 %s, %d, %s', vGAB, L_GAB, vGAB)
    S('v_lshl_add_u32 v8, v12, 5, %s', t1)
    for i in range(7, -1, -1):
        S('v_and_b32 v%d, 0xffff0000, v%d', X2 + 2 * i + 1, XT + i)
        S('v_lshlrev_b32 v%d, 16, v%d', X2 + 2 * i, XT + i)
    ring_setup(4, WS_O)
    A.wait(lg=t)
    poll('v10', 'v12', 'o')
    stamp('o seen')

    def extra(st, k, slots):
        if st == 2 and k == 1:
            for i in range(3):
                slots[i].append(lambda i=i: S('ds_read_b128 %s, %s offset:%d', vr(GA + 4 * i, 4), vGAB, 16 * i))
        if st == 2 and k == 3:
            slots[0].append(lambda: S('ds_read_b128 %s, %s offset:48', vr(GA + 12, 4), vGAB))
            for i in range(2):
                slots[1 + i].append(lambda i=i: S('ds_read_b128 %s, v8 offset:%d', vr(80 + 4 * i, 4), 16 * i))
        if st == 3 and k >= 1:
            for i in range(8):
                if i * 3 // 8 == k - 1:
                    slots[i & 3].append(lambda i=i: unpack(G2 + 2 * i, 80 + i))
    ring_gemm(4, 192, 128, 16, 12, post=w2, npost=OPT['w2a'], extra=extra)
    stamp('wo gemm')
    for e in range(2):
        for i in range(4 * e, 4 * e + 4):
            S('v_pk_fma_f32 %s, %s, %s, %s', vr(X2 + 2 * i, 2), vr(CO + 2 * i, 2), vr(GA + 2 * i, 2), vr(X2 + 2 * i, 2))
        for i in range(4 * e, 4 * e + 4):
            S('v_pk_mul_f32 %s, %s, %s', vr(16 + 2 * i, 2), vr(X2 + 2 * i, 2), vr(G2 + 2 * i, 2))
        for i in range(4 * e, 4 * e + 4):
            S('v_cvt_pk_bf16_f32 v%d, v%d, v%d', 32 + i, 16 + 2 * i, 17 + 2 * i)
        S('buffer_store_dwordx4 %s, %s, %s, %s offen offset:%d%s', vr(32 + 4 * e, 4), vL16, SRD_WS, sYO, e * 1024, sc('y'))
    S('v_pk_add_f32 v[40:41], %s, %s', vr(X2, 2), vr(X2 + 2, 2))
    S('v_pk_mul_f32 v[42:43], %s, %s', vr(X2, 2), vr(X2, 2))
    S('v_pk_fma_f32 v[42:43], %s, %s, v[42:43]', vr(X2 + 2, 2), vr(X2 + 2, 2))
    for i in range(2, 8):
        S('v_pk_add_f32 v[40:41], v[40:41], %s', vr(X2 + 2 * i, 2))
        S('v_pk_fma_f32 v[42:43], %s, %s, v[42:43]', vr(X2 + 2 * i, 2), vr(X2 + 2 * i, 2))
    A('v_add_f32 v40, v40, v41')
    A('v_add_f32 v42, v42, v43')
    S('s_lshr_b32 %s, %s, 1', t1, sTS)
    S('s_lshl_b32 %s, %s, 5', t1, t1)
    A('v_permlane32_swap_b32 v40, v42')
    A('v_add_f32 v40, v40, v42')
    A('v_mov_b32 v41, v40')
    S('s_add_u32 %s, %s, %s', t1, t1, sCT)
    S('s_and_b32 %s, %s, 1', t2, sTS)
    A('v_permlane16_swap_b32 v40, v41')
    A('v_add_f32 v40, v40, v41')
    ts = S('buffer_store_dword v40, v7, %s, %s offen%s', SRD_WS, sSO, sc('y'))
    S('s_lshl1_add_u32 %s, %s, %s', t1, t1, t2)
    S('s_lshl2_add_u32 %s, %s, %d', t5, t1, WS_FA + 128)
    w2.drip(min(4, OPT['w2b']))
    return ts


vT1, vT2 = 6, 8
ACC, BF, YA = 16, 72, 112


def g1_phase(ts, w2):
    S('v_bfe_u32 v10, %s, 2, 3', vLANE)
    S('v_lshrrev_b32 v11, 5, %s', vLANE)
    A('v_lshl_add_u32 v10, v11, 4, v10')
    A('v_mul_u32_u24 v10, 224, v10')
    S('v_and_b32 v11, 3, %s', vLANE)
    S('v_lshl_add_u32 v%d, v11, 3, v10', vT1)
    S('v_add_u32 v%d, 57344, v%d', vT2, vT1)
    S('s_lshl_b32 %s, %s, 5', t0, sW)
    S('s_add_u32 %s, %s, 128', t1, t0)
    S('s_min_u32 %s, %s, 192', t1, t1)
    S('v_add_u32 v100, %s, v%d', t0, vT1)
    S('v_add_u32 v101, %s, v%d', t0, vT2)
    S('v_add_u32 v102, %s, v%d', t1, vT1)
    S('v_add_u32 v103, %s, v%d', t1, vT2)
    S('v_and_b32 v10, 1, %s', vLANE)
    A('v_lshlrev_b32 v11, 10, v10')
    S('v_sub_u32 v11, %d, v11', L_MODL + 1024)
    S('v_lshrrev_b32 v12, 4, %s', vLANE)
    A('v_lshl_add_u32 v104, v12, 5, v11')
    rd = {}
    UB = 16

    def rv(ks):
        S('ds_read_b128 %s, v104 offset:%d', vr(UB + 12 * (ks % 4), 4), 128 * (ks >> 1) + 16 * (ks & 1))

    def rt(ks, n):
        for half in range(2):
            rd[ks] = S('ds_read_b64_tr_b16 %s, v%d offset:%d', vr(UB + 12 * (ks % 4) + 4 + 4 * n + 2 * half, 2), 100 + 2 * n + (ks >> 3), (ks & 7) * 7168 + half * 8 * 224)
    rv(0), rt(0, 0), rt(0, 1)
    A('v_lshlrev_b32 v12, 4, v12')
    S('v_add_u32 v107, %d, v12', L_UT)
    A('v_lshl_add_u32 v12, v10, 9, v107')
    S('s_lshl_b32 %s, %s, 1', t0, t0)
    S('s_lshl_b32 %s, %s, 1', t1, t1)
    S('v_add_u32 v105, %s, v12', t0)
    S('v_add_u32 v106, %s, v12', t1)
    S('s_lshl_b32 %s, %s, 8', t0, sT)
    S('s_add_u32 %s, %s, %d', t0, t0, WS_FA + 128)
    S('v_and_b32 v12, 31, %s', vLANE)
    S('v_lshl_add_u32 v10, v12, 2, %s', t0)
    S('s_mov_b64 %s, 0xffff', sMASK)
    S('s_lshl_b32 %s, %s, 15', t2, sT)
    S('s_add_u32 %s, %s, %d', t2, t2, WS_Y)
    S('s_add_u32 %s, %s, 16384', t3, t2)
    S('s_lshl_b32 %s, %s, 11', t4, sT)
    S('s_add_u32 %s, %s, %d', t4, t4, WS_STAT)
    S('v_bfe_u32 v11, %s, 4, 1', vLANE)
    A('v_lshl_add_u32 v7, v11, 10, v7')
    S('s_lshr_b32 %s, %s, 1', t0, sM)
    S('s_mul_i32 %s, %s, 7', t0, t0)
    S('s_mul_i32 %s, %s, 112', t1, sT)
    S('s_add_u32 %s, %s, %s', t0, t0, t1)
    S('s_lshl_b32 %s, %s, 10', t0, t0)
    S('s_add_u32 %s, %s, %d', sOO, t0, WS_HID)
    S('s_add_u32 %s, %s, %d', sYO, sOO, 56 * 1024)
    S('s_and_b32 %s, %s, 1', t0, sM)
    S('s_lshl_b32 %s, %s, 12', t1, t0)
    S('v_add_u32 v108, %s, %s', t1, vL16)
    S('s_lshl_b32 %s, %s, 9', t1, t0)
    S('v_lshlrev_b32 v110, 3, %s', vLANE)
    S('v_add_u32 v109, %s, v110', t1)
    A.wait(vm=ts)
    flag_store(t5, not LOCAL[0])
    stamp('y pub')
    w2.drip(max(0, OPT['w2b'] - 4))
    for ks in (1, 2):
        rv(ks), rt(ks, 0), rt(ks, 1)
    ta = {}
    aq = Stream()
    for ks in range(16):
        for tt in range(2):
            def pr(ks=ks, tt=tt):
                if ks and ks & 3 == 0:
                    S('s_add_u32 %s, %s, 4096', (t2, t3)[tt], (t2, t3)[tt])

            def f(ks=ks, tt=tt):
                ta[ks, tt] = S('buffer_load_dwordx4 %s, %s, %s, %s offen offset:%d sc1', vr(YA + 8 * ks + 4 * tt, 4), vL16, SRD_WS, (t2, t3)[tt], (ks & 3) * 1024)
            aq.add(f, pr)
    for ks in range(16):
        A.wait(lg=rd[ks])
        b = UB + 12 * (ks % 4)
        for n in range(2):
            c = vr(64 + 4 * n, 4)
            S('%s %s, %s, %s, %s', MF16, c, vr(b + 4 + 4 * n, 4), vr(b, 4), c if ks else '0')
            if ks + 3 < 16:
                if n == 0:
                    rv(ks + 3)
                rt(ks + 3, n)
        if ks == 4:
            tp = S('buffer_load_dword v12, v10, %s, 0 offen sc1', SRD_WS)
        if ks == 10:
            D = A.label('yok')
            A.wait(vm=tp)
            S('v_cmp_ne_u32 vcc, %s, v12', sTAG)
            S('s_and_b64 vcc, vcc, %s', sMASK)
            A('s_cbranch_scc0 ' + D)
            vm_save = A.vm
            poll('v10', 'v12', 'y')
            A.vm = A.vm_done = vm_save
            A(D + ':')
            stamp('y seen')
            aq.drip(10)
    rd = {}

    def bread(g, half):
        ks, nt = divmod(g, 7)
        rd[g] = S('ds_read_b64_tr_b16 %s, v%d offset:%d', vr(BF + 4 * nt + 2 * half, 2), (vT1, vT2)[ks >> 3], (ks & 7) * 7168 + half * 8 * 224 + nt * 32)
    for g in range(6):
        bread(g, 0)
        bread(g, 1)
    A('ds_write_b128 v105, v[64:67]')
    tuw = A('ds_write_b128 v106, v[68:71]')
    tst = {}
    for p in range(8):
        def f(p=p):
            tst[0] = S('buffer_load_dword v%d, v7, %s, %s offen offset:%d sc1', YA + p, SRD_WS, t4, p * 128)
        aq.add(f)
    if LOCAL[0] and OPT['phid']:
        for tt in range(2):
            for i in range(3):
                aq.add(lambda i=i, tt=tt: S('buffer_load_dwordx4 v[100:103], v108, %s, %s offen offset:%d sc1', SRD_WS, (sOO, sYO)[tt], i * 1024))
            aq.add(lambda tt=tt: S('buffer_load_dwordx2 v[100:101], v109, %s, %s offen offset:3072 sc1', SRD_WS, (sOO, sYO)[tt]))
    for _ in range(OPT['w2c']):
        if len(w2):
            aq.q.append(w2.q.pop(0))
    A.wait(lg=tuw)
    rate = [3, 3, 3, 3, 3, 3, 4, 6, 4, 4] + [4] * 6
    for g in range(112):
        ks, nt = divmod(g, 7)
        n = rate[ks]
        go = (nt + 1) * n // 7 > nt * n // 7
        if nt in (0, 2, 4, 6):
            A.wait(vm=ta[ks, 1] if nt == 0 else None, lg=rd[min(g + 1, 111)] if nt < 6 else rd[g])
        for tt in range(2):
            c = vr(ACC + 8 * nt + 4 * tt, 4)
            S('%s %s, %s, %s, %s', MF16, c, vr(BF + 4 * nt, 4), vr(YA + 8 * ks + 4 * tt, 4), c if ks else '0')
            if go and tt == 0:
                aq.pre()
            if g + 6 < 112:
                bread(g + 6, tt)
            if go and tt == 0:
                aq.go()
        if g == 95:
            A('s_barrier')
    aq.drip(99)
    stamp('g1 gemm')
    U, TT = 144, 176
    tu = []
    for nt in range(7):
        S('ds_read_b128 %s, v107 offset:%d', vr(U + 4 * nt, 4), nt * 64)
        tu.append(S('ds_read_b128 %s, v107 offset:%d', vr(TT + 4 * nt, 4), 512 + nt * 64))
    A.wait(vm=tst[0])
    for n in (4, 2):
        for i in range(0, n, 2):
            S('v_pk_add_f32 %s, %s, %s', vr(YA + i, 2), vr(YA + i, 2), vr(YA + n + i, 2))
    A('v_add_f32 v112, v112, v113')
    A('v_mul_f32 v112, 0x3b000000, v112')
    A('v_mov_b32 v113, v112')
    A('v_permlane32_swap_b32 v112, v113')
    A('v_fma_f32 v113, -v112, v112, v113')
    A('v_max_f32 v113, 0, v113')
    A('v_add_f32 v113, 0x3727c5ac, v113')
    A('v_rsq_f32 v114, v113')
    A('v_mul_f32 v115, -v112, v114')
    A('v_mov_b32 v116, v114')
    A('v_mov_b32 v117, v115')
    A('v_permlane16_swap_b32 v114, v116')
    A('v_permlane16_swap_b32 v115, v117')
    for pr in range(4):
        nts = (2 * pr, 2 * pr + 1) if pr < 3 else (6,)
        A.wait(lg=tu[nts[-1]])
        for tt in range(2):
            o = 208 + 8 * pr + 4 * tt
            rp = vr(114 + 2 * tt, 2)
            for i, nt in enumerate(nts):
                for e in range(2):
                    S('v_pk_fma_f32 %s, %s, %s, %s op_sel:[0,1,0] op_sel_hi:[1,1,1]', vr(120 + 2 * e, 2), vr(U + 4 * nt + 2 * e, 2), rp, vr(TT + 4 * nt + 2 * e, 2))
                for e in range(2):
                    S('v_pk_fma_f32 %s, %s, %s, %s op_sel:[0,0,0] op_sel_hi:[1,0,1]', vr(120 + 2 * e, 2), vr(ACC + 8 * nt + 4 * tt + 2 * e, 2), rp, vr(120 + 2 * e, 2))
                for e in range(2):
                    S('v_cvt_pk_bf16_f32 v%d, v%d, v%d', o + 2 * i + e, 120 + 2 * e, 121 + 2 * e)
                for e in range(2):
                    S('v_pk_max_i16 v%d, v%d, 0', o + 2 * i + e, o + 2 * i + e)
            if pr < 3:
                ts = S('buffer_store_dwordx4 %s, v108, %s, %s offen offset:%d%s', vr(o, 4), SRD_WS, (sOO, sYO)[tt], pr * 1024, sc('hid'))
            else:
                ts = S('buffer_store_dwordx2 %s, v109, %s, %s offen offset:3072%s', vr(o, 2), SRD_WS, (sOO, sYO)[tt], sc('hid'))
    return ts


def g2_phase(ts, w2):
    GB = 80
    w2.drip(min(4, OPT['w2d']))
    S('s_lshl_b32 %s, %s, 6', t1, sT)
    S('s_add_u32 %s, %s, %s', t1, t1, sM)
    S('s_lshl2_add_u32 s65, %s, %d', t1, WS_FA + 192)
    for i in range(4):
        S('ds_read_b128 %s, %s offset:%d', vr(GB + 4 * i, 4), vGAB, 256 + 16 * i)
    group_poll_addr(192)
    ring_setup(14, WS_HID)
    A.wait(vm=ts)
    flag_store('s65', not LOCAL[0])
    stamp('hid pub')
    w2.drip(max(0, OPT['w2d'] - 4))
    poll('v10', 'v12', 'hid')
    stamp('hid seen')
    ring_gemm(14, 0, 112, 32, 12, split=(3, 10), vL8='v110', pre=w2)
    stamp('g2 gemm')
    for p in range(2):
        for i in range(4 * p, 4 * p + 4):
            S('v_pk_fma_f32 %s, %s, %s, %s', vr(X2 + 2 * i, 2), vr(CO + 2 * i, 2), vr(GB + 2 * i, 2), vr(X2 + 2 * i, 2))
        for i in range(4 * p, 4 * p + 4):
            S('v_cvt_pk_bf16_f32 v%d, v%d, v%d', 16 + i, X2 + 2 * i, X2 + 2 * i + 1)
        S('buffer_store_dwordx4 %s, %s, %s, 0 offen offset:%d%s', vr(16 + 4 * p, 4), vXO, SRD_OUT, 16 * p, ('', ' sc1', ' nt')[OPT['outsc']])
    SK = A.label('noep')
    S('s_or_b32 %s, %s, %s', t0, sLID, sW)
    S('s_cmp_lg_u32 %s, 0', t0)
    A('s_cbranch_scc1 ' + SK)
    S('s_mov_b32 %s, %d', t2, WS_E)
    flag_store(t2, False)
    A(SK + ':')


def dump_stamps():
    if OPT['diag']:
        D = A.label('diag')
        A('s_waitcnt vmcnt(0) lgkmcnt(0)')
        if OPT['dref'] >= 0:
            A('s_mov_b32 s92, 0x7000')
            S('buffer_load_dword v10, off, %s, s92 sc1', SRD_WS)
            A('s_waitcnt vmcnt(0)')
            A('v_readfirstlane_b32 s97, v10')
            A('s_nop 4')
        A('s_add_u32 s97, s97, 6000')
        A('s_mov_b32 s98, 0')
        A(D + ':')
        A('s_memrealtime s[92:93]')
        A('s_add_u32 s98, s98, 1')
        A('s_cmp_gt_u32 s98, 0x8000')
        A('s_cbranch_scc1 L_exit')
        A('s_waitcnt lgkmcnt(0)')
        A('s_sub_u32 s92, s92, s97')
        A('s_cmp_lt_i32 s92, 0')
        A('s_cbranch_scc1 ' + D)
    if not OPT['stamps']:
        return
    A.wait(vm='all', force=True)
    A('s_memrealtime s[92:93]')
    stamp('end')
    S('s_lshl_b32 %s, %s, 2', t0, sLID)
    S('s_add_u32 %s, %s, %s', t0, t0, sW)
    S('s_lshl_b32 %s, %s, 7', t0, t0)
    S('s_add_u32 %s, %s, %d', t0, t0, WS_TS)
    A('s_mov_b64 exec, 1')
    for i in range(24):
        S('v_mov_b32 v10, s%d', STAMP0 + i)
        S('buffer_store_dword v10, off, %s, %s offset:%d', SRD_WS, t0, 4 * i)
    A('v_mov_b32 v10, s92')
    S('buffer_store_dword v10, off, %s, %s offset:100', SRD_WS, t0)
    S('s_getreg_b32 %s, hwreg(HW_REG_XCC_ID)', t1)
    S('v_mov_b32 v10, %s', t1)
    S('buffer_store_dword v10, off, %s, %s offset:96', SRD_WS, t0)
    S('v_mov_b32 v10, %d', int(LOCAL[0]))
    S('buffer_store_dword v10, off, %s, %s offset:104', SRD_WS, t0)
    A('s_mov_b64 exec, -1')


def rest(wq):
    wst = Stream()
    wst.q = list(wq)
    h_phase(wst)
    w1 = w1_stream()
    w2 = frag_stream(WS_W2T, 14, 0)
    if OPT['nobg'] & 1:
        w1.q = w1.q[:8]
    if OPT['nobg'] & 2:
        w2.q = []
    qkv(w1)
    ool, ts = attention(w1)
    ts = wo_phase(ts, w1, w2)
    ts = g1_phase(ts, w2)
    g2_phase(ts, w2)
    dump_stamps()
    return ool


def main():
    tw, tx = prologue()
    wst = wqkv_stream([0, 1])
    wst.drip(OPT['n1'])
    late_setup()
    vm0 = mod_partial(tw)
    stamp('mod pub')
    ln1(tx, vm0, wst)
    prep_addr()
    if OPT['dref'] >= 0:
        SKX = A.label('skx')
        S('s_lshl2_add_u32 s98, %s, %s', sLID, sW)
        S('s_cmp_lg_u32 s98, %d', OPT['dref'] * 128)
        A('s_cbranch_scc1 ' + SKX)
        A('v_mov_b32 v15, s97')
        A('s_mov_b32 s98, 0x7000')
        A.lines.append('buffer_store_dword v15, off, %s, s98 sc1' % SRD_WS)
        A(SKX + ':')
    stamp('ln done')
    mod_poll()
    st = (A.vm, A.vm_done, A.lg, A.lg_done, nstamp[0])
    alln = ALLN[0]
    ool = rest(wst.q)
    A('L_exit:')
    A('s_endpgm')
    A('L_localend:')
    out_of_line(*ool)
    xc_slow()
    LOCAL[0] = False
    P0DONE[0] = False
    ALLN[0] = alln
    A.vm, A.vm_done, A.lg, A.lg_done, nstamp[0] = st
    ool = rest(wst.q)
    A('s_endpgm')
    out_of_line(*ool)
    body, nops = A.finalize()
    hdr = open(os.path.join(os.path.dirname(os.path.abspath(__file__)), '..', 'cdna_kernels', NAME + '.s.ref')).read().split('; Override')[0]
    out = hdr
    out += '; @launch grid=(256,1,1) block=(256,1,1) lds=163840\n'
    out += '.amdgcn_target "amdgcn-amd-amdhsa--gfx950"\n.text\n.globl %s_kernel\n.p2align 8\n.type %s_kernel,@function\n%s_kernel:\n' % (NAME, NAME, NAME)
    out += '\n'.join(('' if l.endswith(':') else '    ') + l for l in body) + '\n'
    out += '''.section .rodata,"a"
.p2align 6
.amdhsa_kernel %s_kernel
  .amdhsa_next_free_vgpr 512
  .amdhsa_next_free_sgpr 102
  .amdhsa_accum_offset 256
  .amdhsa_group_segment_fixed_size 0
  .amdhsa_kernarg_size 88
  .amdhsa_user_sgpr_count 2
  .amdhsa_user_sgpr_kernarg_segment_ptr 1
  .amdhsa_system_sgpr_workgroup_id_x 1
  .amdhsa_float_denorm_mode_32 3
.end_amdhsa_kernel
''' % NAME
    open(sys.argv[1], 'w').write(out)
    if OPT['stamps']:
        open(sys.argv[1] + '.stamps', 'w').write('\n'.join(STAMP_NAMES))
    print('instructions', len(body), 'pad states', nops, file=sys.stderr)


main()
```

```python
import sys, os
from asmlib import Asm

NAME = 'adaLN_cond__sliding_block__dense_activation_relu__prompt'
OPT = dict(stamps=0, fine=0, force_fallback=0, force_remote=0, diag=0, nobg=0,
           ph=1, po=1, py=1, phid=1,
           n1=0, n2=4, n3=3, n4=2,
           pst=2,
           wq0=0, wq1=4, wq2=4,
           qf=-1, qp=0, qchk=8,
           qd=4,
           aw1=14, fpl=10,
           ow1=3,
           w2a=16, w2b=16, w2c=8, w2d=16,
           uf=4, up=7, uc=12,
           wbl2=0, outsc=0, rot=1, cpf=1, ntw=1, ntp=1, ppos=0)
for a in sys.argv[2:]:
    k, v = a.split('=')
    assert k in OPT, k
    OPT[k] = int(v)

WS_E = 0
WS_FA = 0x1000
WS_XA = 0x6000
WS_XB = 0x8000
WS_FKV = 0x10000
WS_MOD = 0x50000
WS_STAT = 0x80000
WS_TS = 0xC0000
WS_WOT = 0x100000
WS_W2T = 0x200000
WS_H = 0x400000
WS_O = 0x600000
WS_Y = 0x800000
WS_KV = 0xA00000
WS_HID = 0xE00000
WS_SIZE = 0x1600000
OOB = 0x40000000

L_SCR = 98304
L_KV = 114688
L_MODL = 114688
L_GAB = L_MODL + 2048
L_UT = L_MODL + 4096
L_RED = L_MODL + 8192

sDG, sDL, sFG = 's0', 's1', 's2'
sX, sJ, sW, sT, sM = 's3', 's4', 's5', 's6', 's7'
sFKV, sFO, sFY, sFHID = 's8', 's9', 's14', 's15'
sKVO, sOO, sYO, sSO = 's20', 's21', 's22', 's23'
sHO = ('s26', 's27')
STG_O = ('s10', 's11', 's12', 's13')
STG_H = ('s16', 's17', 's18', 's19')
sR4, sR8 = 's24', 's25'
sYL = ('s28', 's29')
sSL, sHL = 's30', 's31'
SRD_X, SRD_WQKV, SRD_W1, SRD_P, SRD_WS, SRD_OUT, SRD_WMOD, SRD_C = [
    's[%d:%d]' % (b, b + 3) for b in (32, 36, 44, 48, 52, 56, 60, 64)]
TAGB = 40
sGM = 's[60:61]'
sW1G, sW1L = 's62', 's63'
sPS, sRHO = 's64', 's67'
sTAG, sE = 's68', 's69'
sCT, sG, sOWN, sTS, sT0 = 's70', 's71', 's72', 's73', 's74'
sLID = 's75'
t0, t1, t2, t3, t4, t5 = 's76', 's77', 's78', 's79', 's80', 's81'
sCNT = 's82'
sXC = 's83'
sMASK = 's[84:85]'
sLO, sHI = 's[86:87]', 's[88:89]'
sWOB, sW2B = 's96', 's101'
sM2 = 's[98:99]'
H_S = 's100'

vLANE, vL16, vTAG = 'v1', 'v2', 'v3'
vXO, vGAB = 'v4', 'v5'
vRW, vRR = (6, 7, 8), 9
vT1, vT2 = 100, 101
vUTR, vPT, vPG, vSS, vSL, vH4, vH2, vL8, vMW, vGW = ['v%d' % i for i in range(102, 112)]
W1V = 112
vKV, vPKV, vD4, vD8, vOO, vMR0, vMR1, vFP, vG2A = ['v%d' % i for i in range(119, 128)]
UTA = 88
vWQ, H_V, vXCV = 'v96', 'v97', 'v98'
l7, l3 = 'v148', 'v149'
JUNK = 152
Q0, Q1 = 48, 52
MD, MFAR = 16, 32
K0, K1 = 64, 68
V0, V1 = 72, 80
MRD = 128
S0, S1 = 160, 176
P0, P1 = 192, 200
O0, O1 = 208, 224
XT = X2 = 240
CA, CB, CO, CR = 16, 32, 48, 64
GA, G2, GB = 208, 224, 80
ACC, BF, YA = 16, 72, 112

A = Asm()
nstamp = [0]
STAMP_NAMES = []
ALLN = [0]
vST = ['v255']
FINE = {1: (0, 4), 2: (4, 10), 3: (10, 15), 4: (15, 20), 9: (99, 99)}
LOCAL = [True]
LIMIT = 1 << 17
MF32 = 'v_mfma_f32_32x32x16_bf16'
MF16 = 'v_mfma_f32_16x16x32_bf16'


def vr(b, n=1, k='v'):
    return '%s%d' % (k, b) if n == 1 else '%s[%d:%d]' % (k, b, b + n - 1)


def ar(b, n=1):
    return vr(b, n, 'a')


def S(fmt, *a):
    return A(fmt % a)


def stamp(name):
    fine = name.startswith('.')
    n = ALLN[0]
    if not fine:
        ALLN[0] += 1
    if OPT['diag']:
        if not fine and ALLN[0] == OPT['diag']:
            print('diag stamp:', name, file=sys.stderr)
            A('s_memrealtime s[90:91]')
            A('s_waitcnt lgkmcnt(0)')
            A.lg_done = A.lg
            A('s_mov_b32 s97, s90')
        return
    if not OPT['stamps']:
        return
    if name == 'h seen':
        A('v_mov_b32 v0, v255')
        vST[0] = 'v0'
    if OPT['fine']:
        if name != 'end' and not (FINE[OPT['fine']][0] <= n <= FINE[OPT['fine']][1]):
            return
    elif fine:
        return
    assert nstamp[0] < 22
    A('s_memtime s[90:91]' if OPT['stamps'] == 1 else 's_memrealtime s[90:91]')
    A('s_waitcnt lgkmcnt(0)')
    A.lg_done = A.lg
    S('v_writelane_b32 %s, s90, %d', vST[0], 2 + nstamp[0])
    nstamp[0] += 1
    if LOCAL[0]:
        STAMP_NAMES.append(name)


def sc(buf):
    return '' if (LOCAL[0] and OPT['p' + buf]) else ' sc1'


def flag_store(soff, sc1, val=vTAG):
    A('s_mov_b64 exec, 1')
    t = S('buffer_store_dword %s, off, %s, %s%s', val, SRD_WS, soff, ' sc1' if sc1 else '')
    A('s_mov_b64 exec, -1')
    return t


def poll_load(vA, off, vT='v15'):
    return S('buffer_load_dword %s, %s, %s, 0 offen offset:%d sc1', vT, vA, SRD_WS, off)


def poll_test(mask, vT='v15'):
    S('v_cmp_ne_u32 vcc, %s, %s', sTAG, vT)
    S('s_and_b64 vcc, vcc, %s', mask)


def poll(vA, off, name, mask):
    L, D = A.label('p' + name), A.label('d' + name)
    S('s_mov_b32 %s, 0', sCNT)
    A(L + ':')
    poll_load(vA, off)
    S('s_add_u32 %s, %s, 1', sCNT, sCNT)
    A('s_waitcnt vmcnt(0)')
    poll_test(mask)
    A('s_cbranch_scc0 ' + D)
    S('s_cmp_lt_u32 %s, %d', sCNT, LIMIT)
    A('s_cbranch_scc1 ' + L)
    A(D + ':')
    A.vm_done = A.vm


def srd(dst, lo, size):
    b = int(dst[2:dst.index(':')])
    S('s_mov_b64 s[%d:%d], s[%d:%d]', b, b + 1, lo, lo + 1)
    S('s_mov_b32 s%d, 0x%x', b + 2, size)
    S('s_mov_b32 s%d, 0x20000', b + 3)


def unpack(dst, src):
    S('v_lshlrev_b32 v%d, 16, v%d', dst, src)
    S('v_and_b32 v%d, 0xffff0000, v%d', dst + 1, src)


def untag(r, acc, first):
    for i in range(4):
        S('v_xor_b32 v%d, s%d, v%d', r + i, TAGB + i, r + i)
    if first:
        S('v_or3_b32 v%d, v%d, v%d, v%d', acc, r, r + 1, r + 2)
        S('v_or_b32 v%d, v%d, v%d', acc, acc, r + 3)
    else:
        S('v_or3_b32 v%d, v%d, v%d, v%d', acc, r, r + 1, acc)
        S('v_or3_b32 v%d, v%d, v%d, v%d', acc, r + 2, r + 3, acc)


def untag_test(acc):
    S('v_and_b32 v%d, 0xff, v%d', acc, acc)
    S('v_cmp_ne_u32 vcc, 0, v%d', acc)


def capture(f):
    save, A.lines = A.lines, []
    f()
    out, A.lines = A.lines, save
    return out


class Stream:
    def __init__(self):
        self.q = []
        self.ready = False

    def add(self, f, pre=None):
        self.q.append((f, pre))

    def pre(self):
        if self.q and not self.ready:
            if self.q[0][1]:
                self.q[0][1]()
            self.ready = True

    def go(self):
        if self.q:
            assert self.ready
            self.ready = False
            return self.q.pop(0)[0]()

    def drip(self, n=1):
        t = None
        for _ in range(n):
            if self.q:
                self.pre()
                t = self.go()
        return t

    def __len__(self):
        return len(self.q)


def touch(voff, soff, off=0, junk=JUNK):
    return S('buffer_load_dwordx4 %s, %s, %s, %s offen offset:%d sc1', vr(junk, 4), voff, SRD_WS, soff, off)


def wqkv_stream():
    st = Stream()
    for tile in range(3):
        for i in range(8):
            def pre(tile=tile, i=i):
                if i == 0:
                    S('s_mul_i32 %s, %s, %d', sDG, sW, 128 * 3072)
                    S('s_lshl_b32 %s, %s, 6', sDL, sM)
                    S('s_add_u32 %s, %s, %s', sDG, sDG, sDL)
                    S('s_lshl_b32 %s, %s, 13', sDL, sW)
                    if tile == 2:
                        S('s_add_u32 %s, %s, 65536', sDL, sDL)
                    else:
                        S('s_lshr_b32 s65, %s, 1', sJ)
                        A('s_cmp_eq_u32 s65, 11')
                        S('s_cselect_b32 s65, %d, %d', 1 - tile, tile)
                        A('s_lshl_b32 s66, s65, 10')
                        S('s_add_u32 %s, %s, s66', sDG, sDG)
                        S('s_add_u32 %s, %s, 1024', sDG, sDG)
                        A('s_lshl_b32 s66, s65, 15')
                        S('s_add_u32 %s, %s, s66', sDL, sDL)
                    S('s_mov_b32 m0, %s', sDL)
                else:
                    S('s_add_u32 m0, %s, %d', sDL, i * 1024)
                    S('s_add_u32 %s, %s, %d', sDG, sDG, 16 * 3072)
            st.add(lambda: S('buffer_load_dwordx4 %s, %s, %s offen lds', vWQ, SRD_WQKV, sDG), pre)
    return st


def w1_stream():
    st = Stream()
    for g in range(4):
        for i in range(7):
            def pre(g=g, i=i):
                S('s_add_u32 m0, %s, %d', sW1L, g * 4 * 7168 + i * 1024)
                if i == 0 and g:
                    S('s_add_u32 %s, %s, %d', sW1G, sW1G, 128 * 3584)
            st.add(lambda i=i: S('buffer_load_dwordx4 v%d, %s, %s offen lds', W1V + i, SRD_W1, sW1G), pre)
    return st


def frag_stream(sb, nks, areg):
    st = Stream()
    for i in range(nks):
        for s in range(4):
            def pre(i=i, s=s):
                if i and s == 0:
                    S('s_add_u32 %s, %s, 4096', sb, sb)
            st.add(lambda i=i, s=s: S('buffer_load_dwordx4 %s, %s, %s, %s offen offset:%d sc1', ar(areg + 16 * i + 4 * s, 4), vL16, SRD_WS, sb, s * 1024), pre)
    return st


def code_prefetch():
    S('global_load_dwordx2 %s, v99, s[30:31]', vr(JUNK, 2))


def prologue():
    A('s_cmp_ge_u32 s2, 256')
    A('s_cbranch_scc1 L_exit')
    A('s_load_dwordx16 s[8:23], s[0:1], 0')
    A('s_load_dwordx4 s[24:27], s[0:1], 64')
    A('s_load_dwordx2 s[28:29], s[0:1], 80')
    A('s_getpc_b64 s[30:31]')
    A('L_pc:')
    A('v_lshrrev_b32 v5, 6, v0')
    S('v_and_b32 %s, 63, v0', vLANE)
    S('v_readfirstlane_b32 %s, v5', sW)
    S('s_lshr_b32 %s, s2, 3', sJ)
    S('s_and_b32 %s, s2, 7', sX)
    if OPT['stamps'] or OPT['diag']:
        A('s_memrealtime s[92:93]')
        A('s_memtime s[94:95]')
    S('v_and_b32 %s, 7, %s', l7, vLANE)
    S('v_lshrrev_b32 %s, 3, %s', l3, vLANE)
    S('s_lshl_b32 %s, %s, 1', t1, sX)
    S('s_lshl2_add_u32 %s, %s, 14', t2, sX)
    S('s_cmp_lt_u32 %s, 8', sJ)
    S('s_cselect_b32 %s, %s, %s', t1, t1, t2)
    S('s_lshr_b32 %s, %s, 2', t2, sJ)
    S('s_add_u32 %s, %s, %s', t5, t1, t2)
    S('s_and_b32 %s, %s, 3', sG, sJ)
    S('s_lshl2_add_u32 %s, %s, %s', t1, sG, sW)
    S('s_lshl_b32 %s, %s, 6', t2, t1)
    S('s_mul_i32 %s, %s, %d', t1, t1, 32 * 6144)
    S('s_lshl_b32 %s, %s, 7', t3, t5)
    S('s_add_u32 %s, %s, %s', t1, t1, t3)
    S('s_cmp_lt_u32 %s, 24', sJ)
    S('s_cselect_b32 %s, 0, 0x%x', t3, OOB)
    S('s_cselect_b32 %s, %s, 0', t1, t1)
    S('v_lshlrev_b32 v11, 3, %s', l3)
    S('v_mul_u32_u24 v13, %d, %s', 4 * 6144, l3)
    S('v_lshl_add_u32 v13, %s, 4, v13', l7)
    S('v_add_u32 v13, %s, v13', t3)
    for b, size in ((64, 1024), (60, 3145728), (32, 2097152), (52, WS_SIZE)):
        S('s_mov_b32 s%d, 0x%x', b + 2, size)
        S('s_mov_b32 s%d, 0x20000', b + 3)
    S('v_lshlrev_b32 v10, 10, %s', l7)
    S('v_lshl_add_u32 v10, %s, 4, v10', l3)
    S('s_lshl_b32 %s, %s, 5', sLID, sX)
    S('s_add_u32 %s, %s, %s', sLID, sLID, sJ)
    S('s_lshl_b32 %s, %s, 13', t0, sLID)
    S('s_lshl_b32 %s, %s, 8', t3, sW)
    S('s_add_u32 %s, %s, %s', t0, t0, t3)
    S('s_lshl_b32 %s, %s, 11', t3, sJ)
    S('v_lshl_add_u32 v99, v0, 3, %s', t3)
    A('v_min_u32 v99, L_localend-L_pc-8, v99')
    A('s_waitcnt lgkmcnt(0)')
    if OPT['diag']:
        A('s_mov_b32 s97, s92')
    if OPT['stamps']:
        A('v_writelane_b32 v255, s92, 0')
        S('v_writelane_b32 v255, %s, 1', 's94' if OPT['stamps'] == 1 else 's92')
    stamp('.kernarg')
    A('s_mov_b64 s[64:65], s[20:21]')
    A('s_mov_b64 s[60:61], s[22:23]')
    S('buffer_load_dwordx2 v[14:15], v11, %s, %s offen', SRD_C, t2)
    for i in range(4):
        tw = S('buffer_load_dwordx4 %s, v13, %s, %s offen%s', vr(64 + 4 * i, 4), SRD_WMOD, t1, ' nt' * OPT['ntw'])
        if i < 3:
            S('s_add_u32 %s, %s, 6144', t1, t1)
    S('s_load_dword %s, s[28:29], %d', sE, WS_E)
    A('s_mov_b64 s[32:33], s[8:9]')
    A('s_barrier')
    S('buffer_load_dwordx4 v[16:19], v10, %s, %s offen', SRD_X, t0)
    tx = S('buffer_load_dwordx4 v[20:23], v10, %s, %s offen offset:128', SRD_X, t0)
    if OPT['cpf'] == 1:
        code_prefetch()
    A('s_mov_b64 s[52:53], s[28:29]')
    S('s_and_b32 %s, %s, 15', sM, sJ)
    S('s_lshr_b32 %s, %s, 4', t0, sJ)
    S('s_lshl2_add_u32 %s, %s, %s', t0, t0, sW)
    S('s_lshl3_add_u32 %s, %s, %s', sT, sX, t0)
    S('s_lshr_b32 %s, %s, 2', t0, sLID)
    S('s_lshl2_add_u32 %s, %s, %s', t0, t0, sW)
    S('s_lshl_b32 %s, %s, 13', t0, t0)
    S('s_lshl_b32 %s, %s, 7', t1, sG)
    S('s_add_u32 %s, %s, %s', t0, t0, t1)
    S('s_add_u32 %s, %s, %d', H_S, t0, WS_H)
    S('v_lshl_add_u32 v11, %s, 9, %s', vLANE, H_S)
    S('s_lshl_b32 %s, %s, 8', t0, sT)
    S('s_add_u32 %s, %s, %d', t0, t0, WS_FA)
    S('v_lshl_add_u32 %s, %s, 2, %s', vPT, vLANE, t0)
    S('v_writelane_b32 v11, %s, 16', t0)
    S('s_add_u32 %s, %s, 128', t0, t0)
    S('v_writelane_b32 v11, %s, 17', t0)
    S('s_lshl_b32 %s, %s, 7', t0, sX)
    S('s_add_u32 %s, %s, %d', t0, t0, WS_XA)
    S('v_writelane_b32 v11, %s, 18', t0)
    S('s_mov_b64 exec, 0x%x', 0x7ffff if OPT['ph'] else 0x70000)
    S('buffer_load_dword v%d, v11, %s, 0 offen sc1', JUNK + 2, SRD_WS)
    A('s_mov_b64 exec, -1')
    S('v_lshlrev_b32 %s, 4, %s', vL16, vLANE)
    return tw, tx


def prep_dma():
    S('s_lshl1_add_u32 %s, %s, %s', t0, sJ, sW)
    S('s_add_u32 %s, %s, 40', t1, sJ)
    S('s_cmp_lt_u32 %s, 2', sW)
    S('s_cselect_b32 %s, %s, %s', sRHO, t0, t1)
    S('s_cselect_b32 %s, 24, %s', t0, sJ)
    S('s_cmp_lt_u32 %s, 24', t0)
    S('s_cselect_b32 %s, 3, %s', t0, sW)
    S('s_cmp_eq_u32 %s, 3', t0)
    S('s_cselect_b32 %s, 0x%x, 0', t3, OOB)
    S('v_lshlrev_b32 v144, 10, %s', l3)
    S('v_lshl_add_u32 v144, %s, 4, v144', l7)
    S('v_add_u32 v144, %s, v144', t3)
    S('v_add_u32 v147, %s, %s', t3, vL16)
    S('s_cmp_lt_u32 %s, 56', sRHO)
    A('s_cselect_b64 s[48:49], s[18:19], s[12:13]')
    A('s_cselect_b32 s50, 7, 2')
    S('s_cselect_b32 %s, 0, 56', t0)
    A('s_lshl_b32 s50, s50, 18')
    A('s_mov_b32 s51, 0x20000')
    S('s_sub_u32 %s, %s, %s', t0, sRHO, t0)
    S('s_lshl_b32 %s, %s, 15', t0, t0)
    S('s_lshl_b32 %s, %s, 7', t1, sX)
    S('s_add_u32 %s, %s, %s', t0, t0, t1)
    S('s_lshl_b32 %s, %s, 12', t1, sW)
    for i in range(4):
        S('s_add_u32 m0, %s, %d', t1, L_KV + 1024 * i)
        if i:
            S('s_add_u32 %s, %s, 8192', t0, t0)
        t = S('buffer_load_dwordx4 v144, %s, %s offen%s lds', SRD_P, t0, ' nt' * OPT['ntp'])
    return t


def prep_addr():
    S('s_cmp_lt_u32 %s, 56', sRHO)
    S('s_cselect_b32 %s, 0, 56', t0)
    S('s_cselect_b32 %s, 56, 16', t1)
    S('s_cselect_b32 %s, 2, 1', t3)
    S('s_cselect_b32 %s, 10, 11', t4)
    assert (WS_W2T, WS_WOT) == (2 << 20, 1 << 20)
    S('s_lshl_b32 %s, %s, 20', t2, t3)
    S('s_lshl_b32 %s, %s, 10', t3, t3)
    S('s_sub_u32 %s, %s, %s', t0, sRHO, t0)
    S('s_mul_i32 %s, %s, %s', t1, t1, sX)
    S('s_add_u32 %s, %s, %s', t1, t1, t0)
    S('s_lshl_b32 %s, %s, 12', t1, t1)
    S('s_add_u32 %s, %s, %s', sPS, t1, t2)
    S('v_lshrrev_b32 v145, 5, %s', vLANE)
    S('v_lshlrev_b32 v145, %s, v145', t4)
    S('v_bfe_u32 v146, %s, 2, 3', vLANE)
    A('v_lshl_add_u32 v145, v146, 7, v145')
    S('v_and_b32 v146, 3, %s', vLANE)
    A('v_lshl_add_u32 v145, v146, 5, v145')
    S('s_lshl_b32 %s, %s, 12', t0, sW)
    S('s_add_u32 %s, %s, %d', t0, t0, L_KV)
    S('v_add_u32 v145, %s, v145', t0)
    S('v_add_u32 v146, %s, v145', t3)


def prep_read(tp):
    A.wait(vm=tp)
    for nt in range(4):
        for half in range(2):
            t = S('ds_read_b64_tr_b16 %s, v%d offset:%d', vr(128 + 4 * nt + 2 * half, 2), 145 + half, nt * 8)
    return t


def prep_store(t):
    A.wait(lg=t)
    for p in range(4):
        S('buffer_store_dwordx4 %s, v147, %s, %s offen offset:%d sc1', vr(128 + 4 * p, 4), SRD_WS, sPS, p * 1024)


def wq_setup():
    srd(SRD_WQKV, 10, 1572864)
    S('v_lshrrev_b32 v12, 2, %s', vLANE)
    A('v_mul_u32_u24 v12, 3072, v12')
    S('v_and_b32 v11, 3, %s', vLANE)
    S('v_lshl_add_u32 %s, v11, 4, v12', vWQ)


def mod_partial(tw):
    S('v_lshrrev_b32 v11, 4, %s', vLANE)
    S('v_lshl_add_u32 v11, %s, 2, v11', l7)
    S('s_lshl_b32 %s, %s, 8', t1, sW)
    S('s_add_u32 %s, %s, %d', t1, t1, L_SCR + 1024)
    S('v_lshl_add_u32 v11, v11, 3, %s', t1)
    S('v_and_b32 v12, 0xf0, %s', vL16)
    S('v_add_u32 v13, %d, v12', L_SCR + 1024)
    S('s_mul_i32 %s, %s, 48', t1, sG)
    S('s_add_u32 %s, %s, %s', t1, t1, t5)
    S('s_lshl_b32 %s, %s, 8', t1, t1)
    S('s_add_u32 %s, %s, %d', t1, t1, WS_MOD)
    S('s_getreg_b32 %s, hwreg(HW_REG_XCC_ID, 0, 4)', sXC)
    A.wait(vm=tw - 4)
    stamp('.c')
    unpack(40, 14)
    unpack(42, 15)
    for i in range(4):
        S('v_mul_f32 v%d, 0xbfb8aa3b, v%d', 44 + i, 40 + i)
    for i in range(4):
        S('v_exp_f32 v%d, v%d', 44 + i, 44 + i)
    for i in range(4):
        S('v_add_f32 v%d, 1.0, v%d', 44 + i, 44 + i)
    for i in range(4):
        S('v_rcp_f32 v%d, v%d', 44 + i, 44 + i)
    for i in range(2):
        S('v_pk_mul_f32 %s, %s, %s', vr(40 + 2 * i, 2), vr(40 + 2 * i, 2), vr(44 + 2 * i, 2))
    A('v_cvt_pk_bf16_f32 v44, v40, v41')
    A('v_cvt_pk_bf16_f32 v45, v42, v43')
    unpack(40, 44)
    unpack(42, 45)
    for i in range(4):
        A.wait(vm=tw - 3 + i)
        for d in range(4):
            unpack(80 + 2 * d, 64 + 4 * i + d)
        s = i & 1
        for d in range(4):
            if i == 0:
                S('v_pk_mul_f32 %s, %s, v[40:41] op_sel_hi:[1,0]', vr(48 + 2 * d, 2), vr(80 + 2 * d, 2))
            else:
                S('v_pk_fma_f32 %s, %s, %s, %s op_sel:[0,%d,0] op_sel_hi:[1,%d,1]',
                  vr(48 + 2 * d, 2), vr(80 + 2 * d, 2), vr(40 + (i & ~1), 2), vr(48 + 2 * d, 2), s, s)
    stamp('.fma')
    for i in range(4):
        S('v_permlane32_swap_b32 v%d, v%d', 48 + i, 52 + i)
    for i in range(2):
        S('v_pk_add_f32 %s, %s, %s', vr(48 + 2 * i, 2), vr(48 + 2 * i, 2), vr(52 + 2 * i, 2))
    A('s_waitcnt lgkmcnt(0)')
    S('s_mul_i32 %s, %s, 1664525', sTAG, sE)
    for i in range(2):
        S('v_permlane16_swap_b32 v%d, v%d', 48 + i, 50 + i)
    A('v_pk_add_f32 v[48:49], v[48:49], v[50:51]')
    S('s_add_u32 %s, %s, 1013904223', sTAG, sTAG)
    S('v_mov_b32 %s, %s', vTAG, sTAG)
    for i in range(2):
        S('v_add_f32_dpp v%d, v%d, v%d row_ror:8 row_mask:0xf bank_mask:0xf', 50 + i, 48 + i, 48 + i)
    t = A('ds_write_b64 v11, v[50:51]')
    for i in range(4):
        S('s_bfe_u32 s%d, %s, 0x%x', TAGB + i, sTAG, (8 << 16) | (8 * i))
    if OPT['force_remote']:
        S('s_and_b32 %s, %s, 1', sXC, sJ)
    S('s_add_u32 %s, %s, %s', sXC, sXC, sTAG)
    S('s_add_u32 %s, %s, 1', sXC, sXC)
    S('v_mov_b32 %s, %s', vXCV, sXC)
    A('v_mov_b32 v10, 0xffffff00')
    S('s_cmp_ge_u32 %s, 24', sJ)
    S('s_cselect_b32 %s, 1, %s', t0, sW)
    S('s_cmp_lg_u32 %s, 0', t0)
    A.wait(lg=t)
    A('s_barrier')
    NP, NX = A.label('nopub'), A.label('noxc')
    vm0 = A.vm
    A('s_cbranch_scc1 ' + NP)
    for i in range(4):
        t = S('ds_read_b128 %s, v13 offset:%d', vr(64 + 4 * i, 4), 256 * i)
    A('s_mov_b64 exec, 0xffff')
    A.wait(lg=t)
    for e in range(2):
        S('v_pk_add_f32 %s, %s, %s', vr(64 + 2 * e, 2), vr(64 + 2 * e, 2), vr(68 + 2 * e, 2))
        S('v_pk_add_f32 %s, %s, %s', vr(72 + 2 * e, 2), vr(72 + 2 * e, 2), vr(76 + 2 * e, 2))
    for e in range(2):
        S('v_pk_add_f32 %s, %s, %s', vr(64 + 2 * e, 2), vr(64 + 2 * e, 2), vr(72 + 2 * e, 2))
    for i in range(4):
        S('v_add_u32 v%d, 0x80, v%d', 64 + i, 64 + i)
    for i in range(4):
        S('v_and_or_b32 v%d, v%d, v10, s%d', 64 + i, 64 + i, TAGB + i)
    S('buffer_store_dwordx4 v[64:67], v12, %s, %s offen sc1', SRD_WS, t1)
    A('s_mov_b64 exec, -1')
    A(NP + ':')
    S('s_cmp_lg_u32 %s, 1', sW)
    A('s_cbranch_scc1 ' + NX)
    S('s_lshl2_add_u32 %s, %s, %d', t0, sLID, WS_XA)
    flag_store(t0, False, vXCV)
    A(NX + ':')
    A.lg_done = A.lg
    A.vm = vm0


def ln1(tx, wst):
    A.wait(vm=tx)
    stamp('.x')
    for i in range(8):
        unpack(24 + 2 * i, 16 + i)
    A('v_pk_add_f32 v[40:41], v[24:25], v[26:27]')
    A('v_pk_mul_f32 v[42:43], v[24:25], v[24:25]')
    A('v_pk_fma_f32 v[42:43], v[26:27], v[26:27], v[42:43]')
    for i in range(2, 8):
        S('v_pk_add_f32 v[40:41], v[40:41], %s', vr(24 + 2 * i, 2))
        S('v_pk_fma_f32 v[42:43], %s, %s, v[42:43]', vr(24 + 2 * i, 2), vr(24 + 2 * i, 2))
    A('v_add_f32 v40, v40, v41')
    A('v_add_f32 v42, v42, v43')
    S('v_lshrrev_b32 v12, 5, %s', vLANE)
    S('v_lshl_add_u32 v12, v12, 3, %s', l7)
    A('v_permlane32_swap_b32 v40, v42')
    A('v_add_f32 v40, v40, v42')
    A('v_mov_b32 v41, v40')
    S('s_lshl2_add_u32 %s, %s, %d', t0, sW, L_SCR)
    S('v_lshlrev_b32 v13, 4, %s', l7)
    A('v_permlane16_swap_b32 v40, v41')
    A('v_add_f32 v40, v40, v41')
    S('v_lshl_add_u32 v12, v12, 4, %s', t0)
    S('v_add_u32 v13, %d, v13', L_SCR)
    A('v_add_f32_dpp v41, v40, v40 row_ror:8 row_mask:0xf bank_mask:0xf')
    t = A('ds_write_b32 v12, v41')
    wst.drip(OPT['n2'])
    A.wait(lg=t)
    A('s_barrier')
    stamp('.bar2')
    A('ds_read_b128 v[40:43], v13')
    t = A('ds_read_b128 v[44:47], v13 offset:128')
    mod_poll_addr()
    A.wait(lg=t)
    A('v_pk_add_f32 v[40:41], v[40:41], v[42:43]')
    A('v_pk_add_f32 v[44:45], v[44:45], v[46:47]')
    A('v_add_f32 v40, v40, v41')
    A('v_add_f32 v44, v44, v45')
    A('v_mul_f32 v40, 0x3b000000, v40')
    A('v_mul_f32 v44, 0x3b000000, v44')
    A('v_fma_f32 v44, -v40, v40, v44')
    A('v_max_f32 v44, 0, v44')
    A('v_add_f32 v44, 0x3727c5ac, v44')
    A('v_rsq_f32 v60, v44')
    A('v_mul_f32 v61, -v40, v60')


def ln1_apply():
    for i in range(8):
        S('v_pk_fma_f32 %s, %s, v[60:61], v[60:61] op_sel:[0,0,1] op_sel_hi:[1,0,1]', vr(24 + 2 * i, 2), vr(24 + 2 * i, 2))


def sum_partials(base, addend):
    for e in range(2):
        S('v_pk_add_f32 %s, %s, %s', vr(base + 2 * e, 2), vr(base + 2 * e, 2), vr(base + 4 + 2 * e, 2))
        S('v_pk_add_f32 %s, %s, %s', vr(base + 8 + 2 * e, 2), vr(base + 8 + 2 * e, 2), vr(base + 12 + 2 * e, 2))
    for e in range(2):
        S('v_pk_add_f32 %s, %s, %s', vr(base + 2 * e, 2), vr(base + 2 * e, 2), vr(base + 8 + 2 * e, 2))
    for e in range(2):
        S('v_cvt_pk_bf16_f32 v%d, v%d, v%d', base + 4 + e, base + 2 * e, base + 2 * e + 1)
    for e in range(2):
        unpack(base + 8 + 2 * e, base + 4 + e)
    for i in range(4):
        S('v_add_f32 v%d, %s, v%d', base + 8 + i, addend, base + 8 + i)
    for e in range(2):
        S('v_cvt_pk_bf16_f32 v%d, v%d, v%d', base + e, base + 8 + 2 * e, base + 9 + 2 * e)


MP = 156
sMP = ('s92', 's93', 's94', 's95')


def mod_poll_addr():
    S('v_and_b32 v151, 31, %s', vLANE)
    S('v_lshrrev_b32 v12, 5, %s', vLANE)
    S('s_lshl_b32 %s, %s, 9', t0, sW)
    S('v_lshl_add_u32 v156, v151, 4, %s', t0)
    A('v_lshl_add_u32 v156, v12, 11, v156')
    A('v_cvt_f32_u32 v150, v12')
    for i in range(4):
        S('s_mov_b32 %s, %d', sMP[i], WS_MOD + 12288 * i)
    S('s_lshl_b32 %s, %s, 7', t0, sX)
    S('s_add_u32 %s, %s, %d', t0, t0, WS_XA)
    S('v_lshl_add_u32 v157, v151, 2, %s', t0)


def setup_a():
    ln1_apply()
    S('s_lshl_b32 %s, %s, 10', t1, sW)
    S('s_add_u32 %s, %s, %d', t1, t1, L_SCR + 4096)
    S('v_add_u32 v158, %s, %s', t1, vL16)
    S('v_lshl_add_u32 v159, %s, 5, %s', l3, t1)
    S('v_lshlrev_b32 v12, 9, %s', l3)
    S('v_lshl_add_u32 %s, %s, 4, v12', H_V, l7)
    srd(SRD_W1, 16, 1835008)
    srd(SRD_OUT, 24, 2097152)
    S('s_and_b32 %s, %s, 7', sCT, sJ)
    S('s_lshr_b32 %s, %s, 3', t0, sJ)
    S('s_lshl_b32 %s, %s, 1', t0, t0)
    S('s_lshl3_add_u32 %s, %s, %s', sT0, sX, t0)
    if OPT['rot']:
        S('s_lshl1_add_u32 %s, %s, %s', sOWN, sCT, sW)
        S('s_and_b32 %s, %s, 3', sOWN, sOWN)
    else:
        S('s_mov_b32 %s, %s', sOWN, sW)
    S('s_lshl1_add_u32 %s, %s, %s', sTS, sT0, sOWN)
    A('s_mov_b32 s86, 0x0000ffff')
    A('s_mov_b32 s87, 0x0000ffff')
    A('s_mov_b32 s88, 0xffff0000')
    A('s_mov_b32 s89, 0xffff0000')
    S('v_and_b32 v12, 3, %s', vLANE)
    A('v_lshlrev_b32 v13, 3, v12')
    S('v_bfe_u32 v12, %s, 4, 1', vLANE)
    A('v_lshl_add_u32 v13, v12, 5, v13')
    S('v_bfe_u32 v12, %s, 2, 2', vLANE)
    A('v_lshl_add_u32 v13, v12, 6, v13')
    S('v_lshrrev_b32 v12, 5, %s', vLANE)
    A('v_lshl_add_u32 v13, v12, 9, v13')
    A('v_add_u32 v14, 65536, v13')
    S('s_lshr_b32 %s, %s, 2', t5, sLID)
    S('s_lshl4_add_u32 %s, %s, %s', t5, t5, sG)
    S('s_lshl2_add_u32 %s, %s, %s', t5, t5, sW)
    S('s_lshl2_add_u32 %s, %s, %d', t5, t5, WS_FA)


def setup_scalar():
    S('s_lshl4_add_u32 %s, %s, %s', t0, sT, sM)
    S('s_lshl_b32 %s, %s, 6', t1, t0)
    S('s_add_u32 %s, %s, %d', sFKV, t1, WS_FKV)
    S('s_lshl_b32 %s, %s, 12', t1, t0)
    S('s_add_u32 %s, %s, %d', sKVO, t1, WS_KV)
    for d, dst in ((4, sR4), (8, sR8)):
        S('s_sub_u32 %s, %s, %d', dst, t0, 16 * d)
        S('s_max_i32 %s, %s, 0', dst, dst)
    S('v_mov_b32 %s, %s', vPKV, sR4)
    S('v_writelane_b32 %s, %s, 1', vPKV, sR8)
    S('v_lshlrev_b32 %s, 6, %s', vPKV, vPKV)
    S('v_add_u32 %s, %d, %s', vPKV, WS_FKV, vPKV)
    for dst in (sR4, sR8):
        S('s_lshl_b32 %s, %s, 12', dst, dst)
        S('s_add_u32 %s, %s, %d', dst, dst, WS_KV)
    S('s_cmp_ge_u32 %s, 4', sT)
    A('s_cselect_b32 s98, 1, 0')
    S('s_cselect_b32 %s, 0, 0x%x', t1, OOB)
    S('v_add_u32 %s, %s, %s', vD4, t1, vL16)
    S('s_cmp_ge_u32 %s, 8', sT)
    A('s_cselect_b32 s98, 3, s98')
    S('s_cselect_b32 %s, 0, 0x%x', t1, OOB)
    S('v_add_u32 %s, %s, %s', vD8, t1, vL16)
    A('s_mov_b32 s99, 0')
    S('s_lshl_b32 %s, %s, 6', t1, sT)
    S('s_add_u32 %s, %s, %s', t1, t1, sM)
    S('s_lshl2_add_u32 %s, %s, %d', sFO, t1, WS_FA + 64)
    S('s_add_u32 %s, %s, 128', sFHID, sFO)
    S('s_lshr_b32 %s, %s, 1', t1, sTS)
    S('s_lshl_b32 %s, %s, 5', t1, t1)
    S('s_add_u32 %s, %s, %s', t1, t1, sCT)
    S('s_and_b32 %s, %s, 1', t2, sTS)
    S('s_lshl1_add_u32 %s, %s, %s', t1, t1, t2)
    S('s_lshl2_add_u32 %s, %s, %d', sFY, t1, WS_FA + 128)
    S('s_lshl_b32 %s, %s, 15', t1, sT)
    S('s_add_u32 %s, %s, %d', sHL, t1, WS_H)
    S('s_add_u32 %s, %s, %d', sYL[0], t1, WS_Y)
    S('s_add_u32 %s, %s, %d', sYL[1], t1, WS_Y + 16384)
    S('s_lshl_b32 %s, %s, 10', t2, sM)
    S('s_add_u32 %s, %s, %s', t1, t1, t2)
    S('s_add_u32 %s, %s, %d', sOO, t1, WS_O)
    S('s_lshl3_add_u32 %s, %s, %s', t1, sTS, sCT)
    S('s_lshl_b32 %s, %s, 11', t2, t1)
    S('s_add_u32 %s, %s, %d', sYO, t2, WS_Y)
    S('s_lshl_b32 %s, %s, 7', t2, t1)
    S('s_add_u32 %s, %s, %d', sSO, t2, WS_STAT)
    S('s_lshl_b32 %s, %s, 11', t2, sT)
    S('s_add_u32 %s, %s, %d', sSL, t2, WS_STAT)
    S('s_lshr_b32 %s, %s, 1', t1, sM)
    S('s_lshl4_add_u32 %s, %s, %s', t1, sT, t1)
    S('s_mul_i32 %s, %s, 7168', t1, t1)
    S('s_add_u32 %s, %s, %d', sHO[0], t1, WS_HID)
    S('s_add_u32 %s, %s, %d', sHO[1], t1, WS_HID + 56 * 1024)
    S('s_lshl3_add_u32 %s, %s, %s', t1, sT0, sW)
    for s in range(4):
        S('s_add_u32 %s, %s, %d', t2, sOWN, s + 1)
        S('s_and_b32 %s, %s, 3', t2, t2)
        S('s_lshl2_add_u32 %s, %s, %s', t2, t2, t1)
        S('s_lshl_b32 %s, %s, 12', t3, t2)
        S('s_add_u32 %s, %s, %d', STG_O[s], t3, WS_O)
        S('s_mul_i32 %s, %s, %d', t3, t2, 14 * 1024)
        S('s_add_u32 %s, %s, %d', STG_H[s], t3, WS_HID)
    S('s_lshl2_add_u32 %s, %s, %s', t1, sCT, sW)
    S('s_lshl_b32 %s, %s, 14', t2, t1)
    S('s_add_u32 %s, %s, %d', sWOB, t2, WS_WOT)
    S('s_mul_i32 %s, %s, %d', t2, t1, 14 * 4096)
    S('s_add_u32 %s, %s, %d', sW2B, t2, WS_W2T)
    S('s_lshr_b32 %s, %s, 1', t1, sW)
    S('s_and_b32 %s, %s, 1', t2, sW)
    S('s_lshl3_add_u32 %s, %s, %s', t1, t1, t2)
    S('s_lshl_b32 %s, %s, 7', t1, t1)
    S('s_add_u32 %s, %s, %s', t1, t1, sM)
    S('s_mul_i32 %s, %s, 224', sW1G, t1)
    S('s_mul_i32 %s, %s, 7168', sW1L, sW)
    S('s_lshl_b32 %s, %s, 2', t1, sW)
    S('s_lshl_b32 s60, 15, %s', t1)
    A('s_mov_b32 s61, s60')
    S('s_mov_b64 %s, 0xffff', sMASK)


def setup_vector():
    a, b, t, q = 'v10', 'v11', 'v12', 'v15'
    S('v_and_b32 %s, 15, %s', t, vLANE)
    S('v_lshrrev_b32 %s, 4, %s', q, vLANE)
    S('s_lshl_b32 %s, %s, 12', t1, sW)
    S('s_add_u32 %s, %s, %d', t1, t1, L_KV)
    S('v_add_u32 %s, %s, %s', vKV, t1, vL16)
    S('s_lshl_b32 %s, %s, 14', t0, sTS)
    S('s_lshl_b32 %s, %s, 7', t1, sCT)
    S('s_add_u32 %s, %s, %s', t0, t0, t1)
    S('v_lshl_add_u32 %s, %s, 10, %s', a, t, t0)
    S('v_lshl_add_u32 %s, %s, 5, %s', vXO, q, a)
    S('s_add_u32 %s, %s, %d', t1, t1, L_MODL + 1024)
    S('v_lshl_add_u32 %s, %s, 5, %s', vG2A, q, t1)
    S('s_mov_b32 %s, %d', t1, L_GAB)
    S('v_lshl_add_u32 %s, %s, 6, %s', vGAB, q, t1)
    S('s_mov_b32 %s, %d', t1, L_UT)
    S('v_lshl_add_u32 %s, %s, 4, %s', vUTR, q, t1)
    S('s_mov_b32 %s, %d', t1, WS_MOD + 6144)
    S('v_lshl_add_u32 %s, v0, 4, %s', vMR0, t1)
    S('s_mov_b32 %s, %d', t1, L_MODL)
    S('v_lshl_add_u32 %s, v0, 3, %s', vMW, t1)
    S('v_bfe_u32 %s, %s, 3, 1', b, vLANE)
    S('v_lshl_add_u32 %s, %s, 1, %s', a, q, b)
    S('v_mul_u32_u24 %s, 6144, %s', a, a)
    S('v_lshl_add_u32 %s, %s, 4, %s', a, l7, a)
    S('s_and_b32 %s, %s, 1', t0, sW)
    S('s_lshl1_add_u32 %s, %s, %s', t1, sCT, t0)
    S('s_lshl_b32 %s, %s, 7', t1, t1)
    S('s_add_u32 %s, %s, %d', t1, t1, WS_MOD + 4096)
    S('v_add_u32 %s, %s, %s', vMR1, t1, a)
    S('s_lshl_b32 %s, %s, 7', t0, t0)
    S('s_add_u32 %s, %s, %d', t0, t0, L_GAB)
    S('v_lshl_add_u32 %s, %s, 8, %s', a, b, t0)
    S('v_lshl_add_u32 %s, %s, 4, %s', a, l7, a)
    S('v_lshrrev_b32 %s, 5, %s', b, vLANE)
    S('v_lshl_add_u32 %s, %s, 2, %s', a, b, a)
    S('v_and_b32 %s, 1, %s', q, q)
    S('v_lshl_add_u32 %s, %s, 3, %s', vGW, q, a)
    S('v_lshlrev_b32 %s, 4, %s', a, t)
    S('v_lshl_add_u32 %s, %s, 14, %s', a, q, a)
    S('v_lshl_add_u32 %s, %s, 8, %s', vOO, b, a)
    S('v_lshlrev_b32 %s, 2, %s', a, t)
    S('v_lshl_add_u32 %s, %s, 6, %s', vSS, b, a)
    S('v_lshl_add_u32 %s, %s, 10, %s', vSL, q, vSS)
    S('s_lshl_b32 %s, %s, 8', t0, sT0)
    S('s_add_u32 %s, %s, %d', t0, t0, WS_FA)
    S('v_lshl_add_u32 %s, %s, 8, %s', a, b, t0)
    S('v_lshl_add_u32 %s, v151, 2, %s', vPG, a)
    S('v_bfe_u32 %s, %s, 2, 3', a, vLANE)
    S('v_lshl_add_u32 %s, %s, 4, %s', a, b, a)
    S('v_mul_u32_u24 %s, 224, %s', a, a)
    S('v_and_b32 %s, 3, %s', b, vLANE)
    S('v_lshl_add_u32 v%d, %s, 3, %s', vT1, b, a)
    S('v_add_u32 v%d, 57344, v%d', vT2, vT1)
    S('s_and_b32 %s, %s, 1', t0, sM)
    S('s_lshl_b32 %s, %s, 12', t1, t0)
    S('v_add_u32 %s, %s, %s', vH4, t1, vL16)
    S('s_lshl_b32 %s, %s, 9', t1, t0)
    S('v_lshlrev_b32 %s, 3, %s', vL8, vLANE)
    S('v_add_u32 %s, %s, %s', vH2, t1, vL8)
    for s in range(4):
        S('s_add_u32 %s, %s, %d', t0, sW, s + 1)
        S('s_and_b32 %s, %s, 3', t0, t0)
        S('s_lshl_b32 %s, %s, 13', t0, t0)
        S('s_add_u32 %s, %s, %d', t0, t0, L_RED + (4096 if s == 1 else 0))
        S('v_add_u32 v%d, %s, %s', (vRW + (vRR,))[s], t0, vL16)
    S('s_mul_i32 %s, %s, 7', t0, sW)
    S('s_sub_u32 %s, %s, 8', t0, t0)
    S('v_mov_b32 %s, %s', a, t0)
    S('v_cmp_gt_u32 vcc, 8, %s', t)
    S('v_min_u32 %s, 14, %s', t, t)
    S('s_lshl_b32 %s, %s, 7', t0, sCT)
    S('v_cndmask_b32 %s, %s, 24, vcc', a, a)
    S('v_add_u32 %s, %s, %s', a, a, t)
    S('v_and_b32 %s, 16, %s', b, a)
    S('v_mul_u32_u24 %s, 3, %s', b, b)
    S('v_add3_u32 %s, %s, %s, %s', a, a, b, t0)
    S('v_lshlrev_b32 %s, 7, %s', b, l7)
    S('s_or_b32 %s, %s, %s', t0, sLID, sW)
    S('s_cmp_eq_u32 %s, 0', t0)
    A('s_cselect_b32 vcc_lo, 0xff0000, 0')
    A('s_mov_b32 vcc_hi, 0')
    S('v_cndmask_b32 %s, %s, %s, vcc', a, a, b)
    S('v_lshlrev_b32 %s, 6, %s', a, a)
    S('v_add_u32 %s, %d, %s', vFP, WS_FKV, a)


def w1_addr():
    for i in range(7):
        S('v_add_u32 v10, %d, %s', 64 * i, vLANE)
        A('v_mul_u32_u24 v11, 4682, v10')
        A('v_lshrrev_b32 v11, 16, v11')
        A('v_mad_i32_i24 v10, v11, -14, v10')
        S('v_add_u32 v10, %s, v10', t4)
        A('v_subrev_u32 v12, 14, v10')
        A('v_min_u32 v10, v10, v12')
        A('v_and_b32 v12, 4, v11')
        A('v_mad_u32_u24 v12, v12, 3, v11')
        A('v_and_b32 v99, 16, v11')
        A('v_add_u32 v12, v12, v99')
        A('v_bfe_u32 v99, v11, 3, 1')
        A('v_mad_i32_i24 v12, v99, -4, v12')
        A('v_mul_u32_u24 v12, 3584, v12')
        S('v_lshl_add_u32 v%d, v10, 4, v12', W1V + i)


def ut_addr():
    S('s_lshl_b32 %s, %s, 5', t3, sW)
    S('s_add_u32 %s, %s, 128', t4, t3)
    S('s_min_u32 %s, %s, 192', t4, t4)
    S('v_add_u32 v%d, %s, v%d', UTA, t3, vT1)
    S('v_add_u32 v%d, %s, v%d', UTA + 1, t3, vT2)
    S('v_add_u32 v%d, %s, v%d', UTA + 2, t4, vT1)
    S('v_add_u32 v%d, %s, v%d', UTA + 3, t4, vT2)
    S('v_and_b32 v10, 1, %s', vLANE)
    A('v_lshlrev_b32 v11, 10, v10')
    S('v_sub_u32 v11, %d, v11', L_MODL + 1024)
    S('v_lshrrev_b32 v12, 4, %s', vLANE)
    S('v_lshl_add_u32 v%d, v12, 5, v11', UTA + 4)
    S('v_lshl_add_u32 v12, v10, 9, %s', vUTR)
    S('v_lshl_add_u32 v%d, %s, 1, v12', UTA + 5, t3)
    S('v_lshl_add_u32 v%d, %s, 1, v12', UTA + 6, t4)


def mod_poll(wst, tp):
    def loads():
        S('buffer_load_dword v58, v157, %s, 0 offen sc1', SRD_WS)
        return [S('buffer_load_dwordx4 %s, v156, %s, %s offen sc1', vr(40 + 4 * i, 4), SRD_WS, sMP[i]) for i in range(4)]
    L, D = A.label('pmod'), A.label('dmod')
    if OPT['pst'] == 0:
        prep_addr()
        prep_store(prep_read(tp))
    stamp('ln done')
    tk = loads()
    if OPT['cpf'] == 2:
        code_prefetch()
    wst.drip(OPT['n3'])
    setup_a()
    if OPT['pst']:
        prep_addr()
        tpr = prep_read(tp)
        if OPT['pst'] == 1:
            prep_store(tpr)
    stamp('.setup a')
    for i in range(4):
        A.wait(vm=tk[i])
        untag(40 + 4 * i, 56, i == 0)
    untag_test(56)
    S('s_mov_b32 %s, 0', sCNT)
    A('s_cbranch_vccz ' + D)
    vm_save = A.vm
    A(L + ':')
    loads()
    S('s_add_u32 %s, %s, 1', sCNT, sCNT)
    for i in range(4):
        S('s_waitcnt vmcnt(%d)', 3 - i)
        untag(40 + 4 * i, 56, i == 0)
    untag_test(56)
    S('s_cmp_lt_u32 %s, %d', sCNT, LIMIT)
    A('s_cbranch_vccz ' + D)
    A('s_cbranch_scc1 ' + L)
    A(D + ':')
    A.vm = vm_save
    stamp('mod seen')
    S('v_cmp_ne_u32 vcc, %s, v58', sXC)
    sum_partials(40, 'v150')
    unpack(44, 40)
    unpack(46, 41)
    A('s_cbranch_vccnz L_xcslow')
    A('L_local:')


def xc_slow():
    A('L_xcslow:')
    S('s_mov_b32 %s, 0', sCNT)
    A('L_xc1:')
    S('buffer_load_dword v58, v157, %s, 0 offen sc1', SRD_WS)
    S('s_add_u32 %s, %s, 1', sCNT, sCNT)
    A('s_waitcnt vmcnt(0)')
    S('v_cmp_ne_u32 vcc, %s, v58', sXC)
    A('s_cbranch_vccz L_local')
    S('s_cmp_lt_u32 %s, 32', sCNT)
    A('s_cbranch_scc1 L_xc1')
    S('s_lshl_b32 %s, %s, 6', t0, sLID)
    S('s_add_u32 %s, %s, %d', t0, t0, WS_XB)
    flag_store(t0, True, vXCV)
    S('s_lshl_b32 %s, %s, 11', t0, sX)
    S('s_add_u32 %s, %s, %d', t0, t0, WS_XB)
    S('v_lshl_add_u32 v59, v151, 6, %s', t0)
    S('buffer_load_dword v57, v59, %s, 0 offen sc1', SRD_WS)
    A('s_waitcnt vmcnt(0)')
    S('v_cmp_ne_u32 vcc, %s, v57', sXC)
    A('s_cbranch_vccz L_local')
    S('s_add_u32 %s, %s, 1', t0, sTAG)
    S('v_subrev_u32 v56, %s, v57', t0)
    A('v_cmp_le_u32 vcc, 16, v56')
    A('s_cbranch_vccz L_remote')
    S('s_cmp_lt_u32 %s, %d', sCNT, LIMIT)
    A('s_cbranch_scc1 L_xc1')
    A('L_remote:')


def h_phase(wst):
    t = A('ds_write_b128 v158, v[44:47]')
    S('s_add_u32 %s, %s, 4096', t3, H_S)
    A.wait(lg=t)
    tr = []
    for i in range(4):
        S('ds_read_b128 %s, v159 offset:%d', vr(64 + 8 * i, 4), 256 * (i >> 1) + 16 * (i & 1))
        tr.append(S('ds_read_b128 %s, v159 offset:%d', vr(68 + 8 * i, 4), 512 + 256 * (i >> 1) + 16 * (i & 1)))
    for i in range(4):
        A.wait(lg=tr[i])
        for d in range(2):
            x = 24 + 4 * i + 2 * d
            S('v_pk_fma_f32 %s, %s, %s, %s', vr(x, 2), vr(x, 2), vr(68 + 8 * i + 2 * d, 2), vr(64 + 8 * i + 2 * d, 2))
        for d in range(2):
            x = 24 + 4 * i + 2 * d
            S('v_cvt_pk_bf16_f32 v%d, v%d, v%d', 16 + 2 * i + d, x, x + 1)
        if i & 1:
            ts = S('buffer_store_dwordx4 %s, %s, %s, %s offen%s', vr(16 + 4 * (i >> 1), 4), H_V, SRD_WS, (H_S, t3)[i >> 1], sc('h'))
    stamp('.h st')
    keep = 8 - OPT['wq0']
    wst.drip(max(0, min(OPT['n4'], len(wst) - keep)))
    sl = capture(setup_scalar)
    A.lines += sl[:50]
    A.wait(vm=ts)
    flag_store(t5, not LOCAL[0])
    stamp('h pub')
    A.lines += sl[50:]
    if OPT['pst'] == 2:
        prep_store(0)
    wst.drip(max(0, len(wst) - keep))
    stamp('.dma iss')
    setup_vector()
    stamp('.setup v')


def qkv(w1, wq):
    RING = 4
    rd = {}

    def bread(s, tile):
        b = 64 + 8 * (s % RING)
        for half in range(2):
            rd[s] = S('ds_read_b64_tr_b16 %s, v13 offset:%d', vr(b + 4 * tile + 2 * half, 2), tile * 32768 + s * 1024 + half * 256)
    poll(vPT, 0, 'h', sMASK)
    stamp('h seen')
    ta = []

    def aload(s):
        if s and s & 3 == 0:
            S('s_add_u32 %s, %s, 4096', sHL, sHL)
        ta.append(S('buffer_load_dwordx4 %s, %s, %s, %s offen offset:%d sc1', vr(128 + 4 * s, 4), vL16, SRD_WS, sHL, (s & 3) * 1024))
    AH = 10
    twq = 0
    for s in range(AH):
        aload(s)
    A('s_barrier')
    for s in range(RING - 1):
        bread(s, 0)
        bread(s, 1)
    S('s_and_b32 %s, %s, 1', t4, sM)
    S('s_lshl_b32 %s, %s, 1', t4, t4)
    fill = capture(w1_addr)
    for s in range(32):
        b = 64 + 8 * (s % RING)
        A.wait(vm=ta[s], lg=rd[s])
        a = vr(128 + 4 * s, 4)
        S('%s v[16:31], %s, %s, %s', MF32, vr(b, 4), a, 'v[16:31]' if s else '0')
        if s + AH < 32:
            aload(s + AH)
        elif s + AH - 32 < OPT['wq1'] and len(wq):
            twq = wq.drip(1)
        if s + RING - 1 < 32:
            bread(s + RING - 1, 0)
        A.lines += fill[:2]
        S('%s v[32:47], %s, %s, %s', MF32, a, vr(b + 4, 4), 'v[32:47]' if s else '0')
        if s + RING - 1 < 32:
            bread(s + RING - 1, 1)
        A.lines += fill[2:4]
        fill = fill[4:]
    assert not fill
    stamp('kv pass')
    for p in range(4):
        for d in range(4):
            S('v_cvt_pk_bf16_f32 v%d, v%d, v%d', 48 + 4 * p + d, 16 + 8 * p + 2 * d, 17 + 8 * p + 2 * d)
        tkvs = S('buffer_store_dwordx4 %s, %s, %s, %s offen offset:%d sc1', vr(48 + 4 * p, 4), vL16, SRD_WS, sKVO, p * 1024)
    stamp('.kv st')
    twq = wq.drip(OPT['wq2']) or twq
    for p in range(4):
        tl = S('ds_write_b128 %s, %s offset:%d', vKV, vr(48 + 4 * p, 4), 8 * 4096 + p * 1024)

    def masks():
        S('v_and_b32 v11, 31, %s', vLANE)
        S('v_lshrrev_b32 v12, 5, %s', vLANE)
        A('v_lshlrev_b32 v12, 2, v12')
        A('v_sub_u32 v11, v11, v12')
        A('v_mov_b32 v12, 0xff800000')
        ms = ('s[90:91]', 's[92:93]', 's[94:95]')
        for r in range(18):
            if r < 16:
                S('v_cmp_le_i32 %s, %d, v11', ms[r % 3], (r & 3) + 8 * (r >> 2))
            if r >= 2:
                S('v_cndmask_b32 v%d, v12, 0, %s', MD + r - 2, ms[(r - 2) % 3])
                S('v_cndmask_b32 v%d, 0, v12, %s', MFAR + r - 2, ms[(r - 2) % 3])
    masks()
    ut_addr()
    stamp('.masks')

    def kvflag():
        A.wait(vm=tkvs)
        flag_store(sFKV, True)
        stamp('kv pub')
    if OPT['qf'] < 0:
        kvflag()
    twq = wq.drip(99) or twq
    A.wait(vm=twq, lg=tl)
    A('s_barrier')
    stamp('wq ready')
    rq = {}

    def qread(s):
        b = 64 + 4 * (s % 6)
        for half in range(2):
            rq[s] = S('ds_read_b64_tr_b16 %s, v14 offset:%d', vr(b + 2 * half, 2), s * 1024 + half * 256)
    early = OPT['qchk'] < 32
    if OPT['qp'] == 0 and early:
        tpoll = poll_load(vPKV, 0)
    for s in range(5):
        qread(s)

    def kv_dma():
        for t, slot, v in ((sR4, 4, vD4), (sR8, 0, vD8)):
            S('s_add_u32 m0, %s, %d', t2, L_KV + slot * 4096)
            for p in range(4):
                tk = S('buffer_load_dwordx4 %s, %s, %s offen offset:%d sc1 lds', v, SRD_WS, t, p * 1024)
        return tk
    LATE = A.label('kvlate')
    S('s_mov_b32 %s, 1', t5)
    S('s_lshl_b32 %s, %s, 12', t2, sW)
    nd = 0
    for s in range(32):
        A.wait(lg=rq[s])
        S('%s v[48:63], %s, %s, %s', MF32, vr(64 + 4 * (s % 6), 4), vr(128 + 4 * s, 4), 'v[48:63]' if s else '0')
        if s and s == OPT['qp'] and early:
            tpoll = poll_load(vPKV, 0)
        if s > OPT['qchk'] and s % 2 == 0 and nd < OPT['qd']:
            w1.pre()
        if s + 5 < 32:
            qread(s + 5)
        if s == OPT['qf']:
            kvflag()
        if s == OPT['qchk']:
            stamp('.q chk')
            A.wait(vm=tpoll)
            stamp('.polled')
            poll_test(sM2)
            A('s_cbranch_scc1 ' + LATE)
            tkv = kv_dma()
            S('s_mov_b32 %s, 0', t5)
            A(LATE + ':')
        if w1.ready:
            w1.go()
            nd += 1
    stamp('q pass')
    if early:
        OKK = A.label('kvok')
        S('s_cmp_eq_u32 %s, 0', t5)
        A('s_cbranch_scc1 ' + OKK)
        vm_save, vd = A.vm, A.vm_done
        poll(vPKV, 0, 'kv', sM2)
        kv_dma()
        A('s_waitcnt vmcnt(0)')
        A.vm, A.vm_done = vm_save, vd
        A(OKK + ':')
    else:
        w1.drip(OPT['qp'])
        poll(vPKV, 0, 'kv', sM2)
        stamp('.kv seen')
        tkv = kv_dma()
        w1.drip(OPT['qd'])
    S('s_mov_b32 %s, 0x3eb8aa3b', t0)
    S('s_mov_b32 %s, 0x3eb8aa3b', t1)
    for r in range(16):
        S('v_mov_b32 v%d, 0x3f803f80', V0 + r)
    return tkv


def mr_load(i):
    if i < 4:
        S('s_mov_b32 s65, %d', 12288 * i)
        return S('buffer_load_dwordx4 %s, %s, %s, s65 offen sc1', vr(MRD + 4 * i, 4), vMR0, SRD_WS)
    return S('buffer_load_dwordx4 %s, %s, %s, 0 offen sc1', vr(MRD + 16, 4), vMR1, SRD_WS)


def kv_off(d, piece):
    return (8 - d) * 4096 + piece * 1024


def attention(w1, tkv):
    bg = Stream()
    wo = frag_stream(sWOB, 4, 192)
    tk = {}
    RET, RETB = A.label('fpretry'), A.label('fpback')

    def fp_load():
        tk[0] = poll_load(vFP, 0)

    def fp_check():
        A.wait(vm=tk[0])
        S('v_cmp_ne_u32 vcc, %s, v15', sTAG)
        A('s_cbranch_vccnz ' + RET)
        A(RETB + ':')
    while len(bg) < OPT['aw1']:
        bg.q.append(w1.q.pop(0) if len(w1) else (lambda: None, None))
    if LOCAL[0] and OPT['po']:
        bg.add(lambda: touch(vOO, sOO))
        bg.add(lambda: touch(vOO, sOO, 512))
    bg.q.insert(OPT['fpl'], (fp_load, None))
    bg.add(fp_check)
    if not OPT['nobg'] & 4:
        bg.q += wo.q
    for i in range(5):
        bg.add(lambda i=i: mr_load(i))
    bg.add(lambda: S('buffer_load_dwordx4 %s, %s, %s, 0 offen', vr(XT, 4), vXO, SRD_X))
    bg.add(lambda: S('buffer_load_dwordx4 %s, %s, %s, 0 offen offset:16', vr(XT + 4, 4), vXO, SRD_X))

    def cop(d):
        return vr(MD, 16) if d == 0 else vr(MFAR, 16) if d == 8 else '0'

    def rdK(h, d):
        return S('ds_read_b128 %s, %s offset:%d', vr((K0, K1)[h], 4), vKV, kv_off(d, h))

    def rdV(h, d):
        if d:
            S('s_cselect_b64 exec, -1, %s', (sLO, sHI)[h])
        else:
            S('s_mov_b64 exec, %s', (sLO, sHI)[h])
        S('ds_read_b128 %s, %s offset:%d', vr((V0, V1)[h], 4), vKV, kv_off(d, 2))
        t = S('ds_read_b128 %s, %s offset:%d', vr((V0, V1)[h] + 4, 4), vKV, kv_off(d, 3))
        A('s_mov_b64 exec, -1')
        return t

    rdK(0, 0)
    rdK(1, 0)
    rdV(0, 0)
    for i in range(8):
        S('v_pk_mul_f32 %s, %s, s[76:77]', vr(48 + 2 * i, 2), vr(48 + 2 * i, 2))
    for i in range(8):
        S('v_cvt_pk_bf16_f32 v%d, v%d, v%d', 48 + i, 48 + 2 * i, 49 + 2 * i)
    A.wait(lg='all')
    S('%s %s, %s, %s, %s', MF32, vr(S0, 16), vr(K0, 4), vr(Q0, 4), cop(0))

    def half(h, d):
        S_, P, O, V = (S0, S1)[h], (P0, P1)[h], (O0, O1)[h], (V0, V1)[h]
        oS, oP, oO, oV, oK, oQ = (S1, S0)[h], (P1, P0)[h], (O1, O0)[h], (V1, V0)[h], (K1, K0)[h], (Q1, Q0)[h]
        od = d if h == 0 else d + 1
        first = d == 0 and h == 0
        if od <= 8:
            S('%s %s, %s, %s, %s', MF32, vr(oS, 16), vr(oK, 4), vr(oQ, 4), cop(od))
            if od:
                S('s_cmp_lt_u32 %s, %d', sT, od)
        if not first:
            if d + 1 <= 8:
                rdK(h, d + 1)
            bg.go()
        else:
            rdV(1, 0)
        for i in range(4):
            S('v_exp_f32 v%d, v%d', S_ + i, S_ + i)
        if not first:
            S('%s %s, %s, %s, %s', MF32, vr(oO, 16), vr(oV + 4, 4), vr(oP + 4, 4), vr(oO, 16))
            if od <= 8:
                rdV(1 - h, od)
            bg.pre()
        for i in range(4, 8):
            S('v_exp_f32 v%d, v%d', S_ + i, S_ + i)
        for i in range(4):
            S('v_cvt_pk_bf16_f32 v%d, v%d, v%d', P + i, S_ + 2 * i, S_ + 2 * i + 1)
        for i in range(8, 12):
            S('v_exp_f32 v%d, v%d', S_ + i, S_ + i)
        S('%s %s, %s, %s, %s', MF32, vr(O, 16), vr(V, 4), vr(P, 4), vr(O, 16) if d else '0')
        if first:
            A.wait(vm=tkv)
            A('s_barrier')
            stamp('kv loaded')
            rdK(0, 1)
            bg.drip(3)
        else:
            A.wait(lg='all')
            bg.go()
        bg.pre()
        for i in range(12, 16):
            S('v_exp_f32 v%d, v%d', S_ + i, S_ + i)
        for i in range(4, 8):
            S('v_cvt_pk_bf16_f32 v%d, v%d, v%d', P + i, S_ + 2 * i, S_ + 2 * i + 1)
        if first:
            A.wait(lg='all')

    for d in range(9):
        if d in (3, 6):
            stamp('.d%d' % d)
        half(0, d)
        half(1, d)
    bg.drip(99)
    S('%s %s, %s, %s, %s', MF32, vr(O1, 16), vr(V1 + 4, 4), vr(P1 + 4, 4), vr(O1, 16))
    stamp('att done')
    FB, OK = A.label('fb'), A.label('attok')
    S('s_mov_b32 %s, 0x1f800000', t0)
    S('s_mov_b32 %s, 0x5f800000', t1)
    S('s_mov_b32 %s, 0x7f000000', t2)
    S('v_add_f32 v10, abs(v%d), abs(v%d)', O0, O0 + 1)
    for i in range(2, 8):
        S('v_add_f32 v10, v10, abs(v%d)', O0 + i)
    S('v_cmp_nle_f32 vcc, %s, v%d', t0, O0 + 8)
    S('v_cmp_nge_f32 s[92:93], %s, v%d', t1, O0 + 8)
    for i in range(8):
        S('v_add_f32 v10, v10, abs(v%d)', O1 + 8 + i)
    A('s_or_b64 vcc, vcc, s[92:93]')
    S('v_cmp_nle_f32 s[92:93], %s, v%d', t0, O1)
    S('v_cmp_nge_f32 s[94:95], %s, v%d', t1, O1)
    S('v_cmp_ngt_f32 s[90:91], %s, v10', t2)
    S('v_rcp_f32 v10, v%d', O0 + 8)
    S('v_rcp_f32 v12, v%d', O1)
    A('s_or_b64 vcc, vcc, s[92:93]')
    A('s_or_b64 vcc, vcc, s[94:95]')
    A('s_or_b64 vcc, vcc, s[90:91]')
    if OPT['force_fallback']:
        A('s_branch ' + FB)
    A('s_cbranch_scc1 ' + FB)
    A(OK + ':')
    for h, (src, rc) in enumerate(((O0, 10), (O1 + 8, 12))):
        for i in range(4):
            S('v_pk_mul_f32 %s, %s, %s op_sel_hi:[1,0]', vr(src + 2 * i, 2), vr(src + 2 * i, 2), vr(rc, 2))
        for i in range(4):
            S('v_cvt_pk_bf16_f32 v%d, v%d, v%d', P0 + 4 * h + i, src + 2 * i, src + 2 * i + 1)
        ts = S('buffer_store_dwordx4 %s, %s, %s, %s offen offset:%d%s', vr(P0 + 4 * h, 4), vOO, SRD_WS, sOO, h * 512, sc('o'))
    return (FB, OK, RET, RETB), ts


def out_of_line(FB, OK, RET, RETB):
    A(RET + ':')
    A('s_cselect_b32 s66, 1, 0')
    poll(vFP, 0, 'fp', '-1')
    A('s_cmp_lg_u32 s66, 0')
    A('s_branch ' + RETB)
    A(FB + ':')
    S('s_min_u32 %s, %s, 8', t3, sT)
    for r in range(16):
        S('v_mov_b32 v%d, 0x3f803f80', V0 + r)
    for h in range(2):
        Kp, Q, O, V = h, (Q0, Q1)[h], (O0, O1)[h], (V0, V1)[h]
        for ps in range(2):
            L, ND, NF = A.label('fl'), A.label('fnd'), A.label('fnf')
            S('s_mov_b32 %s, 0', t4)
            S('v_add_u32 v10, %d, %s', 8 * 4096, vKV)
            if ps == 0:
                A('v_mov_b32 v11, 0xff800000')
            else:
                for r in range(16):
                    S('v_mov_b32 v%d, 0', O + r)
            A(L + ':')
            S('ds_read_b128 %s, v10 offset:%d', vr(K0, 4), Kp * 1024)
            if ps == 1:
                S('s_mov_b64 exec, %s', (sLO, sHI)[h])
                S('ds_read_b128 %s, v10 offset:2048', vr(V, 4))
                S('ds_read_b128 %s, v10 offset:3072', vr(V + 4, 4))
                A('s_mov_b64 exec, -1')
            A('s_waitcnt lgkmcnt(0)')
            S('%s %s, %s, %s, 0', MF32, vr(S0, 16), vr(K0, 4), vr(Q, 4))
            A('s_nop 15')
            S('s_cmp_lg_u32 %s, 0', t4)
            A('s_cbranch_scc1 ' + ND)
            for r in range(16):
                S('v_add_f32 v%d, v%d, v%d', S0 + r, S0 + r, MD + r)
            A(ND + ':')
            S('s_cmp_lg_u32 %s, 8', t4)
            A('s_cbranch_scc1 ' + NF)
            for r in range(16):
                S('v_add_f32 v%d, v%d, v%d', S0 + r, S0 + r, MFAR + r)
            A(NF + ':')
            if ps == 0:
                for r in range(8):
                    S('v_max3_f32 v11, v11, v%d, v%d', S0 + 2 * r, S0 + 2 * r + 1)
            else:
                for r in range(16):
                    S('v_sub_f32 v%d, v%d, v11', S0 + r, S0 + r)
                for r in range(16):
                    S('v_exp_f32 v%d, v%d', S0 + r, S0 + r)
                for r in range(8):
                    S('v_cvt_pk_bf16_f32 v%d, v%d, v%d', P0 + r, S0 + 2 * r, S0 + 2 * r + 1)
                S('%s %s, %s, %s, %s', MF32, vr(O, 16), vr(V, 4), vr(P0, 4), vr(O, 16))
                S('%s %s, %s, %s, %s', MF32, vr(O, 16), vr(V + 4, 4), vr(P0 + 4, 4), vr(O, 16))
                A('s_nop 15')
            A('v_subrev_u32 v10, 4096, v10')
            S('s_add_u32 %s, %s, 1', t4, t4)
            S('s_cmp_le_u32 %s, %s', t4, t3)
            A('s_cbranch_scc1 ' + L)
            if ps == 0:
                A('v_mov_b32 v12, v11')
                A('v_permlane32_swap_b32 v11, v12')
                A('v_max_f32 v11, v11, v12')
    S('v_rcp_f32 v10, v%d', O0 + 8)
    S('v_rcp_f32 v12, v%d', O1)
    A('s_nop 1')
    A('s_branch ' + OK)


def ring_gemm(nks, STG, areg, ring_base, ring_n, ahead, split=(), pre=None, post=None, npost=0, extra=None, head=None):
    ta = {}
    aq = Stream()
    n = 4 * nks
    for i in range(n):
        st, k = divmod(i, nks)
        r = ring_base + 4 * (i % ring_n)

        def pr(st=st, k=k):
            if k and k & 3 == 0:
                S('s_add_u32 %s, %s, 4096', STG[st], STG[st])

        def f(i=i, st=st, k=k, r=r):
            if k in split:
                for hf in range(2):
                    ta[i] = S('buffer_load_dwordx2 %s, %s, %s, %s offen offset:%d sc1', vr(r + 2 * hf, 2), vL8, SRD_WS, STG[st], (k & 3) * 1024 + 512 * hf)
            else:
                ta[i] = S('buffer_load_dwordx4 %s, %s, %s, %s offen offset:%d sc1', vr(r, 4), vL16, SRD_WS, STG[st], (k & 3) * 1024)
        aq.add(f, pr)
    assert ahead < ring_n or n <= ring_n
    aq.drip(ahead)
    if head:
        head()
    btick = {}
    acc = (CA, CB, CA, CO)
    long_ = nks >= 8
    for i in range(n):
        st, k = divmod(i, nks)
        tk = ta[i]
        assert not pre or len(pre) <= 4 * (nks - 1 - i) or not len(pre)
        if st == 0 and k in btick:
            tk = max(tk, btick[k])
        lgw = None
        slots = [[], [], [], []]
        if st >= 1:
            pa = acc[st - 1]
            wr = lambda g: (lambda: S('ds_write_b128 v%d, %s offset:%d', vRW[st - 1], vr(pa + 4 * g, 4), g * 1024))
            if long_:
                if 1 <= k <= 4:
                    slots[3].append(wr(k - 1))
            else:
                if k < 3:
                    slots[3].append(wr(k + (k > 1)))
                if k == 2:
                    slots[0].append(wr(2))
        if st == 2 and k == 0:
            for g in range(4):
                slots[g].append(lambda g=g: S('ds_read_b128 %s, v%d offset:%d', vr(CO + 4 * g, 4), vRR, g * 1024))
        if st == 3 and k == 0:
            for g in range(4):
                slots[g].append(lambda g=g: S('ds_read_b128 %s, v%d offset:%d', vr(CR + 4 * g, 4), vRR, 4096 + g * 1024))
        if k == 0 and OPT['fine'] in (3, 4):
            A.wait(vm=tk)
            stamp('.st%d' % st)
        if st >= 2 and k == 0 or (long_ and st == 3 and k == 7):
            A.wait(vm=tk, lg='all')
            A('s_barrier')
        if long_ and st == 3 and k == 7:
            for g in range(4):
                slots[g].append(lambda g=g: S('ds_read_b128 %s, v%d offset:%d', vr(CB + 4 * g, 4), vRR, g * 1024))
        if long_ and st == 3 and k in (10, 11, 12, 13):
            lgw = 'all'
            for g in range(4):
                r = 4 * (k - 10) + g
                slots[g].append(lambda r=r: S('v_add_f32 v%d, v%d, v%d', CR + r, CR + r, CB + r))
        if extra:
            extra(st, k, slots)
        A.wait(vm=tk, lg=lgw)
        a = vr(ring_base + 4 * (i % ring_n), 4)
        for nt in range(4):
            c = vr(acc[st] + 4 * nt, 4)
            S('%s %s, %s, %s, %s', MF16, c, ar(areg + 16 * k + 4 * nt, 4), a, c if (k or st == 3) else '0')
            if nt == 0:
                aq.pre()
            if nt == 1:
                if len(aq):
                    aq.go()
                elif post and npost > 0:
                    post.drip(1)
                    npost -= 1
            if nt == 2:
                if pre and len(pre):
                    kk = nks - (len(pre) + 3) // 4
                    btick[kk] = pre.drip(1)
                elif not len(aq) and post and npost > 0:
                    post.drip(1)
                    npost -= 1
            for f in slots[nt]:
                f()
    if post and npost > 0:
        post.drip(npost)
    stamp('.mm end')
    if not long_:
        A.wait(lg='all')
        A('s_barrier')
        for g in range(4):
            tr = S('ds_read_b128 %s, v%d offset:%d', vr(CB + 4 * g, 4), vRR, g * 1024)
    for g in range(8):
        S('v_pk_add_f32 %s, %s, %s', vr(CO + 2 * g, 2), vr(CO + 2 * g, 2), vr(CR + 2 * g, 2))
    if not long_:
        for g in range(4):
            A.wait(lg=tr - 3 + g)
            for e in range(2):
                r = 4 * g + 2 * e
                S('v_pk_add_f32 %s, %s, %s', vr(CO + r, 2), vr(CO + r, 2), vr(CB + r, 2))


def wo_phase(ts, w1, w2):
    stamp('.o st')
    w1.drip(OPT['ow1'])
    A.wait(vm=ts - 2)
    L, D = A.label('pmr'), A.label('dmr')
    S('s_mov_b32 %s, 0', sCNT)
    A(L + ':')
    for i in range(5):
        untag(MRD + 4 * i, 148, i == 0)
    untag_test(148)
    A('s_cbranch_vccz ' + D)
    S('s_add_u32 %s, %s, 1', sCNT, sCNT)
    S('s_cmp_ge_u32 %s, %d', sCNT, LIMIT)
    A('s_cbranch_scc1 ' + D)
    vm_save = A.vm
    for i in range(5):
        mr_load(i)
    A.vm = vm_save
    A('s_waitcnt vmcnt(0)')
    A('s_branch ' + L)
    A(D + ':')
    A.wait(vm=ts)
    flag_store(sFO, not LOCAL[0])
    stamp('o pub')
    w1.drip(99)
    if LOCAL[0] and OPT['py']:
        touch(vL16, sYO)
        touch(vL16, sYO, 1024)
        S('buffer_load_dword v%d, %s, %s, %s offen sc1', JUNK, vSS, SRD_WS, sSO)
    S('s_cmp_ge_u32 %s, 2', sW)
    S('s_cselect_b32 %s, 1.0, 0', t4)
    g = MRD + 16
    S('v_permlane32_swap_b32 v%d, v%d', g, g + 1)
    S('v_permlane32_swap_b32 v%d, v%d', g + 2, g + 3)
    S('v_add_f32 v%d, v%d, v%d', g, g, g + 1)
    S('v_add_f32 v%d, v%d, v%d', g + 2, g + 2, g + 3)
    sum_partials(MRD, t4)
    S('v_permlane16_swap_b32 v%d, v%d', g, g + 2)
    S('v_add_f32 v%d, v%d, v%d', g, g, g + 2)
    S('v_cvt_pk_bf16_f32 v%d, v%d, v%d', g, g, g)
    S('v_lshlrev_b32 v12, 16, v%d', g)
    S('v_mov_b32 v10, v%d', MRD)
    S('v_mov_b32 v11, v%d', MRD + 1)
    stamp('.mr')
    poll(vPG, 64, 'o', sGM)
    stamp('o seen')

    def head():
        A('s_barrier')
        S('ds_write_b64 %s, v[10:11]', vMW)
        S('ds_write_b32 %s, v12', vGW)
        for i in range(7, -1, -1):
            S('v_and_b32 v%d, 0xffff0000, v%d', X2 + 2 * i + 1, XT + i)
            S('v_lshlrev_b32 v%d, 16, v%d', X2 + 2 * i, XT + i)

    def extra(st, k, slots):
        if st == 2 and k == 1:
            for i in range(3):
                slots[i].append(lambda i=i: S('ds_read_b128 %s, %s offset:%d', vr(GA + 4 * i, 4), vGAB, 16 * i))
        if st == 2 and k == 3:
            slots[0].append(lambda: S('ds_read_b128 %s, %s offset:48', vr(GA + 12, 4), vGAB))
            for i in range(2):
                slots[1 + i].append(lambda i=i: S('ds_read_b128 %s, %s offset:%d', vr(80 + 4 * i, 4), vG2A, 16 * i))
        if st == 3 and k >= 1:
            for i in range(8):
                if i * 3 // 8 == k - 1:
                    slots[i & 3].append(lambda i=i: unpack(G2 + 2 * i, 80 + i))
    ring_gemm(4, STG_O, 192, 128, 16, 12, post=w2, npost=OPT['w2a'], extra=extra, head=head)
    stamp('wo gemm')
    for e in range(2):
        for i in range(4 * e, 4 * e + 4):
            S('v_pk_fma_f32 %s, %s, %s, %s', vr(X2 + 2 * i, 2), vr(CO + 2 * i, 2), vr(GA + 2 * i, 2), vr(X2 + 2 * i, 2))
        for i in range(4 * e, 4 * e + 4):
            S('v_pk_mul_f32 %s, %s, %s', vr(G2 + 2 * i, 2), vr(X2 + 2 * i, 2), vr(G2 + 2 * i, 2))
        for i in range(4 * e, 4 * e + 4):
            S('v_cvt_pk_bf16_f32 v%d, v%d, v%d', 192 + i, G2 + 2 * i, G2 + 1 + 2 * i)
        S('buffer_store_dwordx4 %s, %s, %s, %s offen offset:%d%s', vr(192 + 4 * e, 4), vL16, SRD_WS, sYO, e * 1024, sc('y'))
    S('v_pk_add_f32 v[200:201], %s, %s', vr(X2, 2), vr(X2 + 2, 2))
    S('v_pk_mul_f32 v[202:203], %s, %s', vr(X2, 2), vr(X2, 2))
    S('v_pk_fma_f32 v[202:203], %s, %s, v[202:203]', vr(X2 + 2, 2), vr(X2 + 2, 2))
    for i in range(2, 8):
        S('v_pk_add_f32 v[200:201], v[200:201], %s', vr(X2 + 2 * i, 2))
        S('v_pk_fma_f32 v[202:203], %s, %s, v[202:203]', vr(X2 + 2 * i, 2), vr(X2 + 2 * i, 2))
    A('v_add_f32 v200, v200, v201')
    A('v_add_f32 v202, v202, v203')
    A('v_permlane32_swap_b32 v200, v202')
    A('v_add_f32 v200, v200, v202')
    A('v_mov_b32 v201, v200')
    A('v_permlane16_swap_b32 v200, v201')
    A('v_add_f32 v200, v200, v201')
    ts = S('buffer_store_dword v200, %s, %s, %s offen%s', vSS, SRD_WS, sSO, sc('y'))
    stamp('.y st')
    return ts


def g1_phase(ts, w2):
    rd = {}
    UB = 16

    def rv(ks):
        S('ds_read_b128 %s, v%d offset:%d', vr(UB + 12 * (ks % 4), 4), UTA + 4, 128 * (ks >> 1) + 16 * (ks & 1))

    def rt(ks, n):
        for half in range(2):
            rd[ks] = S('ds_read_b64_tr_b16 %s, v%d offset:%d', vr(UB + 12 * (ks % 4) + 4 + 4 * n + 2 * half, 2), UTA + 2 * n + (ks >> 3), (ks & 7) * 7168 + half * 8 * 224)
    for ks in range(3):
        rv(ks), rt(ks, 0), rt(ks, 1)
    w2.drip(min(4, OPT['w2b']))
    ta = {}
    aq = Stream()
    for ks in range(16):
        for tt in range(2):
            def pr(ks=ks, tt=tt):
                if ks and ks & 3 == 0:
                    S('s_add_u32 %s, %s, 4096', sYL[tt], sYL[tt])

            def f(ks=ks, tt=tt):
                ta[ks, tt] = S('buffer_load_dwordx4 %s, %s, %s, %s offen offset:%d sc1', vr(YA + 8 * ks + 4 * tt, 4), vL16, SRD_WS, sYL[tt], (ks & 3) * 1024)
            aq.add(f, pr)
    first = list(aq.q[:8])
    LATE = A.label('ylate')
    rb = {}

    def bread(g, half):
        ks, nt = divmod(g, 7)
        rb[g] = S('ds_read_b64_tr_b16 %s, v%d offset:%d', vr(BF + 4 * nt + 2 * half, 2), (vT1, vT2)[ks >> 3], (ks & 7) * 7168 + half * 8 * 224 + nt * 32)
    S('s_mov_b32 %s, 1', t5)
    for ks in range(16):
        A.wait(lg=rd[ks])
        b = UB + 12 * (ks % 4)
        for n in range(2):
            c = vr(64 + 4 * n, 4)
            S('%s %s, %s, %s, %s', MF16, c, vr(b + 4 + 4 * n, 4), vr(b, 4), c if ks else '0')
            if ks + 3 < 16:
                if n == 0:
                    rv(ks + 3)
                rt(ks + 3, n)
            elif ks >= 14:
                bread(2 * (ks - 14) + n, 0)
                bread(2 * (ks - 14) + n, 1)
        if ks == OPT['uf']:
            A.wait(vm=ts)
            flag_store(sFY, not LOCAL[0])
            stamp('y pub')
            w2.drip(max(0, OPT['w2b'] - 4))
        if ks == OPT['up']:
            tp = poll_load(vPT, 128)
        if ks == OPT['uc']:
            A.wait(vm=tp)
            poll_test(sMASK)
            A('s_cbranch_scc1 ' + LATE)
            aq.drip(8)
            S('s_mov_b32 %s, 0', t5)
            A(LATE + ':')
    S('ds_write_b128 v%d, v[64:67]', UTA + 5)
    tuw = S('ds_write_b128 v%d, v[68:71]', UTA + 6)
    for g in (4, 5):
        bread(g, 0)
        bread(g, 1)
    OKK = A.label('yok')
    S('s_cmp_eq_u32 %s, 0', t5)
    A('s_cbranch_scc1 ' + OKK)
    vm_save, vd, tas = A.vm, A.vm_done, dict(ta)
    poll(vPT, 128, 'y', sMASK)
    for f, pr in first:
        f()
    A.vm, A.vm_done = vm_save, vd
    ta.update(tas)
    A(OKK + ':')
    stamp('y seen')
    aq.drip(2)
    tst = {}
    for p in range(8):
        def f(p=p):
            tst[0] = S('buffer_load_dword v%d, %s, %s, %s offen offset:%d sc1', YA + p, vSL, SRD_WS, sSL, p * 128)
        aq.add(f)
    if LOCAL[0] and OPT['phid']:
        for tt in range(2):
            for i in range(3):
                aq.add(lambda i=i, tt=tt: touch(vH4, sHO[tt], i * 1024, YA + 8))
            aq.add(lambda tt=tt: S('buffer_load_dwordx2 %s, %s, %s, %s offen offset:3072 sc1', vr(YA + 8, 2), vH2, SRD_WS, sHO[tt]))
    for _ in range(OPT['w2c']):
        if len(w2):
            aq.q.append(w2.q.pop(0))

    def stats():
        for n in (4, 2, 1):
            for i in range(n):
                S('v_add_f32 v%d, v%d, v%d', YA + i, YA + i, YA + n + i)
        A('v_mul_f32 v112, 0x3b000000, v112')
        A('v_mov_b32 v113, v112')
        A('v_permlane32_swap_b32 v112, v113')
        A('v_fma_f32 v113, -v112, v112, v113')
        A('v_max_f32 v113, 0, v113')
        A('v_add_f32 v113, 0x3727c5ac, v113')
        A('v_rsq_f32 v114, v113')
        A('v_mul_f32 v115, -v112, v114')
        A('v_mov_b32 v116, v114')
        A('v_mov_b32 v117, v115')
        A('v_permlane16_swap_b32 v114, v116')
        A('v_permlane16_swap_b32 v115, v117')
    fill = capture(stats)
    U, TT = 144, 176
    tu = {}
    rate = [3, 3, 3, 3, 3, 3, 4, 6, 4, 4] + [4] * 6
    for g in range(112):
        ks, nt = divmod(g, 7)
        n = rate[ks]
        go = (nt + 1) * n // 7 > nt * n // 7 and len(aq)
        if nt in (0, 2, 4, 6):
            vmw = ta[ks, 1] if nt == 0 else None
            if g == 84:
                vmw = max(vmw, tst[0])
            A.wait(vm=vmw, lg=max(rb[min(g + 1, 111)] if nt < 6 else rb[g], tuw))
        for tt in range(2):
            c = vr(ACC + 8 * nt + 4 * tt, 4)
            S('%s %s, %s, %s, %s', MF16, c, vr(BF + 4 * nt, 4), vr(YA + 8 * ks + 4 * tt, 4), c if ks else '0')
            if go and tt == 0:
                aq.pre()
            if g + 6 < 112:
                bread(g + 6, tt)
            if g >= 105:
                tu[nt] = S('ds_read_b128 %s, %s offset:%d', vr((U, TT)[tt] + 4 * nt, 4), vUTR, 512 * tt + nt * 64)
            if go and tt == 0:
                aq.go()
            elif g >= 84 and fill and (tt == 0 or nt in (0, 2, 4)):
                A.lines.append(fill.pop(0))
        if g in (27, 55, 83):
            stamp('.g%d' % g)
        if g == 95:
            A('s_barrier')
    A.lines += fill
    aq.drip(99)
    stamp('g1 gemm')
    for pr in range(4):
        nts = (2 * pr, 2 * pr + 1) if pr < 3 else (6,)
        A.wait(lg=tu[nts[-1]])
        for tt in range(2):
            o = 208 + 8 * pr + 4 * tt
            rp = vr(114 + 2 * tt, 2)
            for i, nt in enumerate(nts):
                for e in range(2):
                    S('v_pk_fma_f32 %s, %s, %s, %s op_sel:[0,1,0] op_sel_hi:[1,1,1]', vr(128 + 2 * e, 2), vr(U + 4 * nt + 2 * e, 2), rp, vr(TT + 4 * nt + 2 * e, 2))
                for e in range(2):
                    S('v_pk_fma_f32 %s, %s, %s, %s op_sel:[0,0,0] op_sel_hi:[1,0,1]', vr(128 + 2 * e, 2), vr(ACC + 8 * nt + 4 * tt + 2 * e, 2), rp, vr(128 + 2 * e, 2))
                for e in range(2):
                    S('v_cvt_pk_bf16_f32 v%d, v%d, v%d', o + 2 * i + e, 128 + 2 * e, 129 + 2 * e)
                for e in range(2):
                    S('v_pk_max_i16 v%d, v%d, 0', o + 2 * i + e, o + 2 * i + e)
            if pr < 3:
                ts = S('buffer_store_dwordx4 %s, %s, %s, %s offen offset:%d%s', vr(o, 4), vH4, SRD_WS, sHO[tt], pr * 1024, sc('hid'))
            else:
                ts = S('buffer_store_dwordx2 %s, %s, %s, %s offen offset:3072%s', vr(o, 2), vH2, SRD_WS, sHO[tt], sc('hid'))
    return ts


def g2_phase(ts, w2):
    stamp('.hid st')
    w2.drip(min(4, OPT['w2d']))
    for i in range(4):
        S('ds_read_b128 %s, %s offset:%d', vr(GB + 4 * i, 4), vGAB, 256 + 16 * i)
    A.wait(vm=ts)
    flag_store(sFHID, not LOCAL[0])
    stamp('hid pub')
    w2.drip(max(0, OPT['w2d'] - 4))
    poll(vPG, 192, 'hid', sGM)
    stamp('hid seen')
    post = Stream()
    if LOCAL[0] and OPT['wbl2']:
        def wb():
            SK = A.label('nowb')
            S('s_and_b32 %s, %s, %d', t0, sJ, OPT['wbl2'] - 1)
            S('s_or_b32 %s, %s, %s', t0, t0, sW)
            A('s_cbranch_scc1 ' + SK)
            A.lines.append('buffer_wbl2 sc1')
            A(SK + ':')
        post.add(wb)
    ring_gemm(14, STG_H, 0, 112, 32, 12, split=(3, 10), pre=w2)
    post.drip(1)
    stamp('g2 gemm')
    for p in range(2):
        for i in range(4 * p, 4 * p + 4):
            S('v_pk_fma_f32 %s, %s, %s, %s', vr(X2 + 2 * i, 2), vr(CO + 2 * i, 2), vr(GB + 2 * i, 2), vr(X2 + 2 * i, 2))
        for i in range(4 * p, 4 * p + 4):
            S('v_cvt_pk_bf16_f32 v%d, v%d, v%d', 16 + i, X2 + 2 * i, X2 + 2 * i + 1)
        S('buffer_store_dwordx4 %s, %s, %s, 0 offen offset:%d%s', vr(16 + 4 * p, 4), vXO, SRD_OUT, 16 * p, ('', ' sc1', ' nt')[OPT['outsc']])
    stamp('.out st')
    SK = A.label('noep')
    S('s_or_b32 %s, %s, %s', t0, sLID, sW)
    A('s_cbranch_scc1 ' + SK)
    S('s_mov_b32 %s, %d', t2, WS_E)
    flag_store(t2, False)
    A(SK + ':')


def dump_stamps():
    if OPT['diag']:
        D = A.label('diag')
        A('s_waitcnt vmcnt(0) lgkmcnt(0)')
        A('s_add_u32 s97, s97, 6000')
        A('s_mov_b32 s98, 0')
        A(D + ':')
        A('s_memrealtime s[92:93]')
        A('s_add_u32 s98, s98, 1')
        A('s_cmp_gt_u32 s98, 0x8000')
        A('s_cbranch_scc1 L_exit')
        A('s_waitcnt lgkmcnt(0)')
        A('s_sub_u32 s92, s92, s97')
        A('s_cmp_lt_i32 s92, 0')
        A('s_cbranch_scc1 ' + D)
    if not OPT['stamps']:
        return
    A.wait(vm='all', force=True)
    A('s_memrealtime s[92:93]')
    stamp('end')
    A('v_writelane_b32 v0, s92, 25')
    S('s_getreg_b32 %s, hwreg(HW_REG_XCC_ID)', t1)
    S('v_writelane_b32 v0, %s, 24', t1)
    S('v_writelane_b32 v0, %d, 26', int(LOCAL[0]))
    S('s_lshl2_add_u32 %s, %s, %s', t0, sLID, sW)
    S('s_lshl_b32 %s, %s, 7', t0, t0)
    S('s_add_u32 %s, %s, %d', t0, t0, WS_TS)
    S('v_lshlrev_b32 v10, 2, %s', vLANE)
    A('s_mov_b64 exec, 0xffffffff')
    S('buffer_store_dword v0, v10, %s, %s offen', SRD_WS, t0)


def rest(wq):
    wst = Stream()
    wst.q = list(wq)
    h_phase(wst)
    w1 = w1_stream()
    w2 = frag_stream(sW2B, 14, 0)
    if OPT['nobg'] & 1:
        w1.q = []
    if OPT['nobg'] & 2:
        w2.q = []
    tkv = qkv(w1, wst)
    ool, ts = attention(w1, tkv)
    ts = wo_phase(ts, w1, w2)
    ts = g1_phase(ts, w2)
    g2_phase(ts, w2)
    dump_stamps()
    return ool


def main():
    tw, tx = prologue()
    wst = wqkv_stream()
    if OPT['ppos'] == 0:
        tp = prep_dma()
    wq_setup()
    wst.drip(OPT['n1'])
    mod_partial(tw)
    stamp('mod pub')
    if OPT['ppos'] == 1:
        tp = prep_dma()
    ln1(tx, wst)
    mod_poll(wst, tp)
    st = (A.vm, A.vm_done, A.lg, A.lg_done, nstamp[0], ALLN[0], vST[0])
    ool = rest(wst.q)
    A('L_exit:')
    A('s_endpgm')
    A('L_localend:')
    out_of_line(*ool)
    xc_slow()
    LOCAL[0] = False
    A.vm, A.vm_done, A.lg, A.lg_done, nstamp[0], ALLN[0], vST[0] = st
    ool = rest(wst.q)
    A('s_endpgm')
    out_of_line(*ool)
    body, nops = A.finalize()
    hdr = open(os.path.join(os.path.dirname(os.path.abspath(__file__)), '..', 'cdna_kernels', NAME + '.s.ref')).read().split('; Override')[0]
    out = hdr
    out += '; @launch grid=(256,1,1) block=(256,1,1) lds=163840\n'
    out += '.amdgcn_target "amdgcn-amd-amdhsa--gfx950"\n.text\n.globl %s_kernel\n.p2align 8\n.type %s_kernel,@function\n%s_kernel:\n' % (NAME, NAME, NAME)
    out += '\n'.join(('' if l.endswith(':') else '    ') + l for l in body) + '\n'
    out += '''.section .rodata,"a"
.p2align 6
.amdhsa_kernel %s_kernel
  .amdhsa_next_free_vgpr 512
  .amdhsa_next_free_sgpr 102
  .amdhsa_accum_offset 256
  .amdhsa_group_segment_fixed_size 0
  .amdhsa_kernarg_size 88
  .amdhsa_user_sgpr_count 2
  .amdhsa_user_sgpr_kernarg_segment_ptr 1
  .amdhsa_system_sgpr_workgroup_id_x 1
  .amdhsa_float_denorm_mode_32 3
.end_amdhsa_kernel
''' % NAME
    open(sys.argv[1], 'w').write(out)
    if OPT['stamps']:
        open(sys.argv[1] + '.stamps', 'w').write('\n'.join(STAMP_NAMES))
    print('instructions', len(body), 'pad states', nops, file=sys.stderr)


main()
```

```python
import sys, os
from asmlib import Asm

NAME = 'adaLN_cond__sliding_block__dense_activation_relu__prompt'
OPT = dict(stamps=0, fine=0, force_fallback=0, force_remote=0, diag=0, nobg=0,
           ph=1, po=1, py=1, phid=0,
           n1=0, n2=6, n3=3, n4=2,
           wq0=0, wq1=4, wq2=4,
           qf=-1, qp=0, qchk=8,
           qd=4,
           aw1=24, fpf=4, fpl=22,
           ow1=8,
           w2a=20, w2b=8, w2c=28, w2d=0,
           uf=8, up=10, uc=14,
           uh=6, gsplit=0, w2e=4, w2f=12, sv=99,
           outsc=0, rot=1, dbg=0, cpf=2, ntw=1, ntp=1, ppos=0)
for a in sys.argv[2:]:
    k, v = a.split('=')
    assert k in OPT, k
    OPT[k] = int(v)

WS_E = 0
WS_FA = 0x1000
WS_XA = 0x6000
WS_XB = 0x8000
WS_FKV = 0x10000
WS_FP = 0x30000
WS_MOD = 0x50000
WS_STAT = 0x80000
WS_TS = 0xC0000
WS_WOT = 0x100000
WS_W2T = 0x200000
WS_H = 0x400000
WS_O = 0x600000
WS_Y = 0x800000
WS_KV = 0xA00000
WS_HID = 0xE00000
WS_SIZE = 0x1600000
OOB = 0x40000000

L_STG = 98304
L_SCR = 114688
L_KV = 114688
L_MODL = 114688
L_GAB = L_MODL + 2048
L_UT = L_MODL + 4096
L_RED = L_MODL + 8192

sDG, sDL, sFG = 's0', 's1', 's2'
sX, sJ, sW, sT, sM = 's3', 's4', 's5', 's6', 's7'
sFKV, sFO, sFY, sFHID = 's8', 's9', 's14', 's15'
sKVO, sOO, sYO, sSO = 's20', 's21', 's22', 's23'
sHO = ('s26', 's27')
STG_O = ('s10', 's11', 's12', 's13')
STG_H = ('s16', 's17', 's18', 's19')
sR4, sR8 = 's24', 's25'
sYL = ('s28', 's29')
sSL, sHL = 's30', 's31'
SRD_X, SRD_WQKV, SRD_W1, SRD_P, SRD_WS, SRD_OUT, SRD_WMOD, SRD_C = [
    's[%d:%d]' % (b, b + 3) for b in (32, 36, 44, 48, 52, 56, 60, 64)]
TAGB = 40
sGM = 's[60:61]'
sW1G, sW1L = 's62', 's63'
sPS, sRHO = 's64', 's67'
sTAG, sE = 's68', 's69'
sCT, sG, sOWN, sTS, sT0 = 's70', 's71', 's72', 's73', 's74'
sLID = 's75'
t0, t1, t2, t3, t4, t5 = 's76', 's77', 's78', 's79', 's80', 's81'
sCNT = 's82'
sXC = 's83'
sMASK = 's[84:85]'
sLO, sHI = 's[86:87]', 's[88:89]'
sWOB, sW2B = 's96', 's101'
sM2 = 's[98:99]'
H_S = 's100'

vLANE, vL16, vTAG = 'v1', 'v2', 'v3'
vXO, vGAB = 'v4', 'v5'
vRW, vRR = (6, 7, 8), 9
vT1, vT2 = 100, 101
vUTR, vPT, vPG, vSS, vSL, vH4, vH2, vL8, vMW, vGW = ['v%d' % i for i in range(102, 112)]
W1V = 112
vKV, vPKV, vD4, vD8, vOO, vMR0, vMR1, vFP, vG2A = ['v%d' % i for i in range(119, 128)]
UTA = 88
vWQ, H_V, vXCV = 'v96', 'v146', 'v147'
l7, l3 = 'v148', 'v149'
JUNK = 152
Q0, Q1 = 48, 52
MD, MFAR = 16, 32
K0, K1 = 64, 68
V0, V1 = 72, 80
MRD = 128
S0, S1 = 160, 176
P0, P1 = 192, 200
O0, O1 = 208, 224
XT = X2 = 240
CA, CB, CO, CR = 16, 32, 48, 64
GA, G2, GB = 208, 224, 80
ACC, BF, YA = 16, 72, 112

A = Asm()
nstamp = [0]
STAMP_NAMES = []
ALLN = [0]
vST = ['v255']
FINE = {1: (0, 4), 2: (4, 10), 3: (10, 15), 4: (15, 20), 9: (99, 99)}
LOCAL = [True]
LIMIT = 1 << 17
MF32 = 'v_mfma_f32_32x32x16_bf16'
MF16 = 'v_mfma_f32_16x16x32_bf16'


def vr(b, n=1, k='v'):
    return '%s%d' % (k, b) if n == 1 else '%s[%d:%d]' % (k, b, b + n - 1)


def ar(b, n=1):
    return vr(b, n, 'a')


def S(fmt, *a):
    return A(fmt % a)


def stamp(name):
    fine = name.startswith('.')
    n = ALLN[0]
    if not fine:
        ALLN[0] += 1
    if OPT['diag']:
        if not fine and ALLN[0] == OPT['diag']:
            print('diag stamp:', name, file=sys.stderr)
            A('s_memrealtime s[90:91]')
            A('s_waitcnt lgkmcnt(0)')
            A.lg_done = A.lg
            A('s_mov_b32 s97, s90')
        return
    if not OPT['stamps']:
        return
    if name == 'h seen':
        A('v_mov_b32 v0, v255')
        vST[0] = 'v0'
    if OPT['fine']:
        if name != 'end' and not (FINE[OPT['fine']][0] <= n <= FINE[OPT['fine']][1]):
            return
    elif fine:
        return
    assert nstamp[0] < 22
    A('s_memtime s[90:91]' if OPT['stamps'] == 1 else 's_memrealtime s[90:91]')
    A('s_waitcnt lgkmcnt(0)')
    A.lg_done = A.lg
    S('v_writelane_b32 %s, s90, %d', vST[0], 2 + nstamp[0])
    nstamp[0] += 1
    if LOCAL[0]:
        STAMP_NAMES.append(name)


def sc(buf):
    return '' if (LOCAL[0] and OPT['p' + buf]) else ' sc1'


def flag_store(soff, sc1, val=vTAG):
    A('s_mov_b64 exec, 1')
    t = S('buffer_store_dword %s, off, %s, %s%s', val, SRD_WS, soff, ' sc1' if sc1 else '')
    A('s_mov_b64 exec, -1')
    return t


def poll_load(vA, off, vT='v15'):
    return S('buffer_load_dword %s, %s, %s, 0 offen offset:%d sc1', vT, vA, SRD_WS, off)


def poll_test(mask, vT='v15'):
    S('v_cmp_ne_u32 vcc, %s, %s', sTAG, vT)
    S('s_and_b64 vcc, vcc, %s', mask)


def poll(vA, off, name, mask):
    L, D = A.label('p' + name), A.label('d' + name)
    S('s_mov_b32 %s, 0', sCNT)
    A(L + ':')
    poll_load(vA, off)
    S('s_add_u32 %s, %s, 1', sCNT, sCNT)
    A('s_waitcnt vmcnt(0)')
    poll_test(mask)
    A('s_cbranch_scc0 ' + D)
    S('s_cmp_lt_u32 %s, %d', sCNT, LIMIT)
    A('s_cbranch_scc1 ' + L)
    A(D + ':')
    A.vm_done = A.vm


def srd(dst, lo, size):
    b = int(dst[2:dst.index(':')])
    S('s_mov_b64 s[%d:%d], s[%d:%d]', b, b + 1, lo, lo + 1)
    S('s_mov_b32 s%d, 0x%x', b + 2, size)
    S('s_mov_b32 s%d, 0x20000', b + 3)


def unpack(dst, src):
    S('v_lshlrev_b32 v%d, 16, v%d', dst, src)
    S('v_and_b32 v%d, 0xffff0000, v%d', dst + 1, src)


def untag(r, acc, first):
    for i in range(4):
        S('v_xor_b32 v%d, s%d, v%d', r + i, TAGB + i, r + i)
    if first:
        S('v_or3_b32 v%d, v%d, v%d, v%d', acc, r, r + 1, r + 2)
        S('v_or_b32 v%d, v%d, v%d', acc, acc, r + 3)
    else:
        S('v_or3_b32 v%d, v%d, v%d, v%d', acc, r, r + 1, acc)
        S('v_or3_b32 v%d, v%d, v%d, v%d', acc, r + 2, r + 3, acc)


def untag_test(acc):
    S('v_and_b32 v%d, 0xff, v%d', acc, acc)
    S('v_cmp_ne_u32 vcc, 0, v%d', acc)


def capture(f):
    save, A.lines = A.lines, []
    f()
    out, A.lines = A.lines, save
    return out


class Stream:
    def __init__(self):
        self.q = []
        self.ready = False

    def add(self, f, pre=None):
        self.q.append((f, pre))

    def pre(self):
        if self.q and not self.ready:
            if self.q[0][1]:
                self.q[0][1]()
            self.ready = True

    def go(self):
        if self.q:
            assert self.ready
            self.ready = False
            return self.q.pop(0)[0]()

    def drip(self, n=1):
        t = None
        for _ in range(n):
            if self.q:
                self.pre()
                t = self.go()
        return t

    def __len__(self):
        return len(self.q)


def touch(voff, soff, off=0, junk=JUNK):
    return S('buffer_load_dwordx4 %s, %s, %s, %s offen offset:%d sc1', vr(junk, 4), voff, SRD_WS, soff, off)


def wqkv_stream():
    st = Stream()
    for tile in range(3):
        for i in range(8):
            def pre(tile=tile, i=i):
                if i == 0:
                    S('s_mul_i32 %s, %s, %d', sDG, sW, 128 * 3072)
                    S('s_lshl_b32 %s, %s, 6', sDL, sM)
                    S('s_add_u32 %s, %s, %s', sDG, sDG, sDL)
                    S('s_lshl_b32 %s, %s, 13', sDL, sW)
                    if tile == 2:
                        S('s_add_u32 %s, %s, 65536', sDL, sDL)
                    else:
                        S('s_lshr_b32 s65, %s, 1', sJ)
                        A('s_cmp_eq_u32 s65, 11')
                        S('s_cselect_b32 s65, %d, %d', 1 - tile, tile)
                        A('s_lshl_b32 s66, s65, 10')
                        S('s_add_u32 %s, %s, s66', sDG, sDG)
                        S('s_add_u32 %s, %s, 1024', sDG, sDG)
                        A('s_lshl_b32 s66, s65, 15')
                        S('s_add_u32 %s, %s, s66', sDL, sDL)
                    S('s_mov_b32 m0, %s', sDL)
                else:
                    S('s_add_u32 m0, %s, %d', sDL, i * 1024)
                    S('s_add_u32 %s, %s, %d', sDG, sDG, 16 * 3072)
            st.add(lambda: S('buffer_load_dwordx4 %s, %s, %s offen lds', vWQ, SRD_WQKV, sDG), pre)
    return st


def w1_stream():
    st = Stream()
    for g in range(4):
        for i in range(7):
            def pre(g=g, i=i):
                S('s_add_u32 m0, %s, %d', sW1L, g * 4 * 7168 + i * 1024)
                if i == 0 and g:
                    S('s_add_u32 %s, %s, %d', sW1G, sW1G, 128 * 3584)
            st.add(lambda i=i: S('buffer_load_dwordx4 v%d, %s, %s offen lds', W1V + i, SRD_W1, sW1G), pre)
    return st


def frag_stream(sb, nks, areg):
    st = Stream()
    for i in range(nks):
        for s in range(4):
            def pre(i=i, s=s):
                if i and s == 0:
                    S('s_add_u32 %s, %s, 4096', sb, sb)
            st.add(lambda i=i, s=s: S('buffer_load_dwordx4 %s, %s, %s, %s offen offset:%d sc1', ar(areg + 16 * i + 4 * s, 4), vL16, SRD_WS, sb, s * 1024), pre)
    return st


def code_prefetch():
    S('global_load_dwordx2 %s, v145, s[30:31]', vr(JUNK, 2))


def prologue():
    A('s_cmp_ge_u32 s2, 256')
    A('s_cbranch_scc1 L_exit')
    A('s_load_dwordx16 s[8:23], s[0:1], 0')
    A('s_load_dwordx4 s[24:27], s[0:1], 64')
    A('s_load_dwordx2 s[28:29], s[0:1], 80')
    A('s_getpc_b64 s[30:31]')
    A('L_pc:')
    A('v_lshrrev_b32 v5, 6, v0')
    S('v_and_b32 %s, 63, v0', vLANE)
    S('v_readfirstlane_b32 %s, v5', sW)
    S('s_lshr_b32 %s, s2, 3', sJ)
    S('s_and_b32 %s, s2, 7', sX)
    if OPT['stamps'] or OPT['diag']:
        A('s_memrealtime s[92:93]')
        A('s_memtime s[94:95]')
    S('v_and_b32 %s, 7, %s', l7, vLANE)
    S('v_lshrrev_b32 %s, 3, %s', l3, vLANE)
    S('s_lshl_b32 %s, %s, 1', t1, sX)
    S('s_lshl2_add_u32 %s, %s, 14', t2, sX)
    S('s_cmp_lt_u32 %s, 8', sJ)
    S('s_cselect_b32 %s, %s, %s', t1, t1, t2)
    S('s_lshr_b32 %s, %s, 2', t2, sJ)
    S('s_add_u32 %s, %s, %s', t5, t1, t2)
    S('s_and_b32 %s, %s, 3', sG, sJ)
    S('s_lshl2_add_u32 %s, %s, %s', t1, sG, sW)
    S('s_lshl_b32 %s, %s, 6', t2, t1)
    S('s_mul_i32 %s, %s, %d', t1, t1, 32 * 6144)
    S('s_lshl_b32 %s, %s, 7', t3, t5)
    S('s_add_u32 %s, %s, %s', t1, t1, t3)
    S('s_cmp_lt_u32 %s, %d', sJ, 8 if OPT['dbg'] & 2 else 24)
    S('s_cselect_b32 %s, 0, 0x%x', t3, OOB)
    S('s_cselect_b32 %s, %s, 0', t1, t1)
    S('v_lshlrev_b32 v11, 3, %s', l3)
    S('v_mul_u32_u24 v13, %d, %s', 4 * 6144, l3)
    S('v_lshl_add_u32 v13, %s, 4, v13', l7)
    S('v_add_u32 v13, %s, v13', t3)
    for b, size in ((64, 1024), (60, 3145728), (32, 2097152), (52, WS_SIZE)):
        S('s_mov_b32 s%d, 0x%x', b + 2, size)
        S('s_mov_b32 s%d, 0x20000', b + 3)
    S('v_lshlrev_b32 v10, 10, %s', l7)
    S('v_lshl_add_u32 v10, %s, 4, v10', l3)
    S('s_lshl_b32 %s, %s, 5', sLID, sX)
    S('s_add_u32 %s, %s, %s', sLID, sLID, sJ)
    S('s_lshl_b32 %s, %s, 13', t0, sLID)
    S('s_lshl_b32 %s, %s, 8', t3, sW)
    S('s_add_u32 %s, %s, %s', t0, t0, t3)
    S('s_lshl_b32 %s, %s, 11', t3, sJ)
    S('v_lshl_add_u32 v145, v0, 3, %s', t3)
    A('v_min_u32 v145, L_localend-L_pc-8, v145')
    A('s_waitcnt lgkmcnt(0)')
    if OPT['diag']:
        A('s_mov_b32 s97, s92')
    if OPT['stamps']:
        A('v_writelane_b32 v255, s92, 0')
        S('v_writelane_b32 v255, %s, 1', 's94' if OPT['stamps'] == 1 else 's92')
    stamp('.kernarg')
    A('s_mov_b64 s[64:65], s[20:21]')
    A('s_mov_b64 s[60:61], s[22:23]')
    S('buffer_load_dwordx2 v[14:15], v11, %s, %s offen', SRD_C, t2)
    for i in range(4):
        tw = S('buffer_load_dwordx4 %s, v13, %s, %s offen%s', vr(64 + 4 * i, 4), SRD_WMOD, t1, ' nt' * OPT['ntw'])
        if i < 3:
            S('s_add_u32 %s, %s, 6144', t1, t1)
    S('s_load_dword %s, s[28:29], %d', sE, WS_E)
    A('s_mov_b64 s[32:33], s[8:9]')
    A('s_barrier')
    S('buffer_load_dwordx4 v[16:19], v10, %s, %s offen', SRD_X, t0)
    tx = S('buffer_load_dwordx4 v[20:23], v10, %s, %s offen offset:128', SRD_X, t0)
    if OPT['cpf'] == 1:
        code_prefetch()
    A('s_mov_b64 s[52:53], s[28:29]')
    S('s_and_b32 %s, %s, 15', sM, sJ)
    S('s_lshr_b32 %s, %s, 4', t0, sJ)
    S('s_lshl2_add_u32 %s, %s, %s', t0, t0, sW)
    S('s_lshl3_add_u32 %s, %s, %s', sT, sX, t0)
    S('s_lshr_b32 %s, %s, 2', t0, sLID)
    S('s_lshl2_add_u32 %s, %s, %s', t0, t0, sW)
    S('s_lshl_b32 %s, %s, 13', t0, t0)
    S('s_lshl_b32 %s, %s, 7', t1, sG)
    S('s_add_u32 %s, %s, %s', t0, t0, t1)
    S('s_add_u32 %s, %s, %d', H_S, t0, WS_H)
    S('v_lshl_add_u32 v11, %s, 9, %s', vLANE, H_S)
    S('s_lshl_b32 %s, %s, 8', t0, sT)
    S('s_add_u32 %s, %s, %d', t0, t0, WS_FA)
    S('v_lshl_add_u32 %s, %s, 2, %s', vPT, vLANE, t0)
    S('v_writelane_b32 v11, %s, 16', t0)
    S('s_add_u32 %s, %s, 128', t0, t0)
    S('v_writelane_b32 v11, %s, 17', t0)
    S('s_lshl_b32 %s, %s, 7', t0, sX)
    S('s_add_u32 %s, %s, %d', t0, t0, WS_XA)
    S('v_writelane_b32 v11, %s, 18', t0)
    S('s_mov_b64 exec, 0x%x', 0x7ffff if OPT['ph'] else 0x70000)
    S('buffer_load_dword v%d, v11, %s, 0 offen sc1', JUNK + 2, SRD_WS)
    A('s_mov_b64 exec, -1')
    S('v_lshlrev_b32 %s, 4, %s', vL16, vLANE)
    return tw, tx


vPD, vPR, PRD = 'v97', 98, 56
sPSRC, sFP = 's66', 's67'


def prep_srd():
    S('s_lshl1_add_u32 %s, %s, %s', t0, sJ, sW)
    S('s_add_u32 %s, %s, 40', t1, sJ)
    S('s_cmp_lt_u32 %s, 2', sW)
    S('s_cselect_b32 %s, %s, %s', sRHO, t0, t1)
    S('s_cmp_lt_u32 %s, 56', sRHO)
    A('s_cselect_b64 s[48:49], s[18:19], s[12:13]')
    A('s_cselect_b32 s50, 7, 2')
    A('s_lshl_b32 s50, s50, 18')
    A('s_mov_b32 s51, 0x20000')


def prep_addr():
    S('s_cmp_lt_u32 %s, 56', sRHO)
    S('s_cselect_b32 %s, 0, 56', t0)
    S('s_cselect_b32 %s, 56, 16', t1)
    S('s_cselect_b32 %s, 2, 1', t3)
    S('s_cselect_b32 %s, 10, 11', t4)
    assert (WS_W2T, WS_WOT) == (2 << 20, 1 << 20)
    S('s_lshl_b32 %s, %s, 20', t2, t3)
    S('s_lshl_b32 %s, %s, 10', t3, t3)
    S('s_sub_u32 %s, %s, %s', t0, sRHO, t0)
    S('s_mul_i32 %s, %s, %s', t1, t1, sX)
    S('s_add_u32 %s, %s, %s', t1, t1, t0)
    S('s_lshl_b32 %s, %s, 12', t1, t1)
    S('s_add_u32 %s, %s, %s', sPS, t1, t2)
    S('s_lshl_b32 %s, %s, 15', t0, t0)
    S('s_lshl_b32 %s, %s, 7', t1, sX)
    S('s_add_u32 %s, %s, %s', sFG, t0, t1)
    S('v_lshrrev_b32 v98, 5, %s', vLANE)
    S('v_lshlrev_b32 v98, %s, v98', t4)
    S('v_bfe_u32 v99, %s, 2, 3', vLANE)
    A('v_lshl_add_u32 v98, v99, 7, v98')
    S('v_and_b32 v99, 3, %s', vLANE)
    A('v_lshl_add_u32 v98, v99, 5, v98')
    S('s_lshl_b32 %s, %s, 12', t0, sW)
    S('s_add_u32 %s, %s, %d', t0, t0, L_STG)
    S('v_add_u32 v98, %s, v98', t0)
    S('v_add_u32 v99, %s, v98', t3)
    S('s_cmp_lt_u32 %s, 2', sW)
    S('s_cselect_b32 %s, 24, %s', t0, sJ)
    S('s_cmp_lt_u32 %s, 24', t0)
    S('s_cselect_b32 %s, 3, %s', t0, sW)
    S('s_cmp_eq_u32 %s, 3', t0)
    S('s_cselect_b32 %s, 0x%x, 0', H_S, OOB)
    if OPT['dbg'] & 1:
        S('s_mov_b32 %s, 0x%x', H_S, OOB)
    S('s_add_u32 %s, %s, %s', sFP, sRHO, t1)
    S('s_lshl_b32 %s, %s, 6', sFP, sFP)
    S('s_add_u32 %s, %s, %d', sFP, sFP, WS_FP)
    S('v_lshrrev_b32 v10, 3, %s', vLANE)
    A('v_mul_u32_u24 v10, %d, v10' % (1024 - 128))
    S('v_add3_u32 %s, v10, %s, %s', vPD, vL16, H_S)


def prep_stream():
    st = Stream()
    for i in range(4):
        def pre(i=i):
            S('s_lshl_b32 s65, %s, 12', sW)
            S('s_add_u32 m0, s65, %d', L_STG + 1024 * i)
            if i:
                S('s_add_u32 %s, %s, 8192', sFG, sFG)
        st.add(lambda: S('buffer_load_dwordx4 %s, %s, %s offen%s lds', vPD, SRD_P, sFG, ' nt' * OPT['ntp']), pre)
    return st


def prep_read(nt):
    for half in range(2):
        t = S('ds_read_b64_tr_b16 %s, v%d offset:%d', vr(128 + 4 * nt + 2 * half, 2), vPR + half, nt * 8)
    return t


def prep_store(p):
    return S('buffer_store_dwordx4 %s, %s, %s, %s offen offset:%d sc1', vr(128 + 4 * p, 4), vPD, SRD_WS, sPS, p * 1024)


def wq_setup():
    srd(SRD_WQKV, 10, 1572864)
    S('v_lshrrev_b32 v12, 2, %s', vLANE)
    A('v_mul_u32_u24 v12, 3072, v12')
    S('v_and_b32 v11, 3, %s', vLANE)
    S('v_lshl_add_u32 %s, v11, 4, v12', vWQ)
    if OPT['dbg'] & 4:
        S('v_add_u32 %s, 0x%x, %s', vWQ, OOB, vWQ)


def mod_partial(tw):
    S('v_lshrrev_b32 v11, 4, %s', vLANE)
    S('v_lshl_add_u32 v11, %s, 2, v11', l7)
    S('s_lshl_b32 %s, %s, 8', t1, sW)
    S('s_add_u32 %s, %s, %d', t1, t1, L_SCR + 1024)
    S('v_lshl_add_u32 v11, v11, 3, %s', t1)
    S('v_and_b32 v12, 0xf0, %s', vL16)
    S('v_add_u32 v13, %d, v12', L_SCR + 1024)
    S('s_mul_i32 %s, %s, 48', t1, sG)
    S('s_add_u32 %s, %s, %s', t1, t1, t5)
    S('s_lshl_b32 %s, %s, 8', t1, t1)
    S('s_add_u32 %s, %s, %d', t1, t1, WS_MOD)
    S('s_getreg_b32 %s, hwreg(HW_REG_XCC_ID, 0, 4)', sXC)
    A.wait(vm=tw - 4)
    stamp('.c')
    unpack(40, 14)
    unpack(42, 15)
    for i in range(4):
        S('v_mul_f32 v%d, 0xbfb8aa3b, v%d', 44 + i, 40 + i)
    for i in range(4):
        S('v_exp_f32 v%d, v%d', 44 + i, 44 + i)
    for i in range(4):
        S('v_add_f32 v%d, 1.0, v%d', 44 + i, 44 + i)
    for i in range(4):
        S('v_rcp_f32 v%d, v%d', 44 + i, 44 + i)
    for i in range(2):
        S('v_pk_mul_f32 %s, %s, %s', vr(40 + 2 * i, 2), vr(40 + 2 * i, 2), vr(44 + 2 * i, 2))
    A('v_cvt_pk_bf16_f32 v44, v40, v41')
    A('v_cvt_pk_bf16_f32 v45, v42, v43')
    unpack(40, 44)
    unpack(42, 45)
    for i in range(4):
        A.wait(vm=tw - 3 + i)
        for d in range(4):
            unpack(80 + 2 * d, 64 + 4 * i + d)
        s = i & 1
        for d in range(4):
            if i == 0:
                S('v_pk_mul_f32 %s, %s, v[40:41] op_sel_hi:[1,0]', vr(48 + 2 * d, 2), vr(80 + 2 * d, 2))
            else:
                S('v_pk_fma_f32 %s, %s, %s, %s op_sel:[0,%d,0] op_sel_hi:[1,%d,1]',
                  vr(48 + 2 * d, 2), vr(80 + 2 * d, 2), vr(40 + (i & ~1), 2), vr(48 + 2 * d, 2), s, s)
    stamp('.fma')
    for i in range(4):
        S('v_permlane32_swap_b32 v%d, v%d', 48 + i, 52 + i)
    for i in range(2):
        S('v_pk_add_f32 %s, %s, %s', vr(48 + 2 * i, 2), vr(48 + 2 * i, 2), vr(52 + 2 * i, 2))
    A('s_waitcnt lgkmcnt(0)')
    S('s_mul_i32 %s, %s, 1664525', sTAG, sE)
    for i in range(2):
        S('v_permlane16_swap_b32 v%d, v%d', 48 + i, 50 + i)
    A('v_pk_add_f32 v[48:49], v[48:49], v[50:51]')
    S('s_add_u32 %s, %s, 1013904223', sTAG, sTAG)
    S('v_mov_b32 %s, %s', vTAG, sTAG)
    for i in range(2):
        S('v_add_f32_dpp v%d, v%d, v%d row_ror:8 row_mask:0xf bank_mask:0xf', 50 + i, 48 + i, 48 + i)
    t = A('ds_write_b64 v11, v[50:51]')
    for i in range(4):
        S('s_bfe_u32 s%d, %s, 0x%x', TAGB + i, sTAG, (8 << 16) | (8 * i))
    if OPT['force_remote']:
        S('s_and_b32 %s, %s, 1', sXC, sJ)
    S('s_add_u32 %s, %s, %s', sXC, sXC, sTAG)
    S('s_add_u32 %s, %s, 1', sXC, sXC)
    S('v_mov_b32 %s, %s', vXCV, sXC)
    A('v_mov_b32 v10, 0xffffff00')
    S('s_cmp_ge_u32 %s, 24', sJ)
    S('s_cselect_b32 %s, 1, %s', t0, sW)
    S('s_cmp_lg_u32 %s, 0', t0)
    A.wait(lg=t)
    A('s_barrier')
    NP, NX = A.label('nopub'), A.label('noxc')
    vm0 = A.vm
    A('s_cbranch_scc1 ' + NP)
    for i in range(4):
        t = S('ds_read_b128 %s, v13 offset:%d', vr(64 + 4 * i, 4), 256 * i)
    A('s_mov_b64 exec, 0xffff')
    A.wait(lg=t)
    for e in range(2):
        S('v_pk_add_f32 %s, %s, %s', vr(64 + 2 * e, 2), vr(64 + 2 * e, 2), vr(68 + 2 * e, 2))
        S('v_pk_add_f32 %s, %s, %s', vr(72 + 2 * e, 2), vr(72 + 2 * e, 2), vr(76 + 2 * e, 2))
    for e in range(2):
        S('v_pk_add_f32 %s, %s, %s', vr(64 + 2 * e, 2), vr(64 + 2 * e, 2), vr(72 + 2 * e, 2))
    for i in range(4):
        S('v_add_u32 v%d, 0x80, v%d', 64 + i, 64 + i)
    for i in range(4):
        S('v_and_or_b32 v%d, v%d, v10, s%d', 64 + i, 64 + i, TAGB + i)
    S('buffer_store_dwordx4 v[64:67], v12, %s, %s offen sc1', SRD_WS, t1)
    A('s_mov_b64 exec, -1')
    A(NP + ':')
    S('s_cmp_lg_u32 %s, 1', sW)
    A('s_cbranch_scc1 ' + NX)
    S('s_lshl2_add_u32 %s, %s, %d', t0, sLID, WS_XA)
    flag_store(t0, False, vXCV)
    A(NX + ':')
    A.lg_done = A.lg
    A.vm = vm0


def ln1(tx, wst):
    wst.drip(OPT['n2'])
    A.wait(vm=tx)
    stamp('.x')
    for i in range(8):
        unpack(24 + 2 * i, 16 + i)
    A('v_pk_add_f32 v[40:41], v[24:25], v[26:27]')
    A('v_pk_mul_f32 v[42:43], v[24:25], v[24:25]')
    A('v_pk_fma_f32 v[42:43], v[26:27], v[26:27], v[42:43]')
    for i in range(2, 8):
        S('v_pk_add_f32 v[40:41], v[40:41], %s', vr(24 + 2 * i, 2))
        S('v_pk_fma_f32 v[42:43], %s, %s, v[42:43]', vr(24 + 2 * i, 2), vr(24 + 2 * i, 2))
    A('v_add_f32 v40, v40, v41')
    A('v_add_f32 v42, v42, v43')
    S('v_lshrrev_b32 v12, 5, %s', vLANE)
    S('v_lshl_add_u32 v12, v12, 3, %s', l7)
    A('v_permlane32_swap_b32 v40, v42')
    A('v_add_f32 v40, v40, v42')
    A('v_mov_b32 v41, v40')
    S('s_lshl2_add_u32 %s, %s, %d', t0, sW, L_SCR)
    S('v_lshlrev_b32 v13, 4, %s', l7)
    A('v_permlane16_swap_b32 v40, v41')
    A('v_add_f32 v40, v40, v41')
    S('v_lshl_add_u32 v12, v12, 4, %s', t0)
    S('v_add_u32 v13, %d, v13', L_SCR)
    A('v_add_f32_dpp v41, v40, v40 row_ror:8 row_mask:0xf bank_mask:0xf')
    t = A('ds_write_b32 v12, v41')
    mod_poll_addr()
    A.wait(lg=t)
    A('s_barrier')
    stamp('.bar2')


def ln1_apply():
    A('ds_read_b128 v[64:67], v13')
    t = A('ds_read_b128 v[68:71], v13 offset:128')
    prep_srd()
    A.wait(lg=t)
    A('v_pk_add_f32 v[64:65], v[64:65], v[66:67]')
    A('v_pk_add_f32 v[68:69], v[68:69], v[70:71]')
    A('v_add_f32 v64, v64, v65')
    A('v_add_f32 v68, v68, v69')
    A('v_mul_f32 v64, 0x3b000000, v64')
    A('v_mul_f32 v68, 0x3b000000, v68')
    A('v_fma_f32 v68, -v64, v64, v68')
    A('v_max_f32 v68, 0, v68')
    A('v_add_f32 v68, 0x3727c5ac, v68')
    A('v_rsq_f32 v60, v68')
    A('v_mul_f32 v61, -v64, v60')
    for i in range(8):
        S('v_pk_fma_f32 %s, %s, v[60:61], v[60:61] op_sel:[0,0,1] op_sel_hi:[1,0,1]', vr(24 + 2 * i, 2), vr(24 + 2 * i, 2))


def sum_partials(base, addend):
    for e in range(2):
        S('v_pk_add_f32 %s, %s, %s', vr(base + 2 * e, 2), vr(base + 2 * e, 2), vr(base + 4 + 2 * e, 2))
        S('v_pk_add_f32 %s, %s, %s', vr(base + 8 + 2 * e, 2), vr(base + 8 + 2 * e, 2), vr(base + 12 + 2 * e, 2))
    for e in range(2):
        S('v_pk_add_f32 %s, %s, %s', vr(base + 2 * e, 2), vr(base + 2 * e, 2), vr(base + 8 + 2 * e, 2))
    for e in range(2):
        S('v_cvt_pk_bf16_f32 v%d, v%d, v%d', base + 4 + e, base + 2 * e, base + 2 * e + 1)
    for e in range(2):
        unpack(base + 8 + 2 * e, base + 4 + e)
    for i in range(4):
        S('v_add_f32 v%d, %s, v%d', base + 8 + i, addend, base + 8 + i)
    for e in range(2):
        S('v_cvt_pk_bf16_f32 v%d, v%d, v%d', base + e, base + 8 + 2 * e, base + 9 + 2 * e)


MP = 156
sMP = ('s92', 's93', 's94', 's95')


def mod_poll_addr():
    S('v_and_b32 v151, 31, %s', vLANE)
    S('v_lshrrev_b32 v12, 5, %s', vLANE)
    S('s_lshl_b32 %s, %s, 9', t0, sW)
    S('v_lshl_add_u32 v156, v151, 4, %s', t0)
    A('v_lshl_add_u32 v156, v12, 11, v156')
    A('v_cvt_f32_u32 v150, v12')
    for i in range(4):
        S('s_mov_b32 %s, %d', sMP[i], WS_MOD + 12288 * i)
    S('s_lshl_b32 %s, %s, 7', t0, sX)
    S('s_add_u32 %s, %s, %d', t0, t0, WS_XA)
    S('v_lshl_add_u32 v157, v151, 2, %s', t0)


def setup_a():
    ln1_apply()
    S('s_lshl_b32 %s, %s, 10', t1, sW)
    S('s_add_u32 %s, %s, %d', t1, t1, L_SCR + 4096)
    S('v_add_u32 v158, %s, %s', t1, vL16)
    S('v_lshl_add_u32 v159, %s, 5, %s', l3, t1)
    S('v_lshlrev_b32 v12, 9, %s', l3)
    S('v_lshl_add_u32 %s, %s, 4, v12', H_V, l7)
    srd(SRD_W1, 16, 1835008)
    srd(SRD_OUT, 24, 2097152)
    S('s_and_b32 %s, %s, 7', sCT, sJ)
    S('s_lshr_b32 %s, %s, 3', t0, sJ)
    S('s_lshl_b32 %s, %s, 1', t0, t0)
    S('s_lshl3_add_u32 %s, %s, %s', sT0, sX, t0)
    if OPT['rot']:
        S('s_lshl1_add_u32 %s, %s, %s', sOWN, sCT, sW)
        S('s_and_b32 %s, %s, 3', sOWN, sOWN)
    else:
        S('s_mov_b32 %s, %s', sOWN, sW)
    S('s_lshl1_add_u32 %s, %s, %s', sTS, sT0, sOWN)
    A('s_mov_b32 s86, 0x0000ffff')
    A('s_mov_b32 s87, 0x0000ffff')
    A('s_mov_b32 s88, 0xffff0000')
    A('s_mov_b32 s89, 0xffff0000')
    S('v_and_b32 v12, 3, %s', vLANE)
    A('v_lshlrev_b32 v13, 3, v12')
    S('v_bfe_u32 v12, %s, 4, 1', vLANE)
    A('v_lshl_add_u32 v13, v12, 5, v13')
    S('v_bfe_u32 v12, %s, 2, 2', vLANE)
    A('v_lshl_add_u32 v13, v12, 6, v13')
    S('v_lshrrev_b32 v12, 5, %s', vLANE)
    A('v_lshl_add_u32 v13, v12, 9, v13')
    A('v_add_u32 v14, 65536, v13')
    S('s_lshl_b32 %s, %s, 15', t1, sT)
    S('s_add_u32 %s, %s, %d', sHL, t1, WS_H)
    S('s_mov_b64 %s, 0xffff', sMASK)
    S('s_lshr_b32 %s, %s, 2', t5, sLID)
    S('s_lshl4_add_u32 %s, %s, %s', t5, t5, sG)
    S('s_lshl2_add_u32 %s, %s, %s', t5, t5, sW)
    S('s_lshl2_add_u32 %s, %s, %d', t5, t5, WS_FA)


def setup_scalar():
    S('s_lshl4_add_u32 %s, %s, %s', t0, sT, sM)
    S('s_lshl_b32 %s, %s, 6', t1, t0)
    S('s_add_u32 %s, %s, %d', sFKV, t1, WS_FKV)
    S('s_lshl_b32 %s, %s, 12', t1, t0)
    S('s_add_u32 %s, %s, %d', sKVO, t1, WS_KV)
    for d, dst in ((4, sR4), (8, sR8)):
        S('s_sub_u32 %s, %s, %d', dst, t0, 16 * d)
        S('s_max_i32 %s, %s, 0', dst, dst)
    S('v_mov_b32 %s, %s', vPKV, sR4)
    S('v_writelane_b32 %s, %s, 1', vPKV, sR8)
    S('v_lshlrev_b32 %s, 6, %s', vPKV, vPKV)
    S('v_add_u32 %s, %d, %s', vPKV, WS_FKV, vPKV)
    for dst in (sR4, sR8):
        S('s_lshl_b32 %s, %s, 12', dst, dst)
        S('s_add_u32 %s, %s, %d', dst, dst, WS_KV)
    S('s_cmp_ge_u32 %s, 4', sT)
    A('s_cselect_b32 s98, 1, 0')
    S('s_cselect_b32 %s, 0, 0x%x', t1, OOB)
    S('v_add_u32 %s, %s, %s', vD4, t1, vL16)
    S('s_cmp_ge_u32 %s, 8', sT)
    A('s_cselect_b32 s98, 3, s98')
    S('s_cselect_b32 %s, 0, 0x%x', t1, OOB)
    S('v_add_u32 %s, %s, %s', vD8, t1, vL16)
    if OPT['dbg'] & 8:
        S('v_mov_b32 %s, 0x%x', vD4, OOB)
        S('v_mov_b32 %s, 0x%x', vD8, OOB)
    A('s_mov_b32 s99, 0')
    S('s_lshl_b32 %s, %s, 6', t1, sT)
    S('s_add_u32 %s, %s, %s', t1, t1, sM)
    S('s_lshl2_add_u32 %s, %s, %d', sFO, t1, WS_FA + 64)
    S('s_add_u32 %s, %s, 128', sFHID, sFO)
    S('s_lshr_b32 %s, %s, 1', t1, sTS)
    S('s_lshl_b32 %s, %s, 5', t1, t1)
    S('s_add_u32 %s, %s, %s', t1, t1, sCT)
    S('s_and_b32 %s, %s, 1', t2, sTS)
    S('s_lshl1_add_u32 %s, %s, %s', t1, t1, t2)
    S('s_lshl2_add_u32 %s, %s, %d', sFY, t1, WS_FA + 128)
    S('s_lshl_b32 %s, %s, 15', t1, sT)
    S('s_add_u32 %s, %s, %d', sYL[0], t1, WS_Y)
    S('s_add_u32 %s, %s, %d', sYL[1], t1, WS_Y + 16384)
    S('s_lshl_b32 %s, %s, 10', t2, sM)
    S('s_add_u32 %s, %s, %s', t1, t1, t2)
    S('s_add_u32 %s, %s, %d', sOO, t1, WS_O)
    S('s_lshl3_add_u32 %s, %s, %s', t1, sTS, sCT)
    S('s_lshl_b32 %s, %s, 11', t2, t1)
    S('s_add_u32 %s, %s, %d', sYO, t2, WS_Y)
    S('s_lshl_b32 %s, %s, 7', t2, t1)
    S('s_add_u32 %s, %s, %d', sSO, t2, WS_STAT)
    S('s_lshl_b32 %s, %s, 11', t2, sT)
    S('s_add_u32 %s, %s, %d', sSL, t2, WS_STAT)
    S('s_lshr_b32 %s, %s, 1', t1, sM)
    S('s_lshl4_add_u32 %s, %s, %s', t1, sT, t1)
    S('s_mul_i32 %s, %s, 7168', t1, t1)
    S('s_add_u32 %s, %s, %d', sHO[0], t1, WS_HID)
    S('s_add_u32 %s, %s, %d', sHO[1], t1, WS_HID + 56 * 1024)
    S('s_lshl3_add_u32 %s, %s, %s', t1, sT0, sW)
    for s in range(4):
        S('s_add_u32 %s, %s, %d', t2, sOWN, s + 1)
        S('s_and_b32 %s, %s, 3', t2, t2)
        S('s_lshl2_add_u32 %s, %s, %s', t2, t2, t1)
        S('s_lshl_b32 %s, %s, 12', t3, t2)
        S('s_add_u32 %s, %s, %d', STG_O[s], t3, WS_O)
        S('s_mul_i32 %s, %s, %d', t3, t2, 14 * 1024)
        S('s_add_u32 %s, %s, %d', STG_H[s], t3, WS_HID)
    S('s_lshl2_add_u32 %s, %s, %s', t1, sCT, sW)
    S('s_lshl_b32 %s, %s, 14', t2, t1)
    S('s_add_u32 %s, %s, %d', sWOB, t2, WS_WOT)
    S('s_mul_i32 %s, %s, %d', t2, t1, 14 * 4096)
    S('s_add_u32 %s, %s, %d', sW2B, t2, WS_W2T)
    S('s_lshr_b32 %s, %s, 1', t1, sW)
    S('s_and_b32 %s, %s, 1', t2, sW)
    S('s_lshl3_add_u32 %s, %s, %s', t1, t1, t2)
    S('s_lshl_b32 %s, %s, 7', t1, t1)
    S('s_add_u32 %s, %s, %s', t1, t1, sM)
    S('s_mul_i32 %s, %s, 224', sW1G, t1)
    S('s_mul_i32 %s, %s, 7168', sW1L, sW)
    S('s_lshl_b32 %s, %s, 2', t1, sW)
    S('s_lshl_b32 s60, 15, %s', t1)
    A('s_mov_b32 s61, s60')
    S('s_lshl_b32 %s, %s, 12', t1, sW)
    S('s_add_u32 %s, %s, %d', t1, t1, L_KV)
    S('v_add_u32 %s, %s, %s', vKV, t1, vL16)


def setup_vector():
    a, b, t, q, l7 = 'v10', 'v11', 'v12', 'v95', 'v13'
    S('v_and_b32 %s, 7, %s', l7, vLANE)
    S('v_and_b32 %s, 15, %s', t, vLANE)
    S('v_lshrrev_b32 %s, 4, %s', q, vLANE)
    S('s_lshl_b32 %s, %s, 14', t0, sTS)
    S('s_lshl_b32 %s, %s, 7', t1, sCT)
    S('s_add_u32 %s, %s, %s', t0, t0, t1)
    S('v_lshl_add_u32 %s, %s, 10, %s', a, t, t0)
    S('v_lshl_add_u32 %s, %s, 5, %s', vXO, q, a)
    if OPT['dbg'] & 16:
        S('v_add_u32 %s, %s, %s', vXO, t0, vL16)
    S('s_add_u32 %s, %s, %d', t1, t1, L_MODL + 1024)
    S('v_lshl_add_u32 %s, %s, 5, %s', vG2A, q, t1)
    S('s_mov_b32 %s, %d', t1, L_GAB)
    S('v_lshl_add_u32 %s, %s, 6, %s', vGAB, q, t1)
    S('s_mov_b32 %s, %d', t1, L_UT)
    S('v_lshl_add_u32 %s, %s, 4, %s', vUTR, q, t1)
    S('s_lshl_b32 %s, %s, 10', t0, sW)
    S('s_add_u32 %s, %s, %d', t1, t0, WS_MOD + 6144)
    S('v_add_u32 %s, %s, %s', vMR0, t1, vL16)
    S('s_lshr_b32 %s, %s, 1', t0, t0)
    S('s_add_u32 %s, %s, %d', t1, t0, L_MODL)
    S('v_lshl_add_u32 %s, %s, 3, %s', vMW, vLANE, t1)
    S('v_bfe_u32 %s, %s, 3, 1', b, vLANE)
    S('v_lshl_add_u32 %s, %s, 1, %s', a, q, b)
    S('v_mul_u32_u24 %s, 6144, %s', a, a)
    S('v_lshl_add_u32 %s, %s, 4, %s', a, l7, a)
    S('s_and_b32 %s, %s, 1', t0, sW)
    S('s_lshl1_add_u32 %s, %s, %s', t1, sCT, t0)
    S('s_lshl_b32 %s, %s, 7', t1, t1)
    S('s_add_u32 %s, %s, %d', t1, t1, WS_MOD + 4096)
    S('v_add_u32 %s, %s, %s', vMR1, t1, a)
    S('s_lshl_b32 %s, %s, 7', t0, t0)
    S('s_add_u32 %s, %s, %d', t0, t0, L_GAB)
    S('v_lshl_add_u32 %s, %s, 8, %s', a, b, t0)
    S('v_lshl_add_u32 %s, %s, 4, %s', a, l7, a)
    S('v_lshrrev_b32 %s, 5, %s', b, vLANE)
    S('v_lshl_add_u32 %s, %s, 2, %s', a, b, a)
    S('v_and_b32 %s, 1, %s', q, q)
    S('v_lshl_add_u32 %s, %s, 3, %s', vGW, q, a)
    S('v_lshlrev_b32 %s, 4, %s', a, t)
    S('v_lshl_add_u32 %s, %s, 14, %s', a, q, a)
    S('v_lshl_add_u32 %s, %s, 8, %s', vOO, b, a)
    S('v_lshlrev_b32 %s, 2, %s', a, t)
    S('v_lshl_add_u32 %s, %s, 6, %s', vSS, b, a)
    S('v_lshl_add_u32 %s, %s, 10, %s', vSL, q, vSS)
    S('s_lshl_b32 %s, %s, 8', t0, sT0)
    S('s_add_u32 %s, %s, %d', t0, t0, WS_FA)
    S('v_lshl_add_u32 %s, %s, 7, %s', a, b, t0)
    S('v_lshl_add_u32 %s, %s, 2, %s', vPG, vLANE, a)
    S('v_bfe_u32 %s, %s, 2, 3', a, vLANE)
    S('v_lshl_add_u32 %s, %s, 4, %s', a, b, a)
    S('v_mul_u32_u24 %s, 224, %s', a, a)
    S('v_and_b32 %s, 3, %s', b, vLANE)
    S('v_lshl_add_u32 v%d, %s, 3, %s', vT1, b, a)
    S('v_add_u32 v%d, 57344, v%d', vT2, vT1)
    S('s_and_b32 %s, %s, 1', t0, sM)
    S('s_lshl_b32 %s, %s, 12', t1, t0)
    S('v_add_u32 %s, %s, %s', vH4, t1, vL16)
    S('s_lshl_b32 %s, %s, 9', t1, t0)
    S('v_lshlrev_b32 %s, 3, %s', vL8, vLANE)
    S('v_add_u32 %s, %s, %s', vH2, t1, vL8)
    for s in range(4):
        S('s_add_u32 %s, %s, %d', t0, sW, s + 1)
        S('s_and_b32 %s, %s, 3', t0, t0)
        S('s_lshl_b32 %s, %s, 13', t0, t0)
        S('s_add_u32 %s, %s, %d', t0, t0, L_RED + (4096 if s == 1 else 0))
        S('v_add_u32 v%d, %s, %s', (vRW + (vRR,))[s], t0, vL16)
    S('s_mul_i32 %s, %s, 14', t0, sW)
    S('v_min_u32 %s, 13, %s', a, t)
    S('v_add_u32 %s, %s, %s', a, t0, a)
    S('s_lshl2_add_u32 %s, %s, 56', t0, sW)
    S('v_and_b32 %s, 3, %s', b, vLANE)
    S('v_add_u32 %s, %s, %s', b, t0, b)
    S('v_cndmask_b32 %s, %s, %s, %s', a, b, a, sMASK)
    S('s_lshl_b32 %s, %s, 13', t0, sCT)
    S('s_add_u32 %s, %s, %d', t0, t0, WS_FP)
    S('v_lshl_add_u32 %s, %s, 6, %s', a, a, t0)
    S('s_mov_b32 %s, %d', t0, WS_FKV)
    S('v_lshl_add_u32 %s, %s, 13, %s', b, l7, t0)
    S('s_or_b32 %s, %s, %s', t0, sLID, sW)
    S('s_min_u32 %s, %s, 1', t0, t0)
    S('s_sub_u32 %s, %s, 1', t0, t0)
    S('s_and_b32 s93, %s, 0xff', t0)
    A('s_mov_b32 s92, 0')
    S('v_cndmask_b32 %s, %s, %s, s[92:93]', vFP, a, b)


def w1_addr():
    for i in range(7):
        S('v_add_u32 v10, %d, %s', 64 * i, vLANE)
        A('v_mul_u32_u24 v11, 4682, v10')
        A('v_lshrrev_b32 v11, 16, v11')
        A('v_mad_i32_i24 v10, v11, -14, v10')
        S('v_add_u32 v10, %s, v10', t4)
        A('v_subrev_u32 v12, 14, v10')
        A('v_min_u32 v10, v10, v12')
        A('v_and_b32 v12, 4, v11')
        A('v_mad_u32_u24 v12, v12, 3, v11')
        A('v_and_b32 v15, 16, v11')
        A('v_add_u32 v12, v12, v15')
        A('v_bfe_u32 v15, v11, 3, 1')
        A('v_mad_i32_i24 v12, v15, -4, v12')
        A('v_mul_u32_u24 v12, 3584, v12')
        S('v_lshl_add_u32 v%d, v10, 4, v12', W1V + i)


def ut_addr():
    S('s_lshl_b32 %s, %s, 5', t3, sW)
    S('s_add_u32 %s, %s, 128', t4, t3)
    S('s_min_u32 %s, %s, 192', t4, t4)
    S('v_add_u32 v%d, %s, v%d', UTA, t3, vT1)
    S('v_add_u32 v%d, %s, v%d', UTA + 1, t3, vT2)
    S('v_add_u32 v%d, %s, v%d', UTA + 2, t4, vT1)
    S('v_add_u32 v%d, %s, v%d', UTA + 3, t4, vT2)
    S('v_and_b32 v10, 1, %s', vLANE)
    A('v_lshlrev_b32 v11, 10, v10')
    S('v_sub_u32 v11, %d, v11', L_MODL + 1024)
    S('v_lshrrev_b32 v12, 4, %s', vLANE)
    S('v_lshl_add_u32 v%d, v12, 5, v11', UTA + 4)
    S('v_lshl_add_u32 v12, v10, 9, %s', vUTR)
    S('v_lshl_add_u32 v%d, %s, 1, v12', UTA + 5, t3)
    S('v_lshl_add_u32 v%d, %s, 1, v12', UTA + 6, t4)


def mod_poll(wst):
    def loads():
        S('buffer_load_dword v58, v157, %s, 0 offen sc1', SRD_WS)
        return [S('buffer_load_dwordx4 %s, v156, %s, %s offen sc1', vr(40 + 4 * i, 4), SRD_WS, sMP[i]) for i in range(4)]
    L, D = A.label('pmod'), A.label('dmod')
    stamp('ln done')
    tk = loads()
    if OPT['cpf'] == 2:
        code_prefetch()
    wst.drip(OPT['n3'])
    setup_a()
    stamp('.setup a')
    for i in range(4):
        A.wait(vm=tk[i])
        untag(40 + 4 * i, 56, i == 0)
    untag_test(56)
    S('s_mov_b32 %s, 0', sCNT)
    A('s_cbranch_vccz ' + D)
    vm_save = A.vm
    A(L + ':')
    loads()
    S('s_add_u32 %s, %s, 1', sCNT, sCNT)
    for i in range(4):
        S('s_waitcnt vmcnt(%d)', 3 - i)
        untag(40 + 4 * i, 56, i == 0)
    untag_test(56)
    S('s_cmp_lt_u32 %s, %d', sCNT, LIMIT)
    A('s_cbranch_vccz ' + D)
    A('s_cbranch_scc1 ' + L)
    A(D + ':')
    A.vm = vm_save
    stamp('mod seen')
    S('v_cmp_ne_u32 vcc, %s, v58', sXC)
    sum_partials(40, 'v150')
    unpack(44, 40)
    unpack(46, 41)
    A('s_cbranch_vccnz L_xcslow')
    A('L_local:')


def xc_slow():
    A('L_xcslow:')
    S('s_mov_b32 %s, 0', sCNT)
    A('L_xc1:')
    S('buffer_load_dword v58, v157, %s, 0 offen sc1', SRD_WS)
    S('s_add_u32 %s, %s, 1', sCNT, sCNT)
    A('s_waitcnt vmcnt(0)')
    S('v_cmp_ne_u32 vcc, %s, v58', sXC)
    A('s_cbranch_vccz L_local')
    S('s_cmp_lt_u32 %s, 32', sCNT)
    A('s_cbranch_scc1 L_xc1')
    S('s_lshl_b32 %s, %s, 6', t0, sLID)
    S('s_add_u32 %s, %s, %d', t0, t0, WS_XB)
    flag_store(t0, True, vXCV)
    S('s_lshl_b32 %s, %s, 11', t0, sX)
    S('s_add_u32 %s, %s, %d', t0, t0, WS_XB)
    S('v_lshl_add_u32 v59, v151, 6, %s', t0)
    S('buffer_load_dword v57, v59, %s, 0 offen sc1', SRD_WS)
    A('s_waitcnt vmcnt(0)')
    S('v_cmp_ne_u32 vcc, %s, v57', sXC)
    A('s_cbranch_vccz L_local')
    S('s_add_u32 %s, %s, 1', t0, sTAG)
    S('v_subrev_u32 v56, %s, v57', t0)
    A('v_cmp_le_u32 vcc, 16, v56')
    A('s_cbranch_vccz L_remote')
    S('s_cmp_lt_u32 %s, %d', sCNT, LIMIT)
    A('s_cbranch_scc1 L_xc1')
    A('L_remote:')


def h_phase(wst, pst):
    t = A('ds_write_b128 v158, v[44:47]')
    S('s_add_u32 %s, %s, 4096', t3, H_S)
    A.wait(lg=t)
    tr = []
    for i in range(4):
        S('ds_read_b128 %s, v159 offset:%d', vr(64 + 8 * i, 4), 256 * (i >> 1) + 16 * (i & 1))
        tr.append(S('ds_read_b128 %s, v159 offset:%d', vr(68 + 8 * i, 4), 512 + 256 * (i >> 1) + 16 * (i & 1)))
    for i in range(4):
        A.wait(lg=tr[i])
        for d in range(2):
            x = 24 + 4 * i + 2 * d
            S('v_pk_fma_f32 %s, %s, %s, %s', vr(x, 2), vr(x, 2), vr(68 + 8 * i + 2 * d, 2), vr(64 + 8 * i + 2 * d, 2))
        for d in range(2):
            x = 24 + 4 * i + 2 * d
            S('v_cvt_pk_bf16_f32 v%d, v%d, v%d', 16 + 2 * i + d, x, x + 1)
        if i & 1:
            ts = S('buffer_store_dwordx4 %s, %s, %s, %s offen%s', vr(16 + 4 * (i >> 1), 4), H_V, SRD_WS, (H_S, t3)[i >> 1], sc('h'))
    stamp('.h st')
    keep = 8 - OPT['wq0']
    wst.drip(max(0, min(OPT['n4'], len(wst) - keep)))
    prep_addr()
    A.wait(vm=ts)
    flag_store(t5, not LOCAL[0])
    stamp('h pub')
    wst.drip(max(0, len(wst) - keep))
    if OPT['ppos'] == 0:
        pst.drip(4)
    stamp('.dma iss')
    sl = capture(setup_scalar)
    A.lines += sl[:OPT['sv']]
    return sl[OPT['sv']:]


def qkv(w1, wq, pst, sl):
    RING = 4
    rd = {}

    def bread(s, tile):
        b = 64 + 8 * (s % RING)
        for half in range(2):
            rd[s] = S('ds_read_b64_tr_b16 %s, v13 offset:%d', vr(b + 4 * tile + 2 * half, 2), tile * 32768 + s * 1024 + half * 256)
    poll(vPT, 0, 'h', sMASK)
    stamp('h seen')
    ta = []

    def aload(s):
        if s and s & 3 == 0:
            S('s_add_u32 %s, %s, 4096', sHL, sHL)
        ta.append(S('buffer_load_dwordx4 %s, %s, %s, %s offen offset:%d sc1', vr(128 + 4 * s, 4), vL16, SRD_WS, sHL, (s & 3) * 1024))
    AH = 10
    twq = 0
    for s in range(AH):
        aload(s)
    A('s_barrier')
    for s in range(RING - 1):
        bread(s, 0)
        bread(s, 1)
    A.lines += sl
    S('s_and_b32 %s, %s, 1', t4, sM)
    S('s_lshl_b32 %s, %s, 1', t4, t4)
    fill = capture(w1_addr)
    for s in range(32):
        b = 64 + 8 * (s % RING)
        A.wait(vm=ta[s], lg=rd[s])
        a = vr(128 + 4 * s, 4)
        S('%s v[16:31], %s, %s, %s', MF32, vr(b, 4), a, 'v[16:31]' if s else '0')
        if s + AH < 32:
            aload(s + AH)
        elif s + AH - 32 < OPT['wq1'] and len(wq):
            twq = wq.drip(1)
        elif OPT['ppos'] == 1 and len(pst):
            twq = pst.drip(1)
        if s + RING - 1 < 32:
            bread(s + RING - 1, 0)
        A.lines += fill[:2]
        S('%s v[32:47], %s, %s, %s', MF32, a, vr(b + 4, 4), 'v[32:47]' if s else '0')
        if s + RING - 1 < 32:
            bread(s + RING - 1, 1)
        A.lines += fill[2:4]
        fill = fill[4:]
    assert not fill
    stamp('kv pass')
    for p in range(4):
        for d in range(4):
            S('v_cvt_pk_bf16_f32 v%d, v%d, v%d', 48 + 4 * p + d, 16 + 8 * p + 2 * d, 17 + 8 * p + 2 * d)
        tkvs = S('buffer_store_dwordx4 %s, %s, %s, %s offen offset:%d sc1', vr(48 + 4 * p, 4), vL16, SRD_WS, sKVO, p * 1024)
    stamp('.kv st')
    twq = wq.drip(OPT['wq2']) or twq
    for p in range(4):
        tl = S('ds_write_b128 %s, %s offset:%d', vKV, vr(48 + 4 * p, 4), 8 * 4096 + p * 1024)

    def masks():
        S('v_and_b32 v11, 31, %s', vLANE)
        S('v_lshrrev_b32 v12, 5, %s', vLANE)
        A('v_lshlrev_b32 v12, 2, v12')
        A('v_sub_u32 v11, v11, v12')
        A('v_mov_b32 v12, 0xff800000')
        ms = ('s[90:91]', 's[92:93]', 's[94:95]')
        for r in range(18):
            if r < 16:
                S('v_cmp_le_i32 %s, %d, v11', ms[r % 3], (r & 3) + 8 * (r >> 2))
            if r >= 2:
                S('v_cndmask_b32 v%d, v12, 0, %s', MD + r - 2, ms[(r - 2) % 3])
                S('v_cndmask_b32 v%d, 0, v12, %s', MFAR + r - 2, ms[(r - 2) % 3])
    masks()
    fill = capture(lambda: (setup_vector(), ut_addr()))
    A.lines += fill[:len(fill) - 60]
    fill = fill[len(fill) - 60:]
    stamp('.masks')

    def kvflag():
        A.wait(vm=tkvs)
        flag_store(sFKV, True)
        stamp('kv pub')
    if OPT['qf'] < 0:
        kvflag()
    twq = wq.drip(99) or twq
    twq = pst.drip(4) or twq
    A.wait(vm=twq, lg=tl)
    A('s_barrier')
    stamp('wq ready')
    rq = {}

    def qread(s):
        b = 64 + 4 * (s % 6)
        for half in range(2):
            rq[s] = S('ds_read_b64_tr_b16 %s, v14 offset:%d', vr(b + 2 * half, 2), s * 1024 + half * 256)
    early = OPT['qchk'] < 32
    if OPT['qp'] == 0 and early:
        tpoll = poll_load(vPKV, 0)
    for s in range(5):
        qread(s)

    def kv_dma():
        for t, slot, v in ((sR4, 4, vD4), (sR8, 0, vD8)):
            S('s_add_u32 m0, %s, %d', t2, L_KV + slot * 4096)
            for p in range(4):
                tk = S('buffer_load_dwordx4 %s, %s, %s offen offset:%d sc1 lds', v, SRD_WS, t, p * 1024)
        return tk
    LATE = A.label('kvlate')
    S('s_mov_b32 %s, 1', t5)
    S('s_lshl_b32 %s, %s, 12', t2, sW)
    nd = 0
    for s in range(32):
        A.wait(lg=rq[s])
        S('%s v[48:63], %s, %s, %s', MF32, vr(64 + 4 * (s % 6), 4), vr(128 + 4 * s, 4), 'v[48:63]' if s else '0')
        if s and s == OPT['qp'] and early:
            tpoll = poll_load(vPKV, 0)
        if OPT['qchk'] < s < 27 and s % 2 == 0 and nd < OPT['qd']:
            w1.pre()
        if s + 5 < 32:
            qread(s + 5)
        if s == OPT['qf']:
            kvflag()
        if s == OPT['qchk']:
            stamp('.q chk')
            A.wait(vm=tpoll)
            stamp('.polled')
            poll_test(sM2)
            A('s_cbranch_scc1 ' + LATE)
            tkv = kv_dma()
            S('s_mov_b32 %s, 0', t5)
            A(LATE + ':')
        if w1.ready:
            w1.go()
            nd += 1
        elif s >= 27:
            if s < 31:
                tpr = prep_read(s - 27)
        A.lines += fill[:2]
        fill = fill[2:]
    assert not fill
    S('v_add_u32 %s, %s, %s', vPD, H_S, vL16)
    stamp('q pass')
    if early:
        OKK = A.label('kvok')
        S('s_cmp_eq_u32 %s, 0', t5)
        A('s_cbranch_scc1 ' + OKK)
        vm_save, vd = A.vm, A.vm_done
        poll(vPKV, 0, 'kv', sM2)
        kv_dma()
        A('s_waitcnt vmcnt(0)')
        A.vm, A.vm_done = vm_save, vd
        A(OKK + ':')
    else:
        w1.drip(OPT['qp'])
        poll(vPKV, 0, 'kv', sM2)
        stamp('.kv seen')
        tkv = kv_dma()
        w1.drip(OPT['qd'])
    S('s_mov_b32 %s, 0x3eb8aa3b', t0)
    S('s_mov_b32 %s, 0x3eb8aa3b', t1)
    A.wait(lg=tpr)
    for p in range(4):
        tps = prep_store(p)
    for r in range(16):
        S('v_mov_b32 v%d, 0x3f803f80', V0 + r)
    return tkv, tps


def mr_load(i):
    if i < 4:
        S('s_mov_b32 s65, %d', 12288 * i)
        return S('buffer_load_dwordx4 %s, %s, %s, s65 offen sc1', vr(MRD + 4 * i, 4), vMR0, SRD_WS)
    return S('buffer_load_dwordx4 %s, %s, %s, 0 offen sc1', vr(MRD + 16, 4), vMR1, SRD_WS)


def kv_off(d, piece):
    return (8 - d) * 4096 + piece * 1024


def attention(w1, tkv, tps):
    bg = Stream()
    wo = frag_stream(sWOB, 4, 192)
    tk = {}
    RET, RETB = A.label('fpretry'), A.label('fpback')

    def fp_load():
        tk[0] = poll_load(vFP, 0)

    def fp_check():
        A.wait(vm=tk[0])
        S('v_cmp_ne_u32 vcc, %s, v15', sTAG)
        A('s_cbranch_vccnz ' + RET)
        A(RETB + ':')
    while len(bg) < OPT['aw1']:
        bg.q.append(w1.q.pop(0) if len(w1) else (lambda: None, None))
    if LOCAL[0] and OPT['po']:
        bg.add(lambda: touch(vOO, sOO))
        bg.add(lambda: touch(vOO, sOO, 512))

    def fp_flag():
        A.wait(vm=tps)
        S('v_mov_b32 v15, %s', H_S)
        A('s_mov_b64 exec, 1')
        S('buffer_store_dword %s, v15, %s, %s offen sc1', vTAG, SRD_WS, sFP)
        A('s_mov_b64 exec, -1')
    bg.q.insert(OPT['fpl'], (fp_load, None))
    bg.q.insert(OPT['fpf'], (fp_flag, None))
    bg.add(fp_check)
    chk = bg.q.pop()
    for i in range(5):
        bg.add(lambda i=i: mr_load(i))
    bg.add(lambda: S('buffer_load_dwordx4 %s, %s, %s, 0 offen', vr(XT, 4), vXO, SRD_X))
    bg.add(lambda: S('buffer_load_dwordx4 %s, %s, %s, 0 offen offset:16', vr(XT + 4, 4), vXO, SRD_X))
    bg.q.append(chk)
    nmust = len(bg)
    if not OPT['nobg'] & 4:
        bg.q += wo.q
    bg.q += w1.q
    ntail = len(bg) - nmust

    def cop(d):
        return vr(MD, 16) if d == 0 else vr(MFAR, 16) if d == 8 else '0'

    def rdK(h, d):
        return S('ds_read_b128 %s, %s offset:%d', vr((K0, K1)[h], 4), vKV, kv_off(d, h))

    def rdV(h, d):
        if d:
            S('s_cselect_b64 exec, -1, %s', (sLO, sHI)[h])
        else:
            S('s_mov_b64 exec, %s', (sLO, sHI)[h])
        S('ds_read_b128 %s, %s offset:%d', vr((V0, V1)[h], 4), vKV, kv_off(d, 2))
        t = S('ds_read_b128 %s, %s offset:%d', vr((V0, V1)[h] + 4, 4), vKV, kv_off(d, 3))
        A('s_mov_b64 exec, -1')
        return t

    rdK(0, 0)
    rdK(1, 0)
    rdV(0, 0)
    for i in range(8):
        S('v_pk_mul_f32 %s, %s, s[76:77]', vr(48 + 2 * i, 2), vr(48 + 2 * i, 2))
    for i in range(8):
        S('v_cvt_pk_bf16_f32 v%d, v%d, v%d', 48 + i, 48 + 2 * i, 49 + 2 * i)
    A.wait(lg='all')
    S('%s %s, %s, %s, %s', MF32, vr(S0, 16), vr(K0, 4), vr(Q0, 4), cop(0))

    def half(h, d):
        S_, P, O, V = (S0, S1)[h], (P0, P1)[h], (O0, O1)[h], (V0, V1)[h]
        oS, oP, oO, oV, oK, oQ = (S1, S0)[h], (P1, P0)[h], (O1, O0)[h], (V1, V0)[h], (K1, K0)[h], (Q1, Q0)[h]
        od = d if h == 0 else d + 1
        first = d == 0 and h == 0
        if od <= 8:
            S('%s %s, %s, %s, %s', MF32, vr(oS, 16), vr(oK, 4), vr(oQ, 4), cop(od))
            if od:
                S('s_cmp_lt_u32 %s, %d', sT, od)
        if not first:
            if d + 1 <= 8:
                rdK(h, d + 1)
            bg.go()
        else:
            rdV(1, 0)
        for i in range(4):
            S('v_exp_f32 v%d, v%d', S_ + i, S_ + i)
        if not first:
            S('%s %s, %s, %s, %s', MF32, vr(oO, 16), vr(oV + 4, 4), vr(oP + 4, 4), vr(oO, 16))
            if od <= 8:
                rdV(1 - h, od)
            bg.pre()
        for i in range(4, 8):
            S('v_exp_f32 v%d, v%d', S_ + i, S_ + i)
        for i in range(4):
            S('v_cvt_pk_bf16_f32 v%d, v%d, v%d', P + i, S_ + 2 * i, S_ + 2 * i + 1)
        for i in range(8, 12):
            S('v_exp_f32 v%d, v%d', S_ + i, S_ + i)
        S('%s %s, %s, %s, %s', MF32, vr(O, 16), vr(V, 4), vr(P, 4), vr(O, 16) if d else '0')
        if first:
            A.wait(vm=tkv)
            A('s_barrier')
            stamp('kv loaded')
            rdK(0, 1)
            bg.drip(3)
        else:
            A.wait(lg='all')
            bg.go()
        bg.pre()
        for i in range(12, 16):
            S('v_exp_f32 v%d, v%d', S_ + i, S_ + i)
        for i in range(4, 8):
            S('v_cvt_pk_bf16_f32 v%d, v%d, v%d', P + i, S_ + 2 * i, S_ + 2 * i + 1)
        if first:
            A.wait(lg='all')

    for d in range(9):
        if d in (3, 6):
            stamp('.d%d' % d)
        half(0, d)
        half(1, d)
    bg.drip(max(0, len(bg) - ntail))
    w1.q, w1.ready = bg.q, bg.ready
    S('%s %s, %s, %s, %s', MF32, vr(O1, 16), vr(V1 + 4, 4), vr(P1 + 4, 4), vr(O1, 16))
    stamp('att done')
    FB, OK = A.label('fb'), A.label('attok')
    S('s_mov_b32 %s, 0x1f800000', t0)
    S('s_mov_b32 %s, 0x5f800000', t1)
    S('s_mov_b32 %s, 0x7f000000', t2)
    S('v_add_f32 v10, abs(v%d), abs(v%d)', O0, O0 + 1)
    for i in range(2, 8):
        S('v_add_f32 v10, v10, abs(v%d)', O0 + i)
    S('v_cmp_nle_f32 vcc, %s, v%d', t0, O0 + 8)
    S('v_cmp_nge_f32 s[92:93], %s, v%d', t1, O0 + 8)
    for i in range(8):
        S('v_add_f32 v10, v10, abs(v%d)', O1 + 8 + i)
    A('s_or_b64 vcc, vcc, s[92:93]')
    S('v_cmp_nle_f32 s[92:93], %s, v%d', t0, O1)
    S('v_cmp_nge_f32 s[94:95], %s, v%d', t1, O1)
    S('v_cmp_ngt_f32 s[90:91], %s, v10', t2)
    S('v_rcp_f32 v10, v%d', O0 + 8)
    S('v_rcp_f32 v12, v%d', O1)
    A('s_or_b64 vcc, vcc, s[92:93]')
    A('s_or_b64 vcc, vcc, s[94:95]')
    A('s_or_b64 vcc, vcc, s[90:91]')
    if OPT['force_fallback']:
        A('s_branch ' + FB)
    A('s_cbranch_scc1 ' + FB)
    A(OK + ':')
    for h, (src, rc) in enumerate(((O0, 10), (O1 + 8, 12))):
        for i in range(4):
            S('v_pk_mul_f32 %s, %s, %s op_sel_hi:[1,0]', vr(src + 2 * i, 2), vr(src + 2 * i, 2), vr(rc, 2))
        for i in range(4):
            S('v_cvt_pk_bf16_f32 v%d, v%d, v%d', P0 + 4 * h + i, src + 2 * i, src + 2 * i + 1)
        ts = S('buffer_store_dwordx4 %s, %s, %s, %s offen offset:%d%s', vr(P0 + 4 * h, 4), vOO, SRD_WS, sOO, h * 512, sc('o'))
    return (FB, OK, RET, RETB), ts


def out_of_line(FB, OK, RET, RETB):
    A(RET + ':')
    A('s_cselect_b32 s66, 1, 0')
    poll(vFP, 0, 'fp', '-1')
    A('s_cmp_lg_u32 s66, 0')
    A('s_branch ' + RETB)
    A(FB + ':')
    S('s_min_u32 %s, %s, 8', t3, sT)
    for r in range(16):
        S('v_mov_b32 v%d, 0x3f803f80', V0 + r)
    for h in range(2):
        Kp, Q, O, V = h, (Q0, Q1)[h], (O0, O1)[h], (V0, V1)[h]
        for ps in range(2):
            L, ND, NF = A.label('fl'), A.label('fnd'), A.label('fnf')
            S('s_mov_b32 %s, 0', t4)
            S('v_add_u32 v10, %d, %s', 8 * 4096, vKV)
            if ps == 0:
                A('v_mov_b32 v11, 0xff800000')
            else:
                for r in range(16):
                    S('v_mov_b32 v%d, 0', O + r)
            A(L + ':')
            S('ds_read_b128 %s, v10 offset:%d', vr(K0, 4), Kp * 1024)
            if ps == 1:
                S('s_mov_b64 exec, %s', (sLO, sHI)[h])
                S('ds_read_b128 %s, v10 offset:2048', vr(V, 4))
                S('ds_read_b128 %s, v10 offset:3072', vr(V + 4, 4))
                A('s_mov_b64 exec, -1')
            A('s_waitcnt lgkmcnt(0)')
            S('%s %s, %s, %s, 0', MF32, vr(S0, 16), vr(K0, 4), vr(Q, 4))
            A('s_nop 15')
            S('s_cmp_lg_u32 %s, 0', t4)
            A('s_cbranch_scc1 ' + ND)
            for r in range(16):
                S('v_add_f32 v%d, v%d, v%d', S0 + r, S0 + r, MD + r)
            A(ND + ':')
            S('s_cmp_lg_u32 %s, 8', t4)
            A('s_cbranch_scc1 ' + NF)
            for r in range(16):
                S('v_add_f32 v%d, v%d, v%d', S0 + r, S0 + r, MFAR + r)
            A(NF + ':')
            if ps == 0:
                for r in range(8):
                    S('v_max3_f32 v11, v11, v%d, v%d', S0 + 2 * r, S0 + 2 * r + 1)
            else:
                for r in range(16):
                    S('v_sub_f32 v%d, v%d, v11', S0 + r, S0 + r)
                for r in range(16):
                    S('v_exp_f32 v%d, v%d', S0 + r, S0 + r)
                for r in range(8):
                    S('v_cvt_pk_bf16_f32 v%d, v%d, v%d', P0 + r, S0 + 2 * r, S0 + 2 * r + 1)
                S('%s %s, %s, %s, %s', MF32, vr(O, 16), vr(V, 4), vr(P0, 4), vr(O, 16))
                S('%s %s, %s, %s, %s', MF32, vr(O, 16), vr(V + 4, 4), vr(P0 + 4, 4), vr(O, 16))
                A('s_nop 15')
            A('v_subrev_u32 v10, 4096, v10')
            S('s_add_u32 %s, %s, 1', t4, t4)
            S('s_cmp_le_u32 %s, %s', t4, t3)
            A('s_cbranch_scc1 ' + L)
            if ps == 0:
                A('v_mov_b32 v12, v11')
                A('v_permlane32_swap_b32 v11, v12')
                A('v_max_f32 v11, v11, v12')
    S('v_rcp_f32 v10, v%d', O0 + 8)
    S('v_rcp_f32 v12, v%d', O1)
    A('s_nop 1')
    A('s_branch ' + OK)


def ring_gemm(nks, STG, areg, ring_base, ring_n, ahead, split=(), pre=None, post=None, npost=0, extra=None, head=None):
    ta = {}
    aq = Stream()
    n = 4 * nks
    for i in range(n):
        st, k = divmod(i, nks)
        r = ring_base + 4 * (i % ring_n)

        def pr(st=st, k=k):
            if k and k & 3 == 0:
                S('s_add_u32 %s, %s, 4096', STG[st], STG[st])

        def f(i=i, st=st, k=k, r=r):
            if k in split:
                for hf in range(2):
                    ta[i] = S('buffer_load_dwordx2 %s, %s, %s, %s offen offset:%d sc1', vr(r + 2 * hf, 2), vL8, SRD_WS, STG[st], (k & 3) * 1024 + 512 * hf)
            else:
                ta[i] = S('buffer_load_dwordx4 %s, %s, %s, %s offen offset:%d sc1', vr(r, 4), vL16, SRD_WS, STG[st], (k & 3) * 1024)
        aq.add(f, pr)
    assert ahead < ring_n or n <= ring_n
    aq.drip(ahead)
    if head:
        head()
    btick = {}
    long_ = nks >= 8
    acc = (CA, CB, CA, CO) if long_ else (CA, CB, 112, CO)
    tw = {}
    for i in range(n):
        st, k = divmod(i, nks)
        tk = ta[i]
        assert not pre or len(pre) <= 4 * (nks - 1 - i) or not len(pre)
        if st == 0 and k in btick:
            tk = max(tk, btick[k])
        lgw = None
        slots = [[], [], [], []]

        def wr(g, st=st):
            tw[st - 1] = S('ds_write_b128 v%d, %s offset:%d', vRW[st - 1], vr(acc[st - 1] + 4 * g, 4), g * 1024)

        def rds(dst, off):
            for g in range(4):
                slots[g].append(lambda g=g: S('ds_read_b128 %s, v%d offset:%d', vr(dst + 4 * g, 4), vRR, off + g * 1024))
        if k == 0 and OPT['fine'] in (3, 4):
            A.wait(vm=tk)
            stamp('.st%d' % st)
        if long_:
            if st >= 1 and 1 <= k <= 4:
                slots[3].append(lambda k=k: wr(k - 1))
            if st >= 2 and k == 0 or (st == 3 and k == 7):
                A.wait(vm=tk, lg='all')
                A('s_barrier')
                rds(*((CO, 0) if st == 2 else (CR, 4096) if k == 0 else (CB, 0)))
            if st == 3 and k in (10, 11, 12, 13):
                lgw = 'all'
                for g in range(4):
                    r = 4 * (k - 10) + g
                    slots[g].append(lambda r=r: S('v_add_f32 v%d, v%d, v%d', CR + r, CR + r, CB + r))
        else:
            if st >= 1:
                slots[3 - k].append(lambda k=k: wr(k))
            if st == 2 and k == 1:
                A.wait(vm=tk, lg=tw[0])
                A('s_barrier')
                rds(CO, 0)
            if st == 3 and k == 0:
                A.wait(vm=tk, lg='all')
                A('s_barrier')
                rds(CR, 4096)
        if extra:
            extra(st, k, slots)
        A.wait(vm=tk, lg=lgw)
        a = vr(ring_base + 4 * (i % ring_n), 4)
        for nt in range(4):
            c = vr(acc[st] + 4 * nt, 4)
            S('%s %s, %s, %s, %s', MF16, c, ar(areg + 16 * k + 4 * nt, 4), a, c if (k or st == 3) else '0')
            if nt == 0:
                aq.pre()
            if nt == 1:
                if len(aq):
                    aq.go()
                elif post and npost > 0:
                    post.drip(1)
                    npost -= 1
            if nt == 2:
                if pre and len(pre):
                    kk = nks - (len(pre) + 3) // 4
                    btick[kk] = pre.drip(1)
                elif not len(aq) and post and npost > 0:
                    post.drip(1)
                    npost -= 1
            for f in slots[nt]:
                f()
    if post and npost > 0:
        post.drip(npost)
    stamp('.mm end')
    if not long_:
        A.wait(lg='all')
        A('s_barrier')
        for g in range(4):
            tr = S('ds_read_b128 %s, v%d offset:%d', vr(CB + 4 * g, 4), vRR, g * 1024)
    for g in range(8):
        S('v_pk_add_f32 %s, %s, %s', vr(CO + 2 * g, 2), vr(CO + 2 * g, 2), vr(CR + 2 * g, 2))
    if not long_:
        for g in range(4):
            A.wait(lg=tr - 3 + g)
            for e in range(2):
                r = 4 * g + 2 * e
                S('v_pk_add_f32 %s, %s, %s', vr(CO + r, 2), vr(CO + r, 2), vr(CB + r, 2))


def wo_phase(ts, w1, w2):
    stamp('.o st')
    w1.drip(OPT['ow1'])
    A.wait(vm=ts - 2)
    L, D = A.label('pmr'), A.label('dmr')
    S('s_mov_b32 %s, 0', sCNT)
    A(L + ':')
    for i in range(5):
        untag(MRD + 4 * i, 148, i == 0)
    untag_test(148)
    A('s_cbranch_vccz ' + D)
    S('s_add_u32 %s, %s, 1', sCNT, sCNT)
    S('s_cmp_ge_u32 %s, %d', sCNT, LIMIT)
    A('s_cbranch_scc1 ' + D)
    vm_save = A.vm
    for i in range(5):
        mr_load(i)
    A.vm = vm_save
    A('s_waitcnt vmcnt(0)')
    A('s_branch ' + L)
    A(D + ':')
    A.wait(vm=ts)
    flag_store(sFO, not LOCAL[0])
    stamp('o pub')
    w1.drip(99)
    if LOCAL[0] and OPT['py']:
        touch(vL16, sYO)
        touch(vL16, sYO, 1024)
        S('buffer_load_dword v%d, %s, %s, %s offen sc1', JUNK, vSS, SRD_WS, sSO)
    S('s_cmp_ge_u32 %s, 2', sW)
    S('s_cselect_b32 %s, 1.0, 0', t4)
    g = MRD + 16
    S('v_permlane32_swap_b32 v%d, v%d', g, g + 1)
    S('v_permlane32_swap_b32 v%d, v%d', g + 2, g + 3)
    S('v_add_f32 v%d, v%d, v%d', g, g, g + 1)
    S('v_add_f32 v%d, v%d, v%d', g + 2, g + 2, g + 3)
    sum_partials(MRD, t4)
    S('v_permlane16_swap_b32 v%d, v%d', g, g + 2)
    S('v_add_f32 v%d, v%d, v%d', g, g, g + 2)
    S('v_cvt_pk_bf16_f32 v%d, v%d, v%d', g, g, g)
    S('v_lshlrev_b32 v12, 16, v%d', g)
    for i in range(7, -1, -1):
        S('v_and_b32 v%d, 0xffff0000, v%d', X2 + 2 * i + 1, XT + i)
        S('v_lshlrev_b32 v%d, 16, v%d', X2 + 2 * i, XT + i)
    A('s_barrier')
    S('ds_write_b64 %s, %s', vMW, vr(MRD, 2))
    t = S('ds_write_b32 %s, v12', vGW)
    A.wait(lg=t)
    stamp('.mr')
    poll(vPG, 64, 'o', sGM)
    stamp('o seen')

    def head():
        A('s_barrier')
        for i in range(2):
            S('ds_read_b128 %s, %s offset:%d', vr(80 + 4 * i, 4), vG2A, 16 * i)
        for i in range(4):
            t = S('ds_read_b128 %s, %s offset:%d', vr(GA + 4 * i, 4), vGAB, 16 * i)
        ut_steps(0, OPT['uh'])
        A.wait(lg=t)

    def extra(st, k, slots):
        if st == 0:
            for i in (2 * k, 2 * k + 1):
                slots[(0, 3)[i & 1]].append(lambda i=i: unpack(G2 + 2 * i, 80 + i))
    ring_gemm(4, STG_O, 192, 128, 16, 12, post=w2, npost=OPT['w2a'], extra=extra, head=head)
    stamp('wo gemm')
    for e in range(2):
        for i in range(4 * e, 4 * e + 4):
            S('v_pk_fma_f32 %s, %s, %s, %s', vr(X2 + 2 * i, 2), vr(CO + 2 * i, 2), vr(GA + 2 * i, 2), vr(X2 + 2 * i, 2))
        for i in range(4 * e, 4 * e + 4):
            S('v_pk_mul_f32 %s, %s, %s', vr(G2 + 2 * i, 2), vr(X2 + 2 * i, 2), vr(G2 + 2 * i, 2))
        for i in range(4 * e, 4 * e + 4):
            S('v_cvt_pk_bf16_f32 v%d, v%d, v%d', 192 + i, G2 + 2 * i, G2 + 1 + 2 * i)
        S('buffer_store_dwordx4 %s, %s, %s, %s offen offset:%d%s', vr(192 + 4 * e, 4), vL16, SRD_WS, sYO, e * 1024, sc('y'))
    S('v_pk_add_f32 v[200:201], %s, %s', vr(X2, 2), vr(X2 + 2, 2))
    S('v_pk_mul_f32 v[202:203], %s, %s', vr(X2, 2), vr(X2, 2))
    S('v_pk_fma_f32 v[202:203], %s, %s, v[202:203]', vr(X2 + 2, 2), vr(X2 + 2, 2))
    for i in range(2, 8):
        S('v_pk_add_f32 v[200:201], v[200:201], %s', vr(X2 + 2 * i, 2))
        S('v_pk_fma_f32 v[202:203], %s, %s, v[202:203]', vr(X2 + 2 * i, 2), vr(X2 + 2 * i, 2))
    A('v_add_f32 v200, v200, v201')
    A('v_add_f32 v202, v202, v203')
    A('v_permlane32_swap_b32 v200, v202')
    A('v_add_f32 v200, v200, v202')
    A('v_mov_b32 v201, v200')
    A('v_permlane16_swap_b32 v200, v201')
    A('v_add_f32 v200, v200, v201')
    ts = S('buffer_store_dword v200, %s, %s, %s offen%s', vSS, SRD_WS, sSO, sc('y'))
    stamp('.y st')
    return ts


UACC = (96, 204)


def ut_steps(k0, k1, hook=None, tail=None):
    rd = {}
    UB = 16

    def rv(ks):
        S('ds_read_b128 %s, v%d offset:%d', vr(UB + 12 * (ks % 4), 4), UTA + 4, 128 * (ks >> 1) + 16 * (ks & 1))

    def rt(ks, n):
        for half in range(2):
            rd[ks] = S('ds_read_b64_tr_b16 %s, v%d offset:%d', vr(UB + 12 * (ks % 4) + 4 + 4 * n + 2 * half, 2), UTA + 2 * n + (ks >> 3), (ks & 7) * 7168 + half * 8 * 224)
    for ks in range(k0, min(k0 + 3, k1)):
        rv(ks), rt(ks, 0), rt(ks, 1)
    if hook:
        hook(k0 - 1)
    for ks in range(k0, k1):
        A.wait(lg=rd[ks])
        b = UB + 12 * (ks % 4)
        for n in range(2):
            c = vr(UACC[n], 4)
            S('%s %s, %s, %s, %s', MF16, c, vr(b + 4 + 4 * n, 4), vr(b, 4), c if ks else '0')
            if ks + 3 < k1:
                if n == 0:
                    rv(ks + 3)
                rt(ks + 3, n)
            elif tail:
                tail(ks, n)
        if hook:
            hook(ks)


def g1_phase(ts, w2):
    passes = ((0, 1, 2, 3, 6), (4, 5)) if OPT['gsplit'] == 1 else ((0, 1, 2, 3), (4, 5, 6)) if OPT['gsplit'] == 2 else ((0, 1, 2, 3, 4, 5, 6),)
    groups = [(ks, nt) for p in passes for ks in range(16) for nt in p]
    AHB = 5
    ta = {}
    aq = Stream()
    for ks in range(16):
        for tt in range(2):
            def pr(ks=ks, tt=tt):
                if ks and ks & 3 == 0:
                    S('s_add_u32 %s, %s, 4096', sYL[tt], sYL[tt])

            def f(ks=ks, tt=tt):
                ta[ks, tt] = S('buffer_load_dwordx4 %s, %s, %s, %s offen offset:%d sc1', vr(YA + 8 * ks + 4 * tt, 4), vL16, SRD_WS, sYL[tt], (ks & 3) * 1024)
            aq.add(f, pr)
    first = list(aq.q[:8])
    LATE = A.label('ylate')
    rb = {}

    def bread(g, half):
        ks, nt = groups[g]
        rb[g] = S('ds_read_b64_tr_b16 %s, v%d offset:%d', vr(BF + 4 * (g % 6) + 2 * half, 2), (vT1, vT2)[ks >> 3], (ks & 7) * 7168 + half * 8 * 224 + nt * 32)
    tp = {}

    def hook(ks):
        if ks == OPT['uh'] - 1:
            w2.drip(min(4, OPT['w2b']))
            S('s_mov_b32 %s, 1', t5)
        if ks == OPT['uf']:
            A.wait(vm=ts)
            flag_store(sFY, not LOCAL[0])
            stamp('y pub')
            w2.drip(max(0, OPT['w2b'] - 4))
        if ks == OPT['up']:
            tp[0] = poll_load(vPT, 128)
        if ks == OPT['uc']:
            A.wait(vm=tp[0])
            poll_test(sMASK)
            A('s_cbranch_scc1 ' + LATE)
            aq.drip(8)
            S('s_mov_b32 %s, 0', t5)
            A(LATE + ':')

    def tail(ks, n):
        if ks >= 14:
            bread(2 * (ks - 14) + n, 0)
            bread(2 * (ks - 14) + n, 1)
    assert OPT['uh'] - 1 <= OPT['uf'] <= OPT['up'] < OPT['uc'] and OPT['uh'] <= 11
    ut_steps(OPT['uh'], 16, hook, tail)
    S('ds_write_b128 v%d, %s', UTA + 5, vr(UACC[0], 4))
    tuw = S('ds_write_b128 v%d, %s', UTA + 6, vr(UACC[1], 4))
    bread(4, 0)
    bread(4, 1)
    OKK = A.label('yok')
    S('s_cmp_eq_u32 %s, 0', t5)
    A.wait(lg=tuw)
    A('s_barrier')
    A('s_cbranch_scc1 ' + OKK)
    vm_save, vd, tas = A.vm, A.vm_done, dict(ta)
    poll(vPT, 128, 'y', sMASK)
    for f, pr in first:
        f()
    A.vm, A.vm_done = vm_save, vd
    ta.update(tas)
    A(OKK + ':')
    stamp('y seen')
    aq.drip(2)
    split = len(passes) > 1
    SR = ACC + 8 * passes[1][0] if split else YA
    RP = 10
    tst = {}
    sq = []
    for p in range(8):
        def f(p=p):
            tst[0] = S('buffer_load_dword v%d, %s, %s, %s offen offset:%d sc1', SR + p, vSL, SRD_WS, sSL, p * 128)
        sq.append((f, None))
    if split:
        aq.q[8:8] = sq
    else:
        aq.q += sq
    nw = (OPT['w2f'], OPT['w2c'] - OPT['w2e'] - OPT['w2f']) if split else (OPT['w2c'],)

    def stats():
        for n in (4, 2, 1):
            for i in range(n):
                S('v_add_f32 v%d, v%d, v%d', SR + i, SR + i, SR + n + i)
        S('v_mul_f32 v%d, 0x3b000000, v%d', SR, SR)
        S('v_mov_b32 v%d, v%d', SR + 1, SR)
        S('v_permlane32_swap_b32 v%d, v%d', SR, SR + 1)
        S('v_fma_f32 v%d, -v%d, v%d, v%d', SR + 1, SR, SR, SR + 1)
        S('v_max_f32 v%d, 0, v%d', SR + 1, SR + 1)
        S('v_add_f32 v%d, 0x3727c5ac, v%d', SR + 1, SR + 1)
        S('v_rsq_f32 v%d, v%d', RP, SR + 1)
        S('v_mul_f32 v%d, -v%d, v%d', RP + 1, SR, RP)
        S('v_mov_b32 v%d, v%d', RP + 2, RP)
        S('v_mov_b32 v%d, v%d', RP + 3, RP + 1)
        S('v_permlane16_swap_b32 v%d, v%d', RP, RP + 2)
        S('v_permlane16_swap_b32 v%d, v%d', RP + 1, RP + 3)
    fill = capture(stats)

    def epilogue(nts, ub, drip):
        tu = {}

        def rut(i):
            for e in range(2):
                tu[i] = S('ds_read_b128 %s, %s offset:%d', vr(ub[i & 1] + 4 * e, 4), vUTR, 512 * e + nts[i] * 64)
        rut(0)
        if len(nts) > 1:
            rut(1)
        ts = None
        for i, nt in enumerate(nts):
            A.wait(lg=tu[i])
            u = ub[i & 1]
            for tt in range(2):
                rp = vr(RP + 2 * tt, 2)
                c = ACC + 8 * nt + 4 * tt
                o = ACC + 8 * (nt & ~1) + 4 * tt + 2 * (nt & 1)
                for e in range(2):
                    S('v_pk_fma_f32 %s, %s, %s, %s op_sel:[0,1,0] op_sel_hi:[1,1,1]', vr(96 + 2 * e, 2), vr(u + 2 * e, 2), rp, vr(u + 4 + 2 * e, 2))
                for e in range(2):
                    S('v_pk_fma_f32 %s, %s, %s, %s op_sel:[0,0,0] op_sel_hi:[1,0,1]', vr(96 + 2 * e, 2), vr(c + 2 * e, 2), rp, vr(96 + 2 * e, 2))
                if tt == 1 and i + 2 < len(nts):
                    rut(i + 2)
                for e in range(2):
                    S('v_cvt_pk_bf16_f32 v%d, v%d, v%d', o + e, 96 + 2 * e, 97 + 2 * e)
                for e in range(2):
                    S('v_pk_max_i16 v%d, v%d, 0', o + e, o + e)
                if nt == 6:
                    ts = S('buffer_store_dwordx2 %s, %s, %s, %s offen offset:3072%s', vr(o, 2), vH2, SRD_WS, sHO[tt], sc('hid'))
                elif nt & 1:
                    ts = S('buffer_store_dwordx4 %s, %s, %s, %s offen offset:%d%s', vr(o - 2, 4), vH4, SRD_WS, sHO[tt], (nt >> 1) * 1024, sc('hid'))
                if drip > 0 and (nt & 1 or nt == 6):
                    w2.drip(min(2, drip))
                    drip -= 2
        w2.drip(max(0, drip))
        return ts
    g = 0
    for pi, p in enumerate(passes):
        L = len(p)
        for _ in range(nw[pi]):
            if len(w2):
                aq.q.append(w2.q.pop(0))
        for ks in range(16):
            if split:
                n = (3 if ks < 3 else 4 if ks < 6 else 3 if ks < 11 else 2) if pi == 0 else 1
            else:
                n = ([3, 3, 3, 3, 3, 3, 4, 6] + [4] * 8)[ks]
            for i, nt in enumerate(p):
                go = (i + 1) * n // L > i * n // L and len(aq)
                if i % 2 == 0:
                    vmw = ta[ks, 1] if (i == 0 and pi == 0) else None
                    if pi == 0 and ks == 11 and i == 0:
                        vmw = max(vmw, tst[0])
                    A.wait(vm=vmw, lg=rb[g + 1] if i + 1 < L else rb[g])
                for tt in range(2):
                    c = vr(ACC + 8 * nt + 4 * tt, 4)
                    S('%s %s, %s, %s, %s', MF16, c, vr(BF + 4 * (g % 6), 4), vr(YA + 8 * ks + 4 * tt, 4), c if ks else '0')
                    if go and tt == 0:
                        aq.pre()
                    if g + AHB < 112:
                        bread(g + AHB, tt)
                    if go and tt == 0:
                        aq.go()
                    elif ks >= 11 and fill and (tt == 0 or (i % 2 == 0 and i + 1 < L)):
                        A.lines.append(fill.pop(0))
                g += 1
            if ks == 7:
                stamp('.p%d mid' % pi)
        A.lines += fill
        fill = []
        aq.drip(99)
        last = pi == len(passes) - 1
        stamp('g1 gemm' if last else '.pass1')
        ts = epilogue(p, (YA, YA + 8) if last else (SR, SR + 8), 0 if last else OPT['w2e'])
        if not last:
            stamp('.epi1')
    return ts


def g2_phase(ts, w2):
    stamp('.hid st')
    w2.drip(min(4, OPT['w2d']))
    for i in range(4):
        S('ds_read_b128 %s, %s offset:%d', vr(GB + 4 * i, 4), vGAB, 256 + 16 * i)
    A.wait(vm=ts)
    flag_store(sFHID, not LOCAL[0])
    stamp('hid pub')
    w2.drip(max(0, OPT['w2d'] - 4))
    poll(vPG, 192, 'hid', sGM)
    stamp('hid seen')
    ring_gemm(14, STG_H, 0, 112, 32, 12, split=(3, 10), pre=w2)
    stamp('g2 gemm')
    for p in range(2):
        for i in range(4 * p, 4 * p + 4):
            S('v_pk_fma_f32 %s, %s, %s, %s', vr(X2 + 2 * i, 2), vr(CO + 2 * i, 2), vr(GB + 2 * i, 2), vr(X2 + 2 * i, 2))
        for i in range(4 * p, 4 * p + 4):
            S('v_cvt_pk_bf16_f32 v%d, v%d, v%d', 16 + i, X2 + 2 * i, X2 + 2 * i + 1)
        S('buffer_store_dwordx4 %s, %s, %s, 0 offen offset:%d%s', vr(16 + 4 * p, 4), vXO, SRD_OUT, 16 * p, ('', ' sc1', ' nt')[OPT['outsc']])
    stamp('.out st')
    SK = A.label('noep')
    S('s_or_b32 %s, %s, %s', t0, sLID, sW)
    A('s_cbranch_scc1 ' + SK)
    S('s_mov_b32 %s, %d', t2, WS_E)
    flag_store(t2, False)
    A(SK + ':')


def dump_stamps():
    if OPT['diag']:
        D = A.label('diag')
        A('s_waitcnt vmcnt(0) lgkmcnt(0)')
        A('s_add_u32 s97, s97, 6000')
        A('s_mov_b32 s98, 0')
        A(D + ':')
        A('s_memrealtime s[92:93]')
        A('s_add_u32 s98, s98, 1')
        A('s_cmp_gt_u32 s98, 0x8000')
        A('s_cbranch_scc1 L_exit')
        A('s_waitcnt lgkmcnt(0)')
        A('s_sub_u32 s92, s92, s97')
        A('s_cmp_lt_i32 s92, 0')
        A('s_cbranch_scc1 ' + D)
    if not OPT['stamps']:
        return
    A.wait(vm='all', force=True)
    A('s_memrealtime s[92:93]')
    stamp('end')
    A('v_writelane_b32 v0, s92, 25')
    S('s_getreg_b32 %s, hwreg(HW_REG_XCC_ID)', t1)
    S('v_writelane_b32 v0, %s, 24', t1)
    S('v_writelane_b32 v0, %d, 26', int(LOCAL[0]))
    S('s_lshl2_add_u32 %s, %s, %s', t0, sLID, sW)
    S('s_lshl_b32 %s, %s, 7', t0, t0)
    S('s_add_u32 %s, %s, %d', t0, t0, WS_TS)
    S('v_lshlrev_b32 v10, 2, %s', vLANE)
    A('s_mov_b64 exec, 0xffffffff')
    S('buffer_store_dword v0, v10, %s, %s offen', SRD_WS, t0)


def rest(wq):
    wst = Stream()
    wst.q = list(wq)
    pst = prep_stream()
    sl = h_phase(wst, pst)
    w1 = w1_stream()
    w2 = frag_stream(sW2B, 14, 0)
    if OPT['nobg'] & 1:
        w1.q = []
    if OPT['nobg'] & 2:
        w2.q = []
    tkv, tps = qkv(w1, wst, pst, sl)
    ool, ts = attention(w1, tkv, tps)
    ts = wo_phase(ts, w1, w2)
    ts = g1_phase(ts, w2)
    g2_phase(ts, w2)
    dump_stamps()
    return ool


def main():
    tw, tx = prologue()
    wst = wqkv_stream()
    wq_setup()
    wst.drip(OPT['n1'])
    mod_partial(tw)
    stamp('mod pub')
    ln1(tx, wst)
    mod_poll(wst)
    st = (A.vm, A.vm_done, A.lg, A.lg_done, nstamp[0], ALLN[0], vST[0])
    ool = rest(wst.q)
    A('L_exit:')
    A('s_endpgm')
    A('L_localend:')
    out_of_line(*ool)
    xc_slow()
    LOCAL[0] = False
    A.vm, A.vm_done, A.lg, A.lg_done, nstamp[0], ALLN[0], vST[0] = st
    ool = rest(wst.q)
    A('s_endpgm')
    out_of_line(*ool)
    body, nops = A.finalize()
    hdr = open(os.path.join(os.path.dirname(os.path.abspath(__file__)), '..', 'cdna_kernels', NAME + '.s.ref')).read().split('; Override')[0]
    out = hdr
    out += '; @launch grid=(256,1,1) block=(256,1,1) lds=163840\n'
    out += '.amdgcn_target "amdgcn-amd-amdhsa--gfx950"\n.text\n.globl %s_kernel\n.p2align 8\n.type %s_kernel,@function\n%s_kernel:\n' % (NAME, NAME, NAME)
    out += '\n'.join(('' if l.endswith(':') else '    ') + l for l in body) + '\n'
    out += '''.section .rodata,"a"
.p2align 6
.amdhsa_kernel %s_kernel
  .amdhsa_next_free_vgpr 512
  .amdhsa_next_free_sgpr 102
  .amdhsa_accum_offset 256
  .amdhsa_group_segment_fixed_size 0
  .amdhsa_kernarg_size 88
  .amdhsa_user_sgpr_count 2
  .amdhsa_user_sgpr_kernarg_segment_ptr 1
  .amdhsa_system_sgpr_workgroup_id_x 1
  .amdhsa_float_denorm_mode_32 3
.end_amdhsa_kernel
''' % NAME
    open(sys.argv[1], 'w').write(out)
    if OPT['stamps']:
        open(sys.argv[1] + '.stamps', 'w').write('\n'.join(STAMP_NAMES))
    print('instructions', len(body), 'pad states', nops, file=sys.stderr)


main()
```

```python
import sys, os
from asmlib import Asm

NAME = 'adaLN_cond__sliding_block__dense_activation_relu__prompt'
OPT = dict(stamps=0, fine=0, force_fallback=0, force_remote=0, diag=0, nobg=0,
           ph=1, po=0, py=0, phid=0,
           n1=0, n2=8, n3=3, n4=5,
           wq0=0, wq1=4, wq2=4,
           qf=-1, qp=0, qchk=8,
           qd=0,
           aw1=24, fpf=4, fpl=22,
           ow1=8,
           w2a=20, w2b=8, w2c=28, w2d=0,
           uf=6, up=10, uc=15,
           uh=0, gsplit=0, w2e=4, w2f=12, sv=99,
           tkv=1, tw1=3, tfl=1, toy=0, tmod=1, tlb=0,
           outsc=0, rot=0, stag=1, dbg=0, cpf=2, ntw=1, ntp=1, ppos=0)
for a in sys.argv[2:]:
    k, v = a.split('=')
    assert k in OPT, k
    OPT[k] = int(v)

WS_E = 0
WS_FA = 0x1000
WS_XA = 0x6000
WS_XB = 0x8000
WS_FKV = 0x10000
WS_FP = 0x30000
WS_MOD = 0x50000
WS_STAT = 0x80000
WS_TS = 0xC0000
WS_WOT = 0x100000
WS_W2T = 0x200000
WS_H = 0x400000
WS_O = 0x600000
WS_Y = 0x800000
WS_KV = 0xA00000
WS_HID = 0xE00000
WS_SIZE = 0x1600000
OOB = 0x40000000

L_STG = 98304
L_SCR = 114688
L_KV = 114688
L_MODL = 114688
L_GAB = L_MODL + 2048
L_UT = L_MODL + 4096
L_RED = L_MODL + 8192

sDG, sDL, sFG = 's0', 's1', 's2'
sX, sJ, sW, sT, sM = 's3', 's4', 's5', 's6', 's7'
sFKV, sFO, sFY, sFHID = 's8', 's9', 's14', 's15'
sKVO, sOO, sYO, sSO = 's20', 's21', 's22', 's23'
sHO = ('s26', 's27')
STG_O = ('s10', 's11', 's12', 's13')
STG_H = ('s16', 's17', 's18', 's19')
sR4, sR8 = 's24', 's25'
sYL = ('s28', 's29')
sSL, sHL = 's30', 's31'
SRD_X, SRD_WQKV, SRD_W1, SRD_P, SRD_WS, SRD_OUT, SRD_WMOD, SRD_C = [
    's[%d:%d]' % (b, b + 3) for b in (32, 36, 44, 48, 52, 56, 60, 64)]
TAGB = 40
sGM = 's[60:61]'
sW1G, sW1L = 's62', 's63'
sPS, sRHO = 's64', 's67'
sTAG, sE = 's68', 's69'
sCT, sG, sOWN, sTS, sT0 = 's70', 's71', 's72', 's73', 's74'
sLID = 's75'
t0, t1, t2, t3, t4, t5 = 's76', 's77', 's78', 's79', 's80', 's81'
sCNT = 's82'
sXC = 's83'
sMASK = 's[84:85]'
sLO, sHI = 's[86:87]', 's[88:89]'
sWOB, sW2B = 's96', 's101'
sM2 = 's[98:99]'
H_S = 's100'

vLANE, vL16, vTAG = 'v1', 'v2', 'v3'
vXO, vGAB = 'v4', 'v5'
vRW, vRR = (6, 7, 8), 9
vT1, vT2 = 100, 101
vUTR, vPT, vPG, vSS, vSL, vH4, vH2, vL8, vMW, vGW = ['v%d' % i for i in range(102, 112)]
W1V = 112
vKV, vPKV, vD4, vD8, vOO, vMR0, vMR1, vFP, vG2A = ['v%d' % i for i in range(119, 128)]
UTA = 88
vWQ, H_V, vXCV = 'v96', 'v146', 'v147'
l7, l3 = 'v148', 'v149'
JUNK = 152
Q0, Q1 = 48, 52
MD, MFAR = 16, 32
K0, K1 = 64, 68
V0, V1 = 72, 80
MRD = 128
S0, S1 = 160, 176
P0, P1 = 192, 200
O0, O1 = 208, 224
XT = X2 = 240
CA, CB, CO, CR = 16, 32, 48, 64
GA, G2, GB = 208, 224, 80
ACC, BF, YA = 16, 72, 112

A = Asm()
nstamp = [0]
STAMP_NAMES = []
ALLN = [0]
vST = ['v255']
FINE = {1: (0, 4), 2: (4, 10), 3: (10, 15), 4: (15, 20), 9: (99, 99)}
LOCAL = [True]
LIMIT = 1 << 17
MF32 = 'v_mfma_f32_32x32x16_bf16'
MF16 = 'v_mfma_f32_16x16x32_bf16'


def vr(b, n=1, k='v'):
    return '%s%d' % (k, b) if n == 1 else '%s[%d:%d]' % (k, b, b + n - 1)


def ar(b, n=1):
    return vr(b, n, 'a')


def S(fmt, *a):
    return A(fmt % a)


def stamp(name):
    fine = name.startswith('.')
    n = ALLN[0]
    if not fine:
        ALLN[0] += 1
    if OPT['diag']:
        if not fine and ALLN[0] == OPT['diag']:
            print('diag stamp:', name, file=sys.stderr)
            A('s_memrealtime s[90:91]')
            A('s_waitcnt lgkmcnt(0)')
            A.lg_done = A.lg
            A('s_mov_b32 s97, s90')
        return
    if not OPT['stamps']:
        return
    if name == 'h seen':
        A('v_mov_b32 v0, v255')
        vST[0] = 'v0'
    if OPT['fine']:
        if name != 'end' and not (FINE[OPT['fine']][0] <= n <= FINE[OPT['fine']][1]):
            return
    elif fine:
        return
    assert nstamp[0] < 22
    A('s_memtime s[90:91]' if OPT['stamps'] == 1 else 's_memrealtime s[90:91]')
    A('s_waitcnt lgkmcnt(0)')
    A.lg_done = A.lg
    S('v_writelane_b32 %s, s90, %d', vST[0], 2 + nstamp[0])
    nstamp[0] += 1
    if LOCAL[0]:
        STAMP_NAMES.append(name)


def sc(buf):
    return '' if (LOCAL[0] and OPT['p' + buf]) else ' sc1'


def flag_store(soff, sc1, val=vTAG):
    A('s_mov_b64 exec, 1')
    t = S('buffer_store_dword %s, off, %s, %s%s', val, SRD_WS, soff, ' sc1' if sc1 else '')
    A('s_mov_b64 exec, -1')
    return t


def poll_load(vA, off, vT='v15'):
    return S('buffer_load_dword %s, %s, %s, 0 offen offset:%d sc1', vT, vA, SRD_WS, off)


def poll_test(mask, vT='v15'):
    S('v_cmp_ne_u32 vcc, %s, %s', sTAG, vT)
    S('s_and_b64 vcc, vcc, %s', mask)


def poll(vA, off, name, mask):
    L, D = A.label('p' + name), A.label('d' + name)
    S('s_mov_b32 %s, 0', sCNT)
    A(L + ':')
    poll_load(vA, off)
    S('s_add_u32 %s, %s, 1', sCNT, sCNT)
    A('s_waitcnt vmcnt(0)')
    poll_test(mask)
    A('s_cbranch_scc0 ' + D)
    S('s_cmp_lt_u32 %s, %d', sCNT, LIMIT)
    A('s_cbranch_scc1 ' + L)
    A(D + ':')
    A.vm_done = A.vm


def srd(dst, lo, size):
    b = int(dst[2:dst.index(':')])
    S('s_mov_b64 s[%d:%d], s[%d:%d]', b, b + 1, lo, lo + 1)
    S('s_mov_b32 s%d, 0x%x', b + 2, size)
    S('s_mov_b32 s%d, 0x20000', b + 3)


def unpack(dst, src):
    S('v_lshlrev_b32 v%d, 16, v%d', dst, src)
    S('v_and_b32 v%d, 0xffff0000, v%d', dst + 1, src)


def untag(r, acc, first):
    for i in range(4):
        S('v_xor_b32 v%d, s%d, v%d', r + i, TAGB + i, r + i)
    if first:
        S('v_or3_b32 v%d, v%d, v%d, v%d', acc, r, r + 1, r + 2)
        S('v_or_b32 v%d, v%d, v%d', acc, acc, r + 3)
    else:
        S('v_or3_b32 v%d, v%d, v%d, v%d', acc, r, r + 1, acc)
        S('v_or3_b32 v%d, v%d, v%d, v%d', acc, r + 2, r + 3, acc)


def untag_test(acc):
    S('v_and_b32 v%d, 0xff, v%d', acc, acc)
    S('v_cmp_ne_u32 vcc, 0, v%d', acc)


def capture(f):
    save, A.lines = A.lines, []
    f()
    out, A.lines = A.lines, save
    return out


class Stream:
    def __init__(self):
        self.q = []
        self.ready = False

    def add(self, f, pre=None):
        self.q.append((f, pre))

    def pre(self):
        if self.q and not self.ready:
            if self.q[0][1]:
                self.q[0][1]()
            self.ready = True

    def go(self):
        if self.q:
            assert self.ready
            self.ready = False
            return self.q.pop(0)[0]()

    def drip(self, n=1):
        t = None
        for _ in range(n):
            if self.q:
                self.pre()
                t = self.go()
        return t

    def __len__(self):
        return len(self.q)


def touch(voff, soff, off=0, junk=JUNK):
    return S('buffer_load_dwordx4 %s, %s, %s, %s offen offset:%d sc1', vr(junk, 4), voff, SRD_WS, soff, off)


sKEY = 's69'


def wqkv_stream():
    st = Stream()
    for tile in range(3):
        for i in range(8):
            def pre(tile=tile, i=i):
                S('s_xor_b32 s65, %s, %d', sKEY, (tile & 1) * 8 + i)
                A('s_and_b32 s66, s65, 7')
                S('s_mul_i32 %s, s66, %d', sDG, 16 * 3072)
                A('s_and_b32 s65, s65, 8')
                A('s_lshl2_add_u32 s66, s65, s66')
                S('s_lshl3_add_u32 s66, %s, s66', sW)
                if tile == 2:
                    A('s_add_u32 s66, s66, 64')
                A('s_lshl_b32 m0, s66, 10')
                A('s_lshl_b32 s65, s65, 7')
                S('s_add_u32 %s, %s, s65', sDG, sDG)
                S('s_add_u32 %s, %s, %s', sDG, sDG, sDL)
                if tile == 1 and i == 7:
                    S('s_lshr_b32 s65, %s, 2', sKEY)
                    S('s_or_b32 %s, %s, s65', sKEY, sKEY)
                    S('s_and_b32 %s, %s, %d', sKEY, sKEY, 6 * OPT['stag'])
                    S('s_sub_u32 %s, %s, 1024', sDL, sDL)
            st.add(lambda: S('buffer_load_dwordx4 %s, %s, %s offen lds', vWQ, SRD_WQKV, sDG), pre)
    return st


def w1_stream():
    st = Stream()
    for g in range(4):
        for i in range(7):
            def pre(g=g, i=i):
                S('s_add_u32 m0, %s, %d', sW1L, g * 4 * 7168 + i * 1024)
                if i == 0 and g:
                    S('s_add_u32 %s, %s, %d', sW1G, sW1G, 128 * 3584)
            st.add(lambda i=i: S('buffer_load_dwordx4 v%d, %s, %s offen lds', W1V + i, SRD_W1, sW1G), pre)
    return st


def frag_stream(sb, nks, areg):
    st = Stream()
    for i in range(nks):
        for s in range(4):
            def pre(i=i, s=s):
                if i and s == 0:
                    S('s_add_u32 %s, %s, 4096', sb, sb)
            st.add(lambda i=i, s=s: S('buffer_load_dwordx4 %s, %s, %s, %s offen offset:%d sc1', ar(areg + 16 * i + 4 * s, 4), vL16, SRD_WS, sb, s * 1024), pre)
    return st


def code_prefetch():
    S('global_load_dwordx2 %s, v145, s[30:31]', vr(JUNK, 2))


def warm(srdname, nl, va=144, vj=JUNK + 3):
    S('s_lshl2_add_u32 s65, %s, %s', sLID, sW)
    S('s_mul_i32 s65, s65, %d', nl * 128)
    S('v_lshlrev_b32 v%d, 7, %s', va, vLANE)
    S('s_mov_b64 exec, 0x%x', (1 << nl) - 1)
    S('buffer_load_dword v%d, v%d, %s, s65 offen', vj, va, srdname)
    A('s_mov_b64 exec, -1')


def prologue():
    A('s_cmp_ge_u32 s2, 256')
    A('s_cbranch_scc1 L_exit')
    A('s_load_dwordx16 s[8:23], s[0:1], 0')
    A('s_load_dwordx4 s[24:27], s[0:1], 64')
    A('s_load_dwordx2 s[28:29], s[0:1], 80')
    A('s_getpc_b64 s[30:31]')
    A('L_pc:')
    A('v_lshrrev_b32 v5, 6, v0')
    S('v_and_b32 %s, 63, v0', vLANE)
    S('v_readfirstlane_b32 %s, v5', sW)
    S('s_lshr_b32 %s, s2, 3', sJ)
    S('s_and_b32 %s, s2, 7', sX)
    if OPT['stamps'] or OPT['diag']:
        A('s_memrealtime s[92:93]')
        A('s_memtime s[94:95]')
    S('v_and_b32 %s, 7, %s', l7, vLANE)
    S('v_lshrrev_b32 %s, 3, %s', l3, vLANE)
    S('s_lshl_b32 %s, %s, 1', t1, sX)
    S('s_lshl2_add_u32 %s, %s, 14', t2, sX)
    S('s_cmp_lt_u32 %s, 8', sJ)
    S('s_cselect_b32 %s, %s, %s', t1, t1, t2)
    S('s_lshr_b32 %s, %s, 2', t2, sJ)
    S('s_add_u32 %s, %s, %s', t5, t1, t2)
    S('s_and_b32 %s, %s, 3', sG, sJ)
    S('s_lshl2_add_u32 %s, %s, %s', t1, sG, sW)
    S('s_lshl_b32 %s, %s, 6', t2, t1)
    S('s_mul_i32 %s, %s, %d', t1, t1, 32 * 6144)
    S('s_lshl_b32 %s, %s, 7', t3, t5)
    S('s_add_u32 %s, %s, %s', t1, t1, t3)
    S('s_cmp_lt_u32 %s, %d', sJ, 8 if OPT['dbg'] & 2 else 24)
    S('s_cselect_b32 %s, 0, 0x%x', t3, OOB)
    S('s_cselect_b32 %s, %s, 0', t1, t1)
    S('v_lshlrev_b32 v11, 3, %s', l3)
    S('v_mul_u32_u24 v13, %d, %s', 4 * 6144, l3)
    S('v_lshl_add_u32 v13, %s, 4, v13', l7)
    S('v_add_u32 v13, %s, v13', t3)
    for b, size in ((64, 1024), (60, 3145728), (32, 2097152), (52, WS_SIZE)):
        S('s_mov_b32 s%d, 0x%x', b + 2, size)
        S('s_mov_b32 s%d, 0x20000', b + 3)
    S('v_lshlrev_b32 v10, 10, %s', l7)
    S('v_lshl_add_u32 v10, %s, 4, v10', l3)
    S('s_lshl_b32 %s, %s, 5', sLID, sX)
    S('s_add_u32 %s, %s, %s', sLID, sLID, sJ)
    S('s_lshl_b32 %s, %s, 13', t0, sLID)
    S('s_lshl_b32 %s, %s, 8', t3, sW)
    S('s_add_u32 %s, %s, %s', t0, t0, t3)
    S('s_lshl_b32 %s, %s, 11', t3, sJ)
    S('v_lshl_add_u32 v145, v0, 3, %s', t3)
    A('v_min_u32 v145, L_localend-L_pc-8, v145')
    A('s_waitcnt lgkmcnt(0)')
    if OPT['diag']:
        A('s_mov_b32 s97, s92')
    if OPT['stamps']:
        A('v_writelane_b32 v255, s92, 0')
        S('v_writelane_b32 v255, %s, 1', 's94' if OPT['stamps'] == 1 else 's92')
    stamp('.kernarg')
    A('s_mov_b64 s[64:65], s[20:21]')
    A('s_mov_b64 s[60:61], s[22:23]')
    S('buffer_load_dwordx2 v[14:15], v11, %s, %s offen', SRD_C, t2)
    for i in range(4):
        tw = S('buffer_load_dwordx4 %s, v13, %s, %s offen%s', vr(64 + 4 * i, 4), SRD_WMOD, t1, ' nt' * OPT['ntw'])
        if i < 3:
            S('s_add_u32 %s, %s, 6144', t1, t1)
    S('s_load_dword %s, s[28:29], %d', sE, WS_E)
    A('s_mov_b64 s[32:33], s[8:9]')
    A('s_barrier')
    S('buffer_load_dwordx4 v[16:19], v10, %s, %s offen', SRD_X, t0)
    tx = S('buffer_load_dwordx4 v[20:23], v10, %s, %s offen offset:128', SRD_X, t0)
    if OPT['cpf'] == 1:
        code_prefetch()
    srd(SRD_WQKV, 10, 1572864)
    if OPT['tkv']:
        warm(SRD_WQKV, 12)
    A('s_mov_b64 s[52:53], s[28:29]')
    S('s_and_b32 %s, %s, 15', sM, sJ)
    S('s_lshr_b32 %s, %s, 4', t0, sJ)
    S('s_lshl2_add_u32 %s, %s, %s', t0, t0, sW)
    S('s_lshl3_add_u32 %s, %s, %s', sT, sX, t0)
    S('s_lshr_b32 %s, %s, 2', t0, sLID)
    S('s_lshl2_add_u32 %s, %s, %s', t0, t0, sW)
    S('s_lshl_b32 %s, %s, 13', t0, t0)
    S('s_lshl_b32 %s, %s, 7', t1, sG)
    S('s_add_u32 %s, %s, %s', t0, t0, t1)
    S('s_add_u32 %s, %s, %d', H_S, t0, WS_H)
    S('v_lshl_add_u32 v11, %s, 9, %s', vLANE, H_S)
    S('s_lshl_b32 %s, %s, 8', t0, sT)
    S('s_add_u32 %s, %s, %d', t0, t0, WS_FA)
    S('v_lshl_add_u32 %s, %s, 2, %s', vPT, vLANE, t0)
    S('v_writelane_b32 v11, %s, 16', t0)
    S('s_add_u32 %s, %s, 128', t0, t0)
    S('v_writelane_b32 v11, %s, 17', t0)
    S('s_lshl_b32 %s, %s, 7', t0, sX)
    S('s_add_u32 %s, %s, %d', t0, t0, WS_XA)
    S('v_writelane_b32 v11, %s, 18', t0)
    if OPT['tmod']:
        S('s_mul_i32 %s, %s, 48', t0, sG)
        S('s_add_u32 %s, %s, %s', t0, t0, t5)
        S('s_and_b32 %s, %s, 1', t1, sW)
        S('s_lshl1_add_u32 %s, %s, %s', t0, t0, t1)
        S('s_lshl_b32 %s, %s, 7', t0, t0)
        S('s_add_u32 %s, %s, %d', t0, t0, WS_MOD)
        S('v_writelane_b32 v11, %s, 19', t0)
    S('s_mov_b64 exec, 0x%x', (0x7ffff if OPT['ph'] else 0x70000) | OPT['tmod'] << 19)
    S('buffer_load_dword v%d, v11, %s, 0 offen sc1', JUNK + 2, SRD_WS)
    A('s_mov_b64 exec, -1')
    S('v_lshlrev_b32 %s, 4, %s', vL16, vLANE)
    return tw, tx


vPD, vPR, PRD = 'v97', 98, 56
sPSRC, sFP = 's66', 's67'


def prep_srd():
    S('s_lshl1_add_u32 %s, %s, %s', t0, sJ, sW)
    S('s_add_u32 %s, %s, 40', t1, sJ)
    S('s_cmp_lt_u32 %s, 2', sW)
    S('s_cselect_b32 %s, %s, %s', sRHO, t0, t1)
    S('s_cmp_lt_u32 %s, 56', sRHO)
    A('s_cselect_b64 s[48:49], s[18:19], s[12:13]')
    A('s_cselect_b32 s50, 7, 2')
    A('s_lshl_b32 s50, s50, 18')
    A('s_mov_b32 s51, 0x20000')


def prep_addr():
    S('s_cmp_lt_u32 %s, 56', sRHO)
    S('s_cselect_b32 %s, 0, 56', t0)
    S('s_cselect_b32 %s, 56, 16', t1)
    S('s_cselect_b32 %s, 2, 1', t3)
    S('s_cselect_b32 %s, 10, 11', t4)
    assert (WS_W2T, WS_WOT) == (2 << 20, 1 << 20)
    S('s_lshl_b32 %s, %s, 20', t2, t3)
    S('s_lshl_b32 %s, %s, 10', t3, t3)
    S('s_sub_u32 %s, %s, %s', t0, sRHO, t0)
    S('s_mul_i32 %s, %s, %s', t1, t1, sX)
    S('s_add_u32 %s, %s, %s', t1, t1, t0)
    S('s_lshl_b32 %s, %s, 12', t1, t1)
    S('s_add_u32 %s, %s, %s', sPS, t1, t2)
    S('s_lshl_b32 %s, %s, 15', t0, t0)
    S('s_lshl_b32 %s, %s, 7', t1, sX)
    S('s_add_u32 %s, %s, %s', sFG, t0, t1)
    S('v_lshrrev_b32 v98, 5, %s', vLANE)
    S('v_lshlrev_b32 v98, %s, v98', t4)
    S('v_bfe_u32 v99, %s, 2, 3', vLANE)
    A('v_lshl_add_u32 v98, v99, 7, v98')
    S('v_and_b32 v99, 3, %s', vLANE)
    A('v_lshl_add_u32 v98, v99, 5, v98')
    S('s_lshl_b32 %s, %s, 12', t0, sW)
    S('s_add_u32 %s, %s, %d', t0, t0, L_STG)
    S('v_add_u32 v98, %s, v98', t0)
    S('v_add_u32 v99, %s, v98', t3)
    S('s_cmp_lt_u32 %s, 2', sW)
    S('s_cselect_b32 %s, 24, %s', t0, sJ)
    S('s_cmp_lt_u32 %s, 24', t0)
    S('s_cselect_b32 %s, 3, %s', t0, sW)
    S('s_cmp_eq_u32 %s, 3', t0)
    S('s_cselect_b32 %s, 0x%x, 0', H_S, OOB)
    if OPT['dbg'] & 1:
        S('s_mov_b32 %s, 0x%x', H_S, OOB)
    S('s_add_u32 %s, %s, %s', sFP, sRHO, t1)
    S('s_lshl_b32 %s, %s, 6', sFP, sFP)
    S('s_add_u32 %s, %s, %d', sFP, sFP, WS_FP)
    S('v_lshrrev_b32 v10, 3, %s', vLANE)
    A('v_mul_u32_u24 v10, %d, v10' % (1024 - 128))
    S('v_add3_u32 %s, v10, %s, %s', vPD, vL16, H_S)


def prep_stream():
    st = Stream()
    for i in range(4):
        def pre(i=i):
            S('s_lshl_b32 s65, %s, 12', sW)
            S('s_add_u32 m0, s65, %d', L_STG + 1024 * i)
            if i:
                S('s_add_u32 %s, %s, 8192', sFG, sFG)
        st.add(lambda: S('buffer_load_dwordx4 %s, %s, %s offen%s lds', vPD, SRD_P, sFG, ' nt' * OPT['ntp']), pre)
    return st


def prep_read(nt):
    for half in range(2):
        t = S('ds_read_b64_tr_b16 %s, v%d offset:%d', vr(128 + 4 * nt + 2 * half, 2), vPR + half, nt * 8)
    return t


def prep_store(p):
    return S('buffer_store_dwordx4 %s, %s, %s, %s offen offset:%d sc1', vr(128 + 4 * p, 4), vPD, SRD_WS, sPS, p * 1024)


def wq_setup():
    srd(SRD_W1, 16, 1835008)
    if OPT['tw1'] == 1:
        warm(SRD_W1, 14)
    S('v_lshrrev_b32 v12, 2, %s', vLANE)
    A('v_mul_u32_u24 v12, 3072, v12')
    S('v_and_b32 v11, 3, %s', vLANE)
    S('v_lshl_add_u32 %s, v11, 4, v12', vWQ)
    S('s_mul_i32 %s, %s, %d', sDL, sW, 128 * 3072)
    S('s_lshl_b32 %s, %s, 6', t0, sM)
    S('s_add_u32 %s, %s, %s', sDL, sDL, t0)
    S('s_add_u32 %s, %s, 1024', sDL, sDL)
    if OPT['dbg'] & 4:
        S('v_add_u32 %s, 0x%x, %s', vWQ, OOB, vWQ)


def mod_partial(tw):
    S('v_lshrrev_b32 v11, 4, %s', vLANE)
    S('v_lshl_add_u32 v11, %s, 2, v11', l7)
    S('s_lshl_b32 %s, %s, 8', t1, sW)
    S('s_add_u32 %s, %s, %d', t1, t1, L_SCR + 1024)
    S('v_lshl_add_u32 v11, v11, 3, %s', t1)
    S('v_and_b32 v12, 0xf0, %s', vL16)
    S('v_add_u32 v13, %d, v12', L_SCR + 1024)
    S('s_mul_i32 %s, %s, 48', t1, sG)
    S('s_add_u32 %s, %s, %s', t1, t1, t5)
    S('s_lshl_b32 %s, %s, 8', t1, t1)
    S('s_add_u32 %s, %s, %d', t1, t1, WS_MOD)
    S('s_getreg_b32 %s, hwreg(HW_REG_XCC_ID, 0, 4)', sXC)
    A.wait(vm=tw - 4)
    stamp('.c')
    unpack(40, 14)
    unpack(42, 15)
    for i in range(4):
        S('v_mul_f32 v%d, 0xbfb8aa3b, v%d', 44 + i, 40 + i)
    for i in range(4):
        S('v_exp_f32 v%d, v%d', 44 + i, 44 + i)
    for i in range(4):
        S('v_add_f32 v%d, 1.0, v%d', 44 + i, 44 + i)
    for i in range(4):
        S('v_rcp_f32 v%d, v%d', 44 + i, 44 + i)
    for i in range(2):
        S('v_pk_mul_f32 %s, %s, %s', vr(40 + 2 * i, 2), vr(40 + 2 * i, 2), vr(44 + 2 * i, 2))
    A('v_cvt_pk_bf16_f32 v44, v40, v41')
    A('v_cvt_pk_bf16_f32 v45, v42, v43')
    unpack(40, 44)
    unpack(42, 45)
    for i in range(4):
        A.wait(vm=tw - 3 + i)
        for d in range(4):
            unpack(80 + 2 * d, 64 + 4 * i + d)
        s = i & 1
        for d in range(4):
            if i == 0:
                S('v_pk_mul_f32 %s, %s, v[40:41] op_sel_hi:[1,0]', vr(48 + 2 * d, 2), vr(80 + 2 * d, 2))
            else:
                S('v_pk_fma_f32 %s, %s, %s, %s op_sel:[0,%d,0] op_sel_hi:[1,%d,1]',
                  vr(48 + 2 * d, 2), vr(80 + 2 * d, 2), vr(40 + (i & ~1), 2), vr(48 + 2 * d, 2), s, s)
    stamp('.fma')
    for i in range(4):
        S('v_permlane32_swap_b32 v%d, v%d', 48 + i, 52 + i)
    for i in range(2):
        S('v_pk_add_f32 %s, %s, %s', vr(48 + 2 * i, 2), vr(48 + 2 * i, 2), vr(52 + 2 * i, 2))
    A('s_waitcnt lgkmcnt(0)')
    S('s_mul_i32 %s, %s, 1664525', sTAG, sE)
    for i in range(2):
        S('v_permlane16_swap_b32 v%d, v%d', 48 + i, 50 + i)
    A('v_pk_add_f32 v[48:49], v[48:49], v[50:51]')
    S('s_add_u32 %s, %s, 1013904223', sTAG, sTAG)
    S('v_mov_b32 %s, %s', vTAG, sTAG)
    for i in range(2):
        S('v_add_f32_dpp v%d, v%d, v%d row_ror:8 row_mask:0xf bank_mask:0xf', 50 + i, 48 + i, 48 + i)
    t = A('ds_write_b64 v11, v[50:51]')
    for i in range(4):
        S('s_bfe_u32 s%d, %s, 0x%x', TAGB + i, sTAG, (8 << 16) | (8 * i))
    if OPT['force_remote']:
        S('s_and_b32 %s, %s, 1', sXC, sJ)
    S('s_add_u32 %s, %s, %s', sXC, sXC, sTAG)
    S('s_add_u32 %s, %s, 1', sXC, sXC)
    S('v_mov_b32 %s, %s', vXCV, sXC)
    A('v_mov_b32 v10, 0xffffff00')
    S('s_cmp_ge_u32 %s, 24', sJ)
    S('s_cselect_b32 %s, 1, %s', t0, sW)
    S('s_cmp_lg_u32 %s, 0', t0)
    A.wait(lg=t)
    A('s_barrier')
    NP, NX = A.label('nopub'), A.label('noxc')
    vm0 = A.vm
    A('s_cbranch_scc1 ' + NP)
    for i in range(4):
        t = S('ds_read_b128 %s, v13 offset:%d', vr(64 + 4 * i, 4), 256 * i)
    A('s_mov_b64 exec, 0xffff')
    A.wait(lg=t)
    for e in range(2):
        S('v_pk_add_f32 %s, %s, %s', vr(64 + 2 * e, 2), vr(64 + 2 * e, 2), vr(68 + 2 * e, 2))
        S('v_pk_add_f32 %s, %s, %s', vr(72 + 2 * e, 2), vr(72 + 2 * e, 2), vr(76 + 2 * e, 2))
    for e in range(2):
        S('v_pk_add_f32 %s, %s, %s', vr(64 + 2 * e, 2), vr(64 + 2 * e, 2), vr(72 + 2 * e, 2))
    for i in range(4):
        S('v_add_u32 v%d, 0x80, v%d', 64 + i, 64 + i)
    for i in range(4):
        S('v_and_or_b32 v%d, v%d, v10, s%d', 64 + i, 64 + i, TAGB + i)
    S('buffer_store_dwordx4 v[64:67], v12, %s, %s offen sc1', SRD_WS, t1)
    A('s_mov_b64 exec, -1')
    A(NP + ':')
    S('s_cmp_lg_u32 %s, 1', sW)
    A('s_cbranch_scc1 ' + NX)
    S('s_lshl2_add_u32 %s, %s, %d', t0, sLID, WS_XA)
    flag_store(t0, False, vXCV)
    A(NX + ':')
    A.lg_done = A.lg
    A.vm = vm0


def ln1(tx, wst):
    S('s_lshr_b32 %s, %s, 4', t0, sJ)
    S('s_and_b32 %s, %s, %d', t1, sJ, OPT['stag'])
    S('s_lshl_b32 %s, %s, 2', t1, t1)
    S('s_lshl3_add_u32 %s, %s, %s', sKEY, t0, t1)
    S('s_lshr_b32 %s, %s, 1', t0, sM)
    S('s_cmp_eq_u32 %s, 3', t0)
    S('s_cselect_b32 %s, %s, 0', sKEY, sKEY)
    wst.drip(OPT['n2'])
    A.wait(vm=tx)
    stamp('.x')
    for i in range(8):
        unpack(24 + 2 * i, 16 + i)
    A('v_pk_add_f32 v[40:41], v[24:25], v[26:27]')
    A('v_pk_mul_f32 v[42:43], v[24:25], v[24:25]')
    A('v_pk_fma_f32 v[42:43], v[26:27], v[26:27], v[42:43]')
    for i in range(2, 8):
        S('v_pk_add_f32 v[40:41], v[40:41], %s', vr(24 + 2 * i, 2))
        S('v_pk_fma_f32 v[42:43], %s, %s, v[42:43]', vr(24 + 2 * i, 2), vr(24 + 2 * i, 2))
    A('v_add_f32 v40, v40, v41')
    A('v_add_f32 v42, v42, v43')
    S('v_lshrrev_b32 v12, 5, %s', vLANE)
    S('v_lshl_add_u32 v12, v12, 3, %s', l7)
    A('v_permlane32_swap_b32 v40, v42')
    A('v_add_f32 v40, v40, v42')
    A('v_mov_b32 v41, v40')
    S('s_lshl2_add_u32 %s, %s, %d', t0, sW, L_SCR)
    S('v_lshlrev_b32 v13, 4, %s', l7)
    A('v_permlane16_swap_b32 v40, v41')
    A('v_add_f32 v40, v40, v41')
    S('v_lshl_add_u32 v12, v12, 4, %s', t0)
    S('v_add_u32 v13, %d, v13', L_SCR)
    A('v_add_f32_dpp v41, v40, v40 row_ror:8 row_mask:0xf bank_mask:0xf')
    t = A('ds_write_b32 v12, v41')
    mod_poll_addr()
    A.wait(lg=t)
    A('s_barrier')
    stamp('.bar2')


def ln1_apply():
    A('ds_read_b128 v[64:67], v13')
    t = A('ds_read_b128 v[68:71], v13 offset:128')
    prep_srd()
    A.wait(lg=t)
    A('v_pk_add_f32 v[64:65], v[64:65], v[66:67]')
    A('v_pk_add_f32 v[68:69], v[68:69], v[70:71]')
    A('v_add_f32 v64, v64, v65')
    A('v_add_f32 v68, v68, v69')
    A('v_mul_f32 v64, 0x3b000000, v64')
    A('v_mul_f32 v68, 0x3b000000, v68')
    A('v_fma_f32 v68, -v64, v64, v68')
    A('v_max_f32 v68, 0, v68')
    A('v_add_f32 v68, 0x3727c5ac, v68')
    A('v_rsq_f32 v60, v68')
    A('v_mul_f32 v61, -v64, v60')
    for i in range(8):
        S('v_pk_fma_f32 %s, %s, v[60:61], v[60:61] op_sel:[0,0,1] op_sel_hi:[1,0,1]', vr(24 + 2 * i, 2), vr(24 + 2 * i, 2))


def sum_partials(base, addend):
    for e in range(2):
        S('v_pk_add_f32 %s, %s, %s', vr(base + 2 * e, 2), vr(base + 2 * e, 2), vr(base + 4 + 2 * e, 2))
        S('v_pk_add_f32 %s, %s, %s', vr(base + 8 + 2 * e, 2), vr(base + 8 + 2 * e, 2), vr(base + 12 + 2 * e, 2))
    for e in range(2):
        S('v_pk_add_f32 %s, %s, %s', vr(base + 2 * e, 2), vr(base + 2 * e, 2), vr(base + 8 + 2 * e, 2))
    for e in range(2):
        S('v_cvt_pk_bf16_f32 v%d, v%d, v%d', base + 4 + e, base + 2 * e, base + 2 * e + 1)
    for e in range(2):
        unpack(base + 8 + 2 * e, base + 4 + e)
    for i in range(4):
        S('v_add_f32 v%d, %s, v%d', base + 8 + i, addend, base + 8 + i)
    for e in range(2):
        S('v_cvt_pk_bf16_f32 v%d, v%d, v%d', base + e, base + 8 + 2 * e, base + 9 + 2 * e)


MP = 156
sMP = ('s92', 's93', 's94', 's95')


def mod_poll_addr():
    S('v_and_b32 v151, 31, %s', vLANE)
    S('v_lshrrev_b32 v12, 5, %s', vLANE)
    S('s_lshl_b32 %s, %s, 9', t0, sW)
    S('v_lshl_add_u32 v156, v151, 4, %s', t0)
    A('v_lshl_add_u32 v156, v12, 11, v156')
    A('v_cvt_f32_u32 v150, v12')
    for i in range(4):
        S('s_mov_b32 %s, %d', sMP[i], WS_MOD + 12288 * i)
    S('s_lshl_b32 %s, %s, 7', t0, sX)
    S('s_add_u32 %s, %s, %d', t0, t0, WS_XA)
    S('v_lshl_add_u32 v157, v151, 2, %s', t0)


def setup_a():
    ln1_apply()
    S('s_lshl_b32 %s, %s, 10', t1, sW)
    S('s_add_u32 %s, %s, %d', t1, t1, L_SCR + 4096)
    S('v_add_u32 v158, %s, %s', t1, vL16)
    S('v_lshl_add_u32 v159, %s, 5, %s', l3, t1)
    S('v_lshlrev_b32 v12, 9, %s', l3)
    S('v_lshl_add_u32 %s, %s, 4, v12', H_V, l7)
    srd(SRD_OUT, 24, 2097152)
    S('s_and_b32 %s, %s, 7', sCT, sJ)
    S('s_lshr_b32 %s, %s, 3', t0, sJ)
    S('s_lshl_b32 %s, %s, 1', t0, t0)
    S('s_lshl3_add_u32 %s, %s, %s', sT0, sX, t0)
    if OPT['rot']:
        S('s_lshl1_add_u32 %s, %s, %s', sOWN, sCT, sW)
        S('s_and_b32 %s, %s, 3', sOWN, sOWN)
    else:
        S('s_mov_b32 %s, %s', sOWN, sW)
    S('s_lshl1_add_u32 %s, %s, %s', sTS, sT0, sOWN)
    A('s_mov_b32 s86, 0x0000ffff')
    A('s_mov_b32 s87, 0x0000ffff')
    A('s_mov_b32 s88, 0xffff0000')
    A('s_mov_b32 s89, 0xffff0000')
    S('v_and_b32 v12, 3, %s', vLANE)
    A('v_lshlrev_b32 v13, 3, v12')
    S('v_bfe_u32 v12, %s, 4, 1', vLANE)
    A('v_lshl_add_u32 v13, v12, 5, v13')
    S('v_bfe_u32 v12, %s, 2, 2', vLANE)
    A('v_lshl_add_u32 v13, v12, 6, v13')
    S('v_lshrrev_b32 v12, 5, %s', vLANE)
    A('v_lshl_add_u32 v13, v12, 9, v13')
    A('v_add_u32 v14, 65536, v13')
    S('s_lshl_b32 %s, %s, 15', t1, sT)
    S('s_add_u32 %s, %s, %d', sHL, t1, WS_H)
    S('s_mov_b64 %s, 0xffff', sMASK)
    S('s_lshr_b32 %s, %s, 2', t5, sLID)
    S('s_lshl4_add_u32 %s, %s, %s', t5, t5, sG)
    S('s_lshl2_add_u32 %s, %s, %s', t5, t5, sW)
    S('s_lshl2_add_u32 %s, %s, %d', t5, t5, WS_FA)


def setup_scalar():
    S('s_lshl4_add_u32 %s, %s, %s', t0, sT, sM)
    S('s_lshl_b32 %s, %s, 6', t1, t0)
    S('s_add_u32 %s, %s, %d', sFKV, t1, WS_FKV)
    S('s_lshl_b32 %s, %s, 12', t1, t0)
    S('s_add_u32 %s, %s, %d', sKVO, t1, WS_KV)
    for d, dst in ((4, sR4), (8, sR8)):
        S('s_sub_u32 %s, %s, %d', dst, t0, 16 * d)
        S('s_max_i32 %s, %s, 0', dst, dst)
    S('v_mov_b32 %s, %s', vPKV, sR4)
    S('v_writelane_b32 %s, %s, 1', vPKV, sR8)
    S('v_lshlrev_b32 %s, 6, %s', vPKV, vPKV)
    S('v_add_u32 %s, %d, %s', vPKV, WS_FKV, vPKV)
    for dst in (sR4, sR8):
        S('s_lshl_b32 %s, %s, 12', dst, dst)
        S('s_add_u32 %s, %s, %d', dst, dst, WS_KV)
    S('s_cmp_ge_u32 %s, 4', sT)
    A('s_cselect_b32 s98, 1, 0')
    S('s_cselect_b32 %s, 0, 0x%x', t1, OOB)
    S('v_add_u32 %s, %s, %s', vD4, t1, vL16)
    S('s_cmp_ge_u32 %s, 8', sT)
    A('s_cselect_b32 s98, 3, s98')
    S('s_cselect_b32 %s, 0, 0x%x', t1, OOB)
    S('v_add_u32 %s, %s, %s', vD8, t1, vL16)
    if OPT['dbg'] & 8:
        S('v_mov_b32 %s, 0x%x', vD4, OOB)
        S('v_mov_b32 %s, 0x%x', vD8, OOB)
    A('s_mov_b32 s99, 0')
    S('s_lshl_b32 %s, %s, 6', t1, sT)
    S('s_add_u32 %s, %s, %s', t1, t1, sM)
    S('s_lshl2_add_u32 %s, %s, %d', sFO, t1, WS_FA + 64)
    S('s_add_u32 %s, %s, 128', sFHID, sFO)
    S('s_lshr_b32 %s, %s, 1', t1, sTS)
    S('s_lshl_b32 %s, %s, 5', t1, t1)
    S('s_add_u32 %s, %s, %s', t1, t1, sCT)
    S('s_and_b32 %s, %s, 1', t2, sTS)
    S('s_lshl1_add_u32 %s, %s, %s', t1, t1, t2)
    S('s_lshl2_add_u32 %s, %s, %d', sFY, t1, WS_FA + 128)
    S('s_lshl_b32 %s, %s, 15', t1, sT)
    S('s_add_u32 %s, %s, %d', sYL[0], t1, WS_Y)
    S('s_add_u32 %s, %s, %d', sYL[1], t1, WS_Y + 16384)
    S('s_lshl_b32 %s, %s, 10', t2, sM)
    S('s_add_u32 %s, %s, %s', t1, t1, t2)
    S('s_add_u32 %s, %s, %d', sOO, t1, WS_O)
    S('s_lshl3_add_u32 %s, %s, %s', t1, sTS, sCT)
    S('s_lshl_b32 %s, %s, 11', t2, t1)
    S('s_add_u32 %s, %s, %d', sYO, t2, WS_Y)
    S('s_lshl_b32 %s, %s, 7', t2, t1)
    S('s_add_u32 %s, %s, %d', sSO, t2, WS_STAT)
    S('s_lshl_b32 %s, %s, 11', t2, sT)
    S('s_add_u32 %s, %s, %d', sSL, t2, WS_STAT)
    S('s_lshr_b32 %s, %s, 1', t1, sM)
    S('s_lshl4_add_u32 %s, %s, %s', t1, sT, t1)
    S('s_mul_i32 %s, %s, 7168', t1, t1)
    S('s_add_u32 %s, %s, %d', sHO[0], t1, WS_HID)
    S('s_add_u32 %s, %s, %d', sHO[1], t1, WS_HID + 56 * 1024)
    S('s_lshl3_add_u32 %s, %s, %s', t1, sT0, sW)
    for s in range(4):
        S('s_add_u32 %s, %s, %d', t2, sOWN, s + 1)
        S('s_and_b32 %s, %s, 3', t2, t2)
        S('s_lshl2_add_u32 %s, %s, %s', t2, t2, t1)
        S('s_lshl_b32 %s, %s, 12', t3, t2)
        S('s_add_u32 %s, %s, %d', STG_O[s], t3, WS_O)
        S('s_mul_i32 %s, %s, %d', t3, t2, 14 * 1024)
        S('s_add_u32 %s, %s, %d', STG_H[s], t3, WS_HID)
    S('s_lshl2_add_u32 %s, %s, %s', t1, sCT, sW)
    S('s_lshl_b32 %s, %s, 14', t2, t1)
    S('s_add_u32 %s, %s, %d', sWOB, t2, WS_WOT)
    S('s_mul_i32 %s, %s, %d', t2, t1, 14 * 4096)
    S('s_add_u32 %s, %s, %d', sW2B, t2, WS_W2T)
    S('s_lshr_b32 %s, %s, 1', t1, sW)
    S('s_and_b32 %s, %s, 1', t2, sW)
    S('s_lshl3_add_u32 %s, %s, %s', t1, t1, t2)
    S('s_lshl_b32 %s, %s, 7', t1, t1)
    S('s_add_u32 %s, %s, %s', t1, t1, sM)
    S('s_mul_i32 %s, %s, 224', sW1G, t1)
    S('s_mul_i32 %s, %s, 7168', sW1L, sW)
    S('s_lshl_b32 %s, %s, 2', t1, sW)
    S('s_lshl_b32 s60, 15, %s', t1)
    A('s_mov_b32 s61, s60')
    S('s_lshl_b32 %s, %s, 12', t1, sW)
    S('s_add_u32 %s, %s, %d', t1, t1, L_KV)
    S('v_add_u32 %s, %s, %s', vKV, t1, vL16)


def setup_vector():
    a, b, t, q, l7 = 'v10', 'v11', 'v12', 'v95', 'v13'
    S('v_and_b32 %s, 7, %s', l7, vLANE)
    S('v_and_b32 %s, 15, %s', t, vLANE)
    S('v_lshrrev_b32 %s, 4, %s', q, vLANE)
    S('s_lshl_b32 %s, %s, 14', t0, sTS)
    S('s_lshl_b32 %s, %s, 7', t1, sCT)
    S('s_add_u32 %s, %s, %s', t0, t0, t1)
    S('v_lshl_add_u32 %s, %s, 10, %s', a, t, t0)
    S('v_lshl_add_u32 %s, %s, 5, %s', vXO, q, a)
    if OPT['dbg'] & 16:
        S('v_add_u32 %s, %s, %s', vXO, t0, vL16)
    S('s_add_u32 %s, %s, %d', t1, t1, L_MODL + 1024)
    S('v_lshl_add_u32 %s, %s, 5, %s', vG2A, q, t1)
    S('s_mov_b32 %s, %d', t1, L_GAB)
    S('v_lshl_add_u32 %s, %s, 6, %s', vGAB, q, t1)
    S('s_mov_b32 %s, %d', t1, L_UT)
    S('v_lshl_add_u32 %s, %s, 4, %s', vUTR, q, t1)
    S('s_lshl_b32 %s, %s, 10', t0, sW)
    S('s_add_u32 %s, %s, %d', t1, t0, WS_MOD + 6144)
    S('v_add_u32 %s, %s, %s', vMR0, t1, vL16)
    S('s_lshr_b32 %s, %s, 1', t0, t0)
    S('s_add_u32 %s, %s, %d', t1, t0, L_MODL)
    S('v_lshl_add_u32 %s, %s, 3, %s', vMW, vLANE, t1)
    S('v_bfe_u32 %s, %s, 3, 1', b, vLANE)
    S('v_lshl_add_u32 %s, %s, 1, %s', a, q, b)
    S('v_mul_u32_u24 %s, 6144, %s', a, a)
    S('v_lshl_add_u32 %s, %s, 4, %s', a, l7, a)
    S('s_and_b32 %s, %s, 1', t0, sW)
    S('s_lshl1_add_u32 %s, %s, %s', t1, sCT, t0)
    S('s_lshl_b32 %s, %s, 7', t1, t1)
    S('s_add_u32 %s, %s, %d', t1, t1, WS_MOD + 4096)
    S('v_add_u32 %s, %s, %s', vMR1, t1, a)
    S('s_lshl_b32 %s, %s, 7', t0, t0)
    S('s_add_u32 %s, %s, %d', t0, t0, L_GAB)
    S('v_lshl_add_u32 %s, %s, 8, %s', a, b, t0)
    S('v_lshl_add_u32 %s, %s, 4, %s', a, l7, a)
    S('v_lshrrev_b32 %s, 5, %s', b, vLANE)
    S('v_lshl_add_u32 %s, %s, 2, %s', a, b, a)
    S('v_and_b32 %s, 1, %s', q, q)
    S('v_lshl_add_u32 %s, %s, 3, %s', vGW, q, a)
    S('v_lshlrev_b32 %s, 4, %s', a, t)
    S('v_lshl_add_u32 %s, %s, 14, %s', a, q, a)
    S('v_lshl_add_u32 %s, %s, 8, %s', vOO, b, a)
    S('v_lshlrev_b32 %s, 2, %s', a, t)
    S('v_lshl_add_u32 %s, %s, 6, %s', vSS, b, a)
    S('v_lshl_add_u32 %s, %s, 10, %s', vSL, q, vSS)
    S('s_lshl_b32 %s, %s, 8', t0, sT0)
    S('s_add_u32 %s, %s, %d', t0, t0, WS_FA)
    S('v_lshl_add_u32 %s, %s, 7, %s', a, b, t0)
    S('v_lshl_add_u32 %s, %s, 2, %s', vPG, vLANE, a)
    S('v_bfe_u32 %s, %s, 2, 3', a, vLANE)
    S('v_lshl_add_u32 %s, %s, 4, %s', a, b, a)
    S('v_mul_u32_u24 %s, 224, %s', a, a)
    S('v_and_b32 %s, 3, %s', b, vLANE)
    S('v_lshl_add_u32 v%d, %s, 3, %s', vT1, b, a)
    S('v_add_u32 v%d, 57344, v%d', vT2, vT1)
    S('s_and_b32 %s, %s, 1', t0, sM)
    S('s_lshl_b32 %s, %s, 12', t1, t0)
    S('v_add_u32 %s, %s, %s', vH4, t1, vL16)
    S('s_lshl_b32 %s, %s, 9', t1, t0)
    S('v_lshlrev_b32 %s, 3, %s', vL8, vLANE)
    S('v_add_u32 %s, %s, %s', vH2, t1, vL8)
    for s in range(4):
        S('s_add_u32 %s, %s, %d', t0, sW, s + 1)
        S('s_and_b32 %s, %s, 3', t0, t0)
        S('s_lshl_b32 %s, %s, 13', t0, t0)
        S('s_add_u32 %s, %s, %d', t0, t0, L_RED + (4096 if s == 1 else 0))
        S('v_add_u32 v%d, %s, %s', (vRW + (vRR,))[s], t0, vL16)
    S('s_mul_i32 %s, %s, 14', t0, sW)
    S('v_min_u32 %s, 13, %s', a, t)
    S('v_add_u32 %s, %s, %s', a, t0, a)
    S('s_lshl2_add_u32 %s, %s, 56', t0, sW)
    S('v_and_b32 %s, 3, %s', b, vLANE)
    S('v_add_u32 %s, %s, %s', b, t0, b)
    S('v_cndmask_b32 %s, %s, %s, %s', a, b, a, sMASK)
    S('s_lshl_b32 %s, %s, 13', t0, sCT)
    S('s_add_u32 %s, %s, %d', t0, t0, WS_FP)
    S('v_lshl_add_u32 %s, %s, 6, %s', a, a, t0)
    S('s_mov_b32 %s, %d', t0, WS_FKV)
    S('v_lshl_add_u32 %s, %s, 13, %s', b, l7, t0)
    S('s_or_b32 %s, %s, %s', t0, sLID, sW)
    S('s_min_u32 %s, %s, 1', t0, t0)
    S('s_sub_u32 %s, %s, 1', t0, t0)
    S('s_and_b32 s93, %s, 0xff', t0)
    A('s_mov_b32 s92, 0')
    S('v_cndmask_b32 %s, %s, %s, s[92:93]', vFP, a, b)


def w1_addr():
    for i in range(7):
        S('v_add_u32 v10, %d, %s', 64 * i, vLANE)
        A('v_mul_u32_u24 v11, 4682, v10')
        A('v_lshrrev_b32 v11, 16, v11')
        A('v_mad_i32_i24 v10, v11, -14, v10')
        S('v_add_u32 v10, %s, v10', t4)
        A('v_subrev_u32 v12, 14, v10')
        A('v_min_u32 v10, v10, v12')
        A('v_and_b32 v12, 4, v11')
        A('v_mad_u32_u24 v12, v12, 3, v11')
        A('v_and_b32 v15, 16, v11')
        A('v_add_u32 v12, v12, v15')
        A('v_bfe_u32 v15, v11, 3, 1')
        A('v_mad_i32_i24 v12, v15, -4, v12')
        A('v_mul_u32_u24 v12, 3584, v12')
        S('v_lshl_add_u32 v%d, v10, 4, v12', W1V + i)


def ut_addr():
    S('s_lshl_b32 %s, %s, 5', t3, sW)
    S('s_add_u32 %s, %s, 128', t4, t3)
    S('s_min_u32 %s, %s, 192', t4, t4)
    S('v_add_u32 v%d, %s, v%d', UTA, t3, vT1)
    S('v_add_u32 v%d, %s, v%d', UTA + 1, t3, vT2)
    S('v_add_u32 v%d, %s, v%d', UTA + 2, t4, vT1)
    S('v_add_u32 v%d, %s, v%d', UTA + 3, t4, vT2)
    S('v_and_b32 v10, 1, %s', vLANE)
    A('v_lshlrev_b32 v11, 10, v10')
    S('v_sub_u32 v11, %d, v11', L_MODL + 1024)
    S('v_lshrrev_b32 v12, 4, %s', vLANE)
    S('v_lshl_add_u32 v%d, v12, 5, v11', UTA + 4)
    S('v_lshl_add_u32 v12, v10, 9, %s', vUTR)
    S('v_lshl_add_u32 v%d, %s, 1, v12', UTA + 5, t3)
    S('v_lshl_add_u32 v%d, %s, 1, v12', UTA + 6, t4)


def mod_poll(wst):
    def loads():
        S('buffer_load_dword v58, v157, %s, 0 offen sc1', SRD_WS)
        return [S('buffer_load_dwordx4 %s, v156, %s, %s offen sc1', vr(40 + 4 * i, 4), SRD_WS, sMP[i]) for i in range(4)]
    L, D = A.label('pmod'), A.label('dmod')
    stamp('ln done')
    tk = loads()
    if OPT['cpf'] == 2:
        code_prefetch()
    if OPT['tw1'] == 2:
        warm(SRD_W1, 14)
    wst.drip(OPT['n3'])
    setup_a()
    stamp('.setup a')
    for i in range(4):
        A.wait(vm=tk[i])
        untag(40 + 4 * i, 56, i == 0)
    untag_test(56)
    S('s_mov_b32 %s, 0', sCNT)
    A('s_cbranch_vccz ' + D)
    vm_save = A.vm
    A(L + ':')
    loads()
    S('s_add_u32 %s, %s, 1', sCNT, sCNT)
    for i in range(4):
        S('s_waitcnt vmcnt(%d)', 3 - i)
        untag(40 + 4 * i, 56, i == 0)
    untag_test(56)
    S('s_cmp_lt_u32 %s, %d', sCNT, LIMIT)
    A('s_cbranch_vccz ' + D)
    A('s_cbranch_scc1 ' + L)
    A(D + ':')
    A.vm = vm_save
    stamp('mod seen')
    S('v_cmp_ne_u32 vcc, %s, v58', sXC)
    sum_partials(40, 'v150')
    unpack(44, 40)
    unpack(46, 41)
    A('s_cbranch_vccnz L_xcslow')
    A('L_local:')


def xc_slow():
    A('L_xcslow:')
    S('s_mov_b32 %s, 0', sCNT)
    A('L_xc1:')
    S('buffer_load_dword v58, v157, %s, 0 offen sc1', SRD_WS)
    S('s_add_u32 %s, %s, 1', sCNT, sCNT)
    A('s_waitcnt vmcnt(0)')
    S('v_cmp_ne_u32 vcc, %s, v58', sXC)
    A('s_cbranch_vccz L_local')
    S('s_cmp_lt_u32 %s, 32', sCNT)
    A('s_cbranch_scc1 L_xc1')
    S('s_lshl_b32 %s, %s, 6', t0, sLID)
    S('s_add_u32 %s, %s, %d', t0, t0, WS_XB)
    flag_store(t0, True, vXCV)
    S('s_lshl_b32 %s, %s, 11', t0, sX)
    S('s_add_u32 %s, %s, %d', t0, t0, WS_XB)
    S('v_lshl_add_u32 v59, v151, 6, %s', t0)
    S('buffer_load_dword v57, v59, %s, 0 offen sc1', SRD_WS)
    A('s_waitcnt vmcnt(0)')
    S('v_cmp_ne_u32 vcc, %s, v57', sXC)
    A('s_cbranch_vccz L_local')
    S('s_add_u32 %s, %s, 1', t0, sTAG)
    S('v_subrev_u32 v56, %s, v57', t0)
    A('v_cmp_le_u32 vcc, 16, v56')
    A('s_cbranch_vccz L_remote')
    S('s_cmp_lt_u32 %s, %d', sCNT, LIMIT)
    A('s_cbranch_scc1 L_xc1')
    A('L_remote:')


def h_phase(wst, pst):
    t = A('ds_write_b128 v158, v[44:47]')
    S('s_add_u32 %s, %s, 4096', t3, H_S)
    A.wait(lg=t)
    tr = []
    for i in range(4):
        S('ds_read_b128 %s, v159 offset:%d', vr(64 + 8 * i, 4), 256 * (i >> 1) + 16 * (i & 1))
        tr.append(S('ds_read_b128 %s, v159 offset:%d', vr(68 + 8 * i, 4), 512 + 256 * (i >> 1) + 16 * (i & 1)))
    for i in range(4):
        A.wait(lg=tr[i])
        for d in range(2):
            x = 24 + 4 * i + 2 * d
            S('v_pk_fma_f32 %s, %s, %s, %s', vr(x, 2), vr(x, 2), vr(68 + 8 * i + 2 * d, 2), vr(64 + 8 * i + 2 * d, 2))
        for d in range(2):
            x = 24 + 4 * i + 2 * d
            S('v_cvt_pk_bf16_f32 v%d, v%d, v%d', 16 + 2 * i + d, x, x + 1)
        if i & 1:
            ts = S('buffer_store_dwordx4 %s, %s, %s, %s offen%s', vr(16 + 4 * (i >> 1), 4), H_V, SRD_WS, (H_S, t3)[i >> 1], sc('h'))
    stamp('.h st')
    keep = 8 - OPT['wq0']
    wst.drip(max(0, min(OPT['n4'], len(wst) - keep)))
    prep_addr()
    A.wait(vm=ts)
    flag_store(t5, not LOCAL[0])
    stamp('h pub')
    if OPT['tw1'] == 3:
        warm(SRD_W1, 14)
    if OPT['ppos'] == 0:
        pst.drip(4)
    nb = max(0, len(wst) - keep)
    wst.drip(nb - nb // 2)
    setup_scalar()
    lanes = 0
    if LOCAL[0] and OPT['toy']:
        S('v_and_b32 v10, 7, %s', vLANE)
        S('v_bfe_u32 v11, %s, 3, 1', vLANE)
        S('v_lshl_add_u32 v10, v10, 7, %s', sOO)
        A('v_lshl_add_u32 v10, v11, 14, v10')
        S('v_and_b32 v11, 15, %s', vLANE)
        S('v_lshl_add_u32 v11, v11, 7, %s', sYO)
        S('v_cndmask_b32 v10, v11, v10, %s', sMASK)
        S('v_writelane_b32 v10, %s, 32', sSO)
        lanes |= (0xffff if OPT['po'] else 0) | (0x1ffff0000 if OPT['py'] else 0)
    if OPT['tfl']:
        S('v_writelane_b32 v10, %s, 33', sFKV)
        S('v_writelane_b32 v10, %s, 34', sFP)
        lanes |= 3 << 33
    if OPT['tlb'] & 1:
        for i, r in enumerate((sKVO, sR8, sOO, sYO, sHO[0], STG_H[0], sW2B)):
            S('s_or_b32 %s, %s, 0x1fff80', t0, r)
            S('v_writelane_b32 v10, %s, %d', t0, 35 + i)
        lanes |= 0x7f << 35
    if OPT['tlb'] & 2:
        A('s_mov_b64 exec, 1')
        S('buffer_load_dword v%d, off, %s, 0', JUNK + 1, SRD_OUT)
        A('s_mov_b64 exec, -1')
    if lanes:
        S('s_mov_b32 exec_lo, 0x%x', lanes & 0xffffffff)
        S('s_mov_b32 exec_hi, 0x%x', lanes >> 32)
        S('buffer_load_dword v%d, v10, %s, 0 offen sc1', JUNK + 2, SRD_WS)
        A('s_mov_b64 exec, -1')
    wst.drip(nb // 2)
    stamp('.dma iss')
    return []


def qkv(w1, wq, pst, sl):
    RING = 4
    rd = {}

    def bread(s, tile):
        b = 64 + 8 * (s % RING)
        for half in range(2):
            rd[s] = S('ds_read_b64_tr_b16 %s, v13 offset:%d', vr(b + 4 * tile + 2 * half, 2), tile * 32768 + s * 1024 + half * 256)
    poll(vPT, 0, 'h', sMASK)
    stamp('h seen')
    ta = []

    def aload(s):
        if s and s & 3 == 0:
            S('s_add_u32 %s, %s, 4096', sHL, sHL)
        ta.append(S('buffer_load_dwordx4 %s, %s, %s, %s offen offset:%d sc1', vr(128 + 4 * s, 4), vL16, SRD_WS, sHL, (s & 3) * 1024))
    AH = 10
    twq = 0
    for s in range(AH):
        aload(s)
    A('s_barrier')
    for s in range(RING - 1):
        bread(s, 0)
        bread(s, 1)
    A.lines += sl
    S('s_and_b32 %s, %s, 1', t4, sM)
    S('s_lshl_b32 %s, %s, 1', t4, t4)
    fill = capture(w1_addr)
    for s in range(32):
        b = 64 + 8 * (s % RING)
        A.wait(vm=ta[s], lg=rd[s])
        a = vr(128 + 4 * s, 4)
        S('%s v[16:31], %s, %s, %s', MF32, vr(b, 4), a, 'v[16:31]' if s else '0')
        if s + AH < 32:
            aload(s + AH)
        elif s + AH - 32 < OPT['wq1'] and len(wq):
            twq = wq.drip(1)
        elif OPT['ppos'] == 1 and len(pst):
            twq = pst.drip(1)
        if s + RING - 1 < 32:
            bread(s + RING - 1, 0)
        A.lines += fill[:2]
        S('%s v[32:47], %s, %s, %s', MF32, a, vr(b + 4, 4), 'v[32:47]' if s else '0')
        if s + RING - 1 < 32:
            bread(s + RING - 1, 1)
        A.lines += fill[2:4]
        fill = fill[4:]
    assert not fill
    stamp('kv pass')
    for p in range(4):
        for d in range(4):
            S('v_cvt_pk_bf16_f32 v%d, v%d, v%d', 48 + 4 * p + d, 16 + 8 * p + 2 * d, 17 + 8 * p + 2 * d)
        tkvs = S('buffer_store_dwordx4 %s, %s, %s, %s offen offset:%d sc1', vr(48 + 4 * p, 4), vL16, SRD_WS, sKVO, p * 1024)
    stamp('.kv st')
    if OPT['tw1'] == 4:
        warm(SRD_W1, 14, 10, 15)
    if OPT['ppos'] == 3:
        twq = pst.drip(4)
    twq = wq.drip(OPT['wq2']) or twq
    for p in range(4):
        tl = S('ds_write_b128 %s, %s offset:%d', vKV, vr(48 + 4 * p, 4), 8 * 4096 + p * 1024)

    def masks():
        S('v_and_b32 v11, 31, %s', vLANE)
        S('v_lshrrev_b32 v12, 5, %s', vLANE)
        A('v_lshlrev_b32 v12, 2, v12')
        A('v_sub_u32 v11, v11, v12')
        A('v_mov_b32 v12, 0xff800000')
        ms = ('s[90:91]', 's[92:93]', 's[94:95]')
        for r in range(18):
            if r < 16:
                S('v_cmp_le_i32 %s, %d, v11', ms[r % 3], (r & 3) + 8 * (r >> 2))
            if r >= 2:
                S('v_cndmask_b32 v%d, v12, 0, %s', MD + r - 2, ms[(r - 2) % 3])
                S('v_cndmask_b32 v%d, 0, v12, %s', MFAR + r - 2, ms[(r - 2) % 3])
    masks()
    fill = capture(lambda: (setup_vector(), ut_addr()))
    A.lines += fill[:len(fill) - 60]
    fill = fill[len(fill) - 60:]
    stamp('.masks')

    def kvflag():
        A.wait(vm=tkvs)
        flag_store(sFKV, True)
        stamp('kv pub')
    if OPT['qf'] < 0:
        kvflag()
    twq = wq.drip(99) or twq
    twq = pst.drip(4) or twq
    A.wait(vm=twq, lg=tl)
    A('s_barrier')
    stamp('wq ready')
    rq = {}

    def qread(s):
        b = 64 + 4 * (s % 6)
        for half in range(2):
            rq[s] = S('ds_read_b64_tr_b16 %s, v14 offset:%d', vr(b + 2 * half, 2), s * 1024 + half * 256)
    early = OPT['qchk'] < 32
    if OPT['qp'] == 0 and early:
        tpoll = poll_load(vPKV, 0)
    for s in range(5):
        qread(s)

    def kv_dma():
        for t, slot, v in ((sR4, 4, vD4), (sR8, 0, vD8)):
            S('s_add_u32 m0, %s, %d', t2, L_KV + slot * 4096)
            for p in range(4):
                tk = S('buffer_load_dwordx4 %s, %s, %s offen offset:%d sc1 lds', v, SRD_WS, t, p * 1024)
        return tk
    LATE = A.label('kvlate')
    S('s_mov_b32 %s, 1', t5)
    S('s_lshl_b32 %s, %s, 12', t2, sW)
    nd = 0
    for s in range(32):
        A.wait(lg=rq[s])
        S('%s v[48:63], %s, %s, %s', MF32, vr(64 + 4 * (s % 6), 4), vr(128 + 4 * s, 4), 'v[48:63]' if s else '0')
        if s and s == OPT['qp'] and early:
            tpoll = poll_load(vPKV, 0)
        if OPT['qchk'] < s < 27 and s % 2 == 0 and nd < OPT['qd']:
            w1.pre()
        if s + 5 < 32:
            qread(s + 5)
        if s == OPT['qf']:
            kvflag()
        if s == OPT['qchk']:
            stamp('.q chk')
            A.wait(vm=tpoll)
            stamp('.polled')
            poll_test(sM2)
            A('s_cbranch_scc1 ' + LATE)
            tkv = kv_dma()
            S('s_mov_b32 %s, 0', t5)
            A(LATE + ':')
        if w1.ready:
            w1.go()
            nd += 1
        elif s >= 27:
            if s < 31:
                tpr = prep_read(s - 27)
        A.lines += fill[:2]
        fill = fill[2:]
    assert not fill
    S('v_add_u32 %s, %s, %s', vPD, H_S, vL16)
    stamp('q pass')
    if early:
        OKK = A.label('kvok')
        S('s_cmp_eq_u32 %s, 0', t5)
        A('s_cbranch_scc1 ' + OKK)
        vm_save, vd = A.vm, A.vm_done
        poll(vPKV, 0, 'kv', sM2)
        kv_dma()
        A('s_waitcnt vmcnt(0)')
        A.vm, A.vm_done = vm_save, vd
        A(OKK + ':')
    else:
        w1.drip(OPT['qp'])
        poll(vPKV, 0, 'kv', sM2)
        stamp('.kv seen')
        tkv = kv_dma()
        w1.drip(OPT['qd'])
    S('s_mov_b32 %s, 0x3eb8aa3b', t0)
    S('s_mov_b32 %s, 0x3eb8aa3b', t1)
    A.wait(lg=tpr)
    for p in range(4):
        tps = prep_store(p)
    for r in range(16):
        S('v_mov_b32 v%d, 0x3f803f80', V0 + r)
    return tkv, tps


def mr_load(i):
    if i < 4:
        S('s_mov_b32 s65, %d', 12288 * i)
        return S('buffer_load_dwordx4 %s, %s, %s, s65 offen sc1', vr(MRD + 4 * i, 4), vMR0, SRD_WS)
    return S('buffer_load_dwordx4 %s, %s, %s, 0 offen sc1', vr(MRD + 16, 4), vMR1, SRD_WS)


def kv_off(d, piece):
    return (8 - d) * 4096 + piece * 1024


def attention(w1, tkv, tps):
    bg = Stream()
    wo = frag_stream(sWOB, 4, 192)
    tk = {}
    RET, RETB = A.label('fpretry'), A.label('fpback')

    def fp_load():
        tk[0] = poll_load(vFP, 0)

    def fp_check():
        A.wait(vm=tk[0])
        S('v_cmp_ne_u32 vcc, %s, v15', sTAG)
        A('s_cbranch_vccnz ' + RET)
        A(RETB + ':')
    while len(bg) < OPT['aw1']:
        bg.q.append(w1.q.pop(0) if len(w1) else (lambda: None, None))
    if LOCAL[0] and OPT['po'] and OPT['toy'] != 1:
        bg.add(lambda: touch(vOO, sOO))
        bg.add(lambda: touch(vOO, sOO, 512))

    def fp_flag():
        A.wait(vm=tps)
        S('v_mov_b32 v15, %s', H_S)
        A('s_mov_b64 exec, 1')
        S('buffer_store_dword %s, v15, %s, %s offen sc1', vTAG, SRD_WS, sFP)
        A('s_mov_b64 exec, -1')
    bg.q.insert(OPT['fpl'], (fp_load, None))
    bg.q.insert(OPT['fpf'], (fp_flag, None))
    bg.add(fp_check)
    chk = bg.q.pop()
    for i in range(5):
        bg.add(lambda i=i: mr_load(i))
    bg.add(lambda: S('buffer_load_dwordx4 %s, %s, %s, 0 offen', vr(XT, 4), vXO, SRD_X))
    bg.add(lambda: S('buffer_load_dwordx4 %s, %s, %s, 0 offen offset:16', vr(XT + 4, 4), vXO, SRD_X))
    bg.q.append(chk)
    nmust = len(bg)
    if not OPT['nobg'] & 4:
        bg.q += wo.q
    bg.q += w1.q
    ntail = len(bg) - nmust

    def cop(d):
        return vr(MD, 16) if d == 0 else vr(MFAR, 16) if d == 8 else '0'

    def rdK(h, d):
        return S('ds_read_b128 %s, %s offset:%d', vr((K0, K1)[h], 4), vKV, kv_off(d, h))

    def rdV(h, d):
        if d:
            S('s_cselect_b64 exec, -1, %s', (sLO, sHI)[h])
        else:
            S('s_mov_b64 exec, %s', (sLO, sHI)[h])
        S('ds_read_b128 %s, %s offset:%d', vr((V0, V1)[h], 4), vKV, kv_off(d, 2))
        t = S('ds_read_b128 %s, %s offset:%d', vr((V0, V1)[h] + 4, 4), vKV, kv_off(d, 3))
        A('s_mov_b64 exec, -1')
        return t

    rdK(0, 0)
    rdK(1, 0)
    rdV(0, 0)
    for i in range(8):
        S('v_pk_mul_f32 %s, %s, s[76:77]', vr(48 + 2 * i, 2), vr(48 + 2 * i, 2))
    for i in range(8):
        S('v_cvt_pk_bf16_f32 v%d, v%d, v%d', 48 + i, 48 + 2 * i, 49 + 2 * i)
    A.wait(lg='all')
    S('%s %s, %s, %s, %s', MF32, vr(S0, 16), vr(K0, 4), vr(Q0, 4), cop(0))

    def half(h, d):
        S_, P, O, V = (S0, S1)[h], (P0, P1)[h], (O0, O1)[h], (V0, V1)[h]
        oS, oP, oO, oV, oK, oQ = (S1, S0)[h], (P1, P0)[h], (O1, O0)[h], (V1, V0)[h], (K1, K0)[h], (Q1, Q0)[h]
        od = d if h == 0 else d + 1
        first = d == 0 and h == 0
        if od <= 8:
            S('%s %s, %s, %s, %s', MF32, vr(oS, 16), vr(oK, 4), vr(oQ, 4), cop(od))
            if od:
                S('s_cmp_lt_u32 %s, %d', sT, od)
        if not first:
            if d + 1 <= 8:
                rdK(h, d + 1)
            bg.go()
        else:
            rdV(1, 0)
        for i in range(4):
            S('v_exp_f32 v%d, v%d', S_ + i, S_ + i)
        if not first:
            S('%s %s, %s, %s, %s', MF32, vr(oO, 16), vr(oV + 4, 4), vr(oP + 4, 4), vr(oO, 16))
            if od <= 8:
                rdV(1 - h, od)
            bg.pre()
        for i in range(4, 8):
            S('v_exp_f32 v%d, v%d', S_ + i, S_ + i)
        for i in range(4):
            S('v_cvt_pk_bf16_f32 v%d, v%d, v%d', P + i, S_ + 2 * i, S_ + 2 * i + 1)
        for i in range(8, 12):
            S('v_exp_f32 v%d, v%d', S_ + i, S_ + i)
        S('%s %s, %s, %s, %s', MF32, vr(O, 16), vr(V, 4), vr(P, 4), vr(O, 16) if d else '0')
        if first:
            A.wait(vm=tkv)
            A('s_barrier')
            stamp('kv loaded')
            rdK(0, 1)
            bg.drip(3)
        else:
            A.wait(lg='all')
            bg.go()
        bg.pre()
        for i in range(12, 16):
            S('v_exp_f32 v%d, v%d', S_ + i, S_ + i)
        for i in range(4, 8):
            S('v_cvt_pk_bf16_f32 v%d, v%d, v%d', P + i, S_ + 2 * i, S_ + 2 * i + 1)
        if first:
            A.wait(lg='all')

    for d in range(9):
        if d in (3, 6):
            stamp('.d%d' % d)
        half(0, d)
        half(1, d)
    bg.drip(max(0, len(bg) - ntail))
    w1.q, w1.ready = bg.q, bg.ready
    S('%s %s, %s, %s, %s', MF32, vr(O1, 16), vr(V1 + 4, 4), vr(P1 + 4, 4), vr(O1, 16))
    stamp('att done')
    FB, OK = A.label('fb'), A.label('attok')
    S('s_mov_b32 %s, 0x1f800000', t0)
    S('s_mov_b32 %s, 0x5f800000', t1)
    S('s_mov_b32 %s, 0x7f000000', t2)
    S('v_add_f32 v10, abs(v%d), abs(v%d)', O0, O0 + 1)
    for i in range(2, 8):
        S('v_add_f32 v10, v10, abs(v%d)', O0 + i)
    S('v_cmp_nle_f32 vcc, %s, v%d', t0, O0 + 8)
    S('v_cmp_nge_f32 s[92:93], %s, v%d', t1, O0 + 8)
    for i in range(8):
        S('v_add_f32 v10, v10, abs(v%d)', O1 + 8 + i)
    A('s_or_b64 vcc, vcc, s[92:93]')
    S('v_cmp_nle_f32 s[92:93], %s, v%d', t0, O1)
    S('v_cmp_nge_f32 s[94:95], %s, v%d', t1, O1)
    S('v_cmp_ngt_f32 s[90:91], %s, v10', t2)
    S('v_rcp_f32 v10, v%d', O0 + 8)
    S('v_rcp_f32 v12, v%d', O1)
    A('s_or_b64 vcc, vcc, s[92:93]')
    A('s_or_b64 vcc, vcc, s[94:95]')
    A('s_or_b64 vcc, vcc, s[90:91]')
    if OPT['force_fallback']:
        A('s_branch ' + FB)
    A('s_cbranch_scc1 ' + FB)
    A(OK + ':')
    for h, (src, rc) in enumerate(((O0, 10), (O1 + 8, 12))):
        for i in range(4):
            S('v_pk_mul_f32 %s, %s, %s op_sel_hi:[1,0]', vr(src + 2 * i, 2), vr(src + 2 * i, 2), vr(rc, 2))
        for i in range(4):
            S('v_cvt_pk_bf16_f32 v%d, v%d, v%d', P0 + 4 * h + i, src + 2 * i, src + 2 * i + 1)
        ts = S('buffer_store_dwordx4 %s, %s, %s, %s offen offset:%d%s', vr(P0 + 4 * h, 4), vOO, SRD_WS, sOO, h * 512, sc('o'))
    return (FB, OK, RET, RETB), ts


def out_of_line(FB, OK, RET, RETB):
    A(RET + ':')
    A('s_cselect_b32 s66, 1, 0')
    poll(vFP, 0, 'fp', '-1')
    A('s_cmp_lg_u32 s66, 0')
    A('s_branch ' + RETB)
    A(FB + ':')
    S('s_min_u32 %s, %s, 8', t3, sT)
    for r in range(16):
        S('v_mov_b32 v%d, 0x3f803f80', V0 + r)
    for h in range(2):
        Kp, Q, O, V = h, (Q0, Q1)[h], (O0, O1)[h], (V0, V1)[h]
        for ps in range(2):
            L, ND, NF = A.label('fl'), A.label('fnd'), A.label('fnf')
            S('s_mov_b32 %s, 0', t4)
            S('v_add_u32 v10, %d, %s', 8 * 4096, vKV)
            if ps == 0:
                A('v_mov_b32 v11, 0xff800000')
            else:
                for r in range(16):
                    S('v_mov_b32 v%d, 0', O + r)
            A(L + ':')
            S('ds_read_b128 %s, v10 offset:%d', vr(K0, 4), Kp * 1024)
            if ps == 1:
                S('s_mov_b64 exec, %s', (sLO, sHI)[h])
                S('ds_read_b128 %s, v10 offset:2048', vr(V, 4))
                S('ds_read_b128 %s, v10 offset:3072', vr(V + 4, 4))
                A('s_mov_b64 exec, -1')
            A('s_waitcnt lgkmcnt(0)')
            S('%s %s, %s, %s, 0', MF32, vr(S0, 16), vr(K0, 4), vr(Q, 4))
            A('s_nop 15')
            S('s_cmp_lg_u32 %s, 0', t4)
            A('s_cbranch_scc1 ' + ND)
            for r in range(16):
                S('v_add_f32 v%d, v%d, v%d', S0 + r, S0 + r, MD + r)
            A(ND + ':')
            S('s_cmp_lg_u32 %s, 8', t4)
            A('s_cbranch_scc1 ' + NF)
            for r in range(16):
                S('v_add_f32 v%d, v%d, v%d', S0 + r, S0 + r, MFAR + r)
            A(NF + ':')
            if ps == 0:
                for r in range(8):
                    S('v_max3_f32 v11, v11, v%d, v%d', S0 + 2 * r, S0 + 2 * r + 1)
            else:
                for r in range(16):
                    S('v_sub_f32 v%d, v%d, v11', S0 + r, S0 + r)
                for r in range(16):
                    S('v_exp_f32 v%d, v%d', S0 + r, S0 + r)
                for r in range(8):
                    S('v_cvt_pk_bf16_f32 v%d, v%d, v%d', P0 + r, S0 + 2 * r, S0 + 2 * r + 1)
                S('%s %s, %s, %s, %s', MF32, vr(O, 16), vr(V, 4), vr(P0, 4), vr(O, 16))
                S('%s %s, %s, %s, %s', MF32, vr(O, 16), vr(V + 4, 4), vr(P0 + 4, 4), vr(O, 16))
                A('s_nop 15')
            A('v_subrev_u32 v10, 4096, v10')
            S('s_add_u32 %s, %s, 1', t4, t4)
            S('s_cmp_le_u32 %s, %s', t4, t3)
            A('s_cbranch_scc1 ' + L)
            if ps == 0:
                A('v_mov_b32 v12, v11')
                A('v_permlane32_swap_b32 v11, v12')
                A('v_max_f32 v11, v11, v12')
    S('v_rcp_f32 v10, v%d', O0 + 8)
    S('v_rcp_f32 v12, v%d', O1)
    A('s_nop 1')
    A('s_branch ' + OK)


def ring_gemm(nks, STG, areg, ring_base, ring_n, ahead, split=(), pre=None, post=None, npost=0, extra=None, head=None):
    ta = {}
    aq = Stream()
    n = 4 * nks
    for i in range(n):
        st, k = divmod(i, nks)
        r = ring_base + 4 * (i % ring_n)

        def pr(st=st, k=k):
            if k and k & 3 == 0:
                S('s_add_u32 %s, %s, 4096', STG[st], STG[st])

        def f(i=i, st=st, k=k, r=r):
            if k in split:
                for hf in range(2):
                    ta[i] = S('buffer_load_dwordx2 %s, %s, %s, %s offen offset:%d sc1', vr(r + 2 * hf, 2), vL8, SRD_WS, STG[st], (k & 3) * 1024 + 512 * hf)
            else:
                ta[i] = S('buffer_load_dwordx4 %s, %s, %s, %s offen offset:%d sc1', vr(r, 4), vL16, SRD_WS, STG[st], (k & 3) * 1024)
        aq.add(f, pr)
    assert ahead < ring_n or n <= ring_n
    aq.drip(ahead)
    if head:
        head()
    btick = {}
    long_ = nks >= 8
    acc = (CA, CB, CA, CO) if long_ else (CA, CB, 112, CO)
    tw = {}
    for i in range(n):
        st, k = divmod(i, nks)
        tk = ta[i]
        assert not pre or len(pre) <= 4 * (nks - 1 - i) or not len(pre)
        if st == 0 and k in btick:
            tk = max(tk, btick[k])
        lgw = None
        slots = [[], [], [], []]

        def wr(g, st=st):
            tw[st - 1] = S('ds_write_b128 v%d, %s offset:%d', vRW[st - 1], vr(acc[st - 1] + 4 * g, 4), g * 1024)

        def rds(dst, off):
            for g in range(4):
                slots[g].append(lambda g=g: S('ds_read_b128 %s, v%d offset:%d', vr(dst + 4 * g, 4), vRR, off + g * 1024))
        if k == 0 and OPT['fine'] in (3, 4):
            A.wait(vm=tk)
            stamp('.st%d' % st)
        if long_:
            if st >= 1 and 1 <= k <= 4:
                slots[3].append(lambda k=k: wr(k - 1))
            if st >= 2 and k == 0 or (st == 3 and k == 7):
                A.wait(vm=tk, lg='all')
                A('s_barrier')
                rds(*((CO, 0) if st == 2 else (CR, 4096) if k == 0 else (CB, 0)))
            if st == 3 and k in (10, 11, 12, 13):
                lgw = 'all'
                for g in range(4):
                    r = 4 * (k - 10) + g
                    slots[g].append(lambda r=r: S('v_add_f32 v%d, v%d, v%d', CR + r, CR + r, CB + r))
        else:
            if st >= 1:
                slots[3 - k].append(lambda k=k: wr(k))
            if st == 2 and k == 1:
                A.wait(vm=tk, lg=tw[0])
                A('s_barrier')
                rds(CO, 0)
            if st == 3 and k == 0:
                A.wait(vm=tk, lg='all')
                A('s_barrier')
                rds(CR, 4096)
        if extra:
            extra(st, k, slots)
        A.wait(vm=tk, lg=lgw)
        a = vr(ring_base + 4 * (i % ring_n), 4)
        for nt in range(4):
            c = vr(acc[st] + 4 * nt, 4)
            S('%s %s, %s, %s, %s', MF16, c, ar(areg + 16 * k + 4 * nt, 4), a, c if (k or st == 3) else '0')
            if nt == 0:
                aq.pre()
            if nt == 1:
                if len(aq):
                    aq.go()
                elif post and npost > 0:
                    post.drip(1)
                    npost -= 1
            if nt == 2:
                if pre and len(pre):
                    kk = nks - (len(pre) + 3) // 4
                    btick[kk] = pre.drip(1)
                elif not len(aq) and post and npost > 0:
                    post.drip(1)
                    npost -= 1
            for f in slots[nt]:
                f()
    if post and npost > 0:
        post.drip(npost)
    stamp('.mm end')
    if not long_:
        A.wait(lg='all')
        A('s_barrier')
        for g in range(4):
            tr = S('ds_read_b128 %s, v%d offset:%d', vr(CB + 4 * g, 4), vRR, g * 1024)
    for g in range(8):
        S('v_pk_add_f32 %s, %s, %s', vr(CO + 2 * g, 2), vr(CO + 2 * g, 2), vr(CR + 2 * g, 2))
    if not long_:
        for g in range(4):
            A.wait(lg=tr - 3 + g)
            for e in range(2):
                r = 4 * g + 2 * e
                S('v_pk_add_f32 %s, %s, %s', vr(CO + r, 2), vr(CO + r, 2), vr(CB + r, 2))


def wo_phase(ts, w1, w2):
    stamp('.o st')
    w1.drip(OPT['ow1'])
    A.wait(vm=ts - 2)
    L, D = A.label('pmr'), A.label('dmr')
    S('s_mov_b32 %s, 0', sCNT)
    A(L + ':')
    for i in range(5):
        untag(MRD + 4 * i, 148, i == 0)
    untag_test(148)
    A('s_cbranch_vccz ' + D)
    S('s_add_u32 %s, %s, 1', sCNT, sCNT)
    S('s_cmp_ge_u32 %s, %d', sCNT, LIMIT)
    A('s_cbranch_scc1 ' + D)
    vm_save = A.vm
    for i in range(5):
        mr_load(i)
    A.vm = vm_save
    A('s_waitcnt vmcnt(0)')
    A('s_branch ' + L)
    A(D + ':')
    A.wait(vm=ts)
    flag_store(sFO, not LOCAL[0])
    stamp('o pub')
    w1.drip(99)
    if LOCAL[0] and OPT['py'] and OPT['toy'] != 1:
        touch(vL16, sYO)
        touch(vL16, sYO, 1024)
        S('buffer_load_dword v%d, %s, %s, %s offen sc1', JUNK, vSS, SRD_WS, sSO)
    S('s_cmp_ge_u32 %s, 2', sW)
    S('s_cselect_b32 %s, 1.0, 0', t4)
    g = MRD + 16
    S('v_permlane32_swap_b32 v%d, v%d', g, g + 1)
    S('v_permlane32_swap_b32 v%d, v%d', g + 2, g + 3)
    S('v_add_f32 v%d, v%d, v%d', g, g, g + 1)
    S('v_add_f32 v%d, v%d, v%d', g + 2, g + 2, g + 3)
    sum_partials(MRD, t4)
    S('v_permlane16_swap_b32 v%d, v%d', g, g + 2)
    S('v_add_f32 v%d, v%d, v%d', g, g, g + 2)
    S('v_cvt_pk_bf16_f32 v%d, v%d, v%d', g, g, g)
    S('v_lshlrev_b32 v12, 16, v%d', g)
    for i in range(7, -1, -1):
        S('v_and_b32 v%d, 0xffff0000, v%d', X2 + 2 * i + 1, XT + i)
        S('v_lshlrev_b32 v%d, 16, v%d', X2 + 2 * i, XT + i)
    A('s_barrier')
    S('ds_write_b64 %s, %s', vMW, vr(MRD, 2))
    t = S('ds_write_b32 %s, v12', vGW)
    A.wait(lg=t)
    stamp('.mr')
    poll(vPG, 64, 'o', sGM)
    stamp('o seen')

    def head():
        A('s_barrier')
        for i in range(2):
            S('ds_read_b128 %s, %s offset:%d', vr(80 + 4 * i, 4), vG2A, 16 * i)
        for i in range(4):
            t = S('ds_read_b128 %s, %s offset:%d', vr(GA + 4 * i, 4), vGAB, 16 * i)
        ut_steps(0, OPT['uh'])
        A.wait(lg=t)

    def extra(st, k, slots):
        if st == 0:
            for i in (2 * k, 2 * k + 1):
                slots[(0, 3)[i & 1]].append(lambda i=i: unpack(G2 + 2 * i, 80 + i))
    ring_gemm(4, STG_O, 192, 128, 16, 12, post=w2, npost=OPT['w2a'], extra=extra, head=head)
    stamp('wo gemm')
    for e in range(2):
        for i in range(4 * e, 4 * e + 4):
            S('v_pk_fma_f32 %s, %s, %s, %s', vr(X2 + 2 * i, 2), vr(CO + 2 * i, 2), vr(GA + 2 * i, 2), vr(X2 + 2 * i, 2))
        for i in range(4 * e, 4 * e + 4):
            S('v_pk_mul_f32 %s, %s, %s', vr(G2 + 2 * i, 2), vr(X2 + 2 * i, 2), vr(G2 + 2 * i, 2))
        for i in range(4 * e, 4 * e + 4):
            S('v_cvt_pk_bf16_f32 v%d, v%d, v%d', 192 + i, G2 + 2 * i, G2 + 1 + 2 * i)
        S('buffer_store_dwordx4 %s, %s, %s, %s offen offset:%d%s', vr(192 + 4 * e, 4), vL16, SRD_WS, sYO, e * 1024, sc('y'))
    S('v_pk_add_f32 v[200:201], %s, %s', vr(X2, 2), vr(X2 + 2, 2))
    S('v_pk_mul_f32 v[202:203], %s, %s', vr(X2, 2), vr(X2, 2))
    S('v_pk_fma_f32 v[202:203], %s, %s, v[202:203]', vr(X2 + 2, 2), vr(X2 + 2, 2))
    for i in range(2, 8):
        S('v_pk_add_f32 v[200:201], v[200:201], %s', vr(X2 + 2 * i, 2))
        S('v_pk_fma_f32 v[202:203], %s, %s, v[202:203]', vr(X2 + 2 * i, 2), vr(X2 + 2 * i, 2))
    A('v_add_f32 v200, v200, v201')
    A('v_add_f32 v202, v202, v203')
    A('v_permlane32_swap_b32 v200, v202')
    A('v_add_f32 v200, v200, v202')
    A('v_mov_b32 v201, v200')
    A('v_permlane16_swap_b32 v200, v201')
    A('v_add_f32 v200, v200, v201')
    ts = S('buffer_store_dword v200, %s, %s, %s offen%s', vSS, SRD_WS, sSO, sc('y'))
    stamp('.y st')
    return ts


UACC = (96, 204)


def ut_steps(k0, k1, hook=None, tail=None):
    rd = {}
    UB = 16

    def rv(ks):
        S('ds_read_b128 %s, v%d offset:%d', vr(UB + 12 * (ks % 4), 4), UTA + 4, 128 * (ks >> 1) + 16 * (ks & 1))

    def rt(ks, n):
        for half in range(2):
            rd[ks] = S('ds_read_b64_tr_b16 %s, v%d offset:%d', vr(UB + 12 * (ks % 4) + 4 + 4 * n + 2 * half, 2), UTA + 2 * n + (ks >> 3), (ks & 7) * 7168 + half * 8 * 224)
    for ks in range(k0, min(k0 + 3, k1)):
        rv(ks), rt(ks, 0), rt(ks, 1)
    if hook:
        hook(k0 - 1)
    for ks in range(k0, k1):
        A.wait(lg=rd[ks])
        b = UB + 12 * (ks % 4)
        for n in range(2):
            c = vr(UACC[n], 4)
            S('%s %s, %s, %s, %s', MF16, c, vr(b + 4 + 4 * n, 4), vr(b, 4), c if ks else '0')
            if ks + 3 < k1:
                if n == 0:
                    rv(ks + 3)
                rt(ks + 3, n)
            elif tail:
                tail(ks, n)
        if hook:
            hook(ks)


def g1_phase(ts, w2):
    passes = ((0, 1, 2, 3, 6), (4, 5)) if OPT['gsplit'] == 1 else ((0, 1, 2, 3), (4, 5, 6)) if OPT['gsplit'] == 2 else ((0, 1, 2, 3, 4, 5, 6),)
    groups = [(ks, nt) for p in passes for ks in range(16) for nt in p]
    AHB = 5
    ta = {}
    aq = Stream()
    for ks in range(16):
        for tt in range(2):
            def pr(ks=ks, tt=tt):
                if ks and ks & 3 == 0:
                    S('s_add_u32 %s, %s, 4096', sYL[tt], sYL[tt])

            def f(ks=ks, tt=tt):
                ta[ks, tt] = S('buffer_load_dwordx4 %s, %s, %s, %s offen offset:%d sc1', vr(YA + 8 * ks + 4 * tt, 4), vL16, SRD_WS, sYL[tt], (ks & 3) * 1024)
            aq.add(f, pr)
    first = list(aq.q[:8])
    LATE = A.label('ylate')
    rb = {}

    def bread(g, half):
        ks, nt = groups[g]
        rb[g] = S('ds_read_b64_tr_b16 %s, v%d offset:%d', vr(BF + 4 * (g % 6) + 2 * half, 2), (vT1, vT2)[ks >> 3], (ks & 7) * 7168 + half * 8 * 224 + nt * 32)
    tp = {}

    def hook(ks):
        if ks == OPT['uh'] - 1:
            w2.drip(min(4, OPT['w2b']))
            S('s_mov_b32 %s, 1', t5)
        if ks == OPT['uf']:
            A.wait(vm=ts)
            flag_store(sFY, not LOCAL[0])
            stamp('y pub')
            w2.drip(max(0, OPT['w2b'] - 4))
        if ks == OPT['up']:
            tp[0] = poll_load(vPT, 128)
        if ks == OPT['uc']:
            A.wait(vm=tp[0])
            poll_test(sMASK)
            A('s_cbranch_scc1 ' + LATE)
            aq.drip(8)
            S('s_mov_b32 %s, 0', t5)
            A(LATE + ':')

    def tail(ks, n):
        if ks >= 14:
            bread(2 * (ks - 14) + n, 0)
            bread(2 * (ks - 14) + n, 1)
    assert OPT['uh'] - 1 <= OPT['uf'] <= OPT['up'] < OPT['uc'] and OPT['uh'] <= 11
    ut_steps(OPT['uh'], 16, hook, tail)
    S('ds_write_b128 v%d, %s', UTA + 5, vr(UACC[0], 4))
    tuw = S('ds_write_b128 v%d, %s', UTA + 6, vr(UACC[1], 4))
    bread(4, 0)
    bread(4, 1)
    OKK = A.label('yok')
    S('s_cmp_eq_u32 %s, 0', t5)
    A.wait(lg=tuw)
    A('s_barrier')
    A('s_cbranch_scc1 ' + OKK)
    vm_save, vd, tas = A.vm, A.vm_done, dict(ta)
    poll(vPT, 128, 'y', sMASK)
    for f, pr in first:
        f()
    A.vm, A.vm_done = vm_save, vd
    ta.update(tas)
    A(OKK + ':')
    stamp('y seen')
    aq.drip(2)
    split = len(passes) > 1
    SR = ACC + 8 * passes[1][0] if split else YA
    RP = 10
    tst = {}
    sq = []
    for p in range(8):
        def f(p=p):
            tst[0] = S('buffer_load_dword v%d, %s, %s, %s offen offset:%d sc1', SR + p, vSL, SRD_WS, sSL, p * 128)
        sq.append((f, None))
    if split:
        aq.q[8:8] = sq
    else:
        aq.q += sq
    nw = (OPT['w2f'], OPT['w2c'] - OPT['w2e'] - OPT['w2f']) if split else (OPT['w2c'],)

    def stats():
        for n in (4, 2, 1):
            for i in range(n):
                S('v_add_f32 v%d, v%d, v%d', SR + i, SR + i, SR + n + i)
        S('v_mul_f32 v%d, 0x3b000000, v%d', SR, SR)
        S('v_mov_b32 v%d, v%d', SR + 1, SR)
        S('v_permlane32_swap_b32 v%d, v%d', SR, SR + 1)
        S('v_fma_f32 v%d, -v%d, v%d, v%d', SR + 1, SR, SR, SR + 1)
        S('v_max_f32 v%d, 0, v%d', SR + 1, SR + 1)
        S('v_add_f32 v%d, 0x3727c5ac, v%d', SR + 1, SR + 1)
        S('v_rsq_f32 v%d, v%d', RP, SR + 1)
        S('v_mul_f32 v%d, -v%d, v%d', RP + 1, SR, RP)
        S('v_mov_b32 v%d, v%d', RP + 2, RP)
        S('v_mov_b32 v%d, v%d', RP + 3, RP + 1)
        S('v_permlane16_swap_b32 v%d, v%d', RP, RP + 2)
        S('v_permlane16_swap_b32 v%d, v%d', RP + 1, RP + 3)
    fill = capture(stats)

    def epilogue(nts, ub, drip):
        tu = {}

        def rut(i):
            for e in range(2):
                tu[i] = S('ds_read_b128 %s, %s offset:%d', vr(ub[i & 1] + 4 * e, 4), vUTR, 512 * e + nts[i] * 64)
        rut(0)
        if len(nts) > 1:
            rut(1)
        ts = None
        for i, nt in enumerate(nts):
            A.wait(lg=tu[i])
            u = ub[i & 1]
            for tt in range(2):
                rp = vr(RP + 2 * tt, 2)
                c = ACC + 8 * nt + 4 * tt
                o = ACC + 8 * (nt & ~1) + 4 * tt + 2 * (nt & 1)
                for e in range(2):
                    S('v_pk_fma_f32 %s, %s, %s, %s op_sel:[0,1,0] op_sel_hi:[1,1,1]', vr(96 + 2 * e, 2), vr(u + 2 * e, 2), rp, vr(u + 4 + 2 * e, 2))
                for e in range(2):
                    S('v_pk_fma_f32 %s, %s, %s, %s op_sel:[0,0,0] op_sel_hi:[1,0,1]', vr(96 + 2 * e, 2), vr(c + 2 * e, 2), rp, vr(96 + 2 * e, 2))
                if tt == 1 and i + 2 < len(nts):
                    rut(i + 2)
                for e in range(2):
                    S('v_cvt_pk_bf16_f32 v%d, v%d, v%d', o + e, 96 + 2 * e, 97 + 2 * e)
                for e in range(2):
                    S('v_pk_max_i16 v%d, v%d, 0', o + e, o + e)
                if nt == 6:
                    ts = S('buffer_store_dwordx2 %s, %s, %s, %s offen offset:3072%s', vr(o, 2), vH2, SRD_WS, sHO[tt], sc('hid'))
                elif nt & 1:
                    ts = S('buffer_store_dwordx4 %s, %s, %s, %s offen offset:%d%s', vr(o - 2, 4), vH4, SRD_WS, sHO[tt], (nt >> 1) * 1024, sc('hid'))
                if drip > 0 and (nt & 1 or nt == 6):
                    w2.drip(min(2, drip))
                    drip -= 2
        w2.drip(max(0, drip))
        return ts
    g = 0
    for pi, p in enumerate(passes):
        L = len(p)
        for _ in range(nw[pi]):
            if len(w2):
                aq.q.append(w2.q.pop(0))
        for ks in range(16):
            if split:
                n = (3 if ks < 3 else 4 if ks < 6 else 3 if ks < 11 else 2) if pi == 0 else 1
            else:
                n = ([3, 3, 3, 3, 3, 3, 4, 6] + [4] * 8)[ks]
            for i, nt in enumerate(p):
                go = (i + 1) * n // L > i * n // L and len(aq)
                if i % 2 == 0:
                    vmw = ta[ks, 1] if (i == 0 and pi == 0) else None
                    if pi == 0 and ks == 11 and i == 0:
                        vmw = max(vmw, tst[0])
                    A.wait(vm=vmw, lg=rb[g + 1] if i + 1 < L else rb[g])
                for tt in range(2):
                    c = vr(ACC + 8 * nt + 4 * tt, 4)
                    S('%s %s, %s, %s, %s', MF16, c, vr(BF + 4 * (g % 6), 4), vr(YA + 8 * ks + 4 * tt, 4), c if ks else '0')
                    if go and tt == 0:
                        aq.pre()
                    if g + AHB < 112:
                        bread(g + AHB, tt)
                    if go and tt == 0:
                        aq.go()
                    elif ks >= 11 and fill and (tt == 0 or (i % 2 == 0 and i + 1 < L)):
                        A.lines.append(fill.pop(0))
                g += 1
            if ks == 7:
                stamp('.p%d mid' % pi)
        A.lines += fill
        fill = []
        aq.drip(99)
        last = pi == len(passes) - 1
        stamp('g1 gemm' if last else '.pass1')
        ts = epilogue(p, (YA, YA + 8) if last else (SR, SR + 8), 0 if last else OPT['w2e'])
        if not last:
            stamp('.epi1')
    return ts


def g2_phase(ts, w2):
    stamp('.hid st')
    w2.drip(min(4, OPT['w2d']))
    for i in range(4):
        S('ds_read_b128 %s, %s offset:%d', vr(GB + 4 * i, 4), vGAB, 256 + 16 * i)
    A.wait(vm=ts)
    flag_store(sFHID, not LOCAL[0])
    stamp('hid pub')
    w2.drip(max(0, OPT['w2d'] - 4))
    poll(vPG, 192, 'hid', sGM)
    stamp('hid seen')
    ring_gemm(14, STG_H, 0, 112, 32, 12, split=(3, 10), pre=w2)
    stamp('g2 gemm')
    for p in range(2):
        for i in range(4 * p, 4 * p + 4):
            S('v_pk_fma_f32 %s, %s, %s, %s', vr(X2 + 2 * i, 2), vr(CO + 2 * i, 2), vr(GB + 2 * i, 2), vr(X2 + 2 * i, 2))
        for i in range(4 * p, 4 * p + 4):
            S('v_cvt_pk_bf16_f32 v%d, v%d, v%d', 16 + i, X2 + 2 * i, X2 + 2 * i + 1)
        S('buffer_store_dwordx4 %s, %s, %s, 0 offen offset:%d%s', vr(16 + 4 * p, 4), vXO, SRD_OUT, 16 * p, ('', ' sc1', ' nt')[OPT['outsc']])
    stamp('.out st')
    SK = A.label('noep')
    S('s_or_b32 %s, %s, %s', t0, sLID, sW)
    A('s_cbranch_scc1 ' + SK)
    S('s_mov_b32 %s, %d', t2, WS_E)
    flag_store(t2, False)
    A(SK + ':')


def dump_stamps():
    if OPT['diag']:
        D = A.label('diag')
        A('s_waitcnt vmcnt(0) lgkmcnt(0)')
        A('s_add_u32 s97, s97, 6000')
        A('s_mov_b32 s98, 0')
        A(D + ':')
        A('s_memrealtime s[92:93]')
        A('s_add_u32 s98, s98, 1')
        A('s_cmp_gt_u32 s98, 0x8000')
        A('s_cbranch_scc1 L_exit')
        A('s_waitcnt lgkmcnt(0)')
        A('s_sub_u32 s92, s92, s97')
        A('s_cmp_lt_i32 s92, 0')
        A('s_cbranch_scc1 ' + D)
    if not OPT['stamps']:
        return
    A.wait(vm='all', force=True)
    A('s_memrealtime s[92:93]')
    stamp('end')
    A('v_writelane_b32 v0, s92, 25')
    S('s_getreg_b32 %s, hwreg(HW_REG_XCC_ID)', t1)
    S('v_writelane_b32 v0, %s, 24', t1)
    S('v_writelane_b32 v0, %d, 26', int(LOCAL[0]))
    S('s_lshl2_add_u32 %s, %s, %s', t0, sLID, sW)
    S('s_lshl_b32 %s, %s, 7', t0, t0)
    S('s_add_u32 %s, %s, %d', t0, t0, WS_TS)
    S('v_lshlrev_b32 v10, 2, %s', vLANE)
    A('s_mov_b64 exec, 0xffffffff')
    S('buffer_store_dword v0, v10, %s, %s offen', SRD_WS, t0)


def rest(wq):
    wst = Stream()
    wst.q = list(wq)
    pst = prep_stream()
    sl = h_phase(wst, pst)
    w1 = w1_stream()
    w2 = frag_stream(sW2B, 14, 0)
    if OPT['nobg'] & 1:
        w1.q = []
    if OPT['nobg'] & 2:
        w2.q = []
    tkv, tps = qkv(w1, wst, pst, sl)
    ool, ts = attention(w1, tkv, tps)
    ts = wo_phase(ts, w1, w2)
    ts = g1_phase(ts, w2)
    g2_phase(ts, w2)
    dump_stamps()
    return ool


def main():
    tw, tx = prologue()
    wst = wqkv_stream()
    wq_setup()
    mod_partial(tw)
    stamp('mod pub')
    ln1(tx, wst)
    mod_poll(wst)
    st = (A.vm, A.vm_done, A.lg, A.lg_done, nstamp[0], ALLN[0], vST[0])
    ool = rest(wst.q)
    A('L_exit:')
    A('s_endpgm')
    A('L_localend:')
    out_of_line(*ool)
    xc_slow()
    LOCAL[0] = False
    A.vm, A.vm_done, A.lg, A.lg_done, nstamp[0], ALLN[0], vST[0] = st
    ool = rest(wst.q)
    A('s_endpgm')
    out_of_line(*ool)
    body, nops = A.finalize()
    hdr = open(os.path.join(os.path.dirname(os.path.abspath(__file__)), '..', 'cdna_kernels', NAME + '.s.ref')).read().split('; Override')[0]
    out = hdr
    out += '; @launch grid=(256,1,1) block=(256,1,1) lds=163840\n'
    out += '.amdgcn_target "amdgcn-amd-amdhsa--gfx950"\n.text\n.globl %s_kernel\n.p2align 8\n.type %s_kernel,@function\n%s_kernel:\n' % (NAME, NAME, NAME)
    out += '\n'.join(('' if l.endswith(':') else '    ') + l for l in body) + '\n'
    out += '''.section .rodata,"a"
.p2align 6
.amdhsa_kernel %s_kernel
  .amdhsa_next_free_vgpr 512
  .amdhsa_next_free_sgpr 102
  .amdhsa_accum_offset 256
  .amdhsa_group_segment_fixed_size 0
  .amdhsa_kernarg_size 88
  .amdhsa_user_sgpr_count 2
  .amdhsa_user_sgpr_kernarg_segment_ptr 1
  .amdhsa_system_sgpr_workgroup_id_x 1
  .amdhsa_float_denorm_mode_32 3
.end_amdhsa_kernel
''' % NAME
    open(sys.argv[1], 'w').write(out)
    if OPT['stamps']:
        open(sys.argv[1] + '.stamps', 'w').write('\n'.join(STAMP_NAMES))
    print('instructions', len(body), 'pad states', nops, file=sys.stderr)


main()
```

```python
import sys, os
from asmlib import Asm

NAME = 'adaLN_cond__sliding_block__dense_activation_relu__prompt'
OPT = dict(stamps=0, fine=0, force_fallback=0, force_remote=0, diag=0, nobg=0,
           ph=1, po=0, py=0, phid=0,
           n1=0, n2=4, n3=3, n4=5,
           wq0=0, wq1=4, wq2=4,
           qf=-1, qp=0, qchk=14, pstp=0, hb=0, w2d0=4, two=1, fa=14, oa=2, ah=8, pb=14, bst=1, spos=1,
           qd=0,
           aw1=26, fpf=4, fpl=22,
           ow1=8,
           w2a=20, w2b=16, w2c=20, w2d=0,
           uf=6, up=10, uc=15,
           uh=0, gsplit=0, w2e=0, w2f=16, sv=40,
           tkv=1, tw1=3, tfl=1, toy=0, tmod=1, tlb=0, ct=1, help=0, n2b=4, lnp=0, yov=0, ytp=10, w1s=0, w1r=0, nul=0, stl=0, kv2=1, vz=1, xpos=0,
           outsc=1, rot=0, sw=0, swp=0, kvb=1, stag=1, dbg=0, cpf=4, ntw=1, ntp=1, ppos=0)
for a in sys.argv[2:]:
    k, v = a.split('=')
    assert k in OPT, k
    OPT[k] = int(v)

WS_E = 0
WS_FA = 0x1000
WS_XA = 0x6000
WS_XB = 0x8000
WS_FKV = 0x10000
WS_FP = 0x30000
WS_MOD = 0x50000
WS_STAT = 0x80000
WS_TS = 0xC0000
WS_WOT = 0x100000
WS_W2T = 0x200000
WS_H = 0x400000
WS_O = 0x600000
WS_Y = 0x800000
WS_KV = 0xA00000
WS_HID = 0xE00000
WS_SIZE = 0x1600000
OOB = 0x40000000

L_STG = 98304
L_SCR = 114688
L_KV = 114688
L_MODL = 114688
L_GAB = L_MODL + 2048
L_UT = L_MODL + 4096
L_RED = L_MODL + 8192

sDG, sDL, sFG = 's0', 's1', 's2'
sX, sJ, sW, sT, sM = 's3', 's4', 's5', 's6', 's7'
sFKV, sFO, sFY, sFHID = 's8', 's9', 's14', 's15'
sKVO, sOO, sYO, sSO = 's20', 's21', 's22', 's23'
sHO = ('s26', 's27')
STG_O = ('s10', 's11', 's12', 's13')
STG_H = ('s16', 's17', 's18', 's19')
sR4, sR8 = 's24', 's25'
sYL = ('s28', 's29')
sSL, sHL = 's30', 's31'
SRD_X, SRD_WQKV, SRD_W1, SRD_P, SRD_WS, SRD_OUT, SRD_WMOD, SRD_C = [
    's[%d:%d]' % (b, b + 3) for b in (32, 36, 44, 48, 52, 56, 60, 64)]
TAGB = 40
sGM = 's[60:61]'
sW1G, sW1L = 's62', 's63'
sPS, sRHO = 's64', 's67'
sTAG, sE = 's68', 's69'
sCT, sG, sOWN, sTS, sT0 = 's70', 's71', 's72', 's73', 's74'
sLID = 's75'
t0, t1, t2, t3, t4, t5 = 's76', 's77', 's78', 's79', 's80', 's81'
sCNT = 's82'
sXC = 's83'
sMASK = 's[84:85]'
sLO, sHI = 's[86:87]', 's[88:89]'
sWOB, sW2B = 's96', 's101'
sM2 = 's[98:99]'
H_S = 's100'

vLANE, vL16, vTAG = 'v1', 'v2', 'v3'
vXO, vGAB = 'v4', 'v5'
vRW, vRR = (6, 7, 8), 9
vT1, vT2 = 100, 101
vUTR, vPT, vPG, vSS, vSL, vH4, vH2, vL8, vMW, vGW = ['v%d' % i for i in range(102, 112)]
W1V = 112
vKV, vPKV, vD4, vD8, vOO, vMR0, vMR1, vFP, vG2A = ['v%d' % i for i in range(119, 128)]
UTA = 88
vWQ, H_V, vXCV = 'v96', 'v146', 'v147'
l7, l3 = 'v148', 'v149'
JUNK = 152
Q0, Q1 = 48, 52
MD, MFAR = 16, 32
K0, K1 = 128, 132
V0, V1 = 136, 144
MRD = 64
S0, S1 = 160, 176
P0, P1 = 192, 200
O0, O1 = 208, 224
XT = X2 = 240
CA, CB, CO, CR = 16, 32, 48, 64
GA, G2, GB = 208, 224, 80
ACC, BF, YA = 16, 72, 112

A = Asm()
nstamp = [0]
STAMP_NAMES = []
ALLN = [0]
vST = ['v255']
FINE = {1: (0, 4), 2: (4, 10), 3: (10, 15), 4: (15, 20), 9: (99, 99)}
LOCAL = [True]
LIMIT = 1 << 17
MF32 = 'v_mfma_f32_32x32x16_bf16'
MF16 = 'v_mfma_f32_16x16x32_bf16'


def vr(b, n=1, k='v'):
    return '%s%d' % (k, b) if n == 1 else '%s[%d:%d]' % (k, b, b + n - 1)


def ar(b, n=1):
    return vr(b, n, 'a')


def S(fmt, *a):
    return A(fmt % a)


def stamp(name):
    fine = name.startswith('.')
    n = ALLN[0]
    if not fine:
        ALLN[0] += 1
    if OPT['diag']:
        if not fine and ALLN[0] == OPT['diag']:
            print('diag stamp:', name, file=sys.stderr)
            A('s_memrealtime s[90:91]')
            A('s_waitcnt lgkmcnt(0)')
            A.lg_done = A.lg
            A('s_mov_b32 s97, s90')
        return
    if not OPT['stamps']:
        return
    if name == 'h seen':
        A('v_mov_b32 v0, v255')
        vST[0] = 'v0'
    if OPT['fine']:
        if name != 'end' and not (FINE[OPT['fine']][0] <= n <= FINE[OPT['fine']][1]):
            return
    elif fine:
        return
    assert nstamp[0] < 22
    A('s_memtime s[90:91]' if OPT['stamps'] == 1 else 's_memrealtime s[90:91]')
    A('s_waitcnt lgkmcnt(0)')
    A.lg_done = A.lg
    S('v_writelane_b32 %s, s90, %d', vST[0], 2 + nstamp[0])
    nstamp[0] += 1
    if LOCAL[0]:
        STAMP_NAMES.append(name)


def sc(buf):
    return '' if (LOCAL[0] and OPT['p' + buf]) else ' sc1'


def flag_store(soff, sc1, val=vTAG):
    A('s_mov_b64 exec, 1')
    t = S('buffer_store_dword %s, off, %s, %s%s', val, SRD_WS, soff, ' sc1' if sc1 else '')
    A('s_mov_b64 exec, -1')
    return t


def poll_load(vA, off, vT='v15'):
    return S('buffer_load_dword %s, %s, %s, 0 offen offset:%d sc1', vT, vA, SRD_WS, off)


def poll_test(mask, vT='v15', mode=0):
    if mode:
        S('v_subrev_u32 %s, %s, %s', vT, sTAG, vT)
        S('v_cmp_%s_u32 vcc, 1, %s', ('lt', 'ne')[mode - 1], vT)
    else:
        S('v_cmp_ne_u32 vcc, %s, %s', sTAG, vT)
    S('s_and_b64 vcc, vcc, %s', mask)


def poll(vA, off, name, mask, mode=0):
    L, D = A.label('p' + name), A.label('d' + name)
    S('s_mov_b32 %s, 0', sCNT)
    A(L + ':')
    poll_load(vA, off)
    S('s_add_u32 %s, %s, 1', sCNT, sCNT)
    A('s_waitcnt vmcnt(0)')
    poll_test(mask, 'v15', mode)
    A('s_cbranch_scc0 ' + D)
    S('s_cmp_lt_u32 %s, %d', sCNT, LIMIT)
    A('s_cbranch_scc1 ' + L)
    A(D + ':')
    A.vm_done = A.vm


def srd(dst, lo, size):
    b = int(dst[2:dst.index(':')])
    S('s_mov_b64 s[%d:%d], s[%d:%d]', b, b + 1, lo, lo + 1)
    S('s_mov_b32 s%d, 0x%x', b + 2, size)
    S('s_mov_b32 s%d, 0x20000', b + 3)


def unpack(dst, src):
    S('v_lshlrev_b32 v%d, 16, v%d', dst, src)
    S('v_and_b32 v%d, 0xffff0000, v%d', dst + 1, src)


def untag(r, acc, first):
    for i in range(4):
        S('v_xor_b32 v%d, s%d, v%d', r + i, TAGB + i, r + i)
    if first:
        S('v_or3_b32 v%d, v%d, v%d, v%d', acc, r, r + 1, r + 2)
        S('v_or_b32 v%d, v%d, v%d', acc, acc, r + 3)
    else:
        S('v_or3_b32 v%d, v%d, v%d, v%d', acc, r, r + 1, acc)
        S('v_or3_b32 v%d, v%d, v%d, v%d', acc, r + 2, r + 3, acc)


def untag_test(acc):
    S('v_and_b32 v%d, 0xff, v%d', acc, acc)
    S('v_cmp_ne_u32 vcc, 0, v%d', acc)


def capture(f):
    save, A.lines = A.lines, []
    f()
    out, A.lines = A.lines, save
    return out


class Stream:
    def __init__(self):
        self.q = []
        self.ready = False

    def add(self, f, pre=None):
        self.q.append((f, pre))

    def pre(self):
        if self.q and not self.ready:
            if self.q[0][1]:
                self.q[0][1]()
            self.ready = True

    def go(self):
        if self.q:
            assert self.ready
            self.ready = False
            return self.q.pop(0)[0]()

    def drip(self, n=1):
        t = None
        for _ in range(n):
            if self.q:
                self.pre()
                t = self.go()
        return t

    def __len__(self):
        return len(self.q)


def touch(voff, soff, off=0, junk=JUNK):
    return S('buffer_load_dwordx4 %s, %s, %s, %s offen offset:%d sc1', vr(junk, 4), voff, SRD_WS, soff, off)


WGB = ('s8', 's9', 's14', 's15')
WLB = ('s20', 's21', 's22', 's23')
sQK = 's69'


def wqkv_stream():
    st = Stream()
    for n in range(24):
        def pre(n=n):
            g, i = divmod(n, 4)
            if i == 0 and g < 4:
                S('s_mov_b32 %s, %s', sDG, WGB[g])
                S('s_mov_b32 %s, %s', sDL, WLB[g])
            elif i == 0:
                if g == 5:
                    S('s_xor_b32 %s, %s, 4', sQK, sQK)
                S('s_lshl3_add_u32 s65, %s, %s', sW, sQK)
                S('s_mul_i32 %s, s65, %d', sDG, 16 * 3072)
                S('s_lshl_b32 %s, s65, 10', sDL)
                S('s_add_u32 %s, %s, 65536', sDL, sDL)
            S('s_add_u32 m0, %s, %d', sDL, i * 1024)
            if i:
                S('s_add_u32 %s, %s, %d', sDG, sDG, 16 * 3072)
        st.add(lambda: S('buffer_load_dwordx4 %s, %s, %s offen lds', vWQ, SRD_WQKV, sDG), pre)
    return st


def w1_stream():
    st = Stream()
    for g in range(4):
        for i in range(7):
            def pre(g=g, i=i):
                if OPT['w1r']:
                    if i == 0:
                        S('s_add_u32 s65, %s, %d', sX, g)
                        A('s_and_b32 s65, s65, 3')
                        S('s_mul_i32 s65, s65, %d', 4 * 7168)
                        S('s_add_u32 %s, %s, s65', sDL, sW1L)
                        S('s_lshl4_add_u32 %s, s65, %s', sDG, sW1G)
                    S('s_add_u32 m0, %s, %d', sDL, i * 1024)
                    return
                if i == 0 and g == 2 and OPT['w1s']:
                    S('s_sub_u32 %s, %s, %s', sW1L, sW1L, sXC)
                    S('s_lshl_b32 %s, %s, 4', sXC, sXC)
                    S('s_sub_u32 %s, %s, %s', sW1G, sW1G, sXC)
                S('s_add_u32 m0, %s, %d', sW1L, g * 4 * 7168 + i * 1024)
                if i == 0 and g:
                    S('s_add_u32 %s, %s, %d', sW1G, sW1G, 128 * 3584)
            st.add(lambda i=i: S('buffer_load_dwordx4 v%d, %s, %s offen lds', W1V + i, SRD_W1, sDG if OPT['w1r'] else sW1G), pre)
    return st


def frag_stream(sb, nks, areg):
    st = Stream()
    for i in range(nks):
        for s in range(4):
            def pre(i=i, s=s):
                if i and s == 0:
                    S('s_add_u32 %s, %s, 4096', sb, sb)
            st.add(lambda i=i, s=s: S('buffer_load_dwordx4 %s, %s, %s, %s offen offset:%d sc1', ar(areg + 16 * i + 4 * s, 4), vL16, SRD_WS, sb, s * 1024), pre)
    return st


def code_prefetch():
    S('global_load_dword v%d, v145, s[30:31]', JUNK)


def warm(srdname, nl, va=144, vj=JUNK + 3):
    S('s_lshl2_add_u32 s65, %s, %s', sLID, sW)
    S('s_mul_i32 s65, s65, %d', nl * 128)
    S('v_lshlrev_b32 v%d, 7, %s', va, vLANE)
    S('s_mov_b64 exec, 0x%x', (1 << nl) - 1)
    S('buffer_load_dword v%d, v%d, %s, s65 offen', vj, va, srdname)
    A('s_mov_b64 exec, -1')


def swarm(srdname, nl):
    b = int(srdname[2:srdname.index(':')])
    S('s_lshl2_add_u32 s65, %s, %s', sLID, sW)
    S('s_mul_i32 s65, s65, %d', nl * 128)
    S('s_add_u32 s98, s%d, s65', b)
    S('s_addc_u32 s99, s%d, 0', b + 1)
    for i in range(nl << OPT['swp']):
        S('s_load_dword s66, s[98:99], %d', (128 >> OPT['swp']) * i)


def swarm_at(pos):
    for d, (p, nl) in enumerate(((18, 14), (12, 4), (16, 14), (10, 12))):
        if OPT['sw'] // 10 ** d % 10 == pos:
            swarm('s[%d:%d]' % (p, p + 1), nl)


def code_touch(tmp, junk):
    if not LOCAL[0]:
        return
    L = A.label('pc')
    A('s_getpc_b64 s[90:91]')
    A(L + ':')
    S('s_lshl2_add_u32 s65, %s, %s', sJ, sW)
    A('s_lshl_b32 s65, s65, 7')
    S('s_min_u32 s65, s65, L_localend-%s-4', L)
    S('v_mov_b32 %s, s65', tmp)
    S('global_load_dword %s, %s, s[90:91]', junk, tmp)


def prologue():
    A('s_load_dwordx16 s[8:23], s[0:1], 0')
    A('s_load_dwordx4 s[24:27], s[0:1], 64')
    A('s_load_dwordx2 s[28:29], s[0:1], 80')
    A('s_cmp_ge_u32 s2, 256')
    A('s_cbranch_scc1 L_exit')
    A('s_getpc_b64 s[30:31]')
    A('L_pc:')
    S('s_lshr_b32 %s, s2, 3', sJ)
    S('s_lshl_b32 %s, %s, 10', t3, sJ)
    S('v_lshl_add_u32 v145, v0, 2, %s', t3)
    S('v_readfirstlane_b32 %s, v0', sW)
    if OPT['cpf'] == 4:
        code_prefetch()
    S('s_and_b32 %s, s2, 7', sX)
    if OPT['stamps'] or OPT['diag']:
        A('s_memrealtime s[92:93]')
        A('s_memtime s[94:95]')
    S('v_and_b32 %s, 7, v0', l7)
    S('v_bfe_u32 %s, v0, 3, 3', l3)
    S('s_lshr_b32 %s, %s, 6', sW, sW)
    S('s_lshl_b32 %s, %s, 1', t1, sX)
    S('s_lshl2_add_u32 %s, %s, 14', t2, sX)
    S('s_cmp_lt_u32 %s, 8', sJ)
    S('s_cselect_b32 %s, %s, %s', t1, t1, t2)
    S('s_lshr_b32 %s, %s, 2', t2, sJ)
    S('s_add_u32 %s, %s, %s', t5, t1, t2)
    S('s_and_b32 %s, %s, 3', sG, sJ)
    S('s_lshl2_add_u32 %s, %s, %s', t1, sG, sW)
    S('s_lshl_b32 %s, %s, 6', t2, t1)
    S('s_mulk_i32 %s, %d', t1, 32 * 48)
    S('s_add_u32 %s, %s, %s', t1, t1, t5)
    S('s_lshl_b32 %s, %s, 7', t1, t1)
    S('s_movk_i32 %s, 6144', t4)
    S('v_lshlrev_b32 v11, 3, %s', l3)
    S('v_mul_u32_u24 v13, %s, %s', t4, l3)
    S('v_lshl_add_u32 v13, %s, 2, v13', l7)
    A('v_lshlrev_b32 v13, 2, v13')
    S('s_cmp_lt_u32 %s, 24', sJ)
    A('s_cselect_b32 s62, 0x300000, 0')
    S('s_cselect_b32 %s, %s, 0', t1, t1)
    S('s_cselect_b32 %s, %s, 0', t4, t4)
    A('s_mov_b32 s63, 0x20000')
    A('s_movk_i32 s66, 1024')
    A('s_mov_b32 s67, s63')
    A('s_waitcnt lgkmcnt(0)')
    if OPT['diag']:
        A('s_mov_b32 s97, s92')
    if OPT['stamps']:
        A('v_writelane_b32 v255, s92, 0')
        S('v_writelane_b32 v255, %s, 1', 's94' if OPT['stamps'] == 1 else 's92')
    stamp('.kernarg')
    A('s_mov_b64 s[64:65], s[20:21]')
    A('s_mov_b64 s[60:61], s[22:23]')
    S('buffer_load_dwordx2 v[62:63], v11, %s, %s offen', SRD_C, t2)
    for i in range(4):
        tw = S('buffer_load_dwordx4 %s, v13, %s, %s offen%s', vr(64 + 4 * i, 4), SRD_WMOD, t1, ' nt' * OPT['ntw'])
        if i < 3:
            S('s_add_u32 %s, %s, %s', t1, t1, t4)
    S('s_load_dword %s, s[28:29], %d', sE, WS_E)
    if OPT['stl']:
        SK = A.label('notlb')
        S('s_cmp_lg_u32 %s, 3', sW)
        A('s_cbranch_scc1 ' + SK)
        if OPT['stl'] & 1:
            for p in (8, 10, 12, 16, 18, 24):
                S('s_load_dword s90, s[%d:%d], 0', p, p + 1)
        if OPT['stl'] & 2:
            for pg in range(1, 11):
                S('s_mov_b32 s91, 0x%x', (pg << 21) + 0x1fff00)
                A('s_load_dword s90, s[28:29], s91')
        A(SK + ':')
    srd(SRD_X, 8, 2097152)
    S('v_and_b32 %s, 63, v0', vLANE)
    S('v_lshlrev_b32 v10, 10, %s', l7)
    S('v_lshl_add_u32 v10, %s, 4, v10', l3)
    S('s_lshl_b32 %s, %s, 5', sLID, sX)
    S('s_add_u32 %s, %s, %s', sLID, sLID, sJ)
    S('s_lshl_b32 %s, %s, 13', t0, sLID)
    S('s_lshl_b32 %s, %s, 8', t3, sW)
    S('s_add_u32 %s, %s, %s', t0, t0, t3)
    A('s_barrier')
    S('buffer_load_dwordx4 v[16:19], v10, %s, %s offen', SRD_X, t0)
    tx = S('buffer_load_dwordx4 v[20:23], v10, %s, %s offen offset:128', SRD_X, t0)
    if OPT['cpf'] == 1:
        code_prefetch()
    srd(SRD_WQKV, 10, 1572864)
    if OPT['tkv']:
        warm(SRD_WQKV, 12)
    swarm_at(1)
    srd(SRD_WS, 28, WS_SIZE)
    S('s_and_b32 %s, %s, 15', sM, sJ)
    S('s_lshr_b32 %s, %s, 4', t0, sJ)
    S('s_lshl2_add_u32 %s, %s, %s', t0, t0, sW)
    S('s_lshl3_add_u32 %s, %s, %s', sT, sX, t0)
    S('s_lshr_b32 %s, %s, 2', t0, sLID)
    S('s_lshl2_add_u32 %s, %s, %s', t0, t0, sW)
    S('s_lshl_b32 %s, %s, 13', t0, t0)
    S('s_lshl_b32 %s, %s, 7', t1, sG)
    S('s_add_u32 %s, %s, %s', t0, t0, t1)
    S('s_add_u32 %s, %s, %d', H_S, t0, WS_H)
    S('v_lshl_add_u32 v11, %s, 9, %s', vLANE, H_S)
    S('s_lshl_b32 %s, %s, 8', t0, sT)
    S('s_add_u32 %s, %s, %d', t0, t0, WS_FA)
    S('v_lshl_add_u32 %s, %s, 2, %s', vPT, vLANE, t0)
    S('v_writelane_b32 v11, %s, 16', t0)
    S('s_add_u32 %s, %s, 128', t0, t0)
    S('v_writelane_b32 v11, %s, 17', t0)
    S('s_lshl_b32 %s, %s, 7', t0, sX)
    S('s_add_u32 %s, %s, %d', t0, t0, WS_XA)
    S('v_writelane_b32 v11, %s, 18', t0)
    if OPT['tmod']:
        S('s_mul_i32 %s, %s, 48', t0, sG)
        S('s_add_u32 %s, %s, %s', t0, t0, t5)
        S('s_and_b32 %s, %s, 1', t1, sW)
        S('s_lshl1_add_u32 %s, %s, %s', t0, t0, t1)
        S('s_lshl_b32 %s, %s, 7', t0, t0)
        S('s_add_u32 %s, %s, %d', t0, t0, WS_MOD)
        S('v_writelane_b32 v11, %s, 19', t0)
    S('s_mov_b64 exec, 0x%x', (0x7ffff if OPT['ph'] else 0x70000) | OPT['tmod'] << 19)
    S('buffer_load_dword v%d, v11, %s, 0 offen sc1', JUNK + 2, SRD_WS)
    A('s_mov_b64 exec, -1')
    S('v_lshlrev_b32 %s, 4, %s', vL16, vLANE)
    return tw, tx


vPD, vPR, PRD = 'v97', 98, 56
sFP = 's67'


def prep_srd():
    S('s_lshl1_add_u32 %s, %s, %s', t0, sJ, sW)
    S('s_add_u32 %s, %s, 40', t1, sJ)
    S('s_cmp_lt_u32 %s, 2', sW)
    S('s_cselect_b32 %s, %s, %s', sRHO, t0, t1)
    S('s_cmp_lt_u32 %s, 56', sRHO)
    A('s_cselect_b64 s[48:49], s[18:19], s[12:13]')
    A('s_cselect_b32 s50, 7, 2')
    A('s_lshl_b32 s50, s50, 18')
    A('s_mov_b32 s51, 0x20000')


def prep_addr():
    S('s_cmp_lt_u32 %s, 56', sRHO)
    S('s_cselect_b32 %s, 0, 56', t0)
    S('s_cselect_b32 %s, 56, 16', t1)
    S('s_cselect_b32 %s, 2, 1', t3)
    S('s_cselect_b32 %s, 10, 11', t4)
    assert (WS_W2T, WS_WOT) == (2 << 20, 1 << 20)
    S('s_lshl_b32 %s, %s, 20', t2, t3)
    S('s_lshl_b32 %s, %s, 10', t3, t3)
    S('s_sub_u32 %s, %s, %s', t0, sRHO, t0)
    S('s_mul_i32 %s, %s, %s', t1, t1, sX)
    S('s_add_u32 %s, %s, %s', t1, t1, t0)
    S('s_lshl_b32 %s, %s, 12', t1, t1)
    S('s_add_u32 %s, %s, %s', sPS, t1, t2)
    S('s_lshl_b32 %s, %s, 15', t0, t0)
    S('s_lshl_b32 %s, %s, 7', t1, sX)
    S('s_add_u32 %s, %s, %s', sFG, t0, t1)
    S('v_lshrrev_b32 v98, 5, %s', vLANE)
    S('v_lshlrev_b32 v98, %s, v98', t4)
    S('v_bfe_u32 v99, %s, 2, 3', vLANE)
    A('v_lshl_add_u32 v98, v99, 7, v98')
    S('v_and_b32 v99, 3, %s', vLANE)
    A('v_lshl_add_u32 v98, v99, 5, v98')
    S('s_lshl_b32 %s, %s, 12', t0, sW)
    S('s_add_u32 %s, %s, %d', t0, t0, L_STG)
    S('v_add_u32 v98, %s, v98', t0)
    S('v_add_u32 v99, %s, v98', t3)
    S('s_cmp_lt_u32 %s, 2', sW)
    S('s_cselect_b32 %s, 24, %s', t0, sJ)
    S('s_cmp_lt_u32 %s, 24', t0)
    S('s_cselect_b32 %s, 3, %s', t0, sW)
    S('s_cmp_eq_u32 %s, 3', t0)
    S('s_cselect_b32 %s, 0x%x, 0', t0, OOB)
    S('s_add_u32 %s, %s, %s', sFP, sRHO, t1)
    S('s_lshl_b32 %s, %s, 6', sFP, sFP)
    S('s_add_u32 %s, %s, %d', sFP, sFP, WS_FP)
    S('v_lshrrev_b32 v10, 3, %s', vLANE)
    A('v_mul_u32_u24 v10, %d, v10' % (1024 - 128))
    S('v_add3_u32 %s, v10, %s, %s', vPD, vL16, t0)


def prep_stream():
    st = Stream()
    for i in range(4):
        def pre(i=i):
            S('s_lshl_b32 s65, %s, 12', sW)
            S('s_add_u32 m0, s65, %d', L_STG + 1024 * i)
            if i:
                S('s_add_u32 %s, %s, 8192', sFG, sFG)
        st.add(lambda: S('buffer_load_dwordx4 %s, %s, %s offen%s lds', vPD, SRD_P, sFG, ' nt' * OPT['ntp']), pre)
    return st


def prep_read(nt):
    for half in range(2):
        t = S('ds_read_b64_tr_b16 %s, v%d offset:%d', ar(4 * nt + 2 * half, 2), vPR + half, nt * 8)
    return t


def prep_store(p):
    return S('buffer_store_dwordx4 %s, %s, %s, %s offen offset:%d sc1', ar(4 * p, 4), vPD, SRD_WS, sPS, p * 1024)


def wq_setup():
    srd(SRD_W1, 16, 1835008)
    if OPT['tw1'] == 1:
        warm(SRD_W1, 14)
    S('v_lshrrev_b32 v12, 2, %s', vLANE)
    A('v_mul_u32_u24 v12, 3072, v12')
    S('v_and_b32 v11, 3, %s', vLANE)
    S('v_lshl_add_u32 %s, v11, 4, v12', vWQ)
    S('s_lshl_b32 %s, %s, 6', t0, sM)
    S('v_add_u32 %s, %s, %s', vWQ, t0, vWQ)
    S('s_lshr_b32 %s, %s, 4', t0, sJ)
    S('s_and_b32 %s, %s, 1', t1, sJ)
    S('s_lshl1_add_u32 %s, %s, %s', t1, t0, t1)
    S('s_lshr_b32 %s, %s, 1', t0, sM)
    S('s_cmp_eq_u32 %s, 3', t0)
    S('s_cselect_b32 %s, %s, 0', sCNT, t1)
    for g in range(4):
        S('s_xor_b32 %s, %s, %d', t0, sCNT, g)
        S('s_and_b32 %s, %s, 1', t1, t0)
        S('s_lshl1_add_u32 %s, %s, %s', t1, sW, t1)
        S('s_lshr_b32 %s, %s, 1', t0, t0)
        S('s_mul_i32 %s, %s, 192', t2, t1)
        S('s_add_u32 %s, %s, %s', t2, t2, t0)
        S('s_lshl_b32 %s, %s, 10', t2, t2)
        S('s_add_u32 %s, %s, 1024', WGB[g], t2)
        S('s_lshl3_add_u32 %s, %s, %s', t1, t0, t1)
        S('s_lshl_b32 %s, %s, 12', WLB[g], t1)
    if OPT['dbg'] & 4:
        S('v_add_u32 %s, 0x%x, %s', vWQ, OOB, vWQ)


def mod_partial(tw):
    S('v_lshrrev_b32 v11, 4, %s', vLANE)
    S('v_lshl_add_u32 v11, %s, 2, v11', l7)
    S('s_lshl_b32 %s, %s, 8', t1, sW)
    S('s_add_u32 %s, %s, %d', t1, t1, L_SCR + 1024)
    S('v_lshl_add_u32 v11, v11, 3, %s', t1)
    S('v_and_b32 v12, 0xf0, %s', vL16)
    S('v_add_u32 v15, %d, v12', L_SCR + 1024)
    S('s_mul_i32 %s, %s, 48', t1, sG)
    S('s_add_u32 %s, %s, %s', t1, t1, t5)
    S('s_lshl_b32 %s, %s, 8', t1, t1)
    S('s_add_u32 %s, %s, %d', t1, t1, WS_MOD)
    S('s_getreg_b32 %s, hwreg(HW_REG_XCC_ID, 0, 4)', sXC)
    A.wait(vm=tw - 4)
    stamp('.c')
    unpack(40, 62)
    unpack(42, 63)
    for i in range(4):
        S('v_mul_f32 v%d, 0xbfb8aa3b, v%d', 44 + i, 40 + i)
    for i in range(4):
        S('v_exp_f32 v%d, v%d', 44 + i, 44 + i)
    for i in range(4):
        S('v_add_f32 v%d, 1.0, v%d', 44 + i, 44 + i)
    for i in range(4):
        S('v_rcp_f32 v%d, v%d', 44 + i, 44 + i)
    for i in range(2):
        S('v_pk_mul_f32 %s, %s, %s', vr(40 + 2 * i, 2), vr(40 + 2 * i, 2), vr(44 + 2 * i, 2))
    A('v_cvt_pk_bf16_f32 v44, v40, v41')
    A('v_cvt_pk_bf16_f32 v45, v42, v43')
    unpack(40, 44)
    unpack(42, 45)
    for i in range(4):
        A.wait(vm=tw - 3 + i)
        for d in range(4):
            unpack(80 + 2 * d, 64 + 4 * i + d)
        s = i & 1
        for d in range(4):
            if i == 0:
                S('v_pk_mul_f32 %s, %s, v[40:41] op_sel_hi:[1,0]', vr(48 + 2 * d, 2), vr(80 + 2 * d, 2))
            else:
                S('v_pk_fma_f32 %s, %s, %s, %s op_sel:[0,%d,0] op_sel_hi:[1,%d,1]',
                  vr(48 + 2 * d, 2), vr(80 + 2 * d, 2), vr(40 + (i & ~1), 2), vr(48 + 2 * d, 2), s, s)
    stamp('.fma')
    for i in range(4):
        S('v_permlane32_swap_b32 v%d, v%d', 48 + i, 52 + i)
    for i in range(2):
        S('v_pk_add_f32 %s, %s, %s', vr(48 + 2 * i, 2), vr(48 + 2 * i, 2), vr(52 + 2 * i, 2))
    A('s_waitcnt lgkmcnt(0)')
    S('s_mul_i32 %s, %s, 0x9e3779c1', sTAG, sE)
    for i in range(2):
        S('v_permlane16_swap_b32 v%d, v%d', 48 + i, 50 + i)
    A('v_pk_add_f32 v[48:49], v[48:49], v[50:51]')
    S('s_add_u32 %s, %s, 0x7f4a7c21', sTAG, sTAG)
    S('v_mov_b32 %s, %s', vTAG, sTAG)
    for i in range(2):
        S('v_add_f32_dpp v%d, v%d, v%d row_ror:8 row_mask:0xf bank_mask:0xf', 50 + i, 48 + i, 48 + i)
    t = A('ds_write_b64 v11, v[50:51]')
    for i in range(4):
        S('s_bfe_u32 s%d, %s, 0x%x', TAGB + i, sTAG, (8 << 16) | (8 * i))
    if OPT['force_remote']:
        S('s_and_b32 %s, %s, 1', sXC, sJ)
    S('s_add_u32 %s, %s, %s', sXC, sXC, sTAG)
    S('s_add_u32 %s, %s, 1', sXC, sXC)
    S('v_mov_b32 %s, %s', vXCV, sXC)
    A('v_mov_b32 v10, 0xffffff00')
    S('s_cmp_ge_u32 %s, 24', sJ)
    S('s_cselect_b32 %s, 1, %s', t0, sW)
    S('s_cmp_lg_u32 %s, 0', t0)
    A.wait(lg=t)
    A('s_barrier')
    NP, NX = A.label('nopub'), A.label('noxc')
    vm0 = A.vm
    A('s_cbranch_scc1 ' + NP)
    for i in range(4):
        t = S('ds_read_b128 %s, v15 offset:%d', vr(64 + 4 * i, 4), 256 * i)
    A('s_mov_b64 exec, 0xffff')
    A.wait(lg=t)
    for e in range(2):
        S('v_pk_add_f32 %s, %s, %s', vr(64 + 2 * e, 2), vr(64 + 2 * e, 2), vr(68 + 2 * e, 2))
        S('v_pk_add_f32 %s, %s, %s', vr(72 + 2 * e, 2), vr(72 + 2 * e, 2), vr(76 + 2 * e, 2))
    for e in range(2):
        S('v_pk_add_f32 %s, %s, %s', vr(64 + 2 * e, 2), vr(64 + 2 * e, 2), vr(72 + 2 * e, 2))
    for i in range(4):
        S('v_add_u32 v%d, 0x80, v%d', 64 + i, 64 + i)
    for i in range(4):
        S('v_and_or_b32 v%d, v%d, v10, s%d', 64 + i, 64 + i, TAGB + i)
    S('buffer_store_dwordx4 v[64:67], v12, %s, %s offen sc1', SRD_WS, t1)
    A('s_mov_b64 exec, -1')
    A(NP + ':')
    S('s_cmp_lg_u32 %s, 1', sW)
    A('s_cbranch_scc1 ' + NX)
    S('s_lshl2_add_u32 %s, %s, %d', t0, sLID, WS_XA)
    flag_store(t0, False, vXCV)
    A(NX + ':')
    A.lg_done = A.lg
    A.vm = vm0


def ln1(tx, wst):
    S('s_and_b32 %s, %s, 2', sQK, sCNT)
    S('s_lshl_b32 %s, %s, 1', sQK, sQK)
    swarm_at(2)
    wst.drip(OPT['n2'])
    A.wait(vm=tx)
    stamp('.x')
    for i in range(8):
        unpack(24 + 2 * i, 16 + i)
    A('v_pk_add_f32 v[40:41], v[24:25], v[26:27]')
    A('v_pk_mul_f32 v[42:43], v[24:25], v[24:25]')
    A('v_pk_fma_f32 v[42:43], v[26:27], v[26:27], v[42:43]')
    for i in range(2, 8):
        S('v_pk_add_f32 v[40:41], v[40:41], %s', vr(24 + 2 * i, 2))
        S('v_pk_fma_f32 v[42:43], %s, %s, v[42:43]', vr(24 + 2 * i, 2), vr(24 + 2 * i, 2))
    A('v_add_f32 v40, v40, v41')
    A('v_add_f32 v42, v42, v43')
    A('v_permlane32_swap_b32 v40, v42')
    A('v_add_f32 v40, v40, v42')
    A('v_mov_b32 v41, v40')
    A('v_permlane16_swap_b32 v40, v41')
    A('v_add_f32 v40, v40, v41')
    A('v_add_f32_dpp v41, v40, v40 row_ror:8 row_mask:0xf bank_mask:0xf')
    t = A('ds_write_b32 v160, v41')
    A.wait(lg=t)
    A('s_barrier')
    stamp('.bar2')


def ln1_apply():
    A('ds_read_b128 v[64:67], v161')
    t = A('ds_read_b128 v[68:71], v161 offset:128')
    A.wait(lg=t)
    A('v_pk_add_f32 v[64:65], v[64:65], v[66:67]')
    A('v_pk_add_f32 v[68:69], v[68:69], v[70:71]')
    A('v_add_f32 v64, v64, v65')
    A('v_add_f32 v68, v68, v69')
    A('v_mul_f32 v64, 0x3b000000, v64')
    A('v_mul_f32 v68, 0x3b000000, v68')
    A('v_fma_f32 v68, -v64, v64, v68')
    A('v_max_f32 v68, 0, v68')
    A('v_add_f32 v68, 0x3727c5ac, v68')
    A('v_rsq_f32 v60, v68')
    A('v_mul_f32 v61, -v64, v60')
    for i in range(8):
        S('v_pk_fma_f32 %s, %s, v[60:61], v[60:61] op_sel:[0,0,1] op_sel_hi:[1,0,1]', vr(24 + 2 * i, 2), vr(24 + 2 * i, 2))


def sum_partials(base, addend):
    for e in range(2):
        S('v_pk_add_f32 %s, %s, %s', vr(base + 2 * e, 2), vr(base + 2 * e, 2), vr(base + 4 + 2 * e, 2))
        S('v_pk_add_f32 %s, %s, %s', vr(base + 8 + 2 * e, 2), vr(base + 8 + 2 * e, 2), vr(base + 12 + 2 * e, 2))
    for e in range(2):
        S('v_pk_add_f32 %s, %s, %s', vr(base + 2 * e, 2), vr(base + 2 * e, 2), vr(base + 8 + 2 * e, 2))
    for e in range(2):
        S('v_cvt_pk_bf16_f32 v%d, v%d, v%d', base + 4 + e, base + 2 * e, base + 2 * e + 1)
    for e in range(2):
        unpack(base + 8 + 2 * e, base + 4 + e)
    for i in range(4):
        S('v_add_f32 v%d, %s, v%d', base + 8 + i, addend, base + 8 + i)
    for e in range(2):
        S('v_cvt_pk_bf16_f32 v%d, v%d, v%d', base + e, base + 8 + 2 * e, base + 9 + 2 * e)


MP = 156
sMP = ('s92', 's93', 's94', 's95')


def mod_poll_addr():
    S('v_and_b32 v151, 31, %s', vLANE)
    S('v_lshrrev_b32 v12, 5, %s', vLANE)
    S('s_lshl_b32 %s, %s, 9', t0, sW)
    S('v_lshl_add_u32 v156, v151, 4, %s', t0)
    A('v_lshl_add_u32 v156, v12, 11, v156')
    A('v_cvt_f32_u32 v150, v12')
    for i in range(4):
        S('s_mov_b32 %s, %d', sMP[i], WS_MOD + 12288 * i)
    S('s_lshl_b32 %s, %s, 7', t0, sX)
    S('s_add_u32 %s, %s, %d', t0, t0, WS_XA)
    S('v_lshl_add_u32 v157, v151, 2, %s', t0)


def ln_addr():
    S('v_lshrrev_b32 v12, 5, %s', vLANE)
    S('v_lshl_add_u32 v12, v12, 3, %s', l7)
    S('s_lshl2_add_u32 %s, %s, %d', t0, sW, L_SCR)
    S('v_lshl_add_u32 v160, v12, 4, %s', t0)
    S('v_lshlrev_b32 v161, 4, %s', l7)
    S('v_add_u32 v161, %d, v161', L_SCR)


def setup_a():
    mod_poll_addr()
    if OPT['spos'] == 0:
        ln_addr()
    S('s_lshl_b32 %s, %s, 10', t1, sW)
    S('s_add_u32 %s, %s, %d', t1, t1, L_SCR + 4096)
    S('v_add_u32 v158, %s, %s', t1, vL16)
    S('v_lshl_add_u32 v159, %s, 5, %s', l3, t1)
    S('v_lshlrev_b32 v12, 9, %s', l3)
    S('v_lshl_add_u32 %s, %s, 4, v12', H_V, l7)
    srd(SRD_OUT, 24, 2097152)
    S('s_and_b32 %s, %s, 7', sCT, sJ)
    S('s_lshr_b32 %s, %s, 3', t0, sJ)
    S('s_lshl_b32 %s, %s, 1', t0, t0)
    S('s_lshl3_add_u32 %s, %s, %s', sT0, sX, t0)
    if OPT['rot']:
        S('s_lshl1_add_u32 %s, %s, %s', sOWN, sCT, sW)
        S('s_and_b32 %s, %s, 3', sOWN, sOWN)
    else:
        S('s_mov_b32 %s, %s', sOWN, sW)
    S('s_lshl1_add_u32 %s, %s, %s', sTS, sT0, sOWN)
    A('s_mov_b32 s86, 0x0000ffff')
    A('s_mov_b32 s87, 0x0000ffff')
    A('s_mov_b32 s88, 0xffff0000')
    A('s_mov_b32 s89, 0xffff0000')
    S('v_and_b32 v12, 3, %s', vLANE)
    A('v_lshlrev_b32 v13, 3, v12')
    S('v_bfe_u32 v12, %s, 4, 1', vLANE)
    A('v_lshl_add_u32 v13, v12, 5, v13')
    S('v_bfe_u32 v12, %s, 2, 2', vLANE)
    A('v_lshl_add_u32 v13, v12, 6, v13')
    S('v_lshrrev_b32 v12, 5, %s', vLANE)
    A('v_lshl_add_u32 v13, v12, 9, v13')
    A('v_add_u32 v14, 65536, v13')
    S('s_lshl_b32 %s, %s, 15', t1, sT)
    S('s_add_u32 %s, %s, %d', sHL, t1, WS_H)
    S('s_mov_b64 %s, 0xffff', sMASK)
    S('s_lshr_b32 %s, %s, 2', t4, sLID)
    S('s_lshl4_add_u32 %s, %s, %s', t4, t4, sG)
    S('s_lshl2_add_u32 %s, %s, %s', t4, t4, sW)
    S('s_lshl2_add_u32 %s, %s, %d', t4, t4, WS_FA)


def setup_scalar():
    S('s_lshl4_add_u32 %s, %s, %s', t0, sT, sM)
    S('s_lshl_b32 %s, %s, 6', t1, t0)
    S('s_add_u32 %s, %s, %d', sFKV, t1, WS_FKV)
    S('s_lshl_b32 %s, %s, 12', t1, t0)
    S('s_add_u32 %s, %s, %d', sKVO, t1, WS_KV)
    for d, dst in ((4, sR4), (8, sR8)):
        S('s_sub_u32 %s, %s, %d', dst, t0, 16 * d)
        S('s_max_i32 %s, %s, 0', dst, dst)
    S('v_mov_b32 %s, %s', vPKV, sR4)
    S('v_writelane_b32 %s, %s, 1', vPKV, sR8)
    S('v_lshlrev_b32 %s, 6, %s', vPKV, vPKV)
    S('v_add_u32 %s, %d, %s', vPKV, WS_FKV, vPKV)
    for dst in (sR4, sR8):
        S('s_lshl_b32 %s, %s, 12', dst, dst)
        S('s_add_u32 %s, %s, %d', dst, dst, WS_KV)
    S('s_cmp_ge_u32 %s, 4', sT)
    A('s_cselect_b32 s98, 1, 0')
    S('s_cselect_b32 %s, 0, 0x%x', t1, OOB)
    S('v_add_u32 %s, %s, %s', vD4, t1, vL16)
    S('s_cmp_ge_u32 %s, 8', sT)
    A('s_cselect_b32 s98, 3, s98')
    S('s_cselect_b32 %s, 0, 0x%x', t1, OOB)
    S('v_add_u32 %s, %s, %s', vD8, t1, vL16)
    if OPT['dbg'] & 8:
        S('v_mov_b32 %s, 0x%x', vD4, OOB)
        S('v_mov_b32 %s, 0x%x', vD8, OOB)
    A('s_mov_b32 s99, 0')
    S('s_lshl_b32 %s, %s, 6', t1, sT)
    S('s_add_u32 %s, %s, %s', t1, t1, sM)
    S('s_lshl2_add_u32 %s, %s, %d', sFO, t1, WS_FA + 64)
    S('s_add_u32 %s, %s, 128', sFHID, sFO)
    S('s_lshr_b32 %s, %s, 1', t1, sTS)
    S('s_lshl_b32 %s, %s, 5', t1, t1)
    S('s_add_u32 %s, %s, %s', t1, t1, sCT)
    S('s_and_b32 %s, %s, 1', t2, sTS)
    S('s_lshl1_add_u32 %s, %s, %s', t1, t1, t2)
    S('s_lshl2_add_u32 %s, %s, %d', sFY, t1, WS_FA + 128)
    S('s_lshl_b32 %s, %s, 15', t1, sT)
    wsy = WS_H if LOCAL[0] and OPT['yov'] else WS_Y
    S('s_add_u32 %s, %s, %d', sYL[0], t1, wsy)
    S('s_add_u32 %s, %s, %d', sYL[1], t1, wsy + 16384)
    S('s_lshl_b32 %s, %s, 10', t2, sM)
    S('s_add_u32 %s, %s, %s', t1, t1, t2)
    S('s_add_u32 %s, %s, %d', sOO, t1, WS_O)
    S('s_lshl3_add_u32 %s, %s, %s', t1, sTS, sCT)
    S('s_lshl_b32 %s, %s, 11', t2, t1)
    S('s_add_u32 %s, %s, %d', sYO, t2, wsy)
    S('s_lshl_b32 %s, %s, 7', t2, t1)
    S('s_add_u32 %s, %s, %d', sSO, t2, WS_STAT)
    S('s_lshl_b32 %s, %s, 11', t2, sT)
    S('s_add_u32 %s, %s, %d', sSL, t2, WS_STAT)
    S('s_lshr_b32 %s, %s, 1', t1, sM)
    S('s_lshl4_add_u32 %s, %s, %s', t1, sT, t1)
    S('s_mul_i32 %s, %s, 7168', t1, t1)
    S('s_add_u32 %s, %s, %d', sHO[0], t1, WS_HID)
    S('s_add_u32 %s, %s, %d', sHO[1], t1, WS_HID + 56 * 1024)
    S('s_lshl3_add_u32 %s, %s, %s', t1, sT0, sW)
    for s in range(4):
        S('s_add_u32 %s, %s, %d', t2, sOWN, s + 1)
        S('s_and_b32 %s, %s, 3', t2, t2)
        S('s_lshl2_add_u32 %s, %s, %s', t2, t2, t1)
        S('s_lshl_b32 %s, %s, 12', t3, t2)
        S('s_add_u32 %s, %s, %d', STG_O[s], t3, WS_O)
        S('s_mul_i32 %s, %s, %d', t3, t2, 14 * 1024)
        S('s_add_u32 %s, %s, %d', STG_H[s], t3, WS_HID)
    S('s_lshl2_add_u32 %s, %s, %s', t1, sCT, sW)
    S('s_lshl_b32 %s, %s, 14', t2, t1)
    S('s_add_u32 %s, %s, %d', sWOB, t2, WS_WOT)
    S('s_mul_i32 %s, %s, %d', t2, t1, 14 * 4096)
    S('s_add_u32 %s, %s, %d', sW2B, t2, WS_W2T)
    S('s_lshr_b32 %s, %s, 1', t1, sW)
    S('s_and_b32 %s, %s, 1', t2, sW)
    S('s_lshl3_add_u32 %s, %s, %s', t1, t1, t2)
    S('s_lshl_b32 %s, %s, 7', t1, t1)
    S('s_add_u32 %s, %s, %s', t1, t1, sM)
    S('s_mul_i32 %s, %s, 224', sW1G, t1)
    S('s_mul_i32 %s, %s, 7168', sW1L, sW)
    if OPT['w1s']:
        assert OPT['qd'] == 0
        S('s_and_b32 %s, %s, 3', t1, sM)
        S('s_lshr_b32 %s, %d, %s', t1, OPT['w1s'], t1)
        S('s_lshr_b32 %s, %s, 4', t2, sJ)
        S('s_and_b32 %s, %s, %s', t1, t1, t2)
        S('s_mul_i32 %s, %s, %d', t1, t1, 8 * 7168)
        S('s_add_u32 %s, %s, %s', sW1L, sW1L, t1)
        S('s_lshl4_add_u32 %s, %s, %s', sW1G, t1, sW1G)
        S('s_lshl_b32 %s, %s, 1', sXC, t1)
    S('s_lshl_b32 %s, %s, 2', t1, sW)
    S('s_lshl_b32 s60, 15, %s', t1)
    A('s_mov_b32 s61, s60')
    S('s_lshl_b32 %s, %s, 12', t1, sW)
    S('s_add_u32 %s, %s, %d', t1, t1, L_KV)
    S('v_add_u32 %s, %s, %s', vKV, t1, vL16)
    for bit, regs in enumerate(((sHL,), (sKVO,), (sR4, sR8), (sOO,), STG_O, (sYO,), sYL, sHO, STG_H, (sPS,))):
        if OPT['nul'] >> bit & 1:
            for r in regs:
                S('s_mov_b32 %s, 0x%x', r, WS_SIZE)


def setup_vector():
    a, b, t, q = 'v10', 'v11', 'v12', 'v15'
    S('v_and_b32 %s, 15, %s', t, vLANE)
    S('v_lshrrev_b32 %s, 4, %s', q, vLANE)
    S('s_lshl_b32 %s, %s, 14', t0, sTS)
    S('s_lshl_b32 %s, %s, 7', t1, sCT)
    S('s_add_u32 %s, %s, %s', t0, t0, t1)
    S('v_lshrrev_b32 %s, 3, %s', b, vLANE)
    S('v_lshl_add_u32 %s, %s, 10, %s', a, b, t0)
    S('v_xor_b32 %s, %s, %s', b, b, l7)
    S('v_lshl_add_u32 %s, %s, 4, %s', vXO, b, a)
    S('s_add_u32 %s, %s, %d', t1, t1, L_MODL + 1024)
    S('v_lshl_add_u32 %s, %s, 5, %s', vG2A, q, t1)
    S('s_mov_b32 %s, %d', t1, L_GAB)
    S('v_lshl_add_u32 %s, %s, 6, %s', vGAB, q, t1)
    S('s_mov_b32 %s, %d', t1, L_UT)
    S('v_lshl_add_u32 %s, %s, 4, %s', vUTR, q, t1)
    S('s_lshl_b32 %s, %s, 10', t0, sW)
    S('s_add_u32 %s, %s, %d', t1, t0, WS_MOD + 6144)
    S('v_add_u32 %s, %s, %s', vMR0, t1, vL16)
    S('s_lshr_b32 %s, %s, 1', t0, t0)
    S('s_add_u32 %s, %s, %d', t1, t0, L_MODL)
    S('v_lshl_add_u32 %s, %s, 3, %s', vMW, vLANE, t1)
    S('v_bfe_u32 %s, %s, 3, 1', b, vLANE)
    S('v_lshl_add_u32 %s, %s, 1, %s', a, q, b)
    S('v_mul_u32_u24 %s, 6144, %s', a, a)
    S('v_lshl_add_u32 %s, %s, 4, %s', a, l7, a)
    S('s_and_b32 %s, %s, 1', t0, sW)
    S('s_lshl1_add_u32 %s, %s, %s', t1, sCT, t0)
    S('s_lshl_b32 %s, %s, 7', t1, t1)
    S('s_add_u32 %s, %s, %d', t1, t1, WS_MOD + 4096)
    S('v_add_u32 %s, %s, %s', vMR1, t1, a)
    S('s_lshl_b32 %s, %s, 7', t0, t0)
    S('s_add_u32 %s, %s, %d', t0, t0, L_GAB)
    S('v_lshl_add_u32 %s, %s, 8, %s', a, b, t0)
    S('v_lshl_add_u32 %s, %s, 4, %s', a, l7, a)
    S('v_lshrrev_b32 %s, 5, %s', b, vLANE)
    S('v_lshl_add_u32 %s, %s, 2, %s', a, b, a)
    S('v_and_b32 %s, 1, %s', q, q)
    S('v_lshl_add_u32 %s, %s, 3, %s', vGW, q, a)
    S('v_lshlrev_b32 %s, 4, %s', a, t)
    S('v_lshl_add_u32 %s, %s, 14, %s', a, q, a)
    S('v_lshl_add_u32 %s, %s, 8, %s', vOO, b, a)
    S('v_lshlrev_b32 %s, 2, %s', a, t)
    S('v_lshl_add_u32 %s, %s, 6, %s', vSS, b, a)
    S('v_lshl_add_u32 %s, %s, 10, %s', vSL, q, vSS)
    S('s_lshl_b32 %s, %s, 8', t0, sT0)
    S('s_add_u32 %s, %s, %d', t0, t0, WS_FA)
    S('v_lshl_add_u32 %s, %s, 7, %s', a, b, t0)
    S('v_lshl_add_u32 %s, %s, 2, %s', vPG, vLANE, a)
    S('v_bfe_u32 %s, %s, 2, 3', a, vLANE)
    S('v_lshl_add_u32 %s, %s, 4, %s', a, b, a)
    S('v_mul_u32_u24 %s, 224, %s', a, a)
    S('v_and_b32 %s, 3, %s', b, vLANE)
    S('v_lshl_add_u32 v%d, %s, 3, %s', vT1, b, a)
    S('v_add_u32 v%d, 57344, v%d', vT2, vT1)
    S('s_and_b32 %s, %s, 1', t0, sM)
    S('s_lshl_b32 %s, %s, 12', t1, t0)
    S('v_add_u32 %s, %s, %s', vH4, t1, vL16)
    S('s_lshl_b32 %s, %s, 9', t1, t0)
    S('v_lshlrev_b32 %s, 2, %s', vL8, vLANE)
    S('v_add_u32 %s, %s, %s', vH2, t1, vL8)
    for s in range(4):
        S('s_add_u32 %s, %s, %d', t0, sW, s + 1)
        S('s_and_b32 %s, %s, 3', t0, t0)
        S('s_lshl_b32 %s, %s, 13', t0, t0)
        S('s_add_u32 %s, %s, %d', t0, t0, L_RED + (4096 if s == 1 else 0))
        S('v_add_u32 v%d, %s, %s', (vRW + (vRR,))[s], t0, vL16)
    S('s_mul_i32 %s, %s, 14', t0, sW)
    S('v_min_u32 %s, 13, %s', a, t)
    S('v_add_u32 %s, %s, %s', a, t0, a)
    S('s_lshl2_add_u32 %s, %s, 56', t0, sW)
    S('v_and_b32 %s, 3, %s', b, vLANE)
    S('v_add_u32 %s, %s, %s', b, t0, b)
    S('v_cndmask_b32 %s, %s, %s, %s', a, b, a, sMASK)
    S('s_lshl_b32 %s, %s, 13', t0, sCT)
    S('s_add_u32 %s, %s, %d', t0, t0, WS_FP)
    S('v_lshl_add_u32 %s, %s, 6, %s', a, a, t0)
    S('s_mov_b32 %s, %d', t0, WS_FKV)
    S('v_lshl_add_u32 %s, %s, 13, %s', b, l7, t0)
    S('s_or_b32 %s, %s, %s', t0, sLID, sW)
    S('s_min_u32 %s, %s, 1', t0, t0)
    S('s_sub_u32 %s, %s, 1', t0, t0)
    S('s_and_b32 s93, %s, 0xff', t0)
    A('s_mov_b32 s92, 0')
    S('v_cndmask_b32 %s, %s, %s, s[92:93]', vFP, a, b)


def w1_addr():
    for i in range(7):
        S('v_add_u32 v10, %d, %s', 64 * i, vLANE)
        A('v_mul_u32_u24 v11, 4682, v10')
        A('v_lshrrev_b32 v11, 16, v11')
        A('v_mad_i32_i24 v10, v11, -14, v10')
        S('v_add_u32 v10, %s, v10', t4)
        A('v_subrev_u32 v12, 14, v10')
        A('v_min_u32 v10, v10, v12')
        A('v_and_b32 v12, 4, v11')
        A('v_mad_u32_u24 v12, v12, 3, v11')
        A('v_and_b32 v15, 16, v11')
        A('v_add_u32 v12, v12, v15')
        A('v_bfe_u32 v15, v11, 3, 1')
        A('v_mad_i32_i24 v12, v15, -4, v12')
        A('v_mul_u32_u24 v12, 3584, v12')
        S('v_lshl_add_u32 v%d, v10, 4, v12', W1V + i)


def ut_addr():
    S('s_lshl_b32 %s, %s, 5', t3, sW)
    S('s_add_u32 %s, %s, 128', t4, t3)
    S('s_min_u32 %s, %s, 192', t4, t4)
    S('v_add_u32 v%d, %s, v%d', UTA, t3, vT1)
    S('v_add_u32 v%d, %s, v%d', UTA + 1, t3, vT2)
    S('v_add_u32 v%d, %s, v%d', UTA + 2, t4, vT1)
    S('v_add_u32 v%d, %s, v%d', UTA + 3, t4, vT2)
    S('v_and_b32 v10, 1, %s', vLANE)
    A('v_lshlrev_b32 v11, 10, v10')
    S('v_sub_u32 v11, %d, v11', L_MODL + 1024)
    S('v_lshrrev_b32 v12, 4, %s', vLANE)
    S('v_lshl_add_u32 v%d, v12, 5, v11', UTA + 4)
    S('v_lshl_add_u32 v12, v10, 9, %s', vUTR)
    S('v_lshl_add_u32 v%d, %s, 1, v12', UTA + 5, t3)
    S('v_lshl_add_u32 v%d, %s, 1, v12', UTA + 6, t4)


def mod_poll(wst):
    def loads():
        S('buffer_load_dword v58, v157, %s, 0 offen sc1', SRD_WS)
        return [S('buffer_load_dwordx4 %s, v156, %s, %s offen sc1', vr(40 + 4 * i, 4), SRD_WS, sMP[i]) for i in range(4)]
    L, D = A.label('pmod'), A.label('dmod')
    wst.drip(OPT['n2b'])
    if OPT['spos']:
        assert OPT['ppos'] == 0
        prep_srd()
        prep_addr()
        setup_a()
    if OPT['lnp']:
        ln1_apply()
    stamp('ln done')
    tk = loads()
    if OPT['tw1'] == 2:
        warm(SRD_W1, 14)
    wst.drip(OPT['n3'])
    if not OPT['lnp']:
        ln1_apply()
    swarm_at(3)
    stamp('.setup a')
    for i in range(4):
        A.wait(vm=tk[i])
        untag(40 + 4 * i, 56, i == 0)
    untag_test(56)
    S('s_mov_b32 %s, 0', sCNT)
    A('s_cbranch_vccz ' + D)
    vm_save = A.vm
    A(L + ':')
    loads()
    S('s_add_u32 %s, %s, 1', sCNT, sCNT)
    for i in range(4):
        S('s_waitcnt vmcnt(%d)', 3 - i)
        untag(40 + 4 * i, 56, i == 0)
    untag_test(56)
    S('s_cmp_lt_u32 %s, %d', sCNT, LIMIT)
    A('s_cbranch_vccz ' + D)
    A('s_cbranch_scc1 ' + L)
    A(D + ':')
    A.vm = vm_save
    stamp('mod seen')
    S('v_cmp_ne_u32 vcc, %s, v58', sXC)
    sum_partials(40, 'v150')
    unpack(44, 40)
    unpack(46, 41)
    A('s_cbranch_vccnz L_xcslow')
    A('L_local:')


def xc_slow():
    A('L_xcslow:')
    S('s_mov_b32 %s, 0', sCNT)
    A('L_xc1:')
    S('buffer_load_dword v58, v157, %s, 0 offen sc1', SRD_WS)
    S('s_add_u32 %s, %s, 1', sCNT, sCNT)
    A('s_waitcnt vmcnt(0)')
    S('v_cmp_ne_u32 vcc, %s, v58', sXC)
    A('s_cbranch_vccz L_local')
    S('s_cmp_lt_u32 %s, 32', sCNT)
    A('s_cbranch_scc1 L_xc1')
    S('s_lshl_b32 %s, %s, 6', t0, sLID)
    S('s_add_u32 %s, %s, %d', t0, t0, WS_XB)
    flag_store(t0, True, vXCV)
    S('s_lshl_b32 %s, %s, 11', t0, sX)
    S('s_add_u32 %s, %s, %d', t0, t0, WS_XB)
    S('v_lshl_add_u32 v59, v151, 6, %s', t0)
    S('buffer_load_dword v57, v59, %s, 0 offen sc1', SRD_WS)
    A('s_waitcnt vmcnt(0)')
    S('v_cmp_ne_u32 vcc, %s, v57', sXC)
    A('s_cbranch_vccz L_local')
    S('s_add_u32 %s, %s, 1', t0, sTAG)
    S('v_subrev_u32 v56, %s, v57', t0)
    A('v_cmp_le_u32 vcc, 16, v56')
    A('s_cbranch_vccz L_remote')
    S('s_cmp_lt_u32 %s, %d', sCNT, LIMIT)
    A('s_cbranch_scc1 L_xc1')
    A('L_remote:')


def h_phase(wst, pst):
    t = A('ds_write_b128 v158, v[44:47]')
    S('s_add_u32 %s, %s, 4096', t3, H_S)
    A.wait(lg=t)
    tr = []
    for i in range(4):
        S('ds_read_b128 %s, v159 offset:%d', vr(64 + 8 * i, 4), 256 * (i >> 1) + 16 * (i & 1))
        tr.append(S('ds_read_b128 %s, v159 offset:%d', vr(68 + 8 * i, 4), 512 + 256 * (i >> 1) + 16 * (i & 1)))
    for i in range(4):
        A.wait(lg=tr[i])
        for d in range(2):
            x = 24 + 4 * i + 2 * d
            S('v_pk_fma_f32 %s, %s, %s, %s', vr(x, 2), vr(x, 2), vr(68 + 8 * i + 2 * d, 2), vr(64 + 8 * i + 2 * d, 2))
        for d in range(2):
            x = 24 + 4 * i + 2 * d
            S('v_cvt_pk_bf16_f32 v%d, v%d, v%d', 16 + 2 * i + d, x, x + 1)
        if i & 1:
            ts = S('buffer_store_dwordx4 %s, %s, %s, %s offen%s', vr(16 + 4 * (i >> 1), 4), H_V, SRD_WS, (H_S, t3)[i >> 1], sc('h'))
    stamp('.h st')
    keep = 8 - OPT['wq0']
    wst.drip(max(0, min(OPT['n4'], len(wst) - keep)))
    swarm_at(4)
    sl = capture(setup_scalar)
    n0 = OPT['sv'] if len(wst) <= 11 else 0
    A.lines += sl[:n0]
    A.wait(vm=ts)
    flag_store(t4, not LOCAL[0])
    stamp('h pub')
    if OPT['tw1'] == 3:
        warm(SRD_W1, 14)
    if OPT['ppos'] == 0:
        pst.drip(4)
    nb = max(0, len(wst) - keep)
    wst.drip(nb)
    A.lines += sl[n0:]
    lanes = 0
    if LOCAL[0] and OPT['toy']:
        S('v_and_b32 v10, 7, %s', vLANE)
        S('v_bfe_u32 v11, %s, 3, 1', vLANE)
        S('v_lshl_add_u32 v10, v10, 7, %s', sOO)
        A('v_lshl_add_u32 v10, v11, 14, v10')
        S('v_and_b32 v11, 15, %s', vLANE)
        S('v_lshl_add_u32 v11, v11, 7, %s', sYO)
        S('v_cndmask_b32 v10, v11, v10, %s', sMASK)
        S('v_writelane_b32 v10, %s, 32', sSO)
        lanes |= (0xffff if OPT['po'] else 0) | (0x1ffff0000 if OPT['py'] else 0)
    if OPT['tfl']:
        S('v_writelane_b32 v10, %s, 33', sFKV)
        S('v_writelane_b32 v10, %s, 34', sFP)
        lanes |= 3 << 33
    if OPT['tlb'] & 1:
        for i, r in enumerate((sKVO, sR8, sOO, sYO, sHO[0], STG_H[0], sW2B)):
            S('s_or_b32 %s, %s, 0x1fff80', t0, r)
            S('v_writelane_b32 v10, %s, %d', t0, 35 + i)
        lanes |= 0x7f << 35
    if OPT['tlb'] & 2:
        A('s_mov_b64 exec, 1')
        S('buffer_load_dword v%d, off, %s, 0', JUNK + 1, SRD_OUT)
        A('s_mov_b64 exec, -1')
    if lanes:
        S('s_mov_b32 exec_lo, 0x%x', lanes & 0xffffffff)
        S('s_mov_b32 exec_hi, 0x%x', lanes >> 32)
        S('buffer_load_dword v%d, v10, %s, 0 offen sc1', JUNK + 2, SRD_WS)
        A('s_mov_b64 exec, -1')
    stamp('.dma iss')
    assert not len(pst)
    S('v_and_b32 %s, 0x%x, %s', vPD, OOB, vPD)
    S('v_add_u32 %s, %s, %s', vPD, vPD, vL16)
    setup_vector()
    stamp('.setup v')


def qkv(wq):
    RING = 4
    rd = {}

    def bread(s, tile):
        b = 64 + 8 * (s % RING)
        for half in range(2):
            rd[s] = S('ds_read_b64_tr_b16 %s, v13 offset:%d', vr(b + 4 * tile + 2 * half, 2), tile * 32768 + s * 1024 + half * 256)
    S('s_and_b32 %s, %s, 1', t4, sM)
    S('s_lshl_b32 %s, %s, 1', t4, t4)
    poll(vPT, 0, 'h', sMASK)
    stamp('h seen')
    ta = []

    def aload(s):
        if s and s & 3 == 0:
            S('s_add_u32 %s, %s, 4096', sHL, sHL)
        ta.append(S('buffer_load_dwordx4 %s, %s, %s, %s offen offset:%d sc1', vr(128 + 4 * s, 4), vL16, SRD_WS, sHL, (s & 3) * 1024))
    AH = 10
    twq = 0
    for s in range(AH):
        aload(s)
    A('s_barrier')
    for s in range(RING - 1):
        bread(s, 0)
        bread(s, 1)
    fill = capture(w1_addr)
    A.lines += fill[:12]
    fill = fill[12:]
    for s in range(32):
        b = 64 + 8 * (s % RING)
        A.wait(vm=ta[s], lg=rd[s])
        a = vr(128 + 4 * s, 4)
        S('%s v[16:31], %s, %s, %s', MF32, vr(b, 4), a, 'v[16:31]' if s else '0')
        if s + AH < 32:
            aload(s + AH)
        elif s + AH - 32 < OPT['wq1'] and len(wq):
            twq = wq.drip(1)
        if s + RING - 1 < 32:
            bread(s + RING - 1, 0)
        A.lines += fill[:1]
        S('%s v[32:47], %s, %s, %s', MF32, a, vr(b + 4, 4), 'v[32:47]' if s else '0')
        if s + RING - 1 < 32:
            bread(s + RING - 1, 1)
        A.lines += fill[1:3]
        fill = fill[3:]
    assert not fill
    stamp('kv pass')
    for p in range(4):
        for d in range(4):
            S('v_cvt_pk_bf16_f32 v%d, v%d, v%d', 48 + 4 * p + d, 16 + 8 * p + 2 * d, 17 + 8 * p + 2 * d)
        tkvs = S('buffer_store_dwordx4 %s, %s, %s, %s offen offset:%d sc1', vr(48 + 4 * p, 4), vL16, SRD_WS, sKVO, p * 1024)
    stamp('.kv st')
    twq = wq.drip(OPT['wq2']) or twq
    for p in range(4):
        tl = S('ds_write_b128 %s, %s offset:%d', vKV, vr(48 + 4 * p, 4), 8 * 4096 + p * 1024)
    for nt in range(4):
        tl = prep_read(nt)
    S('v_and_b32 v11, 31, %s', vLANE)
    S('v_lshrrev_b32 v12, 5, %s', vLANE)
    A('v_lshlrev_b32 v12, 2, v12')
    A('v_sub_u32 v11, v11, v12')
    A('v_mov_b32 v12, 0xff800000')
    ms = ('s[90:91]', 's[92:93]', 's[94:95]')
    for r in range(18):
        if r < 16:
            S('v_cmp_le_i32 %s, %d, v11', ms[r % 3], (r & 3) + 8 * (r >> 2))
        if r >= 2:
            S('v_cndmask_b32 v%d, v12, 0, %s', MD + r - 2, ms[(r - 2) % 3])
            S('v_cndmask_b32 v%d, 0, v12, %s', MFAR + r - 2, ms[(r - 2) % 3])
    stamp('.masks')
    ps = Stream()
    tps = {}
    for p in range(4):
        def f(p=p):
            tps[0] = prep_store(p)
        ps.add(f)

    def kvflag():
        A.wait(vm=tkvs)
        flag_store(sFKV, True)
        stamp('kv pub')
    if OPT['qf'] < 0:
        kvflag()
    twq = wq.drip(99) or twq
    if OPT['tw1'] == 7:
        warm(SRD_W1, 14, 95, 95)
    if OPT['pstp'] == 0:
        A.wait(lg=tl)
        ps.drip(4)
    ut_addr()
    S('s_lshl_b32 %s, %s, 12', t2, sW)
    S('s_mov_b32 %s, 0x3eb8aa3b', t0)
    S('s_mov_b32 %s, 0x3eb8aa3b', t1)
    A.wait(vm=twq, lg=tl)
    A('s_barrier')
    stamp('wq ready')
    rq = {}

    def qread(s):
        b = 64 + 4 * (s % 6)
        for half in range(2):
            rq[s] = S('ds_read_b64_tr_b16 %s, v14 offset:%d', vr(b + 2 * half, 2), s * 1024 + half * 256)
    if OPT['qp'] == 0:
        tpoll = poll_load(vPKV, 0)
    for s in range(5):
        qread(s)
    kq = Stream()
    tkv = {}
    for n, (t, slot, v) in enumerate(((sR4, 4, vD4), (sR8, 0, vD8))):
        for p in range(4):
            def f(n=n, t=t, v=v, p=p):
                tkv[n] = S('buffer_load_dwordx4 %s, %s, %s offen offset:%d sc1 lds', v, SRD_WS, t, p * 1024)
            kq.add(f, (lambda slot=slot: S('s_add_u32 m0, %s, %d', t2, L_KV + slot * 4096)) if p == 0 else None)
    if OPT['pstp'] == 1:
        kq.q += ps.q
        ps.q = []
    fill = capture(v_ones)
    for s in range(32):
        A.wait(lg=rq[s])
        S('%s v[48:63], %s, %s, %s', MF32, vr(64 + 4 * (s % 6), 4), vr(128 + 4 * s, 4), 'v[48:63]' if s else '0')
        if s and s == OPT['qp']:
            tpoll = poll_load(vPKV, 0)
        if s > OPT['qchk']:
            kq.pre()
        if s + 5 < 32:
            qread(s + 5)
        elif s == 28:
            rdK(0, 0)
            rdK(1, 0)
        elif s == 29:
            assert not fill
            rdV(0, 0)
        if s == OPT['qf']:
            kvflag()
        if s == OPT['qchk']:
            D = A.label('kvseen')
            stamp('.q chk')
            A.wait(vm=tpoll)
            poll_test(sM2)
            A('s_cbranch_scc0 ' + D)
            vm_save = A.vm
            poll(vPKV, 0, 'kv', sM2)
            A.vm = A.vm_done = vm_save
            A(D + ':')
            stamp('.polled')
            kq.drip(4)
        elif s > OPT['qchk'] and len(kq):
            kq.drip(2)
        elif s >= 6:
            A.lines += fill[:2]
            fill = fill[2:]
    kq.drip(99)
    if OPT['tw1'] == 6:
        warm(SRD_W1, 14, 11, 12)
    stamp('q pass')
    return tkv, tps, ps


def mr_load(i):
    if i < 4:
        S('s_mov_b32 s65, %d', 12288 * i)
        return S('buffer_load_dwordx4 %s, %s, %s, s65 offen sc1', vr(MRD + 4 * i, 4), vMR0, SRD_WS)
    return S('buffer_load_dwordx4 %s, %s, %s, 0 offen sc1', vr(MRD + 16, 4), vMR1, SRD_WS)


def v_ones():
    if not OPT['vz']:
        for r in range(16):
            S('v_mov_b32 v%d, 0x3f803f80', V0 + r)
        return
    A('s_mov_b32 s92, 0x00110011')
    A('s_mov_b32 s93, 0x00110011')
    A('v_mov_b32 v10, 0x3f803f80')
    S('v_cndmask_b32 v%d, 0, v10, s[92:93]', V0)
    for r in range(1, 16):
        S('v_mov_b32 v%d, v%d', V0 + r, V0)


def tok_addr(dst, base):
    S('v_and_b32 v%d, 15, %s', dst, vLANE)
    S('v_lshrrev_b32 v%d, 3, %s', dst + 1, vLANE)
    S('v_and_b32 v%d, 6, v%d', dst + 1, dst + 1)
    S('v_xor_b32 v%d, v%d, v%d', dst + 1, dst + 1, dst)
    S('v_and_b32 v%d, 7, v%d', dst + 1, dst + 1)
    S('v_lshl_add_u32 v%d, v%d, 7, %s', dst, dst, base)
    S('v_lshl_add_u32 v%d, v%d, 4, v%d', dst, dst + 1, dst)
    S('v_xor_b32 v%d, 16, v%d', dst + 1, dst)


def kv_off(d, piece):
    return (8 - d) * 4096 + piece * 1024


def rdK(h, d):
    return S('ds_read_b128 %s, %s offset:%d', vr((K0, K1)[h], 4), vKV, kv_off(d, h))


def rdV(h, d):
    if d:
        S('s_cselect_b64 exec, -1, %s', (sLO, sHI)[h])
    else:
        S('s_mov_b64 exec, %s', (sLO, sHI)[h])
    S('ds_read_b128 %s, %s offset:%d', vr((V0, V1)[h], 4), vKV, kv_off(d, 2))
    t = S('ds_read_b128 %s, %s offset:%d', vr((V0, V1)[h] + 4, 4), vKV, kv_off(d, 3))
    A('s_mov_b64 exec, -1')
    return t


def attention(w1, tkv, tps, ps):
    bg = Stream()
    wo = frag_stream(sWOB, 4, 192)
    tk = {}
    RET, RETB = A.label('fpretry'), A.label('fpback')

    def fp_load():
        tk[0] = poll_load(vFP, 0)

    def fp_check():
        A.wait(vm=tk[0])
        S('v_cmp_ne_u32 vcc, %s, v15', sTAG)
        A('s_cbranch_vccnz ' + RET)
        A(RETB + ':')
    while len(bg) < OPT['aw1']:
        bg.q.append(w1.q.pop(0) if len(w1) else (lambda: None, None))
    if LOCAL[0] and OPT['po'] and OPT['toy'] != 1:
        bg.add(lambda: touch(vOO, sOO))
        bg.add(lambda: touch(vOO, sOO, 512))

    def fp_flag():
        A.wait(vm=tps[0])
        A('s_mov_b64 exec, 1')
        S('buffer_store_dword %s, %s, %s, %s offen sc1', vTAG, vPD, SRD_WS, sFP)
        A('s_mov_b64 exec, -1')

    def y_touch():
        S('v_lshl_add_u32 v10, %s, 7, %s', vLANE, sYO)
        S('v_writelane_b32 v10, %s, 16', sSO)
        A('s_mov_b64 exec, 0x1ffff')
        S('buffer_load_dword v%d, v10, %s, 0 offen sc1', JUNK, SRD_WS)
        A('s_mov_b64 exec, -1')
    if LOCAL[0] and OPT['yov'] and OPT['ytp'] >= 0:
        bg.q.insert(OPT['ytp'], (y_touch, None))
    bg.q.insert(OPT['fpl'], (fp_load, None))
    bg.q.insert(OPT['fpf'], (fp_flag, None))
    bg.q[0:0] = ps.q
    bg.add(fp_check)
    chk = bg.q.pop()
    for i in range(5):
        bg.add(lambda i=i: mr_load(i))
    bg.q.append(chk)
    nmust = len(bg)
    if not OPT['nobg'] & 4:
        bg.q += wo.q
    bg.q += w1.q
    ntail = len(bg) - nmust

    def cop(d):
        return vr(MD, 16) if d == 0 else vr(MFAR, 16) if d == 8 else '0'

    for i in range(8):
        S('v_pk_mul_f32 %s, %s, s[76:77]', vr(48 + 2 * i, 2), vr(48 + 2 * i, 2))
    for i in range(8):
        S('v_cvt_pk_bf16_f32 v%d, v%d, v%d', 48 + i, 48 + 2 * i, 49 + 2 * i)
    A.wait(lg='all')
    S('%s %s, %s, %s, %s', MF32, vr(S0, 16), vr(K0, 4), vr(Q0, 4), cop(0))

    def half(h, d):
        S_, P, O, V = (S0, S1)[h], (P0, P1)[h], (O0, O1)[h], (V0, V1)[h]
        oS, oP, oO, oV, oK, oQ = (S1, S0)[h], (P1, P0)[h], (O1, O0)[h], (V1, V0)[h], (K1, K0)[h], (Q1, Q0)[h]
        od = d if h == 0 else d + 1
        first = d == 0 and h == 0
        if od <= 8:
            S('%s %s, %s, %s, %s', MF32, vr(oS, 16), vr(oK, 4), vr(oQ, 4), cop(od))
            if od:
                S('s_cmp_lt_u32 %s, %d', sT, od)
        if not first:
            if d + 1 <= 8:
                rdK(h, d + 1)
            bg.go()
        else:
            rdV(1, 0)
        for i in range(4):
            S('v_exp_f32 v%d, v%d', S_ + i, S_ + i)
        if not first:
            S('%s %s, %s, %s, %s', MF32, vr(oO, 16), vr(oV + 4, 4), vr(oP + 4, 4), vr(oO, 16))
            if od <= 8:
                rdV(1 - h, od)
            bg.pre()
        for i in range(4, 8):
            S('v_exp_f32 v%d, v%d', S_ + i, S_ + i)
        for i in range(4):
            S('v_cvt_pk_bf16_f32 v%d, v%d, v%d', P + i, S_ + 2 * i, S_ + 2 * i + 1)
        for i in range(8, 12):
            S('v_exp_f32 v%d, v%d', S_ + i, S_ + i)
        S('%s %s, %s, %s, %s', MF32, vr(O, 16), vr(V, 4), vr(P, 4), vr(O, 16) if d else '0')
        if first:
            A.wait(vm=tkv[1 - OPT['kv2']])
            A('s_barrier')
            stamp('kv loaded')
            rdK(0, 1)
            bg.drip(3)
        else:
            if OPT['kv2'] and d == 3 and h == 1:
                A.wait(vm=tkv[1], lg='all')
                A('s_barrier')
            A.wait(lg='all')
            bg.go()
        bg.pre()
        for i in range(12, 16):
            S('v_exp_f32 v%d, v%d', S_ + i, S_ + i)
        for i in range(4, 8):
            S('v_cvt_pk_bf16_f32 v%d, v%d, v%d', P + i, S_ + 2 * i, S_ + 2 * i + 1)
        if first:
            A.wait(lg='all')

    for d in range(9):
        if d in (3, 6):
            stamp('.d%d' % d)
        half(0, d)
        half(1, d)
    bg.drip(max(0, len(bg) - ntail))
    w1.q, w1.ready = bg.q, bg.ready
    S('%s %s, %s, %s, %s', MF32, vr(O1, 16), vr(V1 + 4, 4), vr(P1 + 4, 4), vr(O1, 16))
    stamp('att done')
    FB, OK = A.label('fb'), A.label('attok')
    S('s_mov_b32 %s, 0x1f800000', t0)
    S('s_mov_b32 %s, 0x5f800000', t1)
    S('s_mov_b32 %s, 0x7f000000', t2)
    S('v_add_f32 v10, abs(v%d), abs(v%d)', O0, O0 + 1)
    for i in range(2, 8):
        S('v_add_f32 v10, v10, abs(v%d)', O0 + i)
    S('v_cmp_nle_f32 vcc, %s, v%d', t0, O0 + 8)
    S('v_cmp_nge_f32 s[92:93], %s, v%d', t1, O0 + 8)
    for i in range(8):
        S('v_add_f32 v10, v10, abs(v%d)', O1 + 8 + i)
    A('s_or_b64 vcc, vcc, s[92:93]')
    S('v_cmp_nle_f32 s[92:93], %s, v%d', t0, O1)
    S('v_cmp_nge_f32 s[94:95], %s, v%d', t1, O1)
    S('v_cmp_ngt_f32 s[90:91], %s, v10', t2)
    S('v_rcp_f32 v10, v%d', O0 + 8)
    S('v_rcp_f32 v12, v%d', O1)
    A('s_or_b64 vcc, vcc, s[92:93]')
    A('s_or_b64 vcc, vcc, s[94:95]')
    A('s_or_b64 vcc, vcc, s[90:91]')
    if OPT['force_fallback']:
        A('s_branch ' + FB)
    A('s_cbranch_scc1 ' + FB)
    A(OK + ':')
    for h, (src, rc) in enumerate(((O0, 10), (O1 + 8, 12))):
        for i in range(4):
            S('v_pk_mul_f32 %s, %s, %s op_sel_hi:[1,0]', vr(src + 2 * i, 2), vr(src + 2 * i, 2), vr(rc, 2))
        for i in range(4):
            S('v_cvt_pk_bf16_f32 v%d, v%d, v%d', P0 + 4 * h + i, src + 2 * i, src + 2 * i + 1)
        ts = S('buffer_store_dwordx4 %s, %s, %s, %s offen offset:%d%s', vr(P0 + 4 * h, 4), vOO, SRD_WS, sOO, h * 512, sc('o'))
    return (FB, OK, RET, RETB), ts


def out_of_line(FB, OK, RET, RETB):
    A(RET + ':')
    A('s_cselect_b32 s66, 1, 0')
    poll(vFP, 0, 'fp', '-1')
    A('s_cmp_lg_u32 s66, 0')
    A('s_branch ' + RETB)
    A(FB + ':')
    S('s_min_u32 %s, %s, 8', t3, sT)
    v_ones()
    for h in range(2):
        Kp, Q, O, V = h, (Q0, Q1)[h], (O0, O1)[h], (V0, V1)[h]
        for ps in range(2):
            L, ND, NF = A.label('fl'), A.label('fnd'), A.label('fnf')
            S('s_mov_b32 %s, 0', t4)
            S('v_add_u32 v10, %d, %s', 8 * 4096, vKV)
            if ps == 0:
                A('v_mov_b32 v11, 0xff800000')
            else:
                for r in range(16):
                    S('v_mov_b32 v%d, 0', O + r)
            A(L + ':')
            S('ds_read_b128 %s, v10 offset:%d', vr(K0, 4), Kp * 1024)
            if ps == 1:
                S('s_mov_b64 exec, %s', (sLO, sHI)[h])
                S('ds_read_b128 %s, v10 offset:2048', vr(V, 4))
                S('ds_read_b128 %s, v10 offset:3072', vr(V + 4, 4))
                A('s_mov_b64 exec, -1')
            A('s_waitcnt lgkmcnt(0)')
            S('%s %s, %s, %s, 0', MF32, vr(S0, 16), vr(K0, 4), vr(Q, 4))
            A('s_nop 15')
            S('s_cmp_lg_u32 %s, 0', t4)
            A('s_cbranch_scc1 ' + ND)
            for r in range(16):
                S('v_add_f32 v%d, v%d, v%d', S0 + r, S0 + r, MD + r)
            A(ND + ':')
            S('s_cmp_lg_u32 %s, 8', t4)
            A('s_cbranch_scc1 ' + NF)
            for r in range(16):
                S('v_add_f32 v%d, v%d, v%d', S0 + r, S0 + r, MFAR + r)
            A(NF + ':')
            if ps == 0:
                for r in range(8):
                    S('v_max3_f32 v11, v11, v%d, v%d', S0 + 2 * r, S0 + 2 * r + 1)
            else:
                for r in range(16):
                    S('v_sub_f32 v%d, v%d, v11', S0 + r, S0 + r)
                for r in range(16):
                    S('v_exp_f32 v%d, v%d', S0 + r, S0 + r)
                for r in range(8):
                    S('v_cvt_pk_bf16_f32 v%d, v%d, v%d', P0 + r, S0 + 2 * r, S0 + 2 * r + 1)
                S('%s %s, %s, %s, %s', MF32, vr(O, 16), vr(V, 4), vr(P0, 4), vr(O, 16))
                S('%s %s, %s, %s, %s', MF32, vr(O, 16), vr(V + 4, 4), vr(P0 + 4, 4), vr(O, 16))
                A('s_nop 15')
            A('v_subrev_u32 v10, 4096, v10')
            S('s_add_u32 %s, %s, 1', t4, t4)
            S('s_cmp_le_u32 %s, %s', t4, t3)
            A('s_cbranch_scc1 ' + L)
            if ps == 0:
                A('v_mov_b32 v12, v11')
                A('v_permlane32_swap_b32 v11, v12')
                A('v_max_f32 v11, v11, v12')
    S('v_rcp_f32 v10, v%d', O0 + 8)
    S('v_rcp_f32 v12, v%d', O1)
    A('s_nop 1')
    A('s_branch ' + OK)


def ring_gemm(nks, STG, areg, ring_base, ring_n, ahead, split=(), pre=None, post=None, npost=0, extra=None, head=None):
    ta = {}
    aq = Stream()
    n = 4 * nks
    for i in range(n):
        st, k = divmod(i, nks)
        r = ring_base + 4 * (i % ring_n)

        def pr(st=st, k=k):
            if k and k & 3 == 0:
                S('s_add_u32 %s, %s, 4096', STG[st], STG[st])

        def f(i=i, st=st, k=k, r=r):
            if k in split:
                for d in range(4):
                    ta[i] = S('buffer_load_dword v%d, %s, %s, %s offen offset:%d sc1', r + d, vL8, SRD_WS, STG[st], (k & 3) * 1024 + 256 * d)
            else:
                ta[i] = S('buffer_load_dwordx4 %s, %s, %s, %s offen offset:%d sc1', vr(r, 4), vL16, SRD_WS, STG[st], (k & 3) * 1024)
        aq.add(f, pr)
    assert ahead < ring_n or n <= ring_n
    aq.drip(ahead)
    if head:
        head()
    btick = {}
    long_ = nks >= 8
    acc = (CA, CB, CA, CO) if long_ else (CA, CB, 112, CO)
    tw = {}
    for i in range(n):
        st, k = divmod(i, nks)
        tk = ta[i]
        assert not pre or len(pre) <= 4 * (nks - 1 - i) or not len(pre)
        if st == 0 and k in btick:
            tk = max(tk, btick[k])
        lgw = None
        slots = [[], [], [], []]

        def wr(g, st=st):
            tw[st - 1] = S('ds_write_b128 v%d, %s offset:%d', vRW[st - 1], vr(acc[st - 1] + 4 * g, 4), g * 1024)

        def rds(dst, off):
            for g in range(4):
                slots[g].append(lambda g=g: S('ds_read_b128 %s, v%d offset:%d', vr(dst + 4 * g, 4), vRR, off + g * 1024))
        if k == 0 and OPT['fine'] in (3, 4):
            A.wait(vm=tk)
            stamp('.st%d' % st)
        if long_:
            if st >= 1 and 1 <= k <= 4:
                slots[3].append(lambda k=k: wr(k - 1))
            if st >= 2 and k == 0 or (st == 3 and k == 7):
                A.wait(vm=tk, lg='all')
                A('s_barrier')
                rds(*((CO, 0) if st == 2 else (CR, 4096) if k == 0 else (CB, 0)))
            if st == 3 and k in (10, 11, 12, 13):
                lgw = 'all'
                for g in range(4):
                    r = 4 * (k - 10) + g
                    slots[g].append(lambda r=r: S('v_add_f32 v%d, v%d, v%d', CR + r, CR + r, CB + r))
        else:
            if st >= 1:
                slots[3 - k].append(lambda k=k: wr(k))
            if st == 2 and k == 1:
                A.wait(vm=tk, lg=tw[0])
                A('s_barrier')
                rds(CO, 0)
            if st == 3 and k == 0:
                A.wait(vm=tk, lg='all')
                A('s_barrier')
                rds(CR, 4096)
        if extra:
            extra(st, k, slots)
        A.wait(vm=tk, lg=lgw)
        a = vr(ring_base + 4 * (i % ring_n), 4)
        for nt in range(4):
            c = vr(acc[st] + 4 * nt, 4)
            S('%s %s, %s, %s, %s', MF16, c, ar(areg + 16 * k + 4 * nt, 4), a, c if (k or st == 3) else '0')
            if nt == 0:
                aq.pre()
            if nt == 1:
                if len(aq):
                    aq.go()
                elif post and npost > 0:
                    post.drip(1)
                    npost -= 1
            if nt == 2:
                if pre and len(pre):
                    kk = nks - (len(pre) + 3) // 4
                    btick[kk] = pre.drip(1)
                elif not len(aq) and post and npost > 0:
                    post.drip(1)
                    npost -= 1
            for f in slots[nt]:
                f()
    if post and npost > 0:
        post.drip(npost)
    stamp('.mm end')
    if not long_:
        A.wait(lg='all')
        A('s_barrier')
        for g in range(4):
            tr = S('ds_read_b128 %s, v%d offset:%d', vr(CB + 4 * g, 4), vRR, g * 1024)
    for g in range(8):
        S('v_pk_add_f32 %s, %s, %s', vr(CO + 2 * g, 2), vr(CO + 2 * g, 2), vr(CR + 2 * g, 2))
    if not long_:
        for g in range(4):
            A.wait(lg=tr - 3 + g)
            for e in range(2):
                r = 4 * g + 2 * e
                S('v_pk_add_f32 %s, %s, %s', vr(CO + r, 2), vr(CO + r, 2), vr(CB + r, 2))


def wo_phase(ts, w1, w2):
    stamp('.o st')
    w1.drip(OPT['ow1'])
    A.wait(vm=ts - 2)
    L, D = A.label('pmr'), A.label('dmr')
    S('s_mov_b32 %s, 0', sCNT)
    A(L + ':')
    for i in range(5):
        untag(MRD + 4 * i, 84, i == 0)
    untag_test(84)
    A('s_cbranch_vccz ' + D)
    S('s_add_u32 %s, %s, 1', sCNT, sCNT)
    S('s_cmp_ge_u32 %s, %d', sCNT, LIMIT)
    A('s_cbranch_scc1 ' + D)
    vm_save = A.vm
    for i in range(5):
        mr_load(i)
    A.vm = vm_save
    A('s_waitcnt vmcnt(0)')
    A('s_branch ' + L)
    A(D + ':')
    A.wait(vm=ts)
    flag_store(sFO, not LOCAL[0])
    stamp('o pub')
    if OPT['ct'] & 1:
        code_touch('v10', 'v%d' % JUNK)
    w1.drip(99)
    if LOCAL[0] and OPT['py'] and OPT['toy'] != 1 and not OPT['yov']:
        touch(vL16, sYO)
        touch(vL16, sYO, 1024)
        S('buffer_load_dword v%d, %s, %s, %s offen sc1', JUNK, vSS, SRD_WS, sSO)
    S('s_cmp_ge_u32 %s, 2', sW)
    S('s_cselect_b32 %s, 1.0, 0', t4)
    g = MRD + 16
    S('v_permlane32_swap_b32 v%d, v%d', g, g + 1)
    S('v_permlane32_swap_b32 v%d, v%d', g + 2, g + 3)
    S('v_add_f32 v%d, v%d, v%d', g, g, g + 1)
    S('v_add_f32 v%d, v%d, v%d', g + 2, g + 2, g + 3)
    sum_partials(MRD, t4)
    S('v_permlane16_swap_b32 v%d, v%d', g, g + 2)
    S('v_add_f32 v%d, v%d, v%d', g, g, g + 2)
    S('v_cvt_pk_bf16_f32 v%d, v%d, v%d', g, g, g)
    S('v_lshlrev_b32 v12, 16, v%d', g)
    S('s_lshl_b32 %s, %s, 11', t0, sW)
    S('s_add_u32 %s, %s, %d', t0, t0, L_RED + 32768)
    S('s_mov_b32 %s, 8192', t1)
    tok_addr(13, t0)
    S('v_mov_b32 v95, %s', vG2A)
    assert OPT['uh'] == 0
    A('s_barrier')
    for p in range(2):
        S('s_add_u32 m0, %s, %d', t0, 1024 * p)
        S('buffer_load_dwordx4 %s, %s, %s offen lds', vXO, SRD_X, ('0', t1)[p])
    S('ds_write_b64 %s, %s', vMW, vr(MRD, 2))
    t = S('ds_write_b32 %s, v12', vGW)
    A.wait(lg=t)
    stamp('.mr')
    poll(vPG, 64, 'o', sGM)
    stamp('o seen')

    tx = {}

    def head():
        for i in range(2):
            tx[0] = S('ds_read_b128 %s, v%d', vr(192 + 4 * i, 4), 13 + i)
        A.wait(lg=tx[0])
        for i in range(8):
            unpack(X2 + 2 * i, 192 + i)

    def extra(st, k, slots):
        if st == 2 and k == 2:
            for i in range(2):
                slots[2 + i].append(lambda i=i: S('ds_read_b128 %s, v95 offset:%d', vr(80 + 4 * i, 4), 16 * i))
        if st == 2 and k == 3:
            for i in range(3):
                slots[1 + i].append(lambda i=i: S('ds_read_b128 %s, %s offset:%d', vr(GA + 4 * i, 4), vGAB, 16 * i))
        if st == 3 and k == 1:
            slots[0].append(lambda: S('ds_read_b128 %s, %s offset:48', vr(GA + 12, 4), vGAB))
        if st == 3 and k >= 1:
            for i in range(8):
                if i * 3 // 8 == k - 1:
                    slots[(i + 1) & 3].append(lambda i=i: unpack(G2 + 2 * i, 80 + i))
    ring_gemm(4, STG_O, 192, 128, 16, 12, post=w2, npost=OPT['w2a'], extra=extra, head=head)
    stamp('wo gemm')
    for e in range(2):
        for i in range(4 * e, 4 * e + 4):
            S('v_pk_fma_f32 %s, %s, %s, %s', vr(X2 + 2 * i, 2), vr(CO + 2 * i, 2), vr(GA + 2 * i, 2), vr(X2 + 2 * i, 2))
        for i in range(4 * e, 4 * e + 4):
            S('v_pk_mul_f32 %s, %s, %s', vr(G2 + 2 * i, 2), vr(X2 + 2 * i, 2), vr(G2 + 2 * i, 2))
        for i in range(4 * e, 4 * e + 4):
            S('v_cvt_pk_bf16_f32 v%d, v%d, v%d', 192 + i, G2 + 2 * i, G2 + 1 + 2 * i)
        S('buffer_store_dwordx4 %s, %s, %s, %s offen offset:%d%s', vr(192 + 4 * e, 4), vL16, SRD_WS, sYO, e * 1024, sc('y'))
    S('v_pk_add_f32 v[200:201], %s, %s', vr(X2, 2), vr(X2 + 2, 2))
    S('v_pk_mul_f32 v[202:203], %s, %s', vr(X2, 2), vr(X2, 2))
    S('v_pk_fma_f32 v[202:203], %s, %s, v[202:203]', vr(X2 + 2, 2), vr(X2 + 2, 2))
    for i in range(2, 8):
        S('v_pk_add_f32 v[200:201], v[200:201], %s', vr(X2 + 2 * i, 2))
        S('v_pk_fma_f32 v[202:203], %s, %s, v[202:203]', vr(X2 + 2 * i, 2), vr(X2 + 2 * i, 2))
    A('v_add_f32 v200, v200, v201')
    A('v_add_f32 v202, v202, v203')
    A('v_permlane32_swap_b32 v200, v202')
    A('v_add_f32 v200, v200, v202')
    A('v_mov_b32 v201, v200')
    A('v_permlane16_swap_b32 v200, v201')
    A('v_add_f32 v200, v200, v201')
    ts = S('buffer_store_dword v200, %s, %s, %s offen%s', vSS, SRD_WS, sSO, sc('y'))
    stamp('.y st')
    return ts


UACC = (96, 204)


def ut_steps(k0, k1, hook=None, tail=None):
    rd = {}
    UB = 16

    def rv(ks):
        S('ds_read_b128 %s, v%d offset:%d', vr(UB + 12 * (ks % 4), 4), UTA + 4, 128 * (ks >> 1) + 16 * (ks & 1))

    def rt(ks, n):
        for half in range(2):
            rd[ks] = S('ds_read_b64_tr_b16 %s, v%d offset:%d', vr(UB + 12 * (ks % 4) + 4 + 4 * n + 2 * half, 2), UTA + 2 * n + (ks >> 3), (ks & 7) * 7168 + half * 8 * 224)
    if OPT['dbg'] & 32:
        for ks in range(k0 - 1, k1):
            if tail and ks >= 14:
                tail(ks, 0), tail(ks, 1)
            if hook:
                hook(ks)
        return
    for ks in range(k0, min(k0 + 3, k1)):
        rv(ks), rt(ks, 0), rt(ks, 1)
    if hook:
        hook(k0 - 1)
    for ks in range(k0, k1):
        A.wait(lg=rd[ks])
        b = UB + 12 * (ks % 4)
        for n in range(2):
            c = vr(UACC[n], 4)
            S('%s %s, %s, %s, %s', MF16, c, vr(b + 4 + 4 * n, 4), vr(b, 4), c if ks else '0')
            if ks + 3 < k1:
                if n == 0:
                    rv(ks + 3)
                rt(ks + 3, n)
            elif tail:
                tail(ks, n)
        if hook:
            hook(ks)


def g1_phase(ts, w2):
    passes = ((0, 1, 2, 3, 6), (4, 5)) if OPT['gsplit'] == 1 or OPT['two'] else ((0, 1, 2, 3), (4, 5, 6)) if OPT['gsplit'] == 2 else ((0, 1, 2, 3, 4, 5, 6),)
    groups = [(ks, nt) for p in passes for ks in range(16) for nt in p]
    AHB = 5
    ta = {}
    aq = Stream()
    for ks in range(16):
        for tt in range(2):
            def pr(ks=ks, tt=tt):
                if ks and ks & 3 == 0:
                    S('s_add_u32 %s, %s, 4096', sYL[tt], sYL[tt])

            def f(ks=ks, tt=tt):
                ta[ks, tt] = S('buffer_load_dwordx4 %s, %s, %s, %s offen offset:%d sc1', vr(YA + 8 * ks + 4 * tt, 4), vL16, SRD_WS, sYL[tt], (ks & 3) * 1024)
            aq.add(f, pr)
    first = list(aq.q[:8])
    LATE = A.label('ylate')
    rb = {}

    def bread(g, half):
        ks, nt = groups[g]
        rb[g] = S('ds_read_b64_tr_b16 %s, v%d offset:%d', vr(BF + 4 * (g % 6) + 2 * half, 2), (vT1, vT2)[ks >> 3], (ks & 7) * 7168 + half * 8 * 224 + nt * 32)
    tp = {}

    def hook(ks):
        if ks == OPT['uh'] - 1:
            w2.drip(min(4, OPT['w2b']))
            S('s_mov_b32 %s, 1', t5)
        if ks == OPT['uf']:
            A.wait(vm=ts)
            flag_store(sFY, not LOCAL[0])
            stamp('y pub')
            w2.drip(max(0, OPT['w2b'] - 4))
        if ks == OPT['up']:
            tp[0] = poll_load(vPT, 128)
        if ks == OPT['uc']:
            A.wait(vm=tp[0])
            poll_test(sMASK)
            A('s_cbranch_scc1 ' + LATE)
            aq.drip(8)
            S('s_mov_b32 %s, 0', t5)
            A(LATE + ':')

    def tail(ks, n):
        if ks >= 14:
            bread(2 * (ks - 14) + n, 0)
            bread(2 * (ks - 14) + n, 1)
    assert OPT['uh'] - 1 <= OPT['uf'] <= OPT['up'] < OPT['uc'] and OPT['uh'] <= 11
    ut_steps(OPT['uh'], 16, hook, tail)
    S('ds_write_b128 v%d, %s', UTA + 5, vr(UACC[0], 4))
    tuw = S('ds_write_b128 v%d, %s', UTA + 6, vr(UACC[1], 4))
    bread(4, 0)
    bread(4, 1)
    OKK = A.label('yok')
    S('s_cmp_eq_u32 %s, 0', t5)
    A.wait(lg=tuw)
    A('s_barrier')
    A('s_cbranch_scc1 ' + OKK)
    vm_save, vd, tas = A.vm, A.vm_done, dict(ta)
    poll(vPT, 128, 'y', sMASK)
    for f, pr in first:
        f()
    A.vm, A.vm_done = vm_save, vd
    ta.update(tas)
    A(OKK + ':')
    stamp('y seen')
    aq.drip(2)
    split = len(passes) > 1
    SR = ACC + 8 * passes[1][0] if split else YA
    RP = 10
    tst = {}
    sq = []
    for p in range(8):
        def f(p=p):
            tst[0] = S('buffer_load_dword v%d, %s, %s, %s offen offset:%d sc1', SR + p, vSL, SRD_WS, sSL, p * 128)
        sq.append((f, None))
    if split:
        aq.q[8:8] = sq
    else:
        aq.q += sq
    nw = (OPT['w2f'], OPT['w2c'] - OPT['w2e'] - OPT['w2f']) if split else (OPT['w2c'],)

    def stats():
        for n in (4, 2, 1):
            for i in range(n):
                S('v_add_f32 v%d, v%d, v%d', SR + i, SR + i, SR + n + i)
        S('v_mul_f32 v%d, 0x3b000000, v%d', SR, SR)
        S('v_mov_b32 v%d, v%d', SR + 1, SR)
        S('v_permlane32_swap_b32 v%d, v%d', SR, SR + 1)
        S('v_fma_f32 v%d, -v%d, v%d, v%d', SR + 1, SR, SR, SR + 1)
        S('v_max_f32 v%d, 0, v%d', SR + 1, SR + 1)
        S('v_add_f32 v%d, 0x3727c5ac, v%d', SR + 1, SR + 1)
        S('v_rsq_f32 v%d, v%d', RP, SR + 1)
        S('v_mul_f32 v%d, -v%d, v%d', RP + 1, SR, RP)
        S('v_mov_b32 v%d, v%d', RP + 2, RP)
        S('v_mov_b32 v%d, v%d', RP + 3, RP + 1)
        S('v_permlane16_swap_b32 v%d, v%d', RP, RP + 2)
        S('v_permlane16_swap_b32 v%d, v%d', RP + 1, RP + 3)
    fill = capture(stats)
    tu = {}

    def epilogue(nts, ub, drip, defer):
        pre = isinstance(ub, int)

        def rut(i):
            for e in range(2):
                tu[i] = S('ds_read_b128 %s, %s offset:%d', vr(ub[i & 1] + 4 * e, 4), vUTR, 512 * e + nts[i] * 64)
        if not pre:
            rut(0)
            rut(1)
        ts = None
        for i, nt in enumerate(nts):
            A.wait(lg=tu[i])
            u = ub + 8 * i if pre else ub[i & 1]
            for tt in range(2):
                rp = vr(RP + 2 * tt, 2)
                c = ACC + 8 * nt + 4 * tt
                o = ACC + 8 * (nt & ~1) + 4 * tt + 2 * (nt & 1)
                for e in range(2):
                    S('v_pk_fma_f32 %s, %s, %s, %s op_sel:[0,1,0] op_sel_hi:[1,1,1]', vr(96 + 2 * e, 2), vr(u + 2 * e, 2), rp, vr(u + 4 + 2 * e, 2))
                for e in range(2):
                    S('v_pk_fma_f32 %s, %s, %s, %s op_sel:[0,0,0] op_sel_hi:[1,0,1]', vr(96 + 2 * e, 2), vr(c + 2 * e, 2), rp, vr(96 + 2 * e, 2))
                if tt == 1 and i + 2 < len(nts) and not pre:
                    rut(i + 2)
                for e in range(2):
                    S('v_cvt_pk_bf16_f32 v%d, v%d, v%d', o + e, 96 + 2 * e, 97 + 2 * e)
                for e in range(2):
                    S('v_pk_max_i16 v%d, v%d, 0', o + e, o + e)
                if nt == 6:
                    for e in range(2):
                        ts = S('buffer_store_dword v%d, %s, %s, %s offen offset:%d%s', o + e, vH2, SRD_WS, sHO[tt], 3072 + 256 * e, sc('hid'))
                elif nt & 1:
                    f = lambda o=o, tt=tt, nt=nt: S('buffer_store_dwordx4 %s, %s, %s, %s offen offset:%d%s', vr(o - 2, 4), vH4, SRD_WS, sHO[tt], (nt >> 1) * 1024, sc('hid'))
                    ts = (ts or []) + [f] if defer else f()
                if drip > 0 and (nt & 1 or nt == 6):
                    w2.drip(min(2, drip))
                    drip -= 2
        w2.drip(max(0, drip))
        return ts
    g = 0
    for pi, p in enumerate(passes):
        L = len(p)
        for _ in range(nw[pi]):
            if len(w2):
                aq.q.append(w2.q.pop(0))
        for ks in range(16):
            if split:
                n = (3 if ks < 3 else 4 if ks < 6 else 3 if ks < 11 else 2) if pi == 0 else 1
            else:
                n = ([3, 3, 3, 3, 3, 3, 4, 6] + [4] * 8)[ks]
            for i, nt in enumerate(p):
                go = (i + 1) * n // L > i * n // L and len(aq)
                if i % 2 == 0:
                    vmw = ta[ks, 1] if (i == 0 and pi == 0) else None
                    if pi == 0 and ks == 11 and i == 0:
                        vmw = max(vmw, tst[0])
                    A.wait(vm=vmw, lg=rb[g + 1] if i + 1 < L else rb[g])
                for tt in range(2):
                    c = vr(ACC + 8 * nt + 4 * tt, 4)
                    S('%s %s, %s, %s, %s', MF16, c, vr(BF + 4 * (g % 6), 4), vr(YA + 8 * ks + 4 * tt, 4), c if ks else '0')
                    if go and tt == 0:
                        aq.pre()
                    if g + AHB < 112:
                        bread(g + AHB, tt)
                    if ks == 15 and pi == len(passes) - 1:
                        tu[i] = S('ds_read_b128 %s, %s offset:%d', vr(176 + 8 * i + 4 * tt, 4), vUTR, 512 * tt + nt * 64)
                    if go and tt == 0:
                        aq.go()
                    elif ks >= 11 and fill and (tt == 0 or (i % 2 == 0 and i + 1 < L)):
                        A.lines.append(fill.pop(0))
                g += 1
            if ks == 7:
                stamp('.p%d mid' % pi)
            if OPT['two'] and pi == 1 and ks == OPT['fa']:
                A.wait(vm=ts)
                flag_store(sFHID, not LOCAL[0])
        A.lines += fill
        fill = []
        aq.drip(99)
        last = pi == len(passes) - 1
        stamp('g1 gemm' if last else '.pass1')
        ts = epilogue(p, 176 if last else (SR, SR + 8), 0 if last else OPT['w2e'], last and OPT['two'])
        if not last:
            stamp('.epi1')
    return ts


def g2_two(stores, w2):
    KA, KB = (0, 1, 3, 4, 5, 7, 8, 10, 11, 12), (2, 6, 9, 13)
    oa, ahead = OPT['oa'], OPT['ah']
    order = [(st, k) for st in range(3) for k in KA] + [(3, k) for k in KA[:oa]]
    nA = len(order)
    order += [(st, k) for st in range(3) for k in KB] + [(3, k) for k in KA[oa:] + KB]
    acc = (CA, CB, CR, CO)
    stamp('.hid st')
    tsB = None
    if OPT['bst'] == 0:
        for f in stores:
            tsB = f()
    w2.drip(99)
    for i in range(4):
        t = S('ds_read_b128 %s, %s offset:%d', vr(GB + 4 * i, 4), vGAB, 256 + 16 * i)
    S('v_add_u32 v12, 1, %s', vTAG)
    stamp('hid pub')
    poll(vPG, 192, 'hid', sGM, 1)
    stamp('hid seen')
    if OPT['bst'] == 0:
        flag_store(sFHID, not LOCAL[0], 'v12')
    ta = {}
    aq = Stream()
    for i, (st, k) in enumerate(order):
        r = 112 + 4 * (i % 16)

        def pr(st=st, k=k):
            if k >> 2:
                S('s_add_u32 %s, %s, %d', t2, STG_H[st], (k >> 2) * 4096)

        def f(i=i, st=st, k=k, r=r):
            so = t2 if k >> 2 else STG_H[st]
            if k in (3, 10):
                for d in range(4):
                    ta[i] = S('buffer_load_dword v%d, %s, %s, %s offen offset:%d sc1', r + d, vL8, SRD_WS, so, (k & 3) * 1024 + 256 * d)
            else:
                ta[i] = S('buffer_load_dwordx4 %s, %s, %s, %s offen offset:%d sc1', vr(r, 4), vL16, SRD_WS, so, (k & 3) * 1024)
        aq.add(f, pr if (i == 0 or order[i - 1][0] != st or order[i - 1][1] >> 2 != k >> 2) else None)
    aq.drip(ahead)
    if OPT['bst']:
        for f in stores:
            tsB = f()
    S('s_lshl_b32 %s, %s, 13', t0, sW)
    S('s_add_u32 %s, %s, %d', t0, t0, L_RED + 4096)
    S('s_mov_b32 %s, 8192', t1)
    tok_addr(13, t0)
    S('v_subrev_u32 v%d, 40960, v%d', vRW[2], vRW[2])
    S('v_subrev_u32 v11, 40960, v%d', vRR)
    seen = set()
    last = {st: max(i for i, o in enumerate(order) if o[0] == st) for st in range(4)}
    wq, rq, vq = [], [], []
    bar = last[2] + 6
    n = len(order)
    tr = {}
    for i, (st, k) in enumerate(order):
        if i in (0, 10, 20, nA, last[2] + 1) and OPT['fine'] == 4:
            A.wait(vm=ta[i])
            stamp('.s%d' % i)
        if i == nA - ahead:
            D = A.label('hidb')
            A.wait(vm=tp)
            poll_test(sGM, 'v15', 2)
            A('s_cbranch_scc0 ' + D)
            vm_save, vd = A.vm, A.vm_done
            poll(vPG, 192, 'hb', sGM, 2)
            A.vm, A.vm_done = vm_save, vd
            A(D + ':')
        if i == nA:
            A('s_barrier')
        if i == bar:
            assert not wq
            A.wait(vm=ta[i], lg='all')
            A('s_barrier')
            for p, (va, off) in enumerate(((vRR, 0), (vRR, 4096), (11, 0))):
                for g in range(4):
                    def f(p=p, g=g, va=va, off=off):
                        tr[p] = S('ds_read_b128 %s, v%d offset:%d', vr(acc[p] + 4 * g, 4), va, off + g * 1024)
                    rq.append(f)
        lgw = None
        if i == bar + 3:
            lgw = tr[1]
            vq += ['v_add_f32 v%d, v%d, v%d' % (CA + r, CA + r, CB + r) for r in range(16)]
        if i == bar + 5:
            lgw = tr[2]
            vq += ['v_add_f32 v%d, v%d, v%d' % (CA + r, CA + r, CR + r) for r in range(16)]
        A.wait(vm=ta[i], lg=lgw)
        if OPT['bst'] and i == ahead:
            A.wait(vm=tsB)
            flag_store(sFHID, not LOCAL[0], 'v12')
        a = vr(112 + 4 * (i % 16), 4)
        for nt in range(4):
            c = vr(acc[st] + 4 * nt, 4)
            S('%s %s, %s, %s, %s', MF16, c, ar(16 * k + 4 * nt, 4), a, c if st in seen else '0')
            if nt == 0:
                aq.pre()
            if nt == 1:
                aq.go()
            if nt == 2 and i == OPT['pb']:
                tp = poll_load(vPG, 192)
            if nt == 3 and wq:
                wq.pop(0)()
            if rq:
                rq.pop(0)()
            else:
                A.lines += vq[:2]
                vq = vq[2:]
        seen.add(st)
        if st < 3 and i == last[st]:
            for g in range(4):
                wq.append(lambda st=st, g=g: S('ds_write_b128 v%d, %s offset:%d', vRW[st], vr(acc[st] + 4 * g, 4), g * 1024))
    stamp('.mm end')
    assert bar + 3 < n and not rq
    A.lines += vq
    if bar + 5 >= n:
        A.wait(lg=tr[2])
        for g in range(8):
            S('v_pk_add_f32 %s, %s, %s', vr(CA + 2 * g, 2), vr(CA + 2 * g, 2), vr(CR + 2 * g, 2))
    for g in range(8):
        S('v_pk_add_f32 %s, %s, %s', vr(CO + 2 * g, 2), vr(CO + 2 * g, 2), vr(CA + 2 * g, 2))


def g2_one(ts, w2):
    stamp('.hid st')
    if OPT['hb']:
        A('s_barrier')
    w2.drip(min(OPT['w2d0'], OPT['w2d']))
    for i in range(4):
        S('ds_read_b128 %s, %s offset:%d', vr(GB + 4 * i, 4), vGAB, 256 + 16 * i)
    S('s_lshl_b32 %s, %s, 13', t0, sW)
    S('s_add_u32 %s, %s, %d', t0, t0, L_RED + 4096)
    S('s_mov_b32 %s, 8192', t1)
    tok_addr(13, t0)
    A.wait(vm=ts)
    flag_store(sFHID, not LOCAL[0])
    stamp('hid pub')
    w2.drip(max(0, OPT['w2d'] - OPT['w2d0']))
    poll(vPG, 192, 'hid', sGM)
    stamp('hid seen')
    ring_gemm(14, STG_H, 0, 112, 32, 12, split=(3, 10), pre=w2)


def g2_phase(ts, w2):
    (g2_two if OPT['two'] else g2_one)(ts, w2)
    stamp('g2 gemm')
    for p in range(2):
        for i in range(4 * p, 4 * p + 4):
            S('v_pk_fma_f32 %s, %s, %s, %s', vr(X2 + 2 * i, 2), vr(CO + 2 * i, 2), vr(GB + 2 * i, 2), vr(X2 + 2 * i, 2))
        for i in range(4 * p, 4 * p + 4):
            S('v_cvt_pk_bf16_f32 v%d, v%d, v%d', 16 + i, X2 + 2 * i, X2 + 2 * i + 1)
        S('ds_write_b128 v%d, %s', 13 + p, vr(16 + 4 * p, 4))
    tr = [S('ds_read_b128 %s, v%d offset:%d', vr(24 + 4 * p, 4), vRR, 4096 + 1024 * p) for p in range(2)]
    for p in range(2):
        A.wait(lg=tr[p])
        S('buffer_store_dwordx4 %s, %s, %s, %s offen%s', vr(24 + 4 * p, 4), vXO, SRD_OUT, ('0', t1)[p], ('', ' sc1', ' nt', ' sc0 sc1', ' sc1 nt')[OPT['outsc']])
    stamp('.out st')
    SK = A.label('noep')
    S('s_or_b32 %s, %s, %s', t0, sLID, sW)
    A('s_cbranch_scc1 ' + SK)
    S('s_mov_b32 %s, %d', t2, WS_E)
    flag_store(t2, False)
    A(SK + ':')


def dump_stamps():
    if OPT['diag']:
        D = A.label('diag')
        A('s_waitcnt vmcnt(0) lgkmcnt(0)')
        A('s_add_u32 s97, s97, 6000')
        A('s_mov_b32 s98, 0')
        A(D + ':')
        A('s_memrealtime s[92:93]')
        A('s_add_u32 s98, s98, 1')
        A('s_cmp_gt_u32 s98, 0x8000')
        A('s_cbranch_scc1 L_exit')
        A('s_waitcnt lgkmcnt(0)')
        A('s_sub_u32 s92, s92, s97')
        A('s_cmp_lt_i32 s92, 0')
        A('s_cbranch_scc1 ' + D)
    if not OPT['stamps']:
        return
    A.wait(vm='all', force=True)
    A('s_memrealtime s[92:93]')
    stamp('end')
    A('v_writelane_b32 v0, s92, 25')
    S('s_getreg_b32 %s, hwreg(HW_REG_XCC_ID)', t1)
    S('v_writelane_b32 v0, %s, 24', t1)
    S('v_writelane_b32 v0, %d, 26', int(LOCAL[0]))
    S('s_lshl2_add_u32 %s, %s, %s', t0, sLID, sW)
    S('s_lshl_b32 %s, %s, 7', t0, t0)
    S('s_add_u32 %s, %s, %d', t0, t0, WS_TS)
    S('v_lshlrev_b32 v10, 2, %s', vLANE)
    A('s_mov_b64 exec, 0xffffffff')
    S('buffer_store_dword v0, v10, %s, %s offen', SRD_WS, t0)


def rest(wq, pq):
    wst = Stream()
    wst.q = list(wq)
    pst = Stream()
    pst.q = list(pq)
    h_phase(wst, pst)
    w1 = w1_stream()
    w2 = frag_stream(sW2B, 14, 0)
    if OPT['nobg'] & 1:
        w1.q = []
    if OPT['nobg'] & 2:
        w2.q = []
    ool, ts = attention(w1, *qkv(wst))
    ts = wo_phase(ts, w1, w2)
    ts = g1_phase(ts, w2)
    g2_phase(ts, w2)
    dump_stamps()
    return ool


def main():
    tw, tx = prologue()
    wst = wqkv_stream()
    wq_setup()
    if OPT['spos'] == 0:
        prep_srd()
        prep_addr()
        setup_a()
    else:
        ln_addr()
    pst = prep_stream()
    if OPT['ppos'] == 5:
        pst.drip(4)
    mod_partial(tw)
    stamp('mod pub')
    if OPT['ppos'] == 4:
        pst.drip(4)
    if OPT['tw1'] == 5:
        warm(SRD_W1, 14)
    ln1(tx, wst)
    mod_poll(wst)
    st = (A.vm, A.vm_done, A.lg, A.lg_done, nstamp[0], ALLN[0], vST[0])
    ool = rest(wst.q, pst.q)
    A('L_exit:')
    A('s_endpgm')
    A('L_localend:')
    out_of_line(*ool)
    xc_slow()
    LOCAL[0] = False
    A.vm, A.vm_done, A.lg, A.lg_done, nstamp[0], ALLN[0], vST[0] = st
    ool = rest(wst.q, pst.q)
    A('s_endpgm')
    out_of_line(*ool)
    body, nops = A.finalize()
    hdr = open(os.path.join(os.path.dirname(os.path.abspath(__file__)), '..', 'cdna_kernels', NAME + '.s.ref')).read().split('; Override')[0]
    out = hdr
    out += '; @launch grid=(256,1,1) block=(256,1,1) lds=163840\n'
    out += '.amdgcn_target "amdgcn-amd-amdhsa--gfx950"\n.text\n.globl %s_kernel\n.p2align 8\n.type %s_kernel,@function\n%s_kernel:\n' % (NAME, NAME, NAME)
    out += '\n'.join(('' if l.endswith(':') else '    ') + l for l in body) + '\n'
    out += '''.section .rodata,"a"
.p2align 6
.amdhsa_kernel %s_kernel
  .amdhsa_next_free_vgpr 512
  .amdhsa_next_free_sgpr 102
  .amdhsa_accum_offset 256
  .amdhsa_group_segment_fixed_size 0
  .amdhsa_kernarg_size 88
  .amdhsa_user_sgpr_count 2
  .amdhsa_user_sgpr_kernarg_segment_ptr 1
  .amdhsa_system_sgpr_workgroup_id_x 1
  .amdhsa_float_denorm_mode_32 3
.end_amdhsa_kernel
''' % NAME
    open(sys.argv[1], 'w').write(out)
    if OPT['stamps']:
        open(sys.argv[1] + '.stamps', 'w').write('\n'.join(STAMP_NAMES))
    print('instructions', len(body), 'pad states', nops, file=sys.stderr)


main()
```

```python
import sys, os
from asmlib import Asm

NAME = 'adaLN_cond__sliding_block__dense_activation_relu__prompt'
OPT = dict(stamps=0, fine=0, force_fallback=0, force_remote=0, diag=0, nobg=0,
           ph=0, po=0, py=0, phid=0,
           n1=0, n2=4, n3=4, n4=5,
           wq0=0, wq1=4, wq2=2,
           qf=-1, qp=2, qchk=16, pstp=0, hb=0, w2d0=4, two=1, fa=14, oa=2, ah=8, pb=16, bst=1, spos=1,
           qd=0,
           aw1=27, fpf=5, fpl=25,
           ow1=8,
           w2a=24, w2b=12, w2c=18, w2d=0,
           uf=7, up=10, uc=15,
           uh=0, gsplit=0, w2e=0, w2f=16, sv=55,
           tkv=1, tw1=0, tfl=1, toy=0, tmod=1, tlb=0, ct=1, help=0, n2b=5, lnp=0, yov=0, ytp=10, w1s=0, w1r=1, kvr=0, hrot=0, xl=0, snake=1, pa=1, pre2=1, bh=2, bo=4, by=6, bd=0, bk=0, bp=0, kvah=10, woah=12, r1=3, r2=4, r3=3, r4=2, ad=3, ae=0, kb=0, ob=0, yb=0, w2b0=4, mrp=0, rtab=0, ctx=0, nul=0, stl=0, kv2=1, vz=1, xpos=0,
           outsc=1, rot=0, sw=0, swp=0, kvb=1, stag=1, dbg=0, cpf=4, ntw=1, ntp=1, ppos=0)
for a in sys.argv[2:]:
    k, v = a.split('=')
    assert k in OPT, k
    OPT[k] = int(v)
assert OPT['uf'] <= OPT['up'] < OPT['uc'] <= 15 and OPT['fa'] <= 15 and OPT['qp'] < OPT['qchk'] <= 24
assert OPT['fpf'] < OPT['fpl'] <= OPT['aw1'] <= 28 and 4 <= OPT['ah'] <= 15 and OPT['w2a'] <= 40
assert OPT['ah'] <= OPT['pb'] < 30 + OPT['oa'] - OPT['ah'] and OPT['oa'] <= 4
assert OPT['w2c'] >= OPT['w2e'] + OPT['w2f'] and OPT['by'] + OPT['w2b0'] <= OPT['w2b']
assert 4 <= OPT['kvah'] <= 16 and 4 <= OPT['woah'] <= 16 and max(OPT['kb'], OPT['ob'], OPT['yb'], OPT['kv2'], OPT['ph'], OPT['rot'], OPT['lnp'], OPT['pre2']) <= 1 and max(OPT['r1'], OPT['r2'], OPT['r3'], OPT['r4']) <= 5

WS_E = 0
WS_FA = 0x1000
WS_XA = 0x6000
WS_XB = 0x8000
WS_FKV = 0x10000
WS_FP = 0x30000
WS_MOD = 0x50000
WS_STAT = 0x80000
WS_TS = 0xC0000
WS_WOT = 0x100000
WS_W2T = 0x200000
WS_H = 0x400000
WS_O = 0x600000
WS_Y = 0x800000
WS_KV = 0xA00000
WS_HID = 0xE00000
WS_SIZE = 0x1600000
OOB = 0x40000000

L_STG = 98304
L_SCR = 114688
L_KV = 114688
L_MODL = 114688
L_GAB = L_MODL + 2048
L_UT = L_MODL + 4096
L_RED = L_MODL + 8192

sDG, sDL, sFG = 's0', 's1', 's2'
sX, sJ, sW, sT, sM = 's3', 's4', 's5', 's6', 's7'
sFKV, sFO, sFY, sFHID = 's8', 's9', 's14', 's15'
sKVO, sOO, sYO, sSO = 's20', 's21', 's22', 's23'
sHO = ('s26', 's27')
STG_O = ('s10', 's11', 's12', 's13')
STG_H = ('s16', 's17', 's18', 's19')
sR4, sR8 = 's24', 's25'
sYL = ('s28', 's29')
sSL, sHL = 's30', 's31'
SRD_X, SRD_WQKV, SRD_W1, SRD_P, SRD_WS, SRD_OUT, SRD_WMOD, SRD_C = [
    's[%d:%d]' % (b, b + 3) for b in (32, 36, 44, 48, 52, 56, 60, 64)]
TAGB = 40
sGM = 's[60:61]'
sW1G, sW1L = 's62', 's63'
sPS, sRHO = 's64', 's67'
sTAG, sE = 's68', 's69'
sCT, sG, sOWN, sTS, sT0 = 's70', 's71', 's72', 's73', 's74'
sLID = 's75'
t0, t1, t2, t3, t4, t5 = 's76', 's77', 's78', 's79', 's80', 's81'
sCNT = 's82'
sXC = 's83'
sMASK = 's[84:85]'
sLO, sHI = 's[86:87]', 's[88:89]'
sWOB, sW2B = 's96', 's101'
sM2 = 's[98:99]'
H_S = 's100'

vLANE, vL16, vTAG = 'v1', 'v2', 'v3'
vXO, vGAB = 'v4', 'v5'
vRW, vRR = (6, 7, 8), 9
vT1, vT2 = 100, 101
vUTR, vPT, vPG, vSS, vSL, vH4, vH2, vL8, vMW, vGW = ['v%d' % i for i in range(102, 112)]
W1V = 112
vKV, vPKV, vD4, vD8, vOO, vMR0, vMR1, vFP, vG2A = ['v%d' % i for i in range(119, 128)]
UTA = 88
vWQ, H_V, vXCV = 'v96', 'v146', 'v147'
l7, l3 = 'v148', 'v149'
JUNK = 152
Q0, Q1 = 48, 52
MD, MFAR = 16, 32
K0, K1 = 128, 132
V0, V1 = 136, 144
MRD = 64
S0, S1 = 160, 176
P0, P1 = 192, 200
O0, O1 = 208, 224
XT = X2 = 240
CA, CB, CO, CR = 16, 32, 48, 64
GA, G2, GB = 208, 224, 80
ACC, BF, YA = 16, 72, 112

A = Asm()
nstamp = [0]
STAMP_NAMES = []
ALLN = [0]
vST = ['v255']
FINE = {1: (0, 4), 2: (4, 10), 3: (10, 15), 4: (15, 20), 9: (99, 99)}
LOCAL = [True]
LIMIT = 1 << 17
MF32 = 'v_mfma_f32_32x32x16_bf16'
MF16 = 'v_mfma_f32_16x16x32_bf16'


def vr(b, n=1, k='v'):
    return '%s%d' % (k, b) if n == 1 else '%s[%d:%d]' % (k, b, b + n - 1)


def ar(b, n=1):
    return vr(b, n, 'a')


def S(fmt, *a):
    return A(fmt % a)


def stamp(name):
    fine = name.startswith('.')
    n = ALLN[0]
    if not fine:
        ALLN[0] += 1
    if OPT['diag']:
        if not fine and ALLN[0] == OPT['diag']:
            print('diag stamp:', name, file=sys.stderr)
            A('s_memrealtime s[90:91]')
            A('s_waitcnt lgkmcnt(0)')
            A.lg_done = A.lg
            A('s_mov_b32 s97, s90')
        return
    if not OPT['stamps']:
        return
    if name == 'h seen':
        A('v_mov_b32 v0, v255')
        vST[0] = 'v0'
    if OPT['fine']:
        if name != 'end' and not (FINE[OPT['fine']][0] <= n <= FINE[OPT['fine']][1]):
            return
    elif fine:
        return
    assert nstamp[0] < 22
    A('s_memtime s[90:91]' if OPT['stamps'] == 1 else 's_memrealtime s[90:91]')
    A('s_waitcnt lgkmcnt(0)')
    A.lg_done = A.lg
    S('v_writelane_b32 %s, s90, %d', vST[0], 2 + nstamp[0])
    nstamp[0] += 1
    if LOCAL[0]:
        STAMP_NAMES.append(name)


def sc(buf):
    return '' if (LOCAL[0] and OPT['p' + buf]) else ' sc1'


def flag_store(soff, sc1, val=vTAG):
    A('s_mov_b64 exec, 1')
    t = S('buffer_store_dword %s, off, %s, %s%s', val, SRD_WS, soff, ' sc1' if sc1 else '')
    A('s_mov_b64 exec, -1')
    return t


def poll_load(vA, off, vT='v15'):
    return S('buffer_load_dword %s, %s, %s, 0 offen offset:%d sc1', vT, vA, SRD_WS, off)


def poll_test(mask, vT='v15', mode=0):
    if mode:
        S('v_subrev_u32 %s, %s, %s', vT, sTAG, vT)
        S('v_cmp_%s_u32 vcc, 1, %s', ('lt', 'ne')[mode - 1], vT)
    else:
        S('v_cmp_ne_u32 vcc, %s, %s', sTAG, vT)
    S('s_and_b64 vcc, vcc, %s', mask)


def poll(vA, off, name, mask, mode=0):
    L, D = A.label('p' + name), A.label('d' + name)
    S('s_mov_b32 %s, 0', sCNT)
    A(L + ':')
    poll_load(vA, off)
    S('s_add_u32 %s, %s, 1', sCNT, sCNT)
    A('s_waitcnt vmcnt(0)')
    poll_test(mask, 'v15', mode)
    A('s_cbranch_scc0 ' + D)
    S('s_cmp_lt_u32 %s, %d', sCNT, LIMIT)
    A('s_cbranch_scc1 ' + L)
    A(D + ':')
    A.vm_done = A.vm


def poll2(vA, off, name, mask, behind, mode=0):
    D = A.label('q' + name)
    tp = poll_load(vA, off)
    r = behind()
    A.wait(vm=tp)
    poll_test(mask, 'v15', mode)
    A('s_cbranch_scc0 ' + D)
    st = A.vm, A.vm_done
    poll(vA, off, name, mask, mode)
    A.vm, A.vm_done = st
    A(D + ':')
    return r


def srd(dst, lo, size):
    b = int(dst[2:dst.index(':')])
    S('s_mov_b64 s[%d:%d], s[%d:%d]', b, b + 1, lo, lo + 1)
    S('s_mov_b32 s%d, 0x%x', b + 2, size)
    S('s_mov_b32 s%d, 0x20000', b + 3)


def unpack(dst, src):
    S('v_lshlrev_b32 v%d, 16, v%d', dst, src)
    S('v_and_b32 v%d, 0xffff0000, v%d', dst + 1, src)


def untag(r, acc, first):
    for i in range(4):
        S('v_xor_b32 v%d, s%d, v%d', r + i, TAGB + i, r + i)
    if first:
        S('v_or3_b32 v%d, v%d, v%d, v%d', acc, r, r + 1, r + 2)
        S('v_or_b32 v%d, v%d, v%d', acc, acc, r + 3)
    else:
        S('v_or3_b32 v%d, v%d, v%d, v%d', acc, r, r + 1, acc)
        S('v_or3_b32 v%d, v%d, v%d, v%d', acc, r + 2, r + 3, acc)


def untag_test(acc):
    S('v_and_b32 v%d, 0xff, v%d', acc, acc)
    S('v_cmp_ne_u32 vcc, 0, v%d', acc)


def capture(f):
    save, A.lines = A.lines, []
    f()
    out, A.lines = A.lines, save
    return out


class Stream:
    def __init__(self):
        self.q = []
        self.ready = False

    def add(self, f, pre=None):
        self.q.append((f, pre))

    def pre(self):
        if self.q and not self.ready:
            if self.q[0][1]:
                self.q[0][1]()
            self.ready = True

    def go(self):
        if self.q:
            assert self.ready
            self.ready = False
            return self.q.pop(0)[0]()

    def drip(self, n=1):
        t = None
        for _ in range(n):
            if self.q:
                self.pre()
                t = self.go()
        return t

    def __len__(self):
        return len(self.q)


def touch(voff, soff, off=0, junk=JUNK):
    return S('buffer_load_dwordx4 %s, %s, %s, %s offen offset:%d sc1', vr(junk, 4), voff, SRD_WS, soff, off)


WGB = ('s8', 's9', 's14', 's15')
WLB = ('s20', 's21', 's22', 's23')
sQK = 's69'


def wqkv_stream():
    st = Stream()
    for n in range(24):
        def pre(n=n):
            g, i = divmod(n, 4)
            if i == 0 and g < 4:
                S('s_mov_b32 %s, %s', sDG, WGB[g])
                S('s_mov_b32 %s, %s', sDL, WLB[g])
            elif i == 0:
                if g == 5:
                    S('s_xor_b32 %s, %s, 4', sQK, sQK)
                S('s_lshl3_add_u32 s65, %s, %s', sW, sQK)
                S('s_mul_i32 %s, s65, %d', sDG, 16 * 3072)
                if OPT['hrot']:
                    S('s_and_b32 %s, %s, %d', sDL, sG, OPT['hrot'])
                    S('s_lshl_b32 %s, %s, 3', sDL, sDL)
                    S('s_sub_u32 s65, s65, %s', sDL)
                    A('s_and_b32 s65, s65, 31')
                S('s_lshl_b32 %s, s65, 10', sDL)
                S('s_add_u32 %s, %s, 65536', sDL, sDL)
            S('s_add_u32 m0, %s, %d', sDL, i * 1024)
            if i:
                S('s_add_u32 %s, %s, %d', sDG, sDG, 16 * 3072)
        st.add(lambda: S('buffer_load_dwordx4 %s, %s, %s offen lds', vWQ, SRD_WQKV, sDG), pre)
    return st


def w1_stream():
    st = Stream()
    for g in range(4):
        for i in range(7):
            def pre(g=g, i=i):
                if OPT['w1r']:
                    if i == 0:
                        S('s_add_u32 s65, %s, %d', sX, g)
                        A('s_and_b32 s65, s65, 3')
                        S('s_mul_i32 s65, s65, %d', 4 * 7168)
                        if OPT['w1r'] == 3:
                            S('s_add_u32 %s, %s, %d', sDL, sW1L, g * 4 * 7168)
                        else:
                            S('s_add_u32 %s, %s, s65', sDL, sW1L)
                        S('s_lshl4_add_u32 %s, s65, %s', sDG, sW1G)
                    if i == 3 and OPT['w1r'] == 2:
                        S('s_sub_u32 %s, %s, %s', sDL, sDL, sXC)
                    S('s_add_u32 m0, %s, %d', sDL, i * 1024)
                    return
                if i == 0 and g == 2 and OPT['w1s']:
                    S('s_sub_u32 %s, %s, %s', sW1L, sW1L, sXC)
                    S('s_lshl_b32 %s, %s, 4', sXC, sXC)
                    S('s_sub_u32 %s, %s, %s', sW1G, sW1G, sXC)
                S('s_add_u32 m0, %s, %d', sW1L, g * 4 * 7168 + i * 1024)
                if i == 0 and g:
                    S('s_add_u32 %s, %s, %d', sW1G, sW1G, 128 * 3584)
            st.add(lambda i=i: S('buffer_load_dwordx4 v%d, %s, %s offen lds', W1V + i, SRD_W1, sDG if OPT['w1r'] else sW1G), pre)
    return st


def frag_stream(sb, nks, areg):
    st = Stream()
    for i in range(nks):
        for s in range(4):
            def pre(i=i, s=s):
                if i and s == 0:
                    S('s_add_u32 %s, %s, 4096', sb, sb)
            st.add(lambda i=i, s=s: S('buffer_load_dwordx4 %s, %s, %s, %s offen offset:%d sc1', ar(areg + 16 * i + 4 * s, 4), vL16, SRD_WS, sb, s * 1024), pre)
    return st


def code_prefetch():
    S('global_load_dword v%d, v145, s[30:31]', JUNK)


def warm(srdname, nl, va=144, vj=JUNK + 3):
    S('s_lshl2_add_u32 s65, %s, %s', sLID, sW)
    S('s_mul_i32 s65, s65, %d', nl * 128)
    S('v_lshlrev_b32 v%d, 7, %s', va, vLANE)
    S('s_mov_b64 exec, 0x%x', (1 << nl) - 1)
    S('buffer_load_dword v%d, v%d, %s, s65 offen', vj, va, srdname)
    A('s_mov_b64 exec, -1')


def swarm(srdname, nl):
    b = int(srdname[2:srdname.index(':')])
    S('s_lshl2_add_u32 s65, %s, %s', sLID, sW)
    S('s_mul_i32 s65, s65, %d', nl * 128)
    S('s_add_u32 s98, s%d, s65', b)
    S('s_addc_u32 s99, s%d, 0', b + 1)
    for i in range(nl << OPT['swp']):
        S('s_load_dword s66, s[98:99], %d', (128 >> OPT['swp']) * i)


def swarm_at(pos):
    for d, (p, nl) in enumerate(((18, 14), (12, 4), (16, 14), (10, 12))):
        if OPT['sw'] // 10 ** d % 10 == pos:
            swarm('s[%d:%d]' % (p, p + 1), nl)


def code_touch(tmp, junk):
    if not LOCAL[0]:
        return
    L = A.label('pc')
    A('s_getpc_b64 s[90:91]')
    A(L + ':')
    S('s_lshl2_add_u32 s65, %s, %s', sJ, sW)
    A('s_lshl_b32 s65, s65, 7')
    S('s_min_u32 s65, s65, L_localend-%s-4', L)
    S('v_mov_b32 %s, s65', tmp)
    S('global_load_dword %s, %s, s[90:91]', junk, tmp)


def prologue():
    A('s_load_dwordx16 s[8:23], s[0:1], 0')
    A('s_load_dwordx4 s[24:27], s[0:1], 64')
    A('s_load_dwordx2 s[28:29], s[0:1], 80')
    A('s_cmp_ge_u32 s2, 256')
    A('s_cbranch_scc1 L_exit')
    A('s_getpc_b64 s[30:31]')
    A('L_pc:')
    S('s_lshr_b32 %s, s2, 3', sJ)
    S('s_lshl_b32 %s, %s, 10', t3, sJ)
    S('v_lshl_add_u32 v145, v0, 2, %s', t3)
    S('v_readfirstlane_b32 %s, v0', sW)
    if OPT['cpf'] == 4:
        code_prefetch()
    S('s_and_b32 %s, s2, 7', sX)
    if OPT['stamps'] or OPT['diag']:
        A('s_memrealtime s[92:93]')
        A('s_memtime s[94:95]')
    S('v_and_b32 %s, 7, v0', l7)
    S('v_bfe_u32 %s, v0, 3, 3', l3)
    S('s_lshr_b32 %s, %s, 6', sW, sW)
    S('s_lshl_b32 %s, %s, 1', t1, sX)
    S('s_lshl2_add_u32 %s, %s, 14', t2, sX)
    S('s_cmp_lt_u32 %s, 8', sJ)
    S('s_cselect_b32 %s, %s, %s', t1, t1, t2)
    S('s_lshr_b32 %s, %s, 2', t2, sJ)
    S('s_add_u32 %s, %s, %s', t5, t1, t2)
    S('s_and_b32 %s, %s, 3', sG, sJ)
    S('s_lshl2_add_u32 %s, %s, %s', t1, sG, sW)
    S('s_lshl_b32 %s, %s, 6', t2, t1)
    S('s_mulk_i32 %s, %d', t1, 32 * 48)
    S('s_add_u32 %s, %s, %s', t1, t1, t5)
    S('s_lshl_b32 %s, %s, 7', t1, t1)
    S('s_movk_i32 %s, 6144', t4)
    S('v_lshlrev_b32 v11, 3, %s', l3)
    S('v_mul_u32_u24 v13, %s, %s', t4, l3)
    S('v_lshl_add_u32 v13, %s, 2, v13', l7)
    A('v_lshlrev_b32 v13, 2, v13')
    S('s_cmp_lt_u32 %s, %d', sJ, 8 if OPT['dbg'] & 2 else 24)
    A('s_cselect_b32 s62, 0x300000, 0')
    S('s_cselect_b32 %s, %s, 0', t1, t1)
    S('s_cselect_b32 %s, %s, 0', t4, t4)
    A('s_mov_b32 s63, 0x20000')
    A('s_movk_i32 s66, 1024')
    A('s_mov_b32 s67, s63')
    A('s_waitcnt lgkmcnt(0)')
    if OPT['diag']:
        A('s_mov_b32 s97, s92')
    if OPT['stamps']:
        A('v_writelane_b32 v255, s92, 0')
        S('v_writelane_b32 v255, %s, 1', 's94' if OPT['stamps'] == 1 else 's92')
    stamp('.kernarg')
    A('s_mov_b64 s[64:65], s[20:21]')
    A('s_mov_b64 s[60:61], s[22:23]')
    S('buffer_load_dwordx2 v[62:63], v11, %s, %s offen', SRD_C, t2)
    for i in range(4):
        tw = S('buffer_load_dwordx4 %s, v13, %s, %s offen%s', vr(64 + 4 * i, 4), SRD_WMOD, t1, ' nt' * OPT['ntw'])
        if i < 3:
            S('s_add_u32 %s, %s, %s', t1, t1, t4)
    S('s_load_dword %s, s[28:29], %d', sE, WS_E)
    if OPT['stl']:
        SK = A.label('notlb')
        S('s_cmp_lg_u32 %s, 3', sW)
        A('s_cbranch_scc1 ' + SK)
        if OPT['stl'] & 1:
            for p in (8, 10, 12, 16, 18, 24):
                S('s_load_dword s90, s[%d:%d], 0', p, p + 1)
        if OPT['stl'] & 2:
            for pg in range(1, 11):
                S('s_mov_b32 s91, 0x%x', (pg << 21) + 0x1fff00)
                A('s_load_dword s90, s[28:29], s91')
        A(SK + ':')
    srd(SRD_X, 8, 2097152)
    S('v_and_b32 %s, 63, v0', vLANE)
    if OPT['xl']:
        S('v_xor_b32 v12, %s, %s', l7, l3)
        S('v_lshlrev_b32 v10, 10, %s', l3)
        A('v_lshl_add_u32 v10, v12, 4, v10')
        S('s_lshl_b32 %s, %s, 11', t2, sW)
        S('s_add_u32 m0, %s, %d', t2, L_SCR + 8192)
    else:
        S('v_lshlrev_b32 v10, 10, %s', l7)
        S('v_lshl_add_u32 v10, %s, 4, v10', l3)
    S('s_lshl_b32 %s, %s, 5', sLID, sX)
    S('s_add_u32 %s, %s, %s', sLID, sLID, sJ)
    S('s_lshl_b32 %s, %s, 13', t0, sLID)
    S('s_lshl_b32 %s, %s, 8', t3, sW)
    S('s_add_u32 %s, %s, %s', t0, t0, t3)
    A('s_barrier')
    if OPT['xl']:
        S('buffer_load_dwordx4 v10, %s, %s offen lds', SRD_X, t0)
        S('s_add_u32 m0, %s, %d', t2, L_SCR + 8192 + 1024 - 128)
        S('s_add_u32 %s, %s, %d', t2, t2, L_SCR + 8192)
        tx = S('buffer_load_dwordx4 v10, %s, %s offen offset:128 lds', SRD_X, t0)
        S('v_lshl_add_u32 v162, v12, 4, %s', t2)
        S('v_lshl_add_u32 v162, %s, 7, v162', l7)
    else:
        S('buffer_load_dwordx4 v[16:19], v10, %s, %s offen', SRD_X, t0)
        tx = S('buffer_load_dwordx4 v[20:23], v10, %s, %s offen offset:128', SRD_X, t0)
    if OPT['cpf'] == 1:
        code_prefetch()
    srd(SRD_WQKV, 10, 1572864)
    if OPT['tkv']:
        warm(SRD_WQKV, 12)
    swarm_at(1)
    srd(SRD_WS, 28, WS_SIZE)
    S('s_and_b32 %s, %s, 15', sM, sJ)
    S('s_lshr_b32 %s, %s, 4', t0, sJ)
    S('s_lshl2_add_u32 %s, %s, %s', t0, t0, sW)
    S('s_lshl3_add_u32 %s, %s, %s', sT, sX, t0)
    S('s_lshr_b32 %s, %s, 2', t0, sLID)
    S('s_lshl2_add_u32 %s, %s, %s', t0, t0, sW)
    S('s_lshl_b32 %s, %s, 13', t0, t0)
    S('s_lshl_b32 %s, %s, 7', t1, sG)
    S('s_add_u32 %s, %s, %s', t0, t0, t1)
    S('s_add_u32 %s, %s, %d', H_S, t0, WS_H)
    S('v_lshl_add_u32 v11, %s, 9, %s', vLANE, H_S)
    S('s_lshl_b32 %s, %s, 8', t0, sT)
    S('s_add_u32 %s, %s, %d', t0, t0, WS_FA)
    S('v_lshl_add_u32 %s, %s, 2, %s', vPT, vLANE, t0)
    S('v_writelane_b32 v11, %s, 16', t0)
    S('s_add_u32 %s, %s, 128', t0, t0)
    S('v_writelane_b32 v11, %s, 17', t0)
    S('s_lshl_b32 %s, %s, 7', t0, sX)
    S('s_add_u32 %s, %s, %d', t0, t0, WS_XA)
    S('v_writelane_b32 v11, %s, 18', t0)
    if OPT['tmod']:
        S('s_mul_i32 %s, %s, 48', t0, sG)
        S('s_add_u32 %s, %s, %s', t0, t0, t5)
        S('s_and_b32 %s, %s, 1', t1, sW)
        S('s_lshl1_add_u32 %s, %s, %s', t0, t0, t1)
        S('s_lshl_b32 %s, %s, 7', t0, t0)
        S('s_add_u32 %s, %s, %d', t0, t0, WS_MOD)
        S('v_writelane_b32 v11, %s, 19', t0)
    if OPT['tfl'] == 2:
        S('s_lshl4_add_u32 %s, %s, %s', t0, sT, sM)
        S('s_lshl_b32 %s, %s, 6', t0, t0)
        S('s_add_u32 %s, %s, %d', t0, t0, WS_FKV)
        S('v_writelane_b32 v11, %s, 20', t0)
        S('s_lshl2_add_u32 %s, %s, %s', t0, sLID, sW)
        S('s_lshl_b32 %s, %s, 6', t0, t0)
        S('s_add_u32 %s, %s, %d', t0, t0, WS_FP)
        S('v_writelane_b32 v11, %s, 21', t0)
    S('s_mov_b64 exec, 0x%x', (0x7ffff if OPT['ph'] else 0x70000) | OPT['tmod'] << 19 | (3 << 20 if OPT['tfl'] == 2 else 0))
    S('buffer_load_dword v%d, v11, %s, 0 offen sc1', JUNK + 2, SRD_WS)
    A('s_mov_b64 exec, -1')
    S('v_lshlrev_b32 %s, 4, %s', vL16, vLANE)
    return tw, tx


vPD, vPR, PRD = 'v97', 98, 56
sFP = 's67'


RTAB = ([3, 2, 2, 3, 2, 2, 2, 2, 3, 2, 2, 2, 3, 2, 2, 2], [4, 0, 0, 4, 4, 2, 0, 3, 4, 0, 0, 4, 4, 0, 3, 4],
        [4, 1, 1, 4, 3, 2, 0, 3, 3, 1, 1, 3, 4, 1, 2, 3], [3, 1, 1, 3, 3, 3, 0, 3, 3, 1, 2, 3, 3, 1, 3, 3])


def prep_srd():
    mask = sum(((1 << c) - 1) << (4 * m) for m, c in enumerate(RTAB[OPT['rtab']]))
    assert sum(RTAB[OPT['rtab']]) == 36
    S('s_mov_b32 s90, 0x%x', mask & 0xffffffff)
    S('s_mov_b32 s91, 0x%x', mask >> 32)
    S('s_lshl2_add_u32 %s, %s, %s', t0, sM, sW)
    S('s_bitcmp1_b64 s[90:91], %s', t0)
    S('s_cselect_b32 %s, 0, -1', sPS)
    S('s_bfm_b64 s[98:99], %s, 0', t0)
    A('s_and_b64 s[90:91], s[90:91], s[98:99]')
    S('s_bcnt1_i32_b64 %s, s[90:91]', sRHO)
    S('s_lshr_b32 %s, %s, 4', t0, sJ)
    S('s_mul_i32 %s, %s, 36', t0, t0)
    S('s_add_u32 %s, %s, %s', sRHO, sRHO, t0)
    S('s_cmp_lt_u32 %s, 56', sRHO)
    A('s_cselect_b64 s[48:49], s[18:19], s[12:13]')
    A('s_cselect_b32 s50, 7, 2')
    A('s_lshl_b32 s50, s50, 18')
    A('s_mov_b32 s51, 0x20000')


def prep_addr():
    S('s_cmp_lt_u32 %s, 56', sRHO)
    S('s_cselect_b32 %s, 0, 56', t0)
    S('s_cselect_b32 %s, 56, 16', t1)
    S('s_cselect_b32 %s, 2, 1', t3)
    S('s_cselect_b32 %s, 10, 11', t4)
    assert (WS_W2T, WS_WOT) == (2 << 20, 1 << 20)
    S('s_lshl_b32 %s, %s, 20', t2, t3)
    S('s_lshl_b32 %s, %s, 10', t3, t3)
    S('s_sub_u32 %s, %s, %s', t0, sRHO, t0)
    S('s_mul_i32 %s, %s, %s', t1, t1, sX)
    S('s_add_u32 %s, %s, %s', t1, t1, t0)
    S('s_lshl_b32 %s, %s, 12', t1, t1)
    S('s_add_u32 %s, %s, %s', t1, t1, t2)
    S('s_or_b32 %s, %s, %s', sPS, sPS, t1)
    S('s_lshl_b32 %s, %s, 15', t0, t0)
    S('s_lshl_b32 %s, %s, 7', t1, sX)
    S('s_add_u32 %s, %s, %s', sFG, t0, t1)
    S('v_lshrrev_b32 v98, 5, %s', vLANE)
    S('v_lshlrev_b32 v98, %s, v98', t4)
    S('v_bfe_u32 v99, %s, 2, 3', vLANE)
    A('v_lshl_add_u32 v98, v99, 7, v98')
    S('v_and_b32 v99, 3, %s', vLANE)
    A('v_lshl_add_u32 v98, v99, 5, v98')
    S('s_lshl_b32 %s, %s, 12', t0, sW)
    S('s_add_u32 %s, %s, %d', t0, t0, L_STG)
    S('v_add_u32 v98, %s, v98', t0)
    S('v_add_u32 v99, %s, v98', t3)
    S('s_add_u32 %s, %s, %s', sFP, sRHO, t1)
    S('s_lshl_b32 %s, %s, 6', sFP, sFP)
    S('s_add_u32 %s, %s, %d', sFP, sFP, WS_FP)
    S('v_lshrrev_b32 v10, 3, %s', vLANE)
    A('v_mul_u32_u24 v10, %d, v10' % (1024 - 128))
    S('v_add_u32 %s, v10, %s', vPD, vL16)


def role_only(f, other=None):
    L, D = A.label('norole'), A.label('role')
    S('s_bitcmp1_b32 %s, 31', sPS)
    A('s_cbranch_scc1 ' + L)
    st = A.vm, A.vm_done
    f()
    A.vm, A.vm_done = st
    if other:
        A('s_branch ' + D)
    A(L + ':')
    if other:
        other()
        A(D + ':')


def prep_stream():
    st = Stream()
    for i in range(4):
        def pre(i=i):
            S('s_lshl_b32 s65, %s, 12', sW)
            S('s_add_u32 m0, s65, %d', L_STG + 1024 * i)
            if i:
                S('s_add_u32 %s, %s, 8192', sFG, sFG)
        st.add(lambda: S('buffer_load_dwordx4 %s, %s, %s offen%s lds', vPD, SRD_P, sFG, ' nt' * OPT['ntp']), pre)
    return st


def prep_read(nt):
    for half in range(2):
        t = S('ds_read_b64_tr_b16 %s, v%d offset:%d', ar(4 * nt + 2 * half, 2), vPR + half, nt * 8)
    return t


def prep_store(p):
    return S('buffer_store_dwordx4 %s, %s, %s, %s offen offset:%d sc1', ar(4 * p, 4), vL16, SRD_WS, sPS, p * 1024)


def wq_setup():
    srd(SRD_W1, 16, 1835008)
    if OPT['tw1'] == 1:
        warm(SRD_W1, 14)
    S('v_lshrrev_b32 v12, 2, %s', vLANE)
    A('v_mul_u32_u24 v12, 3072, v12')
    S('v_and_b32 v11, 3, %s', vLANE)
    S('v_lshl_add_u32 %s, v11, 4, v12', vWQ)
    S('s_lshl_b32 %s, %s, 6', t0, sM)
    S('v_add_u32 %s, %s, %s', vWQ, t0, vWQ)
    S('s_lshr_b32 %s, %s, 4', t0, sJ)
    S('s_and_b32 %s, %s, 1', t1, sJ)
    S('s_lshl1_add_u32 %s, %s, %s', t1, t0, t1)
    S('s_lshr_b32 %s, %s, 1', t0, sM)
    S('s_cmp_eq_u32 %s, 3', t0)
    S('s_cselect_b32 %s, %s, 0', sCNT, t1)
    if OPT['kvr']:
        S('s_and_b32 %s, %s, 3', t1, sX)
        S('s_xor_b32 %s, %s, %s', sCNT, sCNT, t1)
    for g in range(4):
        S('s_xor_b32 %s, %s, %d', t0, sCNT, g)
        S('s_and_b32 %s, %s, 1', t1, t0)
        S('s_lshl1_add_u32 %s, %s, %s', t1, sW, t1)
        S('s_lshr_b32 %s, %s, 1', t0, t0)
        S('s_mul_i32 %s, %s, 192', t2, t1)
        S('s_add_u32 %s, %s, %s', t2, t2, t0)
        S('s_lshl_b32 %s, %s, 10', t2, t2)
        S('s_add_u32 %s, %s, 1024', WGB[g], t2)
        if OPT['hrot']:
            S('s_and_b32 %s, %s, %d', t2, sG, OPT['hrot'])
            S('s_lshl_b32 %s, %s, 1', t2, t2)
            S('s_sub_u32 %s, %s, %s', t1, t1, t2)
            S('s_and_b32 %s, %s, 7', t1, t1)
        S('s_lshl3_add_u32 %s, %s, %s', t1, t0, t1)
        S('s_lshl_b32 %s, %s, 12', WLB[g], t1)
    if OPT['dbg'] & 4:
        S('v_add_u32 %s, 0x%x, %s', vWQ, OOB, vWQ)


def mod_partial(tw):
    S('v_lshrrev_b32 v11, 4, %s', vLANE)
    S('v_lshl_add_u32 v11, %s, 2, v11', l7)
    S('s_lshl_b32 %s, %s, 8', t1, sW)
    S('s_add_u32 %s, %s, %d', t1, t1, L_SCR + 1024)
    S('v_lshl_add_u32 v11, v11, 3, %s', t1)
    S('v_and_b32 v12, 0xf0, %s', vL16)
    S('v_add_u32 v15, %d, v12', L_SCR + 1024)
    S('s_mul_i32 %s, %s, 48', t1, sG)
    S('s_add_u32 %s, %s, %s', t1, t1, t5)
    S('s_lshl_b32 %s, %s, 8', t1, t1)
    S('s_add_u32 %s, %s, %d', t1, t1, WS_MOD)
    S('s_getreg_b32 %s, hwreg(HW_REG_XCC_ID, 0, 4)', sXC)
    A.wait(vm=tw - 4)
    stamp('.c')
    unpack(40, 62)
    unpack(42, 63)
    for i in range(4):
        S('v_mul_f32 v%d, 0xbfb8aa3b, v%d', 44 + i, 40 + i)
    for i in range(4):
        S('v_exp_f32 v%d, v%d', 44 + i, 44 + i)
    for i in range(4):
        S('v_add_f32 v%d, 1.0, v%d', 44 + i, 44 + i)
    for i in range(4):
        S('v_rcp_f32 v%d, v%d', 44 + i, 44 + i)
    for i in range(2):
        S('v_pk_mul_f32 %s, %s, %s', vr(40 + 2 * i, 2), vr(40 + 2 * i, 2), vr(44 + 2 * i, 2))
    A('v_cvt_pk_bf16_f32 v44, v40, v41')
    A('v_cvt_pk_bf16_f32 v45, v42, v43')
    unpack(40, 44)
    unpack(42, 45)
    for i in range(4):
        A.wait(vm=tw - 3 + i)
        for d in range(4):
            unpack(80 + 2 * d, 64 + 4 * i + d)
        s = i & 1
        for d in range(4):
            if i == 0:
                S('v_pk_mul_f32 %s, %s, v[40:41] op_sel_hi:[1,0]', vr(48 + 2 * d, 2), vr(80 + 2 * d, 2))
            else:
                S('v_pk_fma_f32 %s, %s, %s, %s op_sel:[0,%d,0] op_sel_hi:[1,%d,1]',
                  vr(48 + 2 * d, 2), vr(80 + 2 * d, 2), vr(40 + (i & ~1), 2), vr(48 + 2 * d, 2), s, s)
    stamp('.fma')
    for i in range(4):
        S('v_permlane32_swap_b32 v%d, v%d', 48 + i, 52 + i)
    for i in range(2):
        S('v_pk_add_f32 %s, %s, %s', vr(48 + 2 * i, 2), vr(48 + 2 * i, 2), vr(52 + 2 * i, 2))
    A('s_waitcnt lgkmcnt(0)')
    S('s_mul_i32 %s, %s, 0x9e3779c1', sTAG, sE)
    for i in range(2):
        S('v_permlane16_swap_b32 v%d, v%d', 48 + i, 50 + i)
    A('v_pk_add_f32 v[48:49], v[48:49], v[50:51]')
    S('s_add_u32 %s, %s, 0x7f4a7c21', sTAG, sTAG)
    S('v_mov_b32 %s, %s', vTAG, sTAG)
    for i in range(2):
        S('v_add_f32_dpp v%d, v%d, v%d row_ror:8 row_mask:0xf bank_mask:0xf', 50 + i, 48 + i, 48 + i)
    t = A('ds_write_b64 v11, v[50:51]')
    for i in range(4):
        S('s_bfe_u32 s%d, %s, 0x%x', TAGB + i, sTAG, (8 << 16) | (8 * i))
    if OPT['force_remote']:
        S('s_and_b32 %s, %s, 1', sXC, sJ)
    S('s_add_u32 %s, %s, %s', sXC, sXC, sTAG)
    S('s_add_u32 %s, %s, 1', sXC, sXC)
    S('v_mov_b32 %s, %s', vXCV, sXC)
    A('v_mov_b32 v10, 0xffffff00')
    S('s_cmp_ge_u32 %s, 24', sJ)
    S('s_cselect_b32 %s, 1, %s', t0, sW)
    S('s_cmp_lg_u32 %s, 0', t0)
    A.wait(lg=t)
    A('s_barrier')
    NP, NX = A.label('nopub'), A.label('noxc')
    vm0 = A.vm
    A('s_cbranch_scc1 ' + NP)
    for i in range(4):
        t = S('ds_read_b128 %s, v15 offset:%d', vr(64 + 4 * i, 4), 256 * i)
    A('s_mov_b64 exec, 0xffff')
    A.wait(lg=t)
    for e in range(2):
        S('v_pk_add_f32 %s, %s, %s', vr(64 + 2 * e, 2), vr(64 + 2 * e, 2), vr(68 + 2 * e, 2))
        S('v_pk_add_f32 %s, %s, %s', vr(72 + 2 * e, 2), vr(72 + 2 * e, 2), vr(76 + 2 * e, 2))
    for e in range(2):
        S('v_pk_add_f32 %s, %s, %s', vr(64 + 2 * e, 2), vr(64 + 2 * e, 2), vr(72 + 2 * e, 2))
    for i in range(4):
        S('v_add_u32 v%d, 0x80, v%d', 64 + i, 64 + i)
    for i in range(4):
        S('v_and_or_b32 v%d, v%d, v10, s%d', 64 + i, 64 + i, TAGB + i)
    S('buffer_store_dwordx4 v[64:67], v12, %s, %s offen sc1', SRD_WS, t1)
    A('s_mov_b64 exec, -1')
    A(NP + ':')
    S('s_cmp_lg_u32 %s, 1', sW)
    A('s_cbranch_scc1 ' + NX)
    S('s_lshl2_add_u32 %s, %s, %d', t0, sLID, WS_XA)
    flag_store(t0, False, vXCV)
    A(NX + ':')
    A.lg_done = A.lg
    A.vm = vm0


def ln1(tx, wst):
    S('s_and_b32 %s, %s, 2', sQK, sCNT)
    S('s_lshl_b32 %s, %s, 1', sQK, sQK)
    swarm_at(2)
    wst.drip(OPT['n2'])
    A.wait(vm=tx)
    stamp('.x')
    if OPT['xl']:
        A('ds_read_b128 v[16:19], v162')
        A.wait(lg=A('ds_read_b128 v[20:23], v162 offset:1024'))
    for i in range(8):
        unpack(24 + 2 * i, 16 + i)
    A('v_pk_add_f32 v[40:41], v[24:25], v[26:27]')
    A('v_pk_mul_f32 v[42:43], v[24:25], v[24:25]')
    A('v_pk_fma_f32 v[42:43], v[26:27], v[26:27], v[42:43]')
    for i in range(2, 8):
        S('v_pk_add_f32 v[40:41], v[40:41], %s', vr(24 + 2 * i, 2))
        S('v_pk_fma_f32 v[42:43], %s, %s, v[42:43]', vr(24 + 2 * i, 2), vr(24 + 2 * i, 2))
    A('v_add_f32 v40, v40, v41')
    A('v_add_f32 v42, v42, v43')
    A('v_permlane32_swap_b32 v40, v42')
    A('v_add_f32 v40, v40, v42')
    A('v_mov_b32 v41, v40')
    A('v_permlane16_swap_b32 v40, v41')
    A('v_add_f32 v40, v40, v41')
    A('v_add_f32_dpp v41, v40, v40 row_ror:8 row_mask:0xf bank_mask:0xf')
    t = A('ds_write_b32 v160, v41')
    A.wait(lg=t)
    A('s_barrier')
    stamp('.bar2')


def ln1_apply():
    A('ds_read_b128 v[64:67], v161')
    t = A('ds_read_b128 v[68:71], v161 offset:128')
    A.wait(lg=t)
    A('v_pk_add_f32 v[64:65], v[64:65], v[66:67]')
    A('v_pk_add_f32 v[68:69], v[68:69], v[70:71]')
    A('v_add_f32 v64, v64, v65')
    A('v_add_f32 v68, v68, v69')
    A('v_mul_f32 v64, 0x3b000000, v64')
    A('v_mul_f32 v68, 0x3b000000, v68')
    A('v_fma_f32 v68, -v64, v64, v68')
    A('v_max_f32 v68, 0, v68')
    A('v_add_f32 v68, 0x3727c5ac, v68')
    A('v_rsq_f32 v60, v68')
    A('v_mul_f32 v61, -v64, v60')
    for i in range(8):
        S('v_pk_fma_f32 %s, %s, v[60:61], v[60:61] op_sel:[0,0,1] op_sel_hi:[1,0,1]', vr(24 + 2 * i, 2), vr(24 + 2 * i, 2))


def sum_partials(base, addend):
    for e in range(2):
        S('v_pk_add_f32 %s, %s, %s', vr(base + 2 * e, 2), vr(base + 2 * e, 2), vr(base + 4 + 2 * e, 2))
        S('v_pk_add_f32 %s, %s, %s', vr(base + 8 + 2 * e, 2), vr(base + 8 + 2 * e, 2), vr(base + 12 + 2 * e, 2))
    for e in range(2):
        S('v_pk_add_f32 %s, %s, %s', vr(base + 2 * e, 2), vr(base + 2 * e, 2), vr(base + 8 + 2 * e, 2))
    for e in range(2):
        S('v_cvt_pk_bf16_f32 v%d, v%d, v%d', base + 4 + e, base + 2 * e, base + 2 * e + 1)
    for e in range(2):
        unpack(base + 8 + 2 * e, base + 4 + e)
    for i in range(4):
        S('v_add_f32 v%d, %s, v%d', base + 8 + i, addend, base + 8 + i)
    for e in range(2):
        S('v_cvt_pk_bf16_f32 v%d, v%d, v%d', base + e, base + 8 + 2 * e, base + 9 + 2 * e)


MP = 156
sMP = ('s92', 's93', 's94', 's95')


def mod_poll_addr():
    S('v_and_b32 v151, 31, %s', vLANE)
    S('v_lshrrev_b32 v12, 5, %s', vLANE)
    S('s_lshl_b32 %s, %s, 9', t0, sW)
    S('v_lshl_add_u32 v156, v151, 4, %s', t0)
    A('v_lshl_add_u32 v156, v12, 11, v156')
    A('v_cvt_f32_u32 v150, v12')
    for i in range(4):
        S('s_mov_b32 %s, %d', sMP[i], WS_MOD + 12288 * i)
    S('s_lshl_b32 %s, %s, 7', t0, sX)
    S('s_add_u32 %s, %s, %d', t0, t0, WS_XA)
    S('v_lshl_add_u32 v157, v151, 2, %s', t0)


def ln_addr():
    S('v_lshrrev_b32 v12, 5, %s', vLANE)
    S('v_lshl_add_u32 v12, v12, 3, %s', l7)
    S('s_lshl2_add_u32 %s, %s, %d', t0, sW, L_SCR)
    S('v_lshl_add_u32 v160, v12, 4, %s', t0)
    S('v_lshlrev_b32 v161, 4, %s', l7)
    S('v_add_u32 v161, %d, v161', L_SCR)


def setup_a():
    mod_poll_addr()
    if OPT['spos'] == 0:
        ln_addr()
    S('s_lshl_b32 %s, %s, 10', t1, sW)
    S('s_add_u32 %s, %s, %d', t1, t1, L_SCR + 4096)
    S('v_add_u32 v158, %s, %s', t1, vL16)
    S('v_lshl_add_u32 v159, %s, 5, %s', l3, t1)
    S('v_lshlrev_b32 v12, 9, %s', l3)
    S('v_lshl_add_u32 %s, %s, 4, v12', H_V, l7)
    srd(SRD_OUT, 24, 2097152)
    S('s_and_b32 %s, %s, 7', sCT, sJ)
    S('s_lshr_b32 %s, %s, 3', t0, sJ)
    if OPT['ctx']:
        S('s_and_b32 %s, %s, 1', t1, t0)
        S('s_xor_b32 %s, %s, %s', sCT, sCT, t1)
    S('s_lshl_b32 %s, %s, 1', t0, t0)
    S('s_lshl3_add_u32 %s, %s, %s', sT0, sX, t0)
    if OPT['rot']:
        S('s_lshl1_add_u32 %s, %s, %s', sOWN, sCT, sW)
        S('s_and_b32 %s, %s, 3', sOWN, sOWN)
    else:
        S('s_mov_b32 %s, %s', sOWN, sW)
    S('s_lshl1_add_u32 %s, %s, %s', sTS, sT0, sOWN)
    A('s_mov_b32 s86, 0x0000ffff')
    A('s_mov_b32 s87, 0x0000ffff')
    A('s_mov_b32 s88, 0xffff0000')
    A('s_mov_b32 s89, 0xffff0000')
    S('v_and_b32 v12, 3, %s', vLANE)
    A('v_lshlrev_b32 v13, 3, v12')
    S('v_bfe_u32 v12, %s, 4, 1', vLANE)
    A('v_lshl_add_u32 v13, v12, 5, v13')
    S('v_bfe_u32 v12, %s, 2, 2', vLANE)
    A('v_lshl_add_u32 v13, v12, 6, v13')
    S('v_lshrrev_b32 v12, 5, %s', vLANE)
    A('v_lshl_add_u32 v13, v12, 9, v13')
    A('v_add_u32 v14, 65536, v13')
    S('s_lshl_b32 %s, %s, 15', t1, sT)
    S('s_add_u32 %s, %s, %d', sHL, t1, WS_H)
    S('s_mov_b64 %s, 0xffff', sMASK)
    S('s_lshr_b32 %s, %s, 2', t4, sLID)
    S('s_lshl4_add_u32 %s, %s, %s', t4, t4, sG)
    S('s_lshl2_add_u32 %s, %s, %s', t4, t4, sW)
    S('s_lshl2_add_u32 %s, %s, %d', t4, t4, WS_FA)


def setup_scalar():
    S('s_lshl4_add_u32 %s, %s, %s', t0, sT, sM)
    S('s_lshl_b32 %s, %s, 6', t1, t0)
    S('s_add_u32 %s, %s, %d', sFKV, t1, WS_FKV)
    S('s_lshl_b32 %s, %s, 12', t1, t0)
    S('s_add_u32 %s, %s, %d', sKVO, t1, WS_KV)
    for d, dst in ((4, sR4), (8, sR8)):
        S('s_sub_u32 %s, %s, %d', dst, t0, 16 * d)
        S('s_max_i32 %s, %s, 0', dst, dst)
    S('v_mov_b32 %s, %s', vPKV, sR4)
    S('v_writelane_b32 %s, %s, 1', vPKV, sR8)
    S('v_lshlrev_b32 %s, 6, %s', vPKV, vPKV)
    S('v_add_u32 %s, %d, %s', vPKV, WS_FKV, vPKV)
    for dst in (sR4, sR8):
        S('s_lshl_b32 %s, %s, 12', dst, dst)
        S('s_add_u32 %s, %s, %d', dst, dst, WS_KV)
    S('s_cmp_ge_u32 %s, 4', sT)
    A('s_cselect_b32 s98, 1, 0')
    S('s_cselect_b32 %s, 0, 0x%x', t1, OOB)
    S('v_add_u32 %s, %s, %s', vD4, t1, vL16)
    S('s_cmp_ge_u32 %s, 8', sT)
    A('s_cselect_b32 s98, 3, s98')
    S('s_cselect_b32 %s, 0, 0x%x', t1, OOB)
    S('v_add_u32 %s, %s, %s', vD8, t1, vL16)
    if OPT['dbg'] & 8:
        S('v_mov_b32 %s, 0x%x', vD4, OOB)
        S('v_mov_b32 %s, 0x%x', vD8, OOB)
    A('s_mov_b32 s99, 0')
    S('s_lshl_b32 %s, %s, 6', t1, sT)
    S('s_add_u32 %s, %s, %s', t1, t1, sM)
    S('s_lshl2_add_u32 %s, %s, %d', sFO, t1, WS_FA + 64)
    S('s_add_u32 %s, %s, 128', sFHID, sFO)
    S('s_lshr_b32 %s, %s, 1', t1, sTS)
    S('s_lshl_b32 %s, %s, 5', t1, t1)
    S('s_add_u32 %s, %s, %s', t1, t1, sCT)
    S('s_and_b32 %s, %s, 1', t2, sTS)
    S('s_lshl1_add_u32 %s, %s, %s', t1, t1, t2)
    S('s_lshl2_add_u32 %s, %s, %d', sFY, t1, WS_FA + 128)
    S('s_lshl_b32 %s, %s, 15', t1, sT)
    wsy = WS_H if LOCAL[0] and OPT['yov'] else WS_Y
    if OPT['w1r'] == 3:
        S('s_and_b32 %s, %s, 3', t2, sX)
        S('s_lshl_b32 %s, %s, 12', t2, t2)
        S('s_add_u32 %s, %s, %s', t2, t2, t1)
    S('s_add_u32 %s, %s, %d', sYL[0], t2 if OPT['w1r'] == 3 else t1, wsy)
    S('s_add_u32 %s, %s, %d', sYL[1], t2 if OPT['w1r'] == 3 else t1, wsy + 16384)
    S('s_lshl_b32 %s, %s, 10', t2, sM)
    S('s_add_u32 %s, %s, %s', t1, t1, t2)
    S('s_add_u32 %s, %s, %d', sOO, t1, WS_O)
    S('s_lshl3_add_u32 %s, %s, %s', t1, sTS, sCT)
    S('s_lshl_b32 %s, %s, 11', t2, t1)
    S('s_add_u32 %s, %s, %d', sYO, t2, wsy)
    S('s_lshl_b32 %s, %s, 7', t2, t1)
    S('s_add_u32 %s, %s, %d', sSO, t2, WS_STAT)
    S('s_lshl_b32 %s, %s, 11', t2, sT)
    S('s_add_u32 %s, %s, %d', sSL, t2, WS_STAT)
    S('s_lshr_b32 %s, %s, 1', t1, sM)
    S('s_lshl4_add_u32 %s, %s, %s', t1, sT, t1)
    S('s_mul_i32 %s, %s, 7168', t1, t1)
    S('s_add_u32 %s, %s, %d', sHO[0], t1, WS_HID)
    S('s_add_u32 %s, %s, %d', sHO[1], t1, WS_HID + 56 * 1024)
    S('s_lshl3_add_u32 %s, %s, %s', t1, sT0, sW)
    for s in range(4):
        S('s_add_u32 %s, %s, %d', t2, sOWN, s + 1)
        S('s_and_b32 %s, %s, 3', t2, t2)
        S('s_lshl2_add_u32 %s, %s, %s', t2, t2, t1)
        S('s_lshl_b32 %s, %s, 12', t3, t2)
        S('s_add_u32 %s, %s, %d', STG_O[s], t3, WS_O)
        S('s_mul_i32 %s, %s, %d', t3, t2, 14 * 1024)
        S('s_add_u32 %s, %s, %d', STG_H[s], t3, WS_HID)
    S('s_lshl2_add_u32 %s, %s, %s', t1, sCT, sW)
    S('s_lshl_b32 %s, %s, 14', t2, t1)
    S('s_add_u32 %s, %s, %d', sWOB, t2, WS_WOT)
    S('s_mul_i32 %s, %s, %d', t2, t1, 14 * 4096)
    S('s_add_u32 %s, %s, %d', sW2B, t2, WS_W2T)
    S('s_lshr_b32 %s, %s, 1', t1, sW)
    S('s_and_b32 %s, %s, 1', t2, sW)
    S('s_lshl3_add_u32 %s, %s, %s', t1, t1, t2)
    S('s_lshl_b32 %s, %s, 7', t1, t1)
    S('s_add_u32 %s, %s, %s', t1, t1, sM)
    S('s_mul_i32 %s, %s, 224', sW1G, t1)
    if OPT['dbg'] & 128:
        S('s_add_u32 %s, %s, 64', sW1G, sW1G)
        S('s_and_b32 %s, %s, 0xffffff80', sW1G, sW1G)
    S('s_mul_i32 %s, %s, 7168', sW1L, sW)
    if OPT['w1r'] == 2:
        S('s_lshr_b32 %s, %s, 2', t1, sX)
        S('s_mul_i32 %s, %s, 7168', sXC, t1)
        S('s_lshl_b32 %s, %s, 12', t1, t1)
        S('s_add_u32 %s, %s, %s', sW1L, sW1L, t1)
    if OPT['w1s']:
        assert OPT['qd'] == 0
        S('s_and_b32 %s, %s, 3', t1, sM)
        S('s_lshr_b32 %s, %d, %s', t1, OPT['w1s'], t1)
        S('s_lshr_b32 %s, %s, 4', t2, sJ)
        S('s_and_b32 %s, %s, %s', t1, t1, t2)
        S('s_mul_i32 %s, %s, %d', t1, t1, 8 * 7168)
        S('s_add_u32 %s, %s, %s', sW1L, sW1L, t1)
        S('s_lshl4_add_u32 %s, %s, %s', sW1G, t1, sW1G)
        S('s_lshl_b32 %s, %s, 1', sXC, t1)
    S('s_lshl_b32 %s, %s, 2', t1, sW)
    S('s_lshl_b32 s60, 15, %s', t1)
    A('s_mov_b32 s61, s60')
    S('s_lshl_b32 %s, %s, 12', t1, sW)
    S('s_add_u32 %s, %s, %d', t1, t1, L_KV)
    S('v_add_u32 %s, %s, %s', vKV, t1, vL16)
    for bit, regs in enumerate(((sHL,), (sKVO,), (sR4, sR8), (sOO,), STG_O, (sYO,), sYL, sHO, STG_H, (sPS,))):
        if OPT['nul'] >> bit & 1:
            for r in regs:
                S('s_mov_b32 %s, 0x%x', r, WS_SIZE)


def setup_vector():
    a, b, t, q = 'v10', 'v11', 'v12', 'v15'
    S('v_and_b32 %s, 15, %s', t, vLANE)
    S('v_lshrrev_b32 %s, 4, %s', q, vLANE)
    S('s_lshl_b32 %s, %s, 14', t0, sTS)
    S('s_lshl_b32 %s, %s, 7', t1, sCT)
    S('s_add_u32 %s, %s, %s', t0, t0, t1)
    S('v_lshrrev_b32 %s, 3, %s', b, vLANE)
    S('v_lshl_add_u32 %s, %s, 10, %s', a, b, t0)
    S('v_xor_b32 %s, %s, %s', b, b, l7)
    S('v_lshl_add_u32 %s, %s, 4, %s', vXO, b, a)
    if OPT['w1r'] == 3:
        S('s_lshl_b32 %s, %s, 8', t2, sX)
        S('s_sub_u32 %s, %s, %s', t1, t1, t2)
        S('s_and_b32 %s, %s, 1023', t1, t1)
    S('s_add_u32 %s, %s, %d', t1, t1, L_MODL + 1024)
    S('v_lshl_add_u32 %s, %s, 5, %s', vG2A, q, t1)
    S('s_mov_b32 %s, %d', t1, L_GAB)
    S('v_lshl_add_u32 %s, %s, 6, %s', vGAB, q, t1)
    S('s_mov_b32 %s, %d', t1, L_UT)
    S('v_lshl_add_u32 %s, %s, 4, %s', vUTR, q, t1)
    S('s_lshl_b32 %s, %s, 10', t0, sW)
    S('s_add_u32 %s, %s, %d', t1, t0, WS_MOD + 6144)
    S('v_add_u32 %s, %s, %s', vMR0, t1, vL16)
    S('s_lshr_b32 %s, %s, 1', t0, t0)
    if OPT['w1r'] == 3:
        S('s_sub_u32 %s, %s, %s', t1, t0, t2)
        S('v_lshl_add_u32 %s, %s, 3, %s', a, vLANE, t1)
        S('v_and_b32 %s, 1023, %s', a, a)
        S('s_and_b32 %s, %s, 1024', t1, t0)
        S('s_add_u32 %s, %s, %d', t1, t1, L_MODL)
        S('v_add_u32 %s, %s, %s', vMW, t1, a)
    else:
        S('s_add_u32 %s, %s, %d', t1, t0, L_MODL)
        S('v_lshl_add_u32 %s, %s, 3, %s', vMW, vLANE, t1)
    S('v_bfe_u32 %s, %s, 3, 1', b, vLANE)
    S('v_lshl_add_u32 %s, %s, 1, %s', a, q, b)
    S('v_mul_u32_u24 %s, 6144, %s', a, a)
    S('v_lshl_add_u32 %s, %s, 4, %s', a, l7, a)
    S('s_and_b32 %s, %s, 1', t0, sW)
    S('s_lshl1_add_u32 %s, %s, %s', t1, sCT, t0)
    S('s_lshl_b32 %s, %s, 7', t1, t1)
    S('s_add_u32 %s, %s, %d', t1, t1, WS_MOD + 4096)
    S('v_add_u32 %s, %s, %s', vMR1, t1, a)
    S('s_lshl_b32 %s, %s, 7', t0, t0)
    S('s_add_u32 %s, %s, %d', t0, t0, L_GAB)
    S('v_lshl_add_u32 %s, %s, 8, %s', a, b, t0)
    S('v_lshl_add_u32 %s, %s, 4, %s', a, l7, a)
    S('v_lshrrev_b32 %s, 5, %s', b, vLANE)
    S('v_lshl_add_u32 %s, %s, 2, %s', a, b, a)
    S('v_and_b32 %s, 1, %s', q, q)
    S('v_lshl_add_u32 %s, %s, 3, %s', vGW, q, a)
    S('v_lshlrev_b32 %s, 4, %s', a, t)
    S('v_lshl_add_u32 %s, %s, 14, %s', a, q, a)
    S('v_lshl_add_u32 %s, %s, 8, %s', vOO, b, a)
    S('v_lshlrev_b32 %s, 2, %s', a, t)
    S('v_lshl_add_u32 %s, %s, 6, %s', vSS, b, a)
    S('v_lshl_add_u32 %s, %s, 10, %s', vSL, q, vSS)
    S('s_lshl_b32 %s, %s, 8', t0, sT0)
    S('s_add_u32 %s, %s, %d', t0, t0, WS_FA)
    S('v_lshl_add_u32 %s, %s, 7, %s', a, b, t0)
    S('v_lshl_add_u32 %s, %s, 2, %s', vPG, vLANE, a)
    S('v_bfe_u32 %s, %s, 2, 3', a, vLANE)
    S('v_lshl_add_u32 %s, %s, 4, %s', a, b, a)
    S('v_mul_u32_u24 %s, 224, %s', a, a)
    S('v_and_b32 %s, 3, %s', b, vLANE)
    S('v_lshl_add_u32 v%d, %s, 3, %s', vT1, b, a)
    S('v_add_u32 v%d, 57344, v%d', vT2, vT1)
    S('s_and_b32 %s, %s, 1', t0, sM)
    S('s_lshl_b32 %s, %s, 12', t1, t0)
    S('v_add_u32 %s, %s, %s', vH4, t1, vL16)
    S('s_lshl_b32 %s, %s, 9', t1, t0)
    S('v_lshlrev_b32 %s, 2, %s', vL8, vLANE)
    S('v_add_u32 %s, %s, %s', vH2, t1, vL8)
    for s in range(4):
        S('s_add_u32 %s, %s, %d', t0, sW, s + 1)
        S('s_and_b32 %s, %s, 3', t0, t0)
        S('s_lshl_b32 %s, %s, 13', t0, t0)
        S('s_add_u32 %s, %s, %d', t0, t0, L_RED + (4096 if s == 1 else 0))
        S('v_add_u32 v%d, %s, %s', (vRW + (vRR,))[s], t0, vL16)
    S('s_mul_i32 %s, %s, 14', t0, sW)
    S('v_min_u32 %s, 13, %s', a, t)
    S('v_add_u32 %s, %s, %s', a, t0, a)
    S('s_lshl2_add_u32 %s, %s, 56', t0, sW)
    S('v_and_b32 %s, 3, %s', b, vLANE)
    S('v_add_u32 %s, %s, %s', b, t0, b)
    S('v_cndmask_b32 %s, %s, %s, %s', a, b, a, sMASK)
    S('s_lshl_b32 %s, %s, 13', t0, sCT)
    S('s_add_u32 %s, %s, %d', t0, t0, WS_FP)
    S('v_lshl_add_u32 %s, %s, 6, %s', a, a, t0)
    S('s_mov_b32 %s, %d', t0, WS_FKV)
    S('v_lshl_add_u32 %s, %s, 13, %s', b, l7, t0)
    S('s_or_b32 %s, %s, %s', t0, sLID, sW)
    S('s_min_u32 %s, %s, 1', t0, t0)
    S('s_sub_u32 %s, %s, 1', t0, t0)
    S('s_and_b32 s93, %s, 0xff', t0)
    A('s_mov_b32 s92, 0')
    S('v_cndmask_b32 %s, %s, %s, s[92:93]', vFP, a, b)


def w1_addr():
    for i in range(7):
        if OPT['w1r'] == 2:
            S('v_add_u32 v10, %d, v%d', 64 * i, W1V + (5 if i < 3 else 6))
        else:
            S('v_add_u32 v10, %d, %s', 64 * i, vLANE)
        A('v_mul_u32_u24 v11, 4682, v10')
        A('v_lshrrev_b32 v11, 16, v11')
        A('v_mad_i32_i24 v10, v11, -14, v10')
        S('v_add_u32 v10, %s, v10', t4)
        A('v_subrev_u32 v12, 14, v10')
        A('v_min_u32 v10, v10, v12')
        A('v_and_b32 v12, 4, v11')
        A('v_mad_u32_u24 v12, v12, 3, v11')
        A('v_and_b32 v15, 16, v11')
        A('v_add_u32 v12, v12, v15')
        A('v_bfe_u32 v15, v11, 3, 1')
        A('v_mad_i32_i24 v12, v15, -4, v12')
        A('v_mul_u32_u24 v12, 3584, v12')
        S('v_lshl_add_u32 v%d, v10, 4, v12', W1V + i)


def ut_addr():
    S('s_lshl_b32 %s, %s, 5', t3, sW)
    S('s_add_u32 %s, %s, 128', t4, t3)
    S('s_min_u32 %s, %s, 192', t4, t4)
    S('v_add_u32 v%d, %s, v%d', UTA, t3, vT1)
    S('v_add_u32 v%d, %s, v%d', UTA + 1, t3, vT2)
    S('v_add_u32 v%d, %s, v%d', UTA + 2, t4, vT1)
    S('v_add_u32 v%d, %s, v%d', UTA + 3, t4, vT2)
    S('v_and_b32 v10, 1, %s', vLANE)
    A('v_lshlrev_b32 v11, 10, v10')
    S('v_sub_u32 v11, %d, v11', L_MODL + 1024)
    S('v_lshrrev_b32 v12, 4, %s', vLANE)
    S('v_lshl_add_u32 v%d, v12, 5, v11', UTA + 4)
    S('v_lshl_add_u32 v12, v10, 9, %s', vUTR)
    S('v_lshl_add_u32 v%d, %s, 1, v12', UTA + 5, t3)
    S('v_lshl_add_u32 v%d, %s, 1, v12', UTA + 6, t4)


def mod_poll(wst):
    def loads():
        S('buffer_load_dword v58, v157, %s, 0 offen sc1', SRD_WS)
        return [S('buffer_load_dwordx4 %s, v156, %s, %s offen sc1', vr(40 + 4 * i, 4), SRD_WS, sMP[i]) for i in range(4)]
    L, D = A.label('pmod'), A.label('dmod')
    wst.drip(OPT['n2b'])
    if OPT['spos']:
        assert OPT['ppos'] == 0
        prep_srd()
        prep_addr()
        setup_a()
    if OPT['lnp']:
        ln1_apply()
    stamp('ln done')
    tk = loads()
    if OPT['tw1'] == 2:
        warm(SRD_W1, 14)
    wst.drip(OPT['n3'])
    if not OPT['lnp']:
        ln1_apply()
    swarm_at(3)
    stamp('.setup a')
    for i in range(4):
        A.wait(vm=tk[i])
        untag(40 + 4 * i, 56, i == 0)
    untag_test(56)
    S('s_mov_b32 %s, 0', sCNT)
    A('s_cbranch_vccz ' + D)
    vm_save = A.vm
    A(L + ':')
    loads()
    S('s_add_u32 %s, %s, 1', sCNT, sCNT)
    for i in range(4):
        S('s_waitcnt vmcnt(%d)', 3 - i)
        untag(40 + 4 * i, 56, i == 0)
    untag_test(56)
    S('s_cmp_lt_u32 %s, %d', sCNT, LIMIT)
    A('s_cbranch_vccz ' + D)
    A('s_cbranch_scc1 ' + L)
    A(D + ':')
    A.vm = vm_save
    stamp('mod seen')
    S('v_cmp_ne_u32 vcc, %s, v58', sXC)
    sum_partials(40, 'v150')
    unpack(44, 40)
    unpack(46, 41)
    A('s_cbranch_vccnz L_xcslow')
    A('L_local:')


def xc_slow():
    A('L_xcslow:')
    S('s_mov_b32 %s, 0', sCNT)
    A('L_xc1:')
    S('buffer_load_dword v58, v157, %s, 0 offen sc1', SRD_WS)
    S('s_add_u32 %s, %s, 1', sCNT, sCNT)
    A('s_waitcnt vmcnt(0)')
    S('v_cmp_ne_u32 vcc, %s, v58', sXC)
    A('s_cbranch_vccz L_local')
    S('s_cmp_lt_u32 %s, 32', sCNT)
    A('s_cbranch_scc1 L_xc1')
    S('s_lshl_b32 %s, %s, 6', t0, sLID)
    S('s_add_u32 %s, %s, %d', t0, t0, WS_XB)
    flag_store(t0, True, vXCV)
    S('s_lshl_b32 %s, %s, 11', t0, sX)
    S('s_add_u32 %s, %s, %d', t0, t0, WS_XB)
    S('v_lshl_add_u32 v59, v151, 6, %s', t0)
    S('buffer_load_dword v57, v59, %s, 0 offen sc1', SRD_WS)
    A('s_waitcnt vmcnt(0)')
    S('v_cmp_ne_u32 vcc, %s, v57', sXC)
    A('s_cbranch_vccz L_local')
    S('s_add_u32 %s, %s, 1', t0, sTAG)
    S('v_subrev_u32 v56, %s, v57', t0)
    A('v_cmp_le_u32 vcc, 16, v56')
    A('s_cbranch_vccz L_remote')
    S('s_cmp_lt_u32 %s, %d', sCNT, LIMIT)
    A('s_cbranch_scc1 L_xc1')
    A('L_remote:')


def h_phase(wst, pst):
    t = A('ds_write_b128 v158, v[44:47]')
    S('s_add_u32 %s, %s, 4096', t3, H_S)
    A.wait(lg=t)
    tr = []
    for i in range(4):
        S('ds_read_b128 %s, v159 offset:%d', vr(64 + 8 * i, 4), 256 * (i >> 1) + 16 * (i & 1))
        tr.append(S('ds_read_b128 %s, v159 offset:%d', vr(68 + 8 * i, 4), 512 + 256 * (i >> 1) + 16 * (i & 1)))
    for i in range(4):
        A.wait(lg=tr[i])
        for d in range(2):
            x = 24 + 4 * i + 2 * d
            S('v_pk_fma_f32 %s, %s, %s, %s', vr(x, 2), vr(x, 2), vr(68 + 8 * i + 2 * d, 2), vr(64 + 8 * i + 2 * d, 2))
        for d in range(2):
            x = 24 + 4 * i + 2 * d
            S('v_cvt_pk_bf16_f32 v%d, v%d, v%d', 16 + 2 * i + d, x, x + 1)
        if i & 1:
            ts = S('buffer_store_dwordx4 %s, %s, %s, %s offen%s', vr(16 + 4 * (i >> 1), 4), H_V, SRD_WS, (H_S, t3)[i >> 1], sc('h'))
    stamp('.h st')
    keep = 8 - OPT['wq0']
    wst.drip(max(0, min(OPT['n4'], len(wst) - keep)))
    swarm_at(4)
    sl = capture(setup_scalar)
    n0 = OPT['sv'] if len(wst) <= 11 else 0
    while any(l.startswith('s_cselect') for l in sl[n0:n0 + 2]):
        n0 += 1
    A.lines += sl[:n0]
    A.wait(vm=ts)
    flag_store(t4, not LOCAL[0])
    stamp('h pub')
    if OPT['tw1'] == 3:
        warm(SRD_W1, 14)
    role_only(lambda: pst.drip(4))
    nb = max(0, len(wst) - keep)
    wst.drip(nb)
    A.lines += sl[n0:]
    lanes = 0
    if LOCAL[0] and OPT['toy']:
        S('v_and_b32 v10, 7, %s', vLANE)
        S('v_bfe_u32 v11, %s, 3, 1', vLANE)
        S('v_lshl_add_u32 v10, v10, 7, %s', sOO)
        A('v_lshl_add_u32 v10, v11, 14, v10')
        S('v_and_b32 v11, 15, %s', vLANE)
        S('v_lshl_add_u32 v11, v11, 7, %s', sYO)
        S('v_cndmask_b32 v10, v11, v10, %s', sMASK)
        S('v_writelane_b32 v10, %s, 32', sSO)
        lanes |= (0xffff if OPT['po'] else 0) | (0x1ffff0000 if OPT['py'] else 0)
    if OPT['tfl'] == 1:
        S('v_writelane_b32 v10, %s, 33', sFKV)
        S('v_writelane_b32 v10, %s, 34', sFP)
        lanes |= 3 << 33
    if OPT['tlb'] & 1:
        for i, r in enumerate((sKVO, sR8, sOO, sYO, sHO[0], STG_H[0], sW2B)):
            S('s_or_b32 %s, %s, 0x1fff80', t0, r)
            S('v_writelane_b32 v10, %s, %d', t0, 35 + i)
        lanes |= 0x7f << 35
    if OPT['tlb'] & 2:
        A('s_mov_b64 exec, 1')
        S('buffer_load_dword v%d, off, %s, 0', JUNK + 1, SRD_OUT)
        A('s_mov_b64 exec, -1')
    if lanes:
        S('s_mov_b32 exec_lo, 0x%x', lanes & 0xffffffff)
        S('s_mov_b32 exec_hi, 0x%x', lanes >> 32)
        S('buffer_load_dword v%d, v10, %s, 0 offen sc1', JUNK + 2, SRD_WS)
        A('s_mov_b64 exec, -1')
    stamp('.dma iss')
    assert not len(pst)
    setup_vector()
    stamp('.setup v')


def qkv(wq, w1):
    RING = 4
    rd = {}

    def bread(s, tile):
        b = 64 + 8 * (s % RING)
        for half in range(2):
            rd[s] = S('ds_read_b64_tr_b16 %s, v13 offset:%d', vr(b + 4 * tile + 2 * half, 2), tile * 32768 + s * 1024 + half * 256)
    S('s_and_b32 %s, %s, 1', t4, sM)
    S('s_lshl_b32 %s, %s, 1', t4, t4)
    if OPT['hrot']:
        S('s_and_b32 %s, %s, %d', t3, sG, OPT['hrot'])
        S('s_lshl_b32 %s, %s, 13', t3, t3)
    if OPT['w1r'] == 2:
        S('s_lshr_b32 %s, %s, 2', t0, sX)
        S('v_lshl_add_u32 v%d, %s, 8, %s', W1V + 5, t0, vLANE)
        S('s_mul_i32 %s, %s, 192', t0, t0)
        S('v_subrev_u32 v%d, %s, %s', W1V + 6, t0, vLANE)
    twq = poll2(vPT, 0, 'h', sMASK, lambda: wq.drip(OPT['bh'])) or 0
    stamp('h seen')
    ta = []

    def aload(s):
        if OPT['hrot'] and s & 7 == 0:
            if s:
                S('s_add_u32 %s, %s, 8192', t3, t3)
                S('s_and_b32 %s, %s, 0x7fff', t3, t3)
            S('s_add_u32 %s, %s, %s', t2, sHL, t3)
        elif s and s & 3 == 0:
            S('s_add_u32 %s, %s, 4096', hl, hl)
        ta.append(S('buffer_load_dwordx4 %s, %s, %s, %s offen offset:%d sc1', vr(128 + 4 * s, 4), vL16, SRD_WS, hl, (s & 3) * 1024))
    hl = t2 if OPT['hrot'] else sHL
    AH = OPT['kvah']
    for s in range(AH):
        aload(s)
    A('s_barrier')
    for s in range(RING - 1):
        bread(s, 0)
        bread(s, 1)
    fill = capture(w1_addr)
    A.lines += fill[:12]
    fill = fill[12:]
    for s in range(32):
        b = 64 + 8 * (s % RING)
        A.wait(vm=ta[s], lg=rd[s])
        a = vr(128 + 4 * s, 4)
        S('%s v[16:31], %s, %s, %s', MF32, vr(b, 4), a, 'v[16:31]' if s else '0')
        if s + AH < 32:
            aload(s + AH)
        elif s + AH - 32 < OPT['wq1'] and len(wq):
            twq = wq.drip(1)
        if s + RING - 1 < 32:
            bread(s + RING - 1, 0)
        A.lines += fill[:1]
        S('%s v[32:47], %s, %s, %s', MF32, a, vr(b + 4, 4), 'v[32:47]' if s else '0')
        if s + RING - 1 < 32:
            bread(s + RING - 1, 1)
        A.lines += fill[1:3]
        fill = fill[3:]
    assert not fill
    stamp('kv pass')
    for p in range(4):
        for d in range(4):
            S('v_cvt_pk_bf16_f32 v%d, v%d, v%d', 48 + 4 * p + d, 16 + 8 * p + 2 * d, 17 + 8 * p + 2 * d)
        tkvs = S('buffer_store_dwordx4 %s, %s, %s, %s offen offset:%d sc1', vr(48 + 4 * p, 4), vL16, SRD_WS, sKVO, p * 1024)
    stamp('.kv st')
    if OPT['kb']:
        A('s_barrier')
    twq = wq.drip(OPT['wq2']) or twq
    for p in range(4):
        tl = S('ds_write_b128 %s, %s offset:%d', vKV, vr(48 + 4 * p, 4), 8 * 4096 + p * 1024)
    for nt in range(4):
        tl = prep_read(nt)
    S('v_and_b32 v11, 31, %s', vLANE)
    S('v_lshrrev_b32 v12, 5, %s', vLANE)
    A('v_lshlrev_b32 v12, 2, v12')
    A('v_sub_u32 v11, v11, v12')
    A('v_mov_b32 v12, 0xff800000')
    ms = ('s[90:91]', 's[92:93]', 's[94:95]')
    for r in range(18):
        if r < 16:
            S('v_cmp_le_i32 %s, %d, v11', ms[r % 3], (r & 3) + 8 * (r >> 2))
        if r >= 2:
            S('v_cndmask_b32 v%d, v12, 0, %s', MD + r - 2, ms[(r - 2) % 3])
            S('v_cndmask_b32 v%d, 0, v12, %s', MFAR + r - 2, ms[(r - 2) % 3])
    stamp('.masks')

    def kvflag():
        A.wait(vm=tkvs)
        flag_store(sFKV, True)
        stamp('kv pub')
    if OPT['qf'] < 0:
        kvflag()
    twq = wq.drip(99) or twq
    if OPT['tw1'] == 7:
        warm(SRD_W1, 14, 95, 95)
    ut_addr()
    S('s_lshl_b32 %s, %s, 12', t2, sW)
    S('s_mov_b32 %s, 0x3eb8aa3b', t0)
    S('s_mov_b32 %s, 0x3eb8aa3b', t1)
    A.wait(lg=tl)
    assert OPT['qf'] < 0
    if OPT['bk']:
        A.wait(vm=twq)
    else:
        role_only(lambda: ([prep_store(p) for p in range(4)], A.wait(vm=twq)), lambda: A.wait(vm=twq))
    A('s_barrier')
    stamp('wq ready')
    rq = {}

    def qread(s):
        b = 64 + 4 * (s % 6)
        for half in range(2):
            rq[s] = S('ds_read_b64_tr_b16 %s, v14 offset:%d', vr(b + 2 * half, 2), s * 1024 + half * 256)
    if OPT['qp'] == 0:
        tpoll = poll_load(vPKV, 0)
        if OPT['bk']:
            role_only(lambda: [prep_store(p) for p in range(4)])
    for s in range(5):
        qread(s)
    kq = Stream()
    tkv = {}
    for n, (t, slot, v) in enumerate(((sR4, 4, vD4), (sR8, 0, vD8))):
        for p in range(4):
            def f(n=n, t=t, v=v, p=p):
                tkv[n] = S('buffer_load_dwordx4 %s, %s, %s offen offset:%d sc1 lds', v, SRD_WS, t, p * 1024)
            kq.add(f, (lambda slot=slot: S('s_add_u32 m0, %s, %d', t2, L_KV + slot * 4096)) if p == 0 else None)
    assert OPT['w1r'] == 3 or OPT['bp'] + OPT['qd'] == 0
    assert OPT['bp'] + OPT['qd'] <= 14 and OPT['qp'] + OPT['bp'] < OPT['qchk']
    nq = OPT['qd']
    fill = capture(v_ones)
    for s in range(32):
        A.wait(lg=rq[s])
        S('%s v[48:63], %s, %s, %s', MF32, vr(64 + 4 * (s % 6), 4), vr(128 + 4 * s, 4), 'v[48:63]' if s else '0')
        if s and s == OPT['qp']:
            tpoll = poll_load(vPKV, 0)
        if OPT['qp'] < s <= OPT['qp'] + OPT['bp']:
            w1.drip(1)
        if s > OPT['qchk']:
            kq.pre()
        if s + 5 < 32:
            qread(s + 5)
        elif s == 28:
            rdK(0, 0)
            rdK(1, 0)
        elif s == 29:
            assert not fill
            rdV(0, 0)
        if s == OPT['qf']:
            kvflag()
        if s == OPT['qchk']:
            D = A.label('kvseen')
            stamp('.q chk')
            if OPT['bk']:
                role_only(lambda: A('s_waitcnt vmcnt(4)'), lambda: A.wait(vm=tpoll))
            else:
                A.wait(vm=tpoll)
            poll_test(sM2)
            A('s_cbranch_scc0 ' + D)
            vm_save = A.vm
            poll(vPKV, 0, 'kv', sM2)
            A.vm, A.vm_done = vm_save, tpoll
            A(D + ':')
            stamp('.polled')
            kq.drip(4)
        elif s > OPT['qchk'] and len(kq):
            kq.drip(2)
        elif s >= 6:
            if s > OPT['qchk'] and nq:
                w1.drip(1)
                nq -= 1
            A.lines += fill[:2]
            fill = fill[2:]
    kq.drip(99)
    w1.drip(nq)
    if OPT['tw1'] == 6:
        warm(SRD_W1, 14, 11, 12)
    stamp('q pass')
    return tkv


def mr_load(i):
    if i < 4:
        S('s_mov_b32 s65, %d', 12288 * i)
        return S('buffer_load_dwordx4 %s, %s, %s, s65 offen sc1', vr(MRD + 4 * i, 4), vMR0, SRD_WS)
    return S('buffer_load_dwordx4 %s, %s, %s, 0 offen sc1', vr(MRD + 16, 4), vMR1, SRD_WS)


def v_ones():
    if not OPT['vz']:
        for r in range(16):
            S('v_mov_b32 v%d, 0x3f803f80', V0 + r)
        return
    A('s_mov_b32 s92, 0x00110011')
    A('s_mov_b32 s93, 0x00110011')
    A('v_mov_b32 v10, 0x3f803f80')
    S('v_cndmask_b32 v%d, 0, v10, s[92:93]', V0)
    for r in range(1, 16):
        S('v_mov_b32 v%d, v%d', V0 + r, V0)


def tok_addr(dst, base):
    S('v_and_b32 v%d, 15, %s', dst, vLANE)
    S('v_lshrrev_b32 v%d, 3, %s', dst + 1, vLANE)
    S('v_and_b32 v%d, 6, v%d', dst + 1, dst + 1)
    S('v_xor_b32 v%d, v%d, v%d', dst + 1, dst + 1, dst)
    S('v_and_b32 v%d, 7, v%d', dst + 1, dst + 1)
    S('v_lshl_add_u32 v%d, v%d, 7, %s', dst, dst, base)
    S('v_lshl_add_u32 v%d, v%d, 4, v%d', dst, dst + 1, dst)
    S('v_xor_b32 v%d, 16, v%d', dst + 1, dst)


def kv_off(d, piece):
    return (8 - d) * 4096 + piece * 1024


def rdK(h, d):
    return S('ds_read_b128 %s, %s offset:%d', vr((K0, K1)[h], 4), vKV, kv_off(d, h))


def rdV(h, d):
    if d:
        S('s_cselect_b64 exec, -1, %s', (sLO, sHI)[h])
    else:
        S('s_mov_b64 exec, %s', (sLO, sHI)[h])
    S('ds_read_b128 %s, %s offset:%d', vr((V0, V1)[h], 4), vKV, kv_off(d, 2))
    t = S('ds_read_b128 %s, %s offset:%d', vr((V0, V1)[h] + 4, 4), vKV, kv_off(d, 3))
    A('s_mov_b64 exec, -1')
    return t


def attention(w1, tkv):
    bg = Stream()
    wo = frag_stream(sWOB, 4, 192)
    tk = {}
    RET, RETB = A.label('fpretry'), A.label('fpback')

    def fp_load():
        tk[0] = poll_load(vFP, 0)

    def fp_check():
        A.wait(vm=tk[0])
        S('v_cmp_ne_u32 vcc, %s, v15', sTAG)
        A('s_cbranch_vccnz ' + RET)
        A(RETB + ':')
    while len(bg) < OPT['aw1']:
        bg.q.append(w1.q.pop(0) if len(w1) else (lambda: None, None))
    if LOCAL[0] and OPT['po'] and OPT['toy'] != 1:
        bg.add(lambda: touch(vOO, sOO))
        bg.add(lambda: touch(vOO, sOO, 512))

    def y_touch():
        S('v_lshl_add_u32 v10, %s, 7, %s', vLANE, sYO)
        S('v_writelane_b32 v10, %s, 16', sSO)
        A('s_mov_b64 exec, 0x1ffff')
        S('buffer_load_dword v%d, v10, %s, 0 offen sc1', JUNK, SRD_WS)
        A('s_mov_b64 exec, -1')
    if LOCAL[0] and OPT['yov'] and OPT['ytp'] >= 0:
        bg.q.insert(OPT['ytp'], (y_touch, None))
    bg.q.insert(OPT['fpl'], (fp_load, None))
    bg.q.insert(OPT['fpf'], (lambda: None, lambda: role_only(lambda: flag_store(sFP, True))))
    bg.add(fp_check)
    chk = bg.q.pop()
    at = len(bg) - OPT['mrp']
    assert at >= 0
    bg.q[at:at] = [(lambda i=i: mr_load(i), None) for i in range(5)]
    bg.q.append(chk)
    nmust = len(bg)
    if not OPT['nobg'] & 4:
        bg.q += wo.q
    bg.q += w1.q
    ntail = len(bg) - nmust
    cut = max(nmust, OPT['ad'] + 34 - OPT['ae'])
    rest_, bg.q = bg.q[cut:], bg.q[:cut]

    def cop(d):
        return vr(MD, 16) if d == 0 else vr(MFAR, 16) if d == 8 else '0'

    for i in range(8):
        S('v_pk_mul_f32 %s, %s, s[76:77]', vr(48 + 2 * i, 2), vr(48 + 2 * i, 2))
    for i in range(8):
        S('v_cvt_pk_bf16_f32 v%d, v%d, v%d', 48 + i, 48 + 2 * i, 49 + 2 * i)
    A.wait(lg='all')
    S('%s %s, %s, %s, %s', MF32, vr(S0, 16), vr(K0, 4), vr(Q0, 4), cop(0))

    def half(h, d):
        S_, P, O, V = (S0, S1)[h], (P0, P1)[h], (O0, O1)[h], (V0, V1)[h]
        oS, oP, oO, oV, oK, oQ = (S1, S0)[h], (P1, P0)[h], (O1, O0)[h], (V1, V0)[h], (K1, K0)[h], (Q1, Q0)[h]
        od = d if h == 0 else d + 1
        first = d == 0 and h == 0
        if od <= 8:
            S('%s %s, %s, %s, %s', MF32, vr(oS, 16), vr(oK, 4), vr(oQ, 4), cop(od))
            if od:
                S('s_cmp_lt_u32 %s, %d', sT, od)
        if not first:
            if d + 1 <= 8:
                rdK(h, d + 1)
            bg.go()
        else:
            rdV(1, 0)
        for i in range(4):
            S('v_exp_f32 v%d, v%d', S_ + i, S_ + i)
        if not first:
            S('%s %s, %s, %s, %s', MF32, vr(oO, 16), vr(oV + 4, 4), vr(oP + 4, 4), vr(oO, 16))
            if od <= 8:
                rdV(1 - h, od)
            bg.pre()
        for i in range(4, 8):
            S('v_exp_f32 v%d, v%d', S_ + i, S_ + i)
        for i in range(4):
            S('v_cvt_pk_bf16_f32 v%d, v%d, v%d', P + i, S_ + 2 * i, S_ + 2 * i + 1)
        for i in range(8, 12):
            S('v_exp_f32 v%d, v%d', S_ + i, S_ + i)
        S('%s %s, %s, %s, %s', MF32, vr(O, 16), vr(V, 4), vr(P, 4), vr(O, 16) if d else '0')
        if first:
            A.wait(vm=tkv[1 - OPT['kv2']])
            A('s_barrier')
            stamp('kv loaded')
            rdK(0, 1)
            bg.drip(OPT['ad'])
        else:
            if OPT['kv2'] and d == 3 and h == 1:
                A.wait(vm=tkv[1], lg='all')
                A('s_barrier')
            A.wait(lg='all')
            bg.go()
        bg.pre()
        for i in range(12, 16):
            S('v_exp_f32 v%d, v%d', S_ + i, S_ + i)
        for i in range(4, 8):
            S('v_cvt_pk_bf16_f32 v%d, v%d, v%d', P + i, S_ + 2 * i, S_ + 2 * i + 1)
        if first:
            A.wait(lg='all')

    for d in range(9):
        if d in (3, 6):
            stamp('.d%d' % d)
        half(0, d)
        half(1, d)
    bg.drip(99)
    w1.q, w1.ready = rest_, False
    S('%s %s, %s, %s, %s', MF32, vr(O1, 16), vr(V1 + 4, 4), vr(P1 + 4, 4), vr(O1, 16))
    stamp('att done')
    FB, OK = A.label('fb'), A.label('attok')
    S('s_mov_b32 %s, 0x1f800000', t0)
    S('s_mov_b32 %s, 0x5f800000', t1)
    S('s_mov_b32 %s, 0x7f000000', t2)
    S('v_add_f32 v10, abs(v%d), abs(v%d)', O0, O0 + 1)
    for i in range(2, 8):
        S('v_add_f32 v10, v10, abs(v%d)', O0 + i)
    S('v_cmp_nle_f32 vcc, %s, v%d', t0, O0 + 8)
    S('v_cmp_nge_f32 s[92:93], %s, v%d', t1, O0 + 8)
    for i in range(8):
        S('v_add_f32 v10, v10, abs(v%d)', O1 + 8 + i)
    A('s_or_b64 vcc, vcc, s[92:93]')
    S('v_cmp_nle_f32 s[92:93], %s, v%d', t0, O1)
    S('v_cmp_nge_f32 s[94:95], %s, v%d', t1, O1)
    S('v_cmp_ngt_f32 s[90:91], %s, v10', t2)
    S('v_rcp_f32 v10, v%d', O0 + 8)
    S('v_rcp_f32 v12, v%d', O1)
    A('s_or_b64 vcc, vcc, s[92:93]')
    A('s_or_b64 vcc, vcc, s[94:95]')
    A('s_or_b64 vcc, vcc, s[90:91]')
    if OPT['force_fallback']:
        A('s_branch ' + FB)
    A('s_cbranch_scc1 ' + FB)
    A(OK + ':')
    for h, (src, rc) in enumerate(((O0, 10), (O1 + 8, 12))):
        for i in range(4):
            S('v_pk_mul_f32 %s, %s, %s op_sel_hi:[1,0]', vr(src + 2 * i, 2), vr(src + 2 * i, 2), vr(rc, 2))
        for i in range(4):
            S('v_cvt_pk_bf16_f32 v%d, v%d, v%d', P0 + 4 * h + i, src + 2 * i, src + 2 * i + 1)
        ts = S('buffer_store_dwordx4 %s, %s, %s, %s offen offset:%d%s', vr(P0 + 4 * h, 4), vOO, SRD_WS, sOO, h * 512, sc('o'))
    return (FB, OK, RET, RETB), ts


def out_of_line(FB, OK, RET, RETB):
    A(RET + ':')
    A('s_cselect_b32 s66, 1, 0')
    poll(vFP, 0, 'fp', '-1')
    A('s_cmp_lg_u32 s66, 0')
    A('s_branch ' + RETB)
    A(FB + ':')
    S('s_min_u32 %s, %s, 8', t3, sT)
    v_ones()
    for h in range(2):
        Kp, Q, O, V = h, (Q0, Q1)[h], (O0, O1)[h], (V0, V1)[h]
        for ps in range(2):
            L, ND, NF = A.label('fl'), A.label('fnd'), A.label('fnf')
            S('s_mov_b32 %s, 0', t4)
            S('v_add_u32 v10, %d, %s', 8 * 4096, vKV)
            if ps == 0:
                A('v_mov_b32 v11, 0xff800000')
            else:
                for r in range(16):
                    S('v_mov_b32 v%d, 0', O + r)
            A(L + ':')
            S('ds_read_b128 %s, v10 offset:%d', vr(K0, 4), Kp * 1024)
            if ps == 1:
                S('s_mov_b64 exec, %s', (sLO, sHI)[h])
                S('ds_read_b128 %s, v10 offset:2048', vr(V, 4))
                S('ds_read_b128 %s, v10 offset:3072', vr(V + 4, 4))
                A('s_mov_b64 exec, -1')
            A('s_waitcnt lgkmcnt(0)')
            S('%s %s, %s, %s, 0', MF32, vr(S0, 16), vr(K0, 4), vr(Q, 4))
            A('s_nop 15')
            S('s_cmp_lg_u32 %s, 0', t4)
            A('s_cbranch_scc1 ' + ND)
            for r in range(16):
                S('v_add_f32 v%d, v%d, v%d', S0 + r, S0 + r, MD + r)
            A(ND + ':')
            S('s_cmp_lg_u32 %s, 8', t4)
            A('s_cbranch_scc1 ' + NF)
            for r in range(16):
                S('v_add_f32 v%d, v%d, v%d', S0 + r, S0 + r, MFAR + r)
            A(NF + ':')
            if ps == 0:
                for r in range(8):
                    S('v_max3_f32 v11, v11, v%d, v%d', S0 + 2 * r, S0 + 2 * r + 1)
            else:
                for r in range(16):
                    S('v_sub_f32 v%d, v%d, v11', S0 + r, S0 + r)
                for r in range(16):
                    S('v_exp_f32 v%d, v%d', S0 + r, S0 + r)
                for r in range(8):
                    S('v_cvt_pk_bf16_f32 v%d, v%d, v%d', P0 + r, S0 + 2 * r, S0 + 2 * r + 1)
                S('%s %s, %s, %s, %s', MF32, vr(O, 16), vr(V, 4), vr(P0, 4), vr(O, 16))
                S('%s %s, %s, %s, %s', MF32, vr(O, 16), vr(V + 4, 4), vr(P0 + 4, 4), vr(O, 16))
                A('s_nop 15')
            A('v_subrev_u32 v10, 4096, v10')
            S('s_add_u32 %s, %s, 1', t4, t4)
            S('s_cmp_le_u32 %s, %s', t4, t3)
            A('s_cbranch_scc1 ' + L)
            if ps == 0:
                A('v_mov_b32 v12, v11')
                A('v_permlane32_swap_b32 v11, v12')
                A('v_max_f32 v11, v11, v12')
    S('v_rcp_f32 v10, v%d', O0 + 8)
    S('v_rcp_f32 v12, v%d', O1)
    A('s_nop 1')
    A('s_branch ' + OK)


def ring_gemm(nks, STG, areg, ring_base, ring_n, ahead, split=(), pre=None, post=None, npost=0, extra=None, head=None):
    ta = {}
    aq = Stream()
    n = 4 * nks
    for i in range(n):
        st, k = divmod(i, nks)
        r = ring_base + 4 * (i % ring_n)

        def pr(st=st, k=k):
            if k and k & 3 == 0:
                S('s_add_u32 %s, %s, 4096', STG[st], STG[st])

        def f(i=i, st=st, k=k, r=r):
            if k in split:
                for d in range(4):
                    ta[i] = S('buffer_load_dword v%d, %s, %s, %s offen offset:%d sc1', r + d, vL8, SRD_WS, STG[st], (k & 3) * 1024 + 256 * d)
            else:
                ta[i] = S('buffer_load_dwordx4 %s, %s, %s, %s offen offset:%d sc1', vr(r, 4), vL16, SRD_WS, STG[st], (k & 3) * 1024)
        aq.add(f, pr)
    assert ahead < ring_n or n <= ring_n
    aq.drip(ahead)
    if head:
        head()
    btick = {}
    long_ = nks >= 8
    acc = (CA, CB, CA, CO) if long_ else (CA, CB, 112, CO)
    tw = {}
    for i in range(n):
        st, k = divmod(i, nks)
        tk = ta[i]
        assert not pre or len(pre) <= 4 * (nks - 1 - i) or not len(pre)
        if st == 0 and k in btick:
            tk = max(tk, btick[k])
        lgw = None
        slots = [[], [], [], []]

        def wr(g, st=st):
            tw[st - 1] = S('ds_write_b128 v%d, %s offset:%d', vRW[st - 1], vr(acc[st - 1] + 4 * g, 4), g * 1024)

        def rds(dst, off):
            for g in range(4):
                slots[g].append(lambda g=g: S('ds_read_b128 %s, v%d offset:%d', vr(dst + 4 * g, 4), vRR, off + g * 1024))
        if k == 0 and OPT['fine'] in (3, 4):
            A.wait(vm=tk)
            stamp('.st%d' % st)
        if long_:
            if st >= 1 and 1 <= k <= 4:
                slots[3].append(lambda k=k: wr(k - 1))
            if st >= 2 and k == 0 or (st == 3 and k == 7):
                A.wait(vm=tk, lg='all')
                A('s_barrier')
                rds(*((CO, 0) if st == 2 else (CR, 4096) if k == 0 else (CB, 0)))
            if st == 3 and k in (10, 11, 12, 13):
                lgw = 'all'
                for g in range(4):
                    r = 4 * (k - 10) + g
                    slots[g].append(lambda r=r: S('v_add_f32 v%d, v%d, v%d', CR + r, CR + r, CB + r))
        else:
            if st >= 1:
                slots[3 - k].append(lambda k=k: wr(k))
            if st == 2 and k == 1:
                A.wait(vm=tk, lg=tw[0])
                A('s_barrier')
                rds(CO, 0)
            if st == 3 and k == 0:
                A.wait(vm=tk, lg='all')
                A('s_barrier')
                rds(CR, 4096)
        if extra:
            extra(st, k, slots)
        A.wait(vm=tk, lg=lgw)
        a = vr(ring_base + 4 * (i % ring_n), 4)
        for nt in range(4):
            c = vr(acc[st] + 4 * nt, 4)
            S('%s %s, %s, %s, %s', MF16, c, ar(areg + 16 * k + 4 * nt, 4), a, c if (k or st == 3) else '0')
            if nt == 0:
                aq.pre()
            if nt == 1:
                if len(aq):
                    aq.go()
                elif post and npost > 0:
                    post.drip(1)
                    npost -= 1
            if nt == 2:
                if pre and len(pre):
                    kk = nks - (len(pre) + 3) // 4
                    btick[kk] = pre.drip(1)
                elif not len(aq) and post and npost > 0:
                    post.drip(1)
                    npost -= 1
            for f in slots[nt]:
                f()
    if post and npost > 0:
        post.drip(npost)
    stamp('.mm end')
    if not long_:
        A.wait(lg='all')
        A('s_barrier')
        for g in range(4):
            tr = S('ds_read_b128 %s, v%d offset:%d', vr(CB + 4 * g, 4), vRR, g * 1024)
    for g in range(8):
        S('v_pk_add_f32 %s, %s, %s', vr(CO + 2 * g, 2), vr(CO + 2 * g, 2), vr(CR + 2 * g, 2))
    if not long_:
        for g in range(4):
            A.wait(lg=tr - 3 + g)
            for e in range(2):
                r = 4 * g + 2 * e
                S('v_pk_add_f32 %s, %s, %s', vr(CO + r, 2), vr(CO + r, 2), vr(CB + r, 2))


def wo_phase(ts, w1, w2):
    stamp('.o st')
    if OPT['ob']:
        A('s_barrier')
    w1.drip(OPT['ow1'])
    A.wait(vm=ts - 2)
    L, D = A.label('pmr'), A.label('dmr')
    S('s_mov_b32 %s, 0', sCNT)
    A(L + ':')
    for i in range(5):
        untag(MRD + 4 * i, 84, i == 0)
    untag_test(84)
    A('s_cbranch_vccz ' + D)
    S('s_add_u32 %s, %s, 1', sCNT, sCNT)
    S('s_cmp_ge_u32 %s, %d', sCNT, LIMIT)
    A('s_cbranch_scc1 ' + D)
    vm_save = A.vm
    for i in range(5):
        mr_load(i)
    A.vm = vm_save
    A('s_waitcnt vmcnt(0)')
    A('s_branch ' + L)
    A(D + ':')
    A.wait(vm=ts)
    flag_store(sFO, not LOCAL[0])
    stamp('o pub')
    if OPT['ct'] & 1:
        code_touch('v10', 'v%d' % JUNK)
    w1.drip(max(0, len(w1) - OPT['bo']))
    if LOCAL[0] and OPT['py'] and OPT['toy'] != 1 and not OPT['yov']:
        touch(vL16, sYO)
        touch(vL16, sYO, 1024)
        S('buffer_load_dword v%d, %s, %s, %s offen sc1', JUNK, vSS, SRD_WS, sSO)
    S('s_cmp_ge_u32 %s, 2', sW)
    S('s_cselect_b32 %s, 1.0, 0', t4)
    g = MRD + 16
    S('v_permlane32_swap_b32 v%d, v%d', g, g + 1)
    S('v_permlane32_swap_b32 v%d, v%d', g + 2, g + 3)
    S('v_add_f32 v%d, v%d, v%d', g, g, g + 1)
    S('v_add_f32 v%d, v%d, v%d', g + 2, g + 2, g + 3)
    sum_partials(MRD, t4)
    S('v_permlane16_swap_b32 v%d, v%d', g, g + 2)
    S('v_add_f32 v%d, v%d, v%d', g, g, g + 2)
    S('v_cvt_pk_bf16_f32 v%d, v%d, v%d', g, g, g)
    S('v_lshlrev_b32 v12, 16, v%d', g)
    S('s_lshl_b32 %s, %s, 11', t0, sW)
    S('s_add_u32 %s, %s, %d', t0, t0, L_RED + 32768)
    S('s_mov_b32 %s, 8192', t1)
    tok_addr(13, t0)
    S('v_mov_b32 v95, %s', vG2A)
    assert OPT['uh'] == 0
    A('s_barrier')
    for p in range(2):
        S('s_add_u32 m0, %s, %d', t0, 1024 * p)
        S('buffer_load_dwordx4 %s, %s, %s offen lds', vXO, SRD_X, ('0', t1)[p])
    S('ds_write_b64 %s, %s', vMW, vr(MRD, 2))
    t = S('ds_write_b32 %s, v12', vGW)
    A.wait(lg=t)
    stamp('.mr')
    assert not w1.ready
    poll2(vPG, 64, 'o', sGM, lambda: w1.drip(99))
    stamp('o seen')

    tx = {}

    def head():
        for i in range(2):
            tx[0] = S('ds_read_b128 %s, v%d', vr(192 + 4 * i, 4), 13 + i)
        A.wait(lg=tx[0])
        for i in range(8):
            unpack(X2 + 2 * i, 192 + i)

    def extra(st, k, slots):
        if st == 2 and k == 2:
            for i in range(2):
                slots[2 + i].append(lambda i=i: S('ds_read_b128 %s, v95 offset:%d', vr(80 + 4 * i, 4), 16 * i))
        if st == 2 and k == 3:
            for i in range(3):
                slots[1 + i].append(lambda i=i: S('ds_read_b128 %s, %s offset:%d', vr(GA + 4 * i, 4), vGAB, 16 * i))
        if st == 3 and k == 1:
            slots[0].append(lambda: S('ds_read_b128 %s, %s offset:48', vr(GA + 12, 4), vGAB))
        if st == 3 and k >= 1:
            for i in range(8):
                if i * 3 // 8 == k - 1:
                    slots[(i + 1) & 3].append(lambda i=i: unpack(G2 + 2 * i, 80 + i))
    ring_gemm(4, STG_O, 192, 128, 16, OPT['woah'], post=w2, npost=OPT['w2a'], extra=extra, head=head)
    stamp('wo gemm')
    for e in range(2):
        for i in range(4 * e, 4 * e + 4):
            S('v_pk_fma_f32 %s, %s, %s, %s', vr(X2 + 2 * i, 2), vr(CO + 2 * i, 2), vr(GA + 2 * i, 2), vr(X2 + 2 * i, 2))
        for i in range(4 * e, 4 * e + 4):
            S('v_pk_mul_f32 %s, %s, %s', vr(G2 + 2 * i, 2), vr(X2 + 2 * i, 2), vr(G2 + 2 * i, 2))
        for i in range(4 * e, 4 * e + 4):
            S('v_cvt_pk_bf16_f32 v%d, v%d, v%d', 192 + i, G2 + 2 * i, G2 + 1 + 2 * i)
        S('buffer_store_dwordx4 %s, %s, %s, %s offen offset:%d%s', vr(192 + 4 * e, 4), vL16, SRD_WS, sYO, e * 1024, sc('y'))
    S('v_pk_add_f32 v[200:201], %s, %s', vr(X2, 2), vr(X2 + 2, 2))
    S('v_pk_mul_f32 v[202:203], %s, %s', vr(X2, 2), vr(X2, 2))
    S('v_pk_fma_f32 v[202:203], %s, %s, v[202:203]', vr(X2 + 2, 2), vr(X2 + 2, 2))
    for i in range(2, 8):
        S('v_pk_add_f32 v[200:201], v[200:201], %s', vr(X2 + 2 * i, 2))
        S('v_pk_fma_f32 v[202:203], %s, %s, v[202:203]', vr(X2 + 2 * i, 2), vr(X2 + 2 * i, 2))
    A('v_add_f32 v200, v200, v201')
    A('v_add_f32 v202, v202, v203')
    A('v_permlane32_swap_b32 v200, v202')
    A('v_add_f32 v200, v200, v202')
    A('v_mov_b32 v201, v200')
    A('v_permlane16_swap_b32 v200, v201')
    A('v_add_f32 v200, v200, v201')
    ts = S('buffer_store_dword v200, %s, %s, %s offen%s', vSS, SRD_WS, sSO, sc('y'))
    stamp('.y st')
    return ts


UACC = (96, 204)


def ut_steps(k0, k1, hook=None, tail=None):
    rd = {}
    UB = 16

    def rv(ks):
        S('ds_read_b128 %s, v%d offset:%d', vr(UB + 12 * (ks % 4), 4), UTA + 4, 128 * (ks >> 1) + 16 * (ks & 1))

    def rt(ks, n):
        for half in range(2):
            rd[ks] = S('ds_read_b64_tr_b16 %s, v%d offset:%d', vr(UB + 12 * (ks % 4) + 4 + 4 * n + 2 * half, 2), UTA + 2 * n + (ks >> 3), (ks & 7) * 7168 + half * 8 * 224)
    if OPT['dbg'] & 32:
        for ks in range(k0 - 1, k1):
            if tail and ks >= 14:
                tail(ks, 0), tail(ks, 1)
            if hook:
                hook(ks)
        return
    for ks in range(k0, min(k0 + 3, k1)):
        rv(ks), rt(ks, 0), rt(ks, 1)
    if hook:
        hook(k0 - 1)
    for ks in range(k0, k1):
        A.wait(lg=rd[ks])
        b = UB + 12 * (ks % 4)
        for n in range(2):
            c = vr(UACC[n], 4)
            S('%s %s, %s, %s, %s', MF16, c, vr(b + 4 + 4 * n, 4), vr(b, 4), c if ks else '0')
            if ks + 3 < k1:
                if n == 0:
                    rv(ks + 3)
                rt(ks + 3, n)
            elif tail:
                tail(ks, n)
        if hook:
            hook(ks)


TPA = [0]


def g1_phase(ts, w2):
    passes = ((0, 1, 2, 3, 6), (4, 5)) if OPT['gsplit'] == 1 or OPT['two'] else ((0, 1, 2, 3), (4, 5, 6)) if OPT['gsplit'] == 2 else ((0, 1, 2, 3, 4, 5, 6),)
    groups = [(ks, nt) for p in passes for ks in range(16) for nt in p]
    AHB = 5
    ta = {}
    aq = Stream()
    for ks in range(16):
        for tt in range(2):
            def pr(ks=ks, tt=tt):
                if ks and ks & 3 == 0:
                    if OPT['w1r'] != 3:
                        S('s_add_u32 %s, %s, 4096', sYL[tt], sYL[tt])
                    elif tt == 0:
                        S('s_add_u32 %s, %s, 4096', sYL[0], sYL[0])
                        S('s_bitset0_b32 %s, 14', sYL[0])
                    else:
                        S('s_add_u32 %s, %s, 16384', sYL[1], sYL[0])

            def f(ks=ks, tt=tt):
                ta[ks, tt] = S('buffer_load_dwordx4 %s, %s, %s, %s offen offset:%d sc1', vr(YA + 8 * ks + 4 * tt, 4), vL16, SRD_WS, sYL[tt], (ks & 3) * 1024)
            aq.add(f, pr)
    first = list(aq.q[:8])
    LATE = A.label('ylate')
    rb = {}

    def bread(g, half):
        ks, nt = groups[g]
        rb[g] = S('ds_read_b64_tr_b16 %s, v%d offset:%d', vr(BF + 4 * (g % 6) + 2 * half, 2), (vT1, vT2)[ks >> 3], (ks & 7) * 7168 + half * 8 * 224 + nt * 32)
    tp = {}

    def hook(ks):
        if ks == OPT['uh'] - 1:
            if OPT['yb']:
                A('s_barrier')
            w2.drip(OPT['w2b0'])
            S('s_mov_b32 %s, 1', t5)
        if ks == OPT['uf']:
            A.wait(vm=ts)
            flag_store(sFY, not LOCAL[0])
            stamp('y pub')
            w2.drip(OPT['w2b'] - OPT['w2b0'] - OPT['by'])
        if ks == OPT['up']:
            tp[0] = poll_load(vPT, 128)
            w2.drip(OPT['by'])
        if ks == OPT['uc']:
            A.wait(vm=tp[0])
            poll_test(sMASK)
            A('s_cbranch_scc1 ' + LATE)
            aq.drip(8)
            S('s_mov_b32 %s, 0', t5)
            A(LATE + ':')

    def tail(ks, n):
        if ks >= 14:
            bread(2 * (ks - 14) + n, 0)
            bread(2 * (ks - 14) + n, 1)
    assert OPT['uh'] - 1 <= OPT['uf'] <= OPT['up'] < OPT['uc'] and OPT['uh'] <= 11
    ut_steps(OPT['uh'], 16, hook, tail)
    S('ds_write_b128 v%d, %s', UTA + 5, vr(UACC[0], 4))
    tuw = S('ds_write_b128 v%d, %s', UTA + 6, vr(UACC[1], 4))
    bread(4, 0)
    bread(4, 1)
    OKK = A.label('yok')
    S('s_cmp_eq_u32 %s, 0', t5)
    A.wait(lg=tuw)
    A('s_barrier')
    A('s_cbranch_scc1 ' + OKK)
    vm_save, vd, tas = A.vm, A.vm_done, dict(ta)
    poll(vPT, 128, 'y', sMASK)
    for f, pr in first:
        f()
    A.vm, A.vm_done = vm_save, vd
    ta.update(tas)
    A(OKK + ':')
    stamp('y seen')
    aq.drip(2)
    split = len(passes) > 1
    SR = ACC + 8 * passes[1][0] if split else YA
    RP = 10
    tst = {}
    sq = []
    for p in range(8):
        def f(p=p):
            tst[0] = S('buffer_load_dword v%d, %s, %s, %s offen offset:%d sc1', SR + p, vSL, SRD_WS, sSL, p * 128)
        sq.append((f, None))
    if split:
        aq.q[8:8] = sq
    else:
        aq.q += sq
    nw = (OPT['w2f'], OPT['w2c'] - OPT['w2e'] - OPT['w2f']) if split else (OPT['w2c'],)

    def stats():
        for n in (4, 2, 1):
            for i in range(n):
                S('v_add_f32 v%d, v%d, v%d', SR + i, SR + i, SR + n + i)
        S('v_mul_f32 v%d, 0x3b000000, v%d', SR, SR)
        S('v_mov_b32 v%d, v%d', SR + 1, SR)
        S('v_permlane32_swap_b32 v%d, v%d', SR, SR + 1)
        S('v_fma_f32 v%d, -v%d, v%d, v%d', SR + 1, SR, SR, SR + 1)
        S('v_max_f32 v%d, 0, v%d', SR + 1, SR + 1)
        S('v_add_f32 v%d, 0x3727c5ac, v%d', SR + 1, SR + 1)
        S('v_rsq_f32 v%d, v%d', RP, SR + 1)
        S('v_mul_f32 v%d, -v%d, v%d', RP + 1, SR, RP)
        S('v_mov_b32 v%d, v%d', RP + 2, RP)
        S('v_mov_b32 v%d, v%d', RP + 3, RP + 1)
        S('v_permlane16_swap_b32 v%d, v%d', RP, RP + 2)
        S('v_permlane16_swap_b32 v%d, v%d', RP + 1, RP + 3)
    fill = capture(stats)
    tu = {}

    def epilogue(nts, ub, drip, defer):
        pre = isinstance(ub, int)

        def rut(i):
            for e in range(2):
                tu[i] = S('ds_read_b128 %s, %s offset:%d', vr(ub[i & 1] + 4 * e, 4), vUTR, 512 * e + nts[i] * 64)
        if not pre:
            rut(0)
            rut(1)
        ts = None
        for i, nt in enumerate(nts):
            A.wait(lg=tu[i])
            u = ub + 8 * i if pre else ub[i & 1]
            for tt in range(2):
                rp = vr(RP + 2 * tt, 2)
                c = ACC + 8 * nt + 4 * tt
                o = ACC + 8 * (nt & ~1) + 4 * tt + 2 * (nt & 1)
                for e in range(2):
                    S('v_pk_fma_f32 %s, %s, %s, %s op_sel:[0,1,0] op_sel_hi:[1,1,1]', vr(96 + 2 * e, 2), vr(u + 2 * e, 2), rp, vr(u + 4 + 2 * e, 2))
                for e in range(2):
                    S('v_pk_fma_f32 %s, %s, %s, %s op_sel:[0,0,0] op_sel_hi:[1,0,1]', vr(96 + 2 * e, 2), vr(c + 2 * e, 2), rp, vr(96 + 2 * e, 2))
                if tt == 1 and i + 2 < len(nts) and not pre:
                    rut(i + 2)
                for e in range(2):
                    S('v_cvt_pk_bf16_f32 v%d, v%d, v%d', o + e, 96 + 2 * e, 97 + 2 * e)
                for e in range(2):
                    S('v_pk_max_i16 v%d, v%d, 0', o + e, o + e)
                if nt == 6:
                    for e in range(2):
                        ts = S('buffer_store_dword v%d, %s, %s, %s offen offset:%d%s', o + e, vH2, SRD_WS, sHO[tt], 3072 + 256 * e, sc('hid'))
                elif nt & 1:
                    f = lambda o=o, tt=tt, nt=nt: S('buffer_store_dwordx4 %s, %s, %s, %s offen offset:%d%s', vr(o - 2, 4), vH4, SRD_WS, sHO[tt], (nt >> 1) * 1024, sc('hid'))
                    ts = (ts or []) + [f] if defer else f()
                if drip > 0 and (nt & 1 or nt == 6):
                    w2.drip(min(2, drip))
                    drip -= 2
        w2.drip(max(0, drip))
        return ts
    g = 0
    for pi, p in enumerate(passes):
        L = len(p)
        for _ in range(nw[pi]):
            if len(w2):
                aq.q.append(w2.q.pop(0))
        for ks in range(16):
            if split:
                n = OPT['r1' if ks < 3 else 'r2' if ks < 6 else 'r3' if ks < 11 else 'r4'] if pi == 0 else 1
            else:
                n = ([3, 3, 3, 3, 3, 3, 4, 6] + [4] * 8)[ks]
            for i, nt in enumerate(p):
                go = (i + 1) * n // L > i * n // L and len(aq)
                if i % 2 == 0:
                    vmw = ta[ks, 1] if (i == 0 and pi == 0) else None
                    if pi == 0 and ks == 11 and i == 0:
                        vmw = max(vmw, tst[0])
                    A.wait(vm=vmw, lg=rb[g + 1] if i + 1 < L else rb[g])
                for tt in range(2):
                    t_ = tt ^ (i & OPT['snake'])
                    c = vr(ACC + 8 * nt + 4 * t_, 4)
                    S('%s %s, %s, %s, %s', MF16, c, vr(BF + 4 * (g % 6), 4), vr(YA + 8 * ks + 4 * t_, 4), c if ks else '0')
                    if go and tt == 0:
                        aq.pre()
                    if g + AHB < 112:
                        bread(g + AHB, tt)
                    if ks == 15 and pi == len(passes) - 1:
                        tu[i] = S('ds_read_b128 %s, %s offset:%d', vr(176 + 8 * i + 4 * tt, 4), vUTR, 512 * tt + nt * 64)
                    if go and tt == 0:
                        aq.go()
                    elif ks >= 11 and fill and (tt == 0 or (i % 2 == 0 and i + 1 < L)):
                        A.lines.append(fill.pop(0))
                g += 1
            if ks == 7:
                stamp('.p%d mid' % pi)
            if OPT['two'] and pi == 1 and ks == OPT['fa']:
                A.wait(vm=ts)
                flag_store(sFHID, not LOCAL[0])
        A.lines += fill
        fill = []
        aq.drip(99)
        last = pi == len(passes) - 1
        stamp('g1 gemm' if last else '.pass1')
        if last and OPT['two'] and OPT['pa']:
            TPA[0] = poll_load(vPG, 192)
            w2.drip(99)
        ts = epilogue(p, 176 if last else (SR, SR + 8), 0 if last else OPT['w2e'], last and OPT['two'])
        if not last:
            stamp('.epi1')
    return ts


def g2_two(stores, w2):
    KA, KB = (0, 1, 3, 4, 5, 7, 8, 10, 11, 12), (2, 6, 9, 13)
    oa, ahead = OPT['oa'], OPT['ah']
    order = [(st, k) for st in range(3) for k in KA] + [(3, k) for k in KA[:oa]]
    nA = len(order)
    order += [(st, k) for st in range(3) for k in KB] + [(3, k) for k in KA[oa:] + KB]
    acc = (CA, CB, CR, CO)
    stamp('.hid st')
    tsB = None
    if OPT['bst'] == 0:
        for f in stores:
            tsB = f()
    w2.drip(99)
    for i in range(4):
        t = S('ds_read_b128 %s, %s offset:%d', vr(GB + 4 * i, 4), vGAB, 256 + 16 * i)
    S('v_add_u32 v12, 1, %s', vTAG)
    stamp('hid pub')
    if OPT['pa']:
        assert OPT['bst']
        D = A.label('hida')
        A.wait(vm=TPA[0])
        poll_test(sGM, 'v15', 1)
        A('s_cbranch_scc0 ' + D)
        vm_save = A.vm
    poll(vPG, 192, 'hid', sGM, 1)
    if OPT['pa']:
        A.vm, A.vm_done = vm_save, TPA[0]
        A(D + ':')
    stamp('hid seen')
    if OPT['bst'] == 0:
        flag_store(sFHID, not LOCAL[0], 'v12')
    ta = {}
    aq = Stream()
    for i, (st, k) in enumerate(order):
        r = 112 + 4 * (i % 16)

        def pr(st=st, k=k):
            if k >> 2:
                S('s_add_u32 %s, %s, %d', t2, STG_H[st], (k >> 2) * 4096)

        def f(i=i, st=st, k=k, r=r):
            so = t2 if k >> 2 else STG_H[st]
            if k in (3, 10):
                for d in range(4):
                    ta[i] = S('buffer_load_dword v%d, %s, %s, %s offen offset:%d sc1', r + d, vL8, SRD_WS, so, (k & 3) * 1024 + 256 * d)
            else:
                ta[i] = S('buffer_load_dwordx4 %s, %s, %s, %s offen offset:%d sc1', vr(r, 4), vL16, SRD_WS, so, (k & 3) * 1024)
        aq.add(f, pr if (i == 0 or order[i - 1][0] != st or order[i - 1][1] >> 2 != k >> 2) else None)
    aq.drip(ahead)
    if OPT['bst']:
        for f in stores:
            tsB = f()
    S('s_lshl_b32 %s, %s, 13', t0, sW)
    S('s_add_u32 %s, %s, %d', t0, t0, L_RED + 4096)
    S('s_mov_b32 %s, 8192', t1)
    tok_addr(13, t0)
    S('v_subrev_u32 v%d, 40960, v%d', vRW[2], vRW[2])
    S('v_subrev_u32 v11, 40960, v%d', vRR)
    seen = set()
    last = {st: max(i for i, o in enumerate(order) if o[0] == st) for st in range(4)}
    wq, rq, vq = [], [], []
    bar = last[2] + 6
    n = len(order)
    tr = {}
    for i, (st, k) in enumerate(order):
        if i in (0, 10, 20, nA, last[2] + 1) and OPT['fine'] == 4:
            A.wait(vm=ta[i])
            stamp('.s%d' % i)
        if i == nA - ahead:
            D = A.label('hidb')
            A.wait(vm=tp)
            poll_test(sGM, 'v15', 2)
            A('s_cbranch_scc0 ' + D)
            vm_save, vd = A.vm, A.vm_done
            poll(vPG, 192, 'hb', sGM, 2)
            A.vm, A.vm_done = vm_save, vd
            A(D + ':')
        if i == nA:
            A('s_barrier')
        if i == bar:
            assert not wq
            A.wait(vm=ta[i], lg='all')
            A('s_barrier')
            for p, (va, off) in enumerate(((vRR, 0), (vRR, 4096), (11, 0))):
                for g in range(4):
                    def f(p=p, g=g, va=va, off=off):
                        tr[p] = S('ds_read_b128 %s, v%d offset:%d', vr(acc[p] + 4 * g, 4), va, off + g * 1024)
                    rq.append(f)
        lgw = None
        if i == bar + 3:
            lgw = tr[1]
            vq += ['v_add_f32 v%d, v%d, v%d' % (CA + r, CA + r, CB + r) for r in range(16)]
        if i == bar + 5:
            lgw = tr[2]
            vq += ['v_add_f32 v%d, v%d, v%d' % (CA + r, CA + r, CR + r) for r in range(16)]
            if OPT['pre2']:
                vq += ['v_fmac_f32 v%d, v%d, v%d' % (X2 + r, CA + r, GB + r) for r in range(16)]
        A.wait(vm=ta[i], lg=lgw)
        if OPT['bst'] and i == ahead:
            A.wait(vm=tsB)
            flag_store(sFHID, not LOCAL[0], 'v12')
        a = vr(112 + 4 * (i % 16), 4)
        for nt in range(4):
            c = vr(acc[st] + 4 * nt, 4)
            S('%s %s, %s, %s, %s', MF16, c, ar(16 * k + 4 * nt, 4), a, c if st in seen else '0')
            if nt == 0:
                aq.pre()
            if nt == 1:
                aq.go()
            if nt == 2 and i == OPT['pb']:
                tp = poll_load(vPG, 192)
            if nt == 3 and wq:
                wq.pop(0)()
            if rq:
                rq.pop(0)()
            else:
                A.lines += vq[:2]
                vq = vq[2:]
        seen.add(st)
        if st < 3 and i == last[st]:
            for g in range(4):
                wq.append(lambda st=st, g=g: S('ds_write_b128 v%d, %s offset:%d', vRW[st], vr(acc[st] + 4 * g, 4), g * 1024))
    stamp('.mm end')
    assert bar + 3 < n and not rq
    A.lines += vq
    if bar + 5 >= n:
        A.wait(lg=tr[2])
        for g in range(8):
            S('v_pk_add_f32 %s, %s, %s', vr(CA + 2 * g, 2), vr(CA + 2 * g, 2), vr(CR + 2 * g, 2))
    if bar + 5 >= n or not OPT['pre2']:
        for g in range(8):
            S('v_pk_add_f32 %s, %s, %s', vr(CO + 2 * g, 2), vr(CO + 2 * g, 2), vr(CA + 2 * g, 2))


def g2_one(ts, w2):
    stamp('.hid st')
    if OPT['hb']:
        A('s_barrier')
    w2.drip(min(OPT['w2d0'], OPT['w2d']))
    for i in range(4):
        S('ds_read_b128 %s, %s offset:%d', vr(GB + 4 * i, 4), vGAB, 256 + 16 * i)
    S('s_lshl_b32 %s, %s, 13', t0, sW)
    S('s_add_u32 %s, %s, %d', t0, t0, L_RED + 4096)
    S('s_mov_b32 %s, 8192', t1)
    tok_addr(13, t0)
    A.wait(vm=ts)
    flag_store(sFHID, not LOCAL[0])
    stamp('hid pub')
    w2.drip(max(0, OPT['w2d'] - OPT['w2d0']))
    poll(vPG, 192, 'hid', sGM)
    stamp('hid seen')
    ring_gemm(14, STG_H, 0, 112, 32, 12, split=(3, 10), pre=w2)


def g2_phase(ts, w2):
    (g2_two if OPT['two'] else g2_one)(ts, w2)
    stamp('g2 gemm')
    for p in range(2):
        for i in range(4 * p, 4 * p + 4):
            S('v_pk_fma_f32 %s, %s, %s, %s', vr(X2 + 2 * i, 2), vr(CO + 2 * i, 2), vr(GB + 2 * i, 2), vr(X2 + 2 * i, 2))
        for i in range(4 * p, 4 * p + 4):
            S('v_cvt_pk_bf16_f32 v%d, v%d, v%d', 16 + i, X2 + 2 * i, X2 + 2 * i + 1)
        S('ds_write_b128 v%d, %s', 13 + p, vr(16 + 4 * p, 4))
    tr = [S('ds_read_b128 %s, v%d offset:%d', vr(24 + 4 * p, 4), vRR, 4096 + 1024 * p) for p in range(2)]
    for p in range(2):
        A.wait(lg=tr[p])
        S('buffer_store_dwordx4 %s, %s, %s, %s offen%s', vr(24 + 4 * p, 4), vXO, SRD_OUT, ('0', t1)[p], ('', ' sc1', ' nt', ' sc0 sc1', ' sc1 nt')[OPT['outsc']])
    stamp('.out st')
    SK = A.label('noep')
    S('s_or_b32 %s, %s, %s', t0, sLID, sW)
    A('s_cbranch_scc1 ' + SK)
    S('s_mov_b32 %s, %d', t2, WS_E)
    flag_store(t2, False)
    A(SK + ':')


def dump_stamps():
    if OPT['diag']:
        D = A.label('diag')
        A('s_waitcnt vmcnt(0) lgkmcnt(0)')
        A('s_add_u32 s97, s97, 6000')
        A('s_mov_b32 s98, 0')
        A(D + ':')
        A('s_memrealtime s[92:93]')
        A('s_add_u32 s98, s98, 1')
        A('s_cmp_gt_u32 s98, 0x8000')
        A('s_cbranch_scc1 L_exit')
        A('s_waitcnt lgkmcnt(0)')
        A('s_sub_u32 s92, s92, s97')
        A('s_cmp_lt_i32 s92, 0')
        A('s_cbranch_scc1 ' + D)
    if not OPT['stamps']:
        return
    A.wait(vm='all', force=True)
    A('s_memrealtime s[92:93]')
    stamp('end')
    A('v_writelane_b32 v0, s92, 25')
    S('s_getreg_b32 %s, hwreg(HW_REG_XCC_ID)', t1)
    S('v_writelane_b32 v0, %s, 24', t1)
    S('v_writelane_b32 v0, %d, 26', int(LOCAL[0]))
    S('s_lshl2_add_u32 %s, %s, %s', t0, sLID, sW)
    S('s_lshl_b32 %s, %s, 7', t0, t0)
    S('s_add_u32 %s, %s, %d', t0, t0, WS_TS)
    S('v_lshlrev_b32 v10, 2, %s', vLANE)
    A('s_mov_b64 exec, 0xffffffff')
    S('buffer_store_dword v0, v10, %s, %s offen', SRD_WS, t0)


def rest(wq, pq):
    wst = Stream()
    wst.q = list(wq)
    pst = Stream()
    pst.q = list(pq)
    h_phase(wst, pst)
    w1 = w1_stream()
    w2 = frag_stream(sW2B, 14, 0)
    if OPT['nobg'] & 1:
        w1.q = []
    if OPT['nobg'] & 2:
        w2.q = []
    ool, ts = attention(w1, qkv(wst, w1))
    ts = wo_phase(ts, w1, w2)
    ts = g1_phase(ts, w2)
    g2_phase(ts, w2)
    dump_stamps()
    return ool


def main():
    tw, tx = prologue()
    wst = wqkv_stream()
    wq_setup()
    if OPT['spos'] == 0:
        prep_srd()
        prep_addr()
        setup_a()
    else:
        ln_addr()
    wst.drip(OPT['n1'])
    pst = prep_stream()
    mod_partial(tw)
    stamp('mod pub')
    if OPT['tw1'] == 5:
        warm(SRD_W1, 14)
    ln1(tx, wst)
    mod_poll(wst)
    st = (A.vm, A.vm_done, A.lg, A.lg_done, nstamp[0], ALLN[0], vST[0])
    ool = rest(wst.q, pst.q)
    A('L_exit:')
    A('s_endpgm')
    A('L_localend:')
    out_of_line(*ool)
    xc_slow()
    LOCAL[0] = False
    A.vm, A.vm_done, A.lg, A.lg_done, nstamp[0], ALLN[0], vST[0] = st
    ool = rest(wst.q, pst.q)
    A('s_endpgm')
    out_of_line(*ool)
    body, nops = A.finalize()
    hdr = open(os.path.join(os.path.dirname(os.path.abspath(__file__)), '..', 'cdna_kernels', NAME + '.s.ref')).read().split('; Override')[0]
    out = hdr
    out += '; @launch grid=(256,1,1) block=(256,1,1) lds=163840\n'
    out += '.amdgcn_target "amdgcn-amd-amdhsa--gfx950"\n.text\n.globl %s_kernel\n.p2align 8\n.type %s_kernel,@function\n%s_kernel:\n' % (NAME, NAME, NAME)
    out += '\n'.join(('' if l.endswith(':') else '    ') + l for l in body) + '\n'
    out += '''.section .rodata,"a"
.p2align 6
.amdhsa_kernel %s_kernel
  .amdhsa_next_free_vgpr 512
  .amdhsa_next_free_sgpr 102
  .amdhsa_accum_offset 256
  .amdhsa_group_segment_fixed_size 0
  .amdhsa_kernarg_size 88
  .amdhsa_user_sgpr_count 2
  .amdhsa_user_sgpr_kernarg_segment_ptr 1
  .amdhsa_system_sgpr_workgroup_id_x 1
  .amdhsa_float_denorm_mode_32 3
.end_amdhsa_kernel
''' % NAME
    open(sys.argv[1], 'w').write(out)
    if OPT['stamps']:
        open(sys.argv[1] + '.stamps', 'w').write('\n'.join(STAMP_NAMES))
    print('instructions', len(body), 'pad states', nops, file=sys.stderr)


main()
```

```python
import sys, os
from asmlib import Asm

NAME = 'adaLN_cond__sliding_block__dense_activation_relu__prompt'
OPT = dict(stamps=0, fine=0, force_fallback=0, force_remote=0, diag=0, nobg=0,
           ph=0, po=0, py=0, phid=0,
           n1=0, n2=4, n3=4, n4=5,
           wq0=0, wq1=4, wq2=2,
           qf=-1, qp=2, qchk=16, pstp=0, hb=0, w2d0=4, two=1, fa=14, oa=2, ah=8, pb=16, bst=1, spos=1,
           qd=0,
           aw1=27, fpf=5, fpl=25,
           ow1=8,
           w2a=24, w2b=12, w2c=18, w2d=0,
           uf=7, up=10, uc=15,
           uh=0, gsplit=0, w2e=0, w2f=16, sv=55,
           tkv=1, tw1=0, tfl=1, toy=0, tmod=1, tlb=0, ct=1, help=0, n2b=5, lnp=0, yov=0, ytp=10, w1s=0, w1r=1, kvr=0, hrot=0, xl=0, snake=1, pa=1, pre2=1, bh=2, bo=4, by=6, bd=0, bk=0, bp=0, kvah=10, woah=12, r1=3, r2=4, r3=3, r4=2, ad=3, ae=0, kb=0, ob=0, yb=0, w2b0=4, mrp=0, rtab=0, ctx=0, ns=0, l2w=-1, l2n=2, l2o=0, nsp=1, wops=0, wor=2, gall=0, nul=0, stl=0, kv2=1, vz=1, xpos=0,
           outsc=1, rot=0, sw=0, swp=0, kvb=1, stag=1, dbg=0, cpf=4, ntw=1, ntp=1, ppos=0)
for a in sys.argv[2:]:
    k, v = a.split('=')
    assert k in OPT, k
    OPT[k] = int(v)
assert OPT['uf'] <= OPT['up'] < OPT['uc'] <= 15 and OPT['fa'] <= 15 and OPT['qp'] < OPT['qchk'] <= 24
assert OPT['fpf'] < OPT['fpl'] <= OPT['aw1'] <= 28 and 4 <= OPT['ah'] <= 15 and OPT['w2a'] <= 40
assert OPT['ah'] <= OPT['pb'] < 30 + OPT['oa'] - OPT['ah'] and OPT['oa'] <= 4
assert OPT['w2c'] >= OPT['w2e'] + OPT['w2f'] and OPT['by'] + OPT['w2b0'] <= OPT['w2b']
assert 4 <= OPT['kvah'] <= 16 and 4 <= OPT['woah'] <= 16 and max(OPT['kb'], OPT['ob'], OPT['yb'], OPT['kv2'], OPT['ph'], OPT['rot'], OPT['lnp'], OPT['pre2']) <= 1 and max(OPT['r1'], OPT['r2'], OPT['r3'], OPT['r4']) <= 5

WS_E = 0
WS_FA = 0x1000
WS_XA = 0x6000
WS_XB = 0x8000
WS_FKV = 0x10000
WS_FP = 0x30000
WS_MOD = 0x50000
WS_STAT = 0x80000
WS_TS = 0xC0000
WS_WOT = 0x100000
WS_W2T = 0x200000
WS_H = 0x400000
WS_O = 0x600000
WS_Y = 0x800000
WS_KV = 0xA00000
WS_HID = 0xE00000
WS_SIZE = 0x1600000
OOB = 0x40000000

L_STG = 98304
L_SCR = 114688
L_KV = 114688
L_MODL = 114688
L_GAB = L_MODL + 2048
L_UT = L_MODL + 4096
L_RED = L_MODL + 8192

sDG, sDL, sFG = 's0', 's1', 's2'
sX, sJ, sW, sT, sM = 's3', 's4', 's5', 's6', 's7'
sFKV, sFO, sFY, sFHID = 's8', 's9', 's14', 's15'
sKVO, sOO, sYO, sSO = 's20', 's21', 's22', 's23'
sHO = ('s26', 's27')
STG_O = ('s10', 's11', 's12', 's13')
STG_H = ('s16', 's17', 's18', 's19')
sR4, sR8 = 's24', 's25'
sYL = ('s28', 's29')
sSL, sHL = 's30', 's31'
SRD_X, SRD_WQKV, SRD_W1, SRD_P, SRD_WS, SRD_OUT, SRD_WMOD, SRD_C = [
    's[%d:%d]' % (b, b + 3) for b in (32, 36, 44, 48, 52, 56, 60, 64)]
TAGB = 40
sGM = 's[60:61]'
sW1G, sW1L = 's62', 's63'
sPS, sRHO = 's64', 's67'
sTAG, sE = 's68', 's69'
sCT, sG, sOWN, sTS, sT0 = 's70', 's71', 's72', 's73', 's74'
sLID = 's75'
t0, t1, t2, t3, t4, t5 = 's76', 's77', 's78', 's79', 's80', 's81'
sCNT = 's82'
sXC = 's83'
sMASK = 's[84:85]'
sLO, sHI = 's[86:87]', 's[88:89]'
sWOB, sW2B = 's96', 's101'
sM2 = 's[98:99]'
H_S = 's100'

vLANE, vL16, vTAG = 'v1', 'v2', 'v3'
vXO, vGAB = 'v4', 'v5'
vRW, vRR = (6, 7, 8), 9
vT1, vT2 = 100, 101
vUTR, vPT, vPG, vSS, vSL, vH4, vH2, vL8, vMW, vGW = ['v%d' % i for i in range(102, 112)]
W1V = 112
vKV, vPKV, vD4, vD8, vOO, vMR0, vMR1, vFP, vG2A = ['v%d' % i for i in range(119, 128)]
UTA = 88
vWQ, H_V, vXCV = 'v96', 'v146', 'v147'
l7, l3 = 'v148', 'v149'
JUNK = 152
Q0, Q1 = 48, 52
MD, MFAR = 16, 32
K0, K1 = 128, 132
V0, V1 = 136, 144
MRD = 64
S0, S1 = 160, 176
P0, P1 = 192, 200
O0, O1 = 208, 224
XT = X2 = 240
CA, CB, CO, CR = 16, 32, 48, 64
GA, G2, GB = 208, 224, 80
ACC, BF, YA = 16, 72, 112

A = Asm()
nstamp = [0]
STAMP_NAMES = []
ALLN = [0]
vST = ['v255']
FINE = {1: (0, 4), 2: (4, 10), 3: (10, 15), 4: (15, 20), 9: (99, 99)}
LOCAL = [True]
LIMIT = 1 << 17
MF32 = 'v_mfma_f32_32x32x16_bf16'
MF16 = 'v_mfma_f32_16x16x32_bf16'


def vr(b, n=1, k='v'):
    return '%s%d' % (k, b) if n == 1 else '%s[%d:%d]' % (k, b, b + n - 1)


def ar(b, n=1):
    return vr(b, n, 'a')


def S(fmt, *a):
    return A(fmt % a)


def stamp(name):
    fine = name.startswith('.')
    n = ALLN[0]
    if not fine:
        ALLN[0] += 1
    if OPT['diag']:
        if not fine and ALLN[0] == OPT['diag']:
            print('diag stamp:', name, file=sys.stderr)
            A('s_memrealtime s[90:91]')
            A('s_waitcnt lgkmcnt(0)')
            A.lg_done = A.lg
            A('s_mov_b32 s97, s90')
        return
    if not OPT['stamps']:
        return
    if name == 'h seen':
        A('v_mov_b32 v0, v255')
        vST[0] = 'v0'
    if OPT['fine']:
        if name != 'end' and not (FINE[OPT['fine']][0] <= n <= FINE[OPT['fine']][1]):
            return
    elif fine:
        return
    assert nstamp[0] < 22
    A('s_memtime s[90:91]' if OPT['stamps'] == 1 else 's_memrealtime s[90:91]')
    A('s_waitcnt lgkmcnt(0)')
    A.lg_done = A.lg
    S('v_writelane_b32 %s, s90, %d', vST[0], 2 + nstamp[0])
    nstamp[0] += 1
    if LOCAL[0]:
        STAMP_NAMES.append(name)


def sc(buf):
    return '' if (LOCAL[0] and OPT['p' + buf]) else ' sc1'


def flag_store(soff, sc1, val=vTAG):
    if OPT['ns'] & 2 and A.lines[-1].startswith('s_waitcnt vmcnt') and 'lgkm' not in A.lines[-1] and val != 'v12':
        A.lines.pop()
        A.vm_done = 0
    A('s_mov_b64 exec, 1')
    t = S('buffer_store_dword %s, off, %s, %s%s', val, SRD_WS, soff, ' sc1' if sc1 else '')
    A('s_mov_b64 exec, -1')
    return t


def poll_load(vA, off, vT='v15'):
    return S('buffer_load_dword %s, %s, %s, 0 offen offset:%d sc1', vT, vA, SRD_WS, off)


def poll_test(mask, vT='v15', mode=0):
    if OPT['ns'] & 4 and A.lines[-1].startswith('s_waitcnt vmcnt') and 'lgkm' not in A.lines[-1]:
        A.lines.pop()
        A.vm_done = 0
    if OPT['ns'] & 1:
        A('s_cmp_eq_u32 0, 1')
        return
    if mode:
        S('v_subrev_u32 %s, %s, %s', vT, sTAG, vT)
        S('v_cmp_%s_u32 vcc, 1, %s', ('lt', 'ne')[mode - 1], vT)
    else:
        S('v_cmp_ne_u32 vcc, %s, %s', sTAG, vT)
    S('s_and_b64 vcc, vcc, %s', mask)


def poll(vA, off, name, mask, mode=0):
    L, D = A.label('p' + name), A.label('d' + name)
    S('s_mov_b32 %s, 0', sCNT)
    A(L + ':')
    poll_load(vA, off)
    S('s_add_u32 %s, %s, 1', sCNT, sCNT)
    A('s_waitcnt vmcnt(0)')
    poll_test(mask, 'v15', mode)
    A('s_cbranch_scc0 ' + D)
    S('s_cmp_lt_u32 %s, %d', sCNT, LIMIT)
    A('s_cbranch_scc1 ' + L)
    A(D + ':')
    A.vm_done = A.vm


def poll2(vA, off, name, mask, behind, mode=0):
    D = A.label('q' + name)
    tp = poll_load(vA, off)
    r = behind()
    A.wait(vm=tp)
    poll_test(mask, 'v15', mode)
    A('s_cbranch_scc0 ' + D)
    st = A.vm, A.vm_done
    poll(vA, off, name, mask, mode)
    A.vm, A.vm_done = st
    A(D + ':')
    return r


def srd(dst, lo, size):
    b = int(dst[2:dst.index(':')])
    S('s_mov_b64 s[%d:%d], s[%d:%d]', b, b + 1, lo, lo + 1)
    S('s_mov_b32 s%d, 0x%x', b + 2, size)
    S('s_mov_b32 s%d, 0x20000', b + 3)


def unpack(dst, src):
    S('v_lshlrev_b32 v%d, 16, v%d', dst, src)
    S('v_and_b32 v%d, 0xffff0000, v%d', dst + 1, src)


def untag(r, acc, first):
    for i in range(4):
        S('v_xor_b32 v%d, s%d, v%d', r + i, TAGB + i, r + i)
    if first:
        S('v_or3_b32 v%d, v%d, v%d, v%d', acc, r, r + 1, r + 2)
        S('v_or_b32 v%d, v%d, v%d', acc, acc, r + 3)
    else:
        S('v_or3_b32 v%d, v%d, v%d, v%d', acc, r, r + 1, acc)
        S('v_or3_b32 v%d, v%d, v%d, v%d', acc, r + 2, r + 3, acc)


def untag_test(acc):
    S('v_and_b32 v%d, 0xff, v%d', acc, acc)
    S('v_cmp_ne_u32 vcc, 0, v%d', acc)


def capture(f):
    save, A.lines = A.lines, []
    f()
    out, A.lines = A.lines, save
    return out


class Stream:
    def __init__(self):
        self.q = []
        self.ready = False

    def add(self, f, pre=None):
        self.q.append((f, pre))

    def pre(self):
        if self.q and not self.ready:
            if self.q[0][1]:
                self.q[0][1]()
            self.ready = True

    def go(self):
        if self.q:
            assert self.ready
            self.ready = False
            return self.q.pop(0)[0]()

    def drip(self, n=1):
        t = None
        for _ in range(n):
            if self.q:
                self.pre()
                t = self.go()
        return t

    def __len__(self):
        return len(self.q)


def touch(voff, soff, off=0, junk=JUNK):
    return S('buffer_load_dwordx4 %s, %s, %s, %s offen offset:%d sc1', vr(junk, 4), voff, SRD_WS, soff, off)


WGB = ('s8', 's9', 's14', 's15')
WLB = ('s20', 's21', 's22', 's23')
sQK = 's69'


def wqkv_stream():
    st = Stream()
    for n in range(24):
        def pre(n=n):
            g, i = divmod(n, 4)
            if i == 0 and g < 4:
                S('s_mov_b32 %s, %s', sDG, WGB[g])
                S('s_mov_b32 %s, %s', sDL, WLB[g])
            elif i == 0:
                if g == 5:
                    S('s_xor_b32 %s, %s, 4', sQK, sQK)
                S('s_lshl3_add_u32 s65, %s, %s', sW, sQK)
                S('s_mul_i32 %s, s65, %d', sDG, 16 * 3072)
                if OPT['hrot']:
                    S('s_and_b32 %s, %s, %d', sDL, sG, OPT['hrot'])
                    S('s_lshl_b32 %s, %s, 3', sDL, sDL)
                    S('s_sub_u32 s65, s65, %s', sDL)
                    A('s_and_b32 s65, s65, 31')
                S('s_lshl_b32 %s, s65, 10', sDL)
                S('s_add_u32 %s, %s, 65536', sDL, sDL)
            S('s_add_u32 m0, %s, %d', sDL, i * 1024)
            if i:
                S('s_add_u32 %s, %s, %d', sDG, sDG, 16 * 3072)
        st.add(lambda: S('buffer_load_dwordx4 %s, %s, %s offen lds', vWQ, SRD_WQKV, sDG), pre)
    return st


def w1_stream():
    st = Stream()
    for g in range(4):
        for i in range(7):
            def pre(g=g, i=i):
                if OPT['w1r']:
                    if i == 0:
                        S('s_add_u32 s65, %s, %d', sX, g)
                        A('s_and_b32 s65, s65, 3')
                        S('s_mul_i32 s65, s65, %d', 4 * 7168)
                        if OPT['w1r'] == 3:
                            S('s_add_u32 %s, %s, %d', sDL, sW1L, g * 4 * 7168)
                        else:
                            S('s_add_u32 %s, %s, s65', sDL, sW1L)
                        S('s_lshl4_add_u32 %s, s65, %s', sDG, sW1G)
                    if i == 3 and OPT['w1r'] == 2:
                        S('s_sub_u32 %s, %s, %s', sDL, sDL, sXC)
                    S('s_add_u32 m0, %s, %d', sDL, i * 1024)
                    return
                if i == 0 and g == 2 and OPT['w1s']:
                    S('s_sub_u32 %s, %s, %s', sW1L, sW1L, sXC)
                    S('s_lshl_b32 %s, %s, 4', sXC, sXC)
                    S('s_sub_u32 %s, %s, %s', sW1G, sW1G, sXC)
                S('s_add_u32 m0, %s, %d', sW1L, g * 4 * 7168 + i * 1024)
                if i == 0 and g:
                    S('s_add_u32 %s, %s, %d', sW1G, sW1G, 128 * 3584)
            st.add(lambda i=i: S('buffer_load_dwordx4 v%d, %s, %s offen lds', W1V + i, SRD_W1, sDG if OPT['w1r'] else sW1G), pre)
    return st


def frag_stream(sb, nks, areg):
    st = Stream()
    for i in range(nks):
        for s in range(4):
            def pre(i=i, s=s):
                if i and s == 0:
                    S('s_add_u32 %s, %s, 4096', sb, sb)
            st.add(lambda i=i, s=s: S('buffer_load_dwordx4 %s, %s, %s, %s offen offset:%d sc1', ar(areg + 16 * i + 4 * s, 4), vL16, SRD_WS, sb, s * 1024), pre)
    return st


def code_prefetch():
    S('global_load_dword v%d, v145, s[30:31]', JUNK)


def warm(srdname, nl, va=144, vj=JUNK + 3):
    S('s_lshl2_add_u32 s65, %s, %s', sLID, sW)
    S('s_mul_i32 s65, s65, %d', nl * 128)
    S('v_lshlrev_b32 v%d, 7, %s', va, vLANE)
    S('s_mov_b64 exec, 0x%x', (1 << nl) - 1)
    S('buffer_load_dword v%d, v%d, %s, s65 offen', vj, va, srdname)
    A('s_mov_b64 exec, -1')


def swarm(srdname, nl):
    b = int(srdname[2:srdname.index(':')])
    S('s_lshl2_add_u32 s65, %s, %s', sLID, sW)
    S('s_mul_i32 s65, s65, %d', nl * 128)
    S('s_add_u32 s98, s%d, s65', b)
    S('s_addc_u32 s99, s%d, 0', b + 1)
    for i in range(nl << OPT['swp']):
        S('s_load_dword s66, s[98:99], %d', (128 >> OPT['swp']) * i)


def swarm_at(pos):
    for d, (p, nl) in enumerate(((18, 14), (12, 4), (16, 14), (10, 12))):
        if OPT['sw'] // 10 ** d % 10 == pos:
            swarm('s[%d:%d]' % (p, p + 1), nl)


def code_touch(tmp, junk):
    if not LOCAL[0]:
        return
    L = A.label('pc')
    A('s_getpc_b64 s[90:91]')
    A(L + ':')
    S('s_lshl2_add_u32 s65, %s, %s', sJ, sW)
    A('s_lshl_b32 s65, s65, 7')
    S('s_min_u32 s65, s65, L_localend-%s-4', L)
    S('v_mov_b32 %s, s65', tmp)
    S('global_load_dword %s, %s, s[90:91]', junk, tmp)


def prologue():
    A('s_load_dwordx16 s[8:23], s[0:1], 0')
    A('s_load_dwordx4 s[24:27], s[0:1], 64')
    A('s_load_dwordx2 s[28:29], s[0:1], 80')
    A('s_cmp_ge_u32 s2, 256')
    A('s_cbranch_scc1 L_exit')
    A('s_getpc_b64 s[30:31]')
    A('L_pc:')
    S('s_lshr_b32 %s, s2, 3', sJ)
    S('s_lshl_b32 %s, %s, 10', t3, sJ)
    S('v_lshl_add_u32 v145, v0, 2, %s', t3)
    S('v_readfirstlane_b32 %s, v0', sW)
    if OPT['cpf'] == 4:
        code_prefetch()
    S('s_and_b32 %s, s2, 7', sX)
    if OPT['stamps'] or OPT['diag']:
        A('s_memrealtime s[92:93]')
        A('s_memtime s[94:95]')
    S('v_and_b32 %s, 7, v0', l7)
    S('v_bfe_u32 %s, v0, 3, 3', l3)
    S('s_lshr_b32 %s, %s, 6', sW, sW)
    S('s_lshl_b32 %s, %s, 1', t1, sX)
    S('s_lshl2_add_u32 %s, %s, 14', t2, sX)
    S('s_cmp_lt_u32 %s, 8', sJ)
    S('s_cselect_b32 %s, %s, %s', t1, t1, t2)
    S('s_lshr_b32 %s, %s, 2', t2, sJ)
    S('s_add_u32 %s, %s, %s', t5, t1, t2)
    S('s_and_b32 %s, %s, 3', sG, sJ)
    S('s_lshl2_add_u32 %s, %s, %s', t1, sG, sW)
    S('s_lshl_b32 %s, %s, 6', t2, t1)
    S('s_mulk_i32 %s, %d', t1, 32 * 48)
    S('s_add_u32 %s, %s, %s', t1, t1, t5)
    S('s_lshl_b32 %s, %s, 7', t1, t1)
    S('s_movk_i32 %s, 6144', t4)
    S('v_lshlrev_b32 v11, 3, %s', l3)
    S('v_mul_u32_u24 v13, %s, %s', t4, l3)
    S('v_lshl_add_u32 v13, %s, 2, v13', l7)
    A('v_lshlrev_b32 v13, 2, v13')
    S('s_cmp_lt_u32 %s, %d', sJ, 8 if OPT['dbg'] & 2 else 24)
    A('s_cselect_b32 s62, 0x300000, 0')
    S('s_cselect_b32 %s, %s, 0', t1, t1)
    S('s_cselect_b32 %s, %s, 0', t4, t4)
    A('s_mov_b32 s63, 0x20000')
    A('s_movk_i32 s66, 1024')
    A('s_mov_b32 s67, s63')
    A('s_waitcnt lgkmcnt(0)')
    if OPT['diag']:
        A('s_mov_b32 s97, s92')
    if OPT['stamps']:
        A('v_writelane_b32 v255, s92, 0')
        S('v_writelane_b32 v255, %s, 1', 's94' if OPT['stamps'] == 1 else 's92')
    stamp('.kernarg')
    A('s_mov_b64 s[64:65], s[20:21]')
    A('s_mov_b64 s[60:61], s[22:23]')
    S('buffer_load_dwordx2 v[62:63], v11, %s, %s offen', SRD_C, t2)
    for i in range(4):
        tw = S('buffer_load_dwordx4 %s, v13, %s, %s offen%s', vr(64 + 4 * i, 4), SRD_WMOD, t1, ' nt' * OPT['ntw'])
        if i < 3:
            S('s_add_u32 %s, %s, %s', t1, t1, t4)
    S('s_load_dword %s, s[28:29], %d', sE, WS_E)
    if OPT['stl']:
        SK = A.label('notlb')
        S('s_cmp_lg_u32 %s, 3', sW)
        A('s_cbranch_scc1 ' + SK)
        if OPT['stl'] & 1:
            for p in (8, 10, 12, 16, 18, 24):
                S('s_load_dword s90, s[%d:%d], 0', p, p + 1)
        if OPT['stl'] & 2:
            for pg in range(1, 11):
                S('s_mov_b32 s91, 0x%x', (pg << 21) + 0x1fff00)
                A('s_load_dword s90, s[28:29], s91')
        A(SK + ':')
    srd(SRD_X, 8, 2097152)
    S('v_and_b32 %s, 63, v0', vLANE)
    if OPT['xl']:
        S('v_xor_b32 v12, %s, %s', l7, l3)
        S('v_lshlrev_b32 v10, 10, %s', l3)
        A('v_lshl_add_u32 v10, v12, 4, v10')
        S('s_lshl_b32 %s, %s, 11', t2, sW)
        S('s_add_u32 m0, %s, %d', t2, L_SCR + 8192)
    else:
        S('v_lshlrev_b32 v10, 10, %s', l7)
        S('v_lshl_add_u32 v10, %s, 4, v10', l3)
    S('s_lshl_b32 %s, %s, 5', sLID, sX)
    S('s_add_u32 %s, %s, %s', sLID, sLID, sJ)
    S('s_lshl_b32 %s, %s, 13', t0, sLID)
    S('s_lshl_b32 %s, %s, 8', t3, sW)
    S('s_add_u32 %s, %s, %s', t0, t0, t3)
    A('s_barrier')
    if OPT['xl']:
        S('buffer_load_dwordx4 v10, %s, %s offen lds', SRD_X, t0)
        S('s_add_u32 m0, %s, %d', t2, L_SCR + 8192 + 1024 - 128)
        S('s_add_u32 %s, %s, %d', t2, t2, L_SCR + 8192)
        tx = S('buffer_load_dwordx4 v10, %s, %s offen offset:128 lds', SRD_X, t0)
        S('v_lshl_add_u32 v162, v12, 4, %s', t2)
        S('v_lshl_add_u32 v162, %s, 7, v162', l7)
    else:
        S('buffer_load_dwordx4 v[16:19], v10, %s, %s offen', SRD_X, t0)
        tx = S('buffer_load_dwordx4 v[20:23], v10, %s, %s offen offset:128', SRD_X, t0)
    if OPT['cpf'] == 1:
        code_prefetch()
    srd(SRD_WQKV, 10, 1572864)
    if OPT['tkv']:
        warm(SRD_WQKV, 12)
    swarm_at(1)
    srd(SRD_WS, 28, WS_SIZE)
    S('s_and_b32 %s, %s, 15', sM, sJ)
    S('s_lshr_b32 %s, %s, 4', t0, sJ)
    S('s_lshl2_add_u32 %s, %s, %s', t0, t0, sW)
    S('s_lshl3_add_u32 %s, %s, %s', sT, sX, t0)
    S('s_lshr_b32 %s, %s, 2', t0, sLID)
    S('s_lshl2_add_u32 %s, %s, %s', t0, t0, sW)
    S('s_lshl_b32 %s, %s, 13', t0, t0)
    S('s_lshl_b32 %s, %s, 7', t1, sG)
    S('s_add_u32 %s, %s, %s', t0, t0, t1)
    S('s_add_u32 %s, %s, %d', H_S, t0, WS_H)
    S('v_lshl_add_u32 v11, %s, 9, %s', vLANE, H_S)
    S('s_lshl_b32 %s, %s, 8', t0, sT)
    S('s_add_u32 %s, %s, %d', t0, t0, WS_FA)
    S('v_lshl_add_u32 %s, %s, 2, %s', vPT, vLANE, t0)
    S('v_writelane_b32 v11, %s, 16', t0)
    S('s_add_u32 %s, %s, 128', t0, t0)
    S('v_writelane_b32 v11, %s, 17', t0)
    S('s_lshl_b32 %s, %s, 7', t0, sX)
    S('s_add_u32 %s, %s, %d', t0, t0, WS_XA)
    S('v_writelane_b32 v11, %s, 18', t0)
    if OPT['tmod']:
        S('s_mul_i32 %s, %s, 48', t0, sG)
        S('s_add_u32 %s, %s, %s', t0, t0, t5)
        S('s_and_b32 %s, %s, 1', t1, sW)
        S('s_lshl1_add_u32 %s, %s, %s', t0, t0, t1)
        S('s_lshl_b32 %s, %s, 7', t0, t0)
        S('s_add_u32 %s, %s, %d', t0, t0, WS_MOD)
        S('v_writelane_b32 v11, %s, 19', t0)
    if OPT['tfl'] == 2:
        S('s_lshl4_add_u32 %s, %s, %s', t0, sT, sM)
        S('s_lshl_b32 %s, %s, 6', t0, t0)
        S('s_add_u32 %s, %s, %d', t0, t0, WS_FKV)
        S('v_writelane_b32 v11, %s, 20', t0)
        S('s_lshl2_add_u32 %s, %s, %s', t0, sLID, sW)
        S('s_lshl_b32 %s, %s, 6', t0, t0)
        S('s_add_u32 %s, %s, %d', t0, t0, WS_FP)
        S('v_writelane_b32 v11, %s, 21', t0)
    S('s_mov_b64 exec, 0x%x', (0x7ffff if OPT['ph'] else 0x70000) | OPT['tmod'] << 19 | (3 << 20 if OPT['tfl'] == 2 else 0))
    S('buffer_load_dword v%d, v11, %s, 0 offen sc1', JUNK + 2, SRD_WS)
    A('s_mov_b64 exec, -1')
    S('v_lshlrev_b32 %s, 4, %s', vL16, vLANE)
    return tw, tx


vPD, vPR, PRD = 'v97', 98, 56
sFP = 's67'


RTAB = ([3, 2, 2, 3, 2, 2, 2, 2, 3, 2, 2, 2, 3, 2, 2, 2], [4, 0, 0, 4, 4, 2, 0, 3, 4, 0, 0, 4, 4, 0, 3, 4],
        [4, 1, 1, 4, 3, 2, 0, 3, 3, 1, 1, 3, 4, 1, 2, 3], [3, 1, 1, 3, 3, 3, 0, 3, 3, 1, 2, 3, 3, 1, 3, 3])


def prep_srd():
    mask = sum(((1 << c) - 1) << (4 * m) for m, c in enumerate(RTAB[OPT['rtab']]))
    assert sum(RTAB[OPT['rtab']]) == 36
    S('s_mov_b32 s90, 0x%x', mask & 0xffffffff)
    S('s_mov_b32 s91, 0x%x', mask >> 32)
    S('s_lshl2_add_u32 %s, %s, %s', t0, sM, sW)
    S('s_bitcmp1_b64 s[90:91], %s', t0)
    S('s_cselect_b32 %s, 0, -1', sPS)
    S('s_bfm_b64 s[98:99], %s, 0', t0)
    A('s_and_b64 s[90:91], s[90:91], s[98:99]')
    S('s_bcnt1_i32_b64 %s, s[90:91]', sRHO)
    S('s_lshr_b32 %s, %s, 4', t0, sJ)
    S('s_mul_i32 %s, %s, 36', t0, t0)
    S('s_add_u32 %s, %s, %s', sRHO, sRHO, t0)
    S('s_cmp_lt_u32 %s, 56', sRHO)
    A('s_cselect_b64 s[48:49], s[18:19], s[12:13]')
    A('s_cselect_b32 s50, 7, 2')
    A('s_lshl_b32 s50, s50, 18')
    A('s_mov_b32 s51, 0x20000')


def prep_addr():
    S('s_cmp_lt_u32 %s, 56', sRHO)
    S('s_cselect_b32 %s, 0, 56', t0)
    S('s_cselect_b32 %s, 56, 16', t1)
    S('s_cselect_b32 %s, 2, 1', t3)
    S('s_cselect_b32 %s, 10, 11', t4)
    assert (WS_W2T, WS_WOT) == (2 << 20, 1 << 20)
    S('s_lshl_b32 %s, %s, 20', t2, t3)
    S('s_lshl_b32 %s, %s, 10', t3, t3)
    S('s_sub_u32 %s, %s, %s', t0, sRHO, t0)
    S('s_mul_i32 %s, %s, %s', t1, t1, sX)
    S('s_add_u32 %s, %s, %s', t1, t1, t0)
    S('s_lshl_b32 %s, %s, 12', t1, t1)
    S('s_add_u32 %s, %s, %s', t1, t1, t2)
    S('s_or_b32 %s, %s, %s', sPS, sPS, t1)
    S('s_lshl_b32 %s, %s, 15', t0, t0)
    S('s_lshl_b32 %s, %s, 7', t1, sX)
    S('s_add_u32 %s, %s, %s', sFG, t0, t1)
    S('v_lshrrev_b32 v98, 5, %s', vLANE)
    S('v_lshlrev_b32 v98, %s, v98', t4)
    S('v_bfe_u32 v99, %s, 2, 3', vLANE)
    A('v_lshl_add_u32 v98, v99, 7, v98')
    S('v_and_b32 v99, 3, %s', vLANE)
    A('v_lshl_add_u32 v98, v99, 5, v98')
    S('s_lshl_b32 %s, %s, 12', t0, sW)
    S('s_add_u32 %s, %s, %d', t0, t0, L_STG)
    S('v_add_u32 v98, %s, v98', t0)
    S('v_add_u32 v99, %s, v98', t3)
    S('s_add_u32 %s, %s, %s', sFP, sRHO, t1)
    S('s_lshl_b32 %s, %s, 6', sFP, sFP)
    S('s_add_u32 %s, %s, %d', sFP, sFP, WS_FP)
    S('v_lshrrev_b32 v10, 3, %s', vLANE)
    A('v_mul_u32_u24 v10, %d, v10' % (1024 - 128))
    S('v_add_u32 %s, v10, %s', vPD, vL16)


def role_only(f, other=None):
    L, D = A.label('norole'), A.label('role')
    S('s_bitcmp1_b32 %s, 31', sPS)
    A('s_cbranch_scc1 ' + L)
    st = A.vm, A.vm_done
    f()
    A.vm, A.vm_done = st
    if other:
        A('s_branch ' + D)
    A(L + ':')
    if other:
        other()
        A(D + ':')


def prep_stream():
    st = Stream()
    for i in range(4):
        def pre(i=i):
            S('s_lshl_b32 s65, %s, 12', sW)
            S('s_add_u32 m0, s65, %d', L_STG + 1024 * i)
            if i:
                S('s_add_u32 %s, %s, 8192', sFG, sFG)
        st.add(lambda: S('buffer_load_dwordx4 %s, %s, %s offen%s lds', vPD, SRD_P, sFG, ' nt' * OPT['ntp']), pre)
    return st


def prep_read(nt):
    for half in range(2):
        t = S('ds_read_b64_tr_b16 %s, v%d offset:%d', ar(4 * nt + 2 * half, 2), vPR + half, nt * 8)
    return t


def prep_store(p):
    return S('buffer_store_dwordx4 %s, %s, %s, %s offen offset:%d sc1', ar(4 * p, 4), vL16, SRD_WS, sPS, p * 1024)


def wq_setup():
    srd(SRD_W1, 16, 1835008)
    if OPT['tw1'] == 1:
        warm(SRD_W1, 14)
    S('v_lshrrev_b32 v12, 2, %s', vLANE)
    A('v_mul_u32_u24 v12, 3072, v12')
    S('v_and_b32 v11, 3, %s', vLANE)
    S('v_lshl_add_u32 %s, v11, 4, v12', vWQ)
    S('s_lshl_b32 %s, %s, 6', t0, sM)
    S('v_add_u32 %s, %s, %s', vWQ, t0, vWQ)
    S('s_lshr_b32 %s, %s, 4', t0, sJ)
    S('s_and_b32 %s, %s, 1', t1, sJ)
    S('s_lshl1_add_u32 %s, %s, %s', t1, t0, t1)
    S('s_lshr_b32 %s, %s, 1', t0, sM)
    S('s_cmp_eq_u32 %s, 3', t0)
    S('s_cselect_b32 %s, %s, 0', sCNT, t1)
    if OPT['kvr']:
        S('s_and_b32 %s, %s, 3', t1, sX)
        S('s_xor_b32 %s, %s, %s', sCNT, sCNT, t1)
    for g in range(4):
        S('s_xor_b32 %s, %s, %d', t0, sCNT, g)
        S('s_and_b32 %s, %s, 1', t1, t0)
        S('s_lshl1_add_u32 %s, %s, %s', t1, sW, t1)
        S('s_lshr_b32 %s, %s, 1', t0, t0)
        S('s_mul_i32 %s, %s, 192', t2, t1)
        S('s_add_u32 %s, %s, %s', t2, t2, t0)
        S('s_lshl_b32 %s, %s, 10', t2, t2)
        S('s_add_u32 %s, %s, 1024', WGB[g], t2)
        if OPT['hrot']:
            S('s_and_b32 %s, %s, %d', t2, sG, OPT['hrot'])
            S('s_lshl_b32 %s, %s, 1', t2, t2)
            S('s_sub_u32 %s, %s, %s', t1, t1, t2)
            S('s_and_b32 %s, %s, 7', t1, t1)
        S('s_lshl3_add_u32 %s, %s, %s', t1, t0, t1)
        S('s_lshl_b32 %s, %s, 12', WLB[g], t1)
    if OPT['dbg'] & 4:
        S('v_add_u32 %s, 0x%x, %s', vWQ, OOB, vWQ)


def mod_partial(tw):
    S('v_lshrrev_b32 v11, 4, %s', vLANE)
    S('v_lshl_add_u32 v11, %s, 2, v11', l7)
    S('s_lshl_b32 %s, %s, 8', t1, sW)
    S('s_add_u32 %s, %s, %d', t1, t1, L_SCR + 1024)
    S('v_lshl_add_u32 v11, v11, 3, %s', t1)
    S('v_and_b32 v12, 0xf0, %s', vL16)
    S('v_add_u32 v15, %d, v12', L_SCR + 1024)
    S('s_mul_i32 %s, %s, 48', t1, sG)
    S('s_add_u32 %s, %s, %s', t1, t1, t5)
    S('s_lshl_b32 %s, %s, 8', t1, t1)
    S('s_add_u32 %s, %s, %d', t1, t1, WS_MOD)
    S('s_getreg_b32 %s, hwreg(HW_REG_XCC_ID, 0, 4)', sXC)
    A.wait(vm=tw - 4)
    stamp('.c')
    unpack(40, 62)
    unpack(42, 63)
    for i in range(4):
        S('v_mul_f32 v%d, 0xbfb8aa3b, v%d', 44 + i, 40 + i)
    for i in range(4):
        S('v_exp_f32 v%d, v%d', 44 + i, 44 + i)
    for i in range(4):
        S('v_add_f32 v%d, 1.0, v%d', 44 + i, 44 + i)
    for i in range(4):
        S('v_rcp_f32 v%d, v%d', 44 + i, 44 + i)
    for i in range(2):
        S('v_pk_mul_f32 %s, %s, %s', vr(40 + 2 * i, 2), vr(40 + 2 * i, 2), vr(44 + 2 * i, 2))
    A('v_cvt_pk_bf16_f32 v44, v40, v41')
    A('v_cvt_pk_bf16_f32 v45, v42, v43')
    unpack(40, 44)
    unpack(42, 45)
    for i in range(4):
        A.wait(vm=tw - 3 + i)
        for d in range(4):
            unpack(80 + 2 * d, 64 + 4 * i + d)
        s = i & 1
        for d in range(4):
            if i == 0:
                S('v_pk_mul_f32 %s, %s, v[40:41] op_sel_hi:[1,0]', vr(48 + 2 * d, 2), vr(80 + 2 * d, 2))
            else:
                S('v_pk_fma_f32 %s, %s, %s, %s op_sel:[0,%d,0] op_sel_hi:[1,%d,1]',
                  vr(48 + 2 * d, 2), vr(80 + 2 * d, 2), vr(40 + (i & ~1), 2), vr(48 + 2 * d, 2), s, s)
    stamp('.fma')
    for i in range(4):
        S('v_permlane32_swap_b32 v%d, v%d', 48 + i, 52 + i)
    for i in range(2):
        S('v_pk_add_f32 %s, %s, %s', vr(48 + 2 * i, 2), vr(48 + 2 * i, 2), vr(52 + 2 * i, 2))
    A('s_waitcnt lgkmcnt(0)')
    S('s_mul_i32 %s, %s, 0x9e3779c1', sTAG, sE)
    for i in range(2):
        S('v_permlane16_swap_b32 v%d, v%d', 48 + i, 50 + i)
    A('v_pk_add_f32 v[48:49], v[48:49], v[50:51]')
    S('s_add_u32 %s, %s, 0x7f4a7c21', sTAG, sTAG)
    S('v_mov_b32 %s, %s', vTAG, sTAG)
    for i in range(2):
        S('v_add_f32_dpp v%d, v%d, v%d row_ror:8 row_mask:0xf bank_mask:0xf', 50 + i, 48 + i, 48 + i)
    t = A('ds_write_b64 v11, v[50:51]')
    for i in range(4):
        S('s_bfe_u32 s%d, %s, 0x%x', TAGB + i, sTAG, (8 << 16) | (8 * i))
    if OPT['force_remote']:
        S('s_and_b32 %s, %s, 1', sXC, sJ)
    S('s_add_u32 %s, %s, %s', sXC, sXC, sTAG)
    S('s_add_u32 %s, %s, 1', sXC, sXC)
    S('v_mov_b32 %s, %s', vXCV, sXC)
    A('v_mov_b32 v10, 0xffffff00')
    S('s_cmp_ge_u32 %s, 24', sJ)
    S('s_cselect_b32 %s, 1, %s', t0, sW)
    S('s_cmp_lg_u32 %s, 0', t0)
    A.wait(lg=t)
    A('s_barrier')
    NP, NX = A.label('nopub'), A.label('noxc')
    vm0 = A.vm
    A('s_cbranch_scc1 ' + NP)
    for i in range(4):
        t = S('ds_read_b128 %s, v15 offset:%d', vr(64 + 4 * i, 4), 256 * i)
    A('s_mov_b64 exec, 0xffff')
    A.wait(lg=t)
    for e in range(2):
        S('v_pk_add_f32 %s, %s, %s', vr(64 + 2 * e, 2), vr(64 + 2 * e, 2), vr(68 + 2 * e, 2))
        S('v_pk_add_f32 %s, %s, %s', vr(72 + 2 * e, 2), vr(72 + 2 * e, 2), vr(76 + 2 * e, 2))
    for e in range(2):
        S('v_pk_add_f32 %s, %s, %s', vr(64 + 2 * e, 2), vr(64 + 2 * e, 2), vr(72 + 2 * e, 2))
    for i in range(4):
        S('v_add_u32 v%d, 0x80, v%d', 64 + i, 64 + i)
    for i in range(4):
        S('v_and_or_b32 v%d, v%d, v10, s%d', 64 + i, 64 + i, TAGB + i)
    S('buffer_store_dwordx4 v[64:67], v12, %s, %s offen sc1', SRD_WS, t1)
    A('s_mov_b64 exec, -1')
    A(NP + ':')
    S('s_cmp_lg_u32 %s, 1', sW)
    A('s_cbranch_scc1 ' + NX)
    S('s_lshl2_add_u32 %s, %s, %d', t0, sLID, WS_XA)
    flag_store(t0, False, vXCV)
    A(NX + ':')
    A.lg_done = A.lg
    A.vm = vm0


def ln1(tx, wst):
    S('s_and_b32 %s, %s, 2', sQK, sCNT)
    S('s_lshl_b32 %s, %s, 1', sQK, sQK)
    swarm_at(2)
    wst.drip(OPT['n2'])
    A.wait(vm=tx)
    stamp('.x')
    if OPT['xl']:
        A('ds_read_b128 v[16:19], v162')
        A.wait(lg=A('ds_read_b128 v[20:23], v162 offset:1024'))
    for i in range(8):
        unpack(24 + 2 * i, 16 + i)
    A('v_pk_add_f32 v[40:41], v[24:25], v[26:27]')
    A('v_pk_mul_f32 v[42:43], v[24:25], v[24:25]')
    A('v_pk_fma_f32 v[42:43], v[26:27], v[26:27], v[42:43]')
    for i in range(2, 8):
        S('v_pk_add_f32 v[40:41], v[40:41], %s', vr(24 + 2 * i, 2))
        S('v_pk_fma_f32 v[42:43], %s, %s, v[42:43]', vr(24 + 2 * i, 2), vr(24 + 2 * i, 2))
    A('v_add_f32 v40, v40, v41')
    A('v_add_f32 v42, v42, v43')
    A('v_permlane32_swap_b32 v40, v42')
    A('v_add_f32 v40, v40, v42')
    A('v_mov_b32 v41, v40')
    A('v_permlane16_swap_b32 v40, v41')
    A('v_add_f32 v40, v40, v41')
    A('v_add_f32_dpp v41, v40, v40 row_ror:8 row_mask:0xf bank_mask:0xf')
    t = A('ds_write_b32 v160, v41')
    A.wait(lg=t)
    A('s_barrier')
    stamp('.bar2')


def ln1_apply():
    A('ds_read_b128 v[64:67], v161')
    t = A('ds_read_b128 v[68:71], v161 offset:128')
    A.wait(lg=t)
    A('v_pk_add_f32 v[64:65], v[64:65], v[66:67]')
    A('v_pk_add_f32 v[68:69], v[68:69], v[70:71]')
    A('v_add_f32 v64, v64, v65')
    A('v_add_f32 v68, v68, v69')
    A('v_mul_f32 v64, 0x3b000000, v64')
    A('v_mul_f32 v68, 0x3b000000, v68')
    A('v_fma_f32 v68, -v64, v64, v68')
    A('v_max_f32 v68, 0, v68')
    A('v_add_f32 v68, 0x3727c5ac, v68')
    A('v_rsq_f32 v60, v68')
    A('v_mul_f32 v61, -v64, v60')
    for i in range(8):
        S('v_pk_fma_f32 %s, %s, v[60:61], v[60:61] op_sel:[0,0,1] op_sel_hi:[1,0,1]', vr(24 + 2 * i, 2), vr(24 + 2 * i, 2))


def sum_partials(base, addend):
    for e in range(2):
        S('v_pk_add_f32 %s, %s, %s', vr(base + 2 * e, 2), vr(base + 2 * e, 2), vr(base + 4 + 2 * e, 2))
        S('v_pk_add_f32 %s, %s, %s', vr(base + 8 + 2 * e, 2), vr(base + 8 + 2 * e, 2), vr(base + 12 + 2 * e, 2))
    for e in range(2):
        S('v_pk_add_f32 %s, %s, %s', vr(base + 2 * e, 2), vr(base + 2 * e, 2), vr(base + 8 + 2 * e, 2))
    for e in range(2):
        S('v_cvt_pk_bf16_f32 v%d, v%d, v%d', base + 4 + e, base + 2 * e, base + 2 * e + 1)
    for e in range(2):
        unpack(base + 8 + 2 * e, base + 4 + e)
    for i in range(4):
        S('v_add_f32 v%d, %s, v%d', base + 8 + i, addend, base + 8 + i)
    for e in range(2):
        S('v_cvt_pk_bf16_f32 v%d, v%d, v%d', base + e, base + 8 + 2 * e, base + 9 + 2 * e)


MP = 156
sMP = ('s92', 's93', 's94', 's95')


def mod_poll_addr():
    S('v_and_b32 v151, 31, %s', vLANE)
    S('v_lshrrev_b32 v12, 5, %s', vLANE)
    S('s_lshl_b32 %s, %s, 9', t0, sW)
    S('v_lshl_add_u32 v156, v151, 4, %s', t0)
    A('v_lshl_add_u32 v156, v12, 11, v156')
    A('v_cvt_f32_u32 v150, v12')
    for i in range(4):
        S('s_mov_b32 %s, %d', sMP[i], WS_MOD + 12288 * i)
    S('s_lshl_b32 %s, %s, 7', t0, sX)
    S('s_add_u32 %s, %s, %d', t0, t0, WS_XA)
    S('v_lshl_add_u32 v157, v151, 2, %s', t0)


def ln_addr():
    S('v_lshrrev_b32 v12, 5, %s', vLANE)
    S('v_lshl_add_u32 v12, v12, 3, %s', l7)
    S('s_lshl2_add_u32 %s, %s, %d', t0, sW, L_SCR)
    S('v_lshl_add_u32 v160, v12, 4, %s', t0)
    S('v_lshlrev_b32 v161, 4, %s', l7)
    S('v_add_u32 v161, %d, v161', L_SCR)


def setup_a():
    mod_poll_addr()
    if OPT['spos'] == 0:
        ln_addr()
    S('s_lshl_b32 %s, %s, 10', t1, sW)
    S('s_add_u32 %s, %s, %d', t1, t1, L_SCR + 4096)
    S('v_add_u32 v158, %s, %s', t1, vL16)
    S('v_lshl_add_u32 v159, %s, 5, %s', l3, t1)
    S('v_lshlrev_b32 v12, 9, %s', l3)
    S('v_lshl_add_u32 %s, %s, 4, v12', H_V, l7)
    srd(SRD_OUT, 24, 2097152)
    S('s_and_b32 %s, %s, 7', sCT, sJ)
    S('s_lshr_b32 %s, %s, 3', t0, sJ)
    if OPT['ctx']:
        S('s_and_b32 %s, %s, 1', t1, t0)
        S('s_xor_b32 %s, %s, %s', sCT, sCT, t1)
    S('s_lshl_b32 %s, %s, 1', t0, t0)
    S('s_lshl3_add_u32 %s, %s, %s', sT0, sX, t0)
    if OPT['rot']:
        S('s_lshl1_add_u32 %s, %s, %s', sOWN, sCT, sW)
        S('s_and_b32 %s, %s, 3', sOWN, sOWN)
    else:
        S('s_mov_b32 %s, %s', sOWN, sW)
    S('s_lshl1_add_u32 %s, %s, %s', sTS, sT0, sOWN)
    A('s_mov_b32 s86, 0x0000ffff')
    A('s_mov_b32 s87, 0x0000ffff')
    A('s_mov_b32 s88, 0xffff0000')
    A('s_mov_b32 s89, 0xffff0000')
    S('v_and_b32 v12, 3, %s', vLANE)
    A('v_lshlrev_b32 v13, 3, v12')
    S('v_bfe_u32 v12, %s, 4, 1', vLANE)
    A('v_lshl_add_u32 v13, v12, 5, v13')
    S('v_bfe_u32 v12, %s, 2, 2', vLANE)
    A('v_lshl_add_u32 v13, v12, 6, v13')
    S('v_lshrrev_b32 v12, 5, %s', vLANE)
    A('v_lshl_add_u32 v13, v12, 9, v13')
    A('v_add_u32 v14, 65536, v13')
    S('s_lshl_b32 %s, %s, 15', t1, sT)
    S('s_add_u32 %s, %s, %d', sHL, t1, WS_H)
    S('s_mov_b64 %s, 0xffff', sMASK)
    S('s_lshr_b32 %s, %s, 2', t4, sLID)
    S('s_lshl4_add_u32 %s, %s, %s', t4, t4, sG)
    S('s_lshl2_add_u32 %s, %s, %s', t4, t4, sW)
    S('s_lshl2_add_u32 %s, %s, %d', t4, t4, WS_FA)


def setup_scalar():
    S('s_lshl4_add_u32 %s, %s, %s', t0, sT, sM)
    S('s_lshl_b32 %s, %s, 6', t1, t0)
    S('s_add_u32 %s, %s, %d', sFKV, t1, WS_FKV)
    S('s_lshl_b32 %s, %s, 12', t1, t0)
    S('s_add_u32 %s, %s, %d', sKVO, t1, WS_KV)
    for d, dst in ((4, sR4), (8, sR8)):
        S('s_sub_u32 %s, %s, %d', dst, t0, 16 * d)
        S('s_max_i32 %s, %s, 0', dst, dst)
    S('v_mov_b32 %s, %s', vPKV, sR4)
    S('v_writelane_b32 %s, %s, 1', vPKV, sR8)
    S('v_lshlrev_b32 %s, 6, %s', vPKV, vPKV)
    S('v_add_u32 %s, %d, %s', vPKV, WS_FKV, vPKV)
    for dst in (sR4, sR8):
        S('s_lshl_b32 %s, %s, 12', dst, dst)
        S('s_add_u32 %s, %s, %d', dst, dst, WS_KV)
    S('s_cmp_ge_u32 %s, 4', sT)
    A('s_cselect_b32 s98, 1, 0')
    S('s_cselect_b32 %s, 0, 0x%x', t1, OOB)
    S('v_add_u32 %s, %s, %s', vD4, t1, vL16)
    S('s_cmp_ge_u32 %s, 8', sT)
    A('s_cselect_b32 s98, 3, s98')
    S('s_cselect_b32 %s, 0, 0x%x', t1, OOB)
    S('v_add_u32 %s, %s, %s', vD8, t1, vL16)
    if OPT['dbg'] & 8:
        S('v_mov_b32 %s, 0x%x', vD4, OOB)
        S('v_mov_b32 %s, 0x%x', vD8, OOB)
    A('s_mov_b32 s99, 0')
    S('s_lshl_b32 %s, %s, 6', t1, sT)
    S('s_add_u32 %s, %s, %s', t1, t1, sM)
    S('s_lshl2_add_u32 %s, %s, %d', sFO, t1, WS_FA + 64)
    S('s_add_u32 %s, %s, 128', sFHID, sFO)
    S('s_lshr_b32 %s, %s, 1', t1, sTS)
    S('s_lshl_b32 %s, %s, 5', t1, t1)
    S('s_add_u32 %s, %s, %s', t1, t1, sCT)
    S('s_and_b32 %s, %s, 1', t2, sTS)
    S('s_lshl1_add_u32 %s, %s, %s', t1, t1, t2)
    S('s_lshl2_add_u32 %s, %s, %d', sFY, t1, WS_FA + 128)
    S('s_lshl_b32 %s, %s, 15', t1, sT)
    wsy = WS_H if LOCAL[0] and OPT['yov'] else WS_Y
    if OPT['w1r'] == 3:
        S('s_and_b32 %s, %s, 3', t2, sX)
        S('s_lshl_b32 %s, %s, 12', t2, t2)
        S('s_add_u32 %s, %s, %s', t2, t2, t1)
    S('s_add_u32 %s, %s, %d', sYL[0], t2 if OPT['w1r'] == 3 else t1, wsy)
    S('s_add_u32 %s, %s, %d', sYL[1], t2 if OPT['w1r'] == 3 else t1, wsy + 16384)
    S('s_lshl_b32 %s, %s, 10', t2, sM)
    S('s_add_u32 %s, %s, %s', t1, t1, t2)
    S('s_add_u32 %s, %s, %d', sOO, t1, WS_O)
    S('s_lshl3_add_u32 %s, %s, %s', t1, sTS, sCT)
    S('s_lshl_b32 %s, %s, 11', t2, t1)
    S('s_add_u32 %s, %s, %d', sYO, t2, wsy)
    S('s_lshl_b32 %s, %s, 7', t2, t1)
    S('s_add_u32 %s, %s, %d', sSO, t2, WS_STAT)
    S('s_lshl_b32 %s, %s, 11', t2, sT)
    S('s_add_u32 %s, %s, %d', sSL, t2, WS_STAT)
    S('s_lshr_b32 %s, %s, 1', t1, sM)
    S('s_lshl4_add_u32 %s, %s, %s', t1, sT, t1)
    S('s_mul_i32 %s, %s, 7168', t1, t1)
    S('s_add_u32 %s, %s, %d', sHO[0], t1, WS_HID)
    S('s_add_u32 %s, %s, %d', sHO[1], t1, WS_HID + 56 * 1024)
    S('s_lshl3_add_u32 %s, %s, %s', t1, sT0, sW)
    for s in range(4):
        S('s_add_u32 %s, %s, %d', t2, sOWN, s + 1)
        S('s_and_b32 %s, %s, 3', t2, t2)
        S('s_lshl2_add_u32 %s, %s, %s', t2, t2, t1)
        S('s_lshl_b32 %s, %s, 12', t3, t2)
        S('s_add_u32 %s, %s, %d', STG_O[s], t3, WS_O)
        S('s_mul_i32 %s, %s, %d', t3, t2, 14 * 1024)
        S('s_add_u32 %s, %s, %d', STG_H[s], t3, WS_HID)
    S('s_lshl2_add_u32 %s, %s, %s', t1, sCT, sW)
    S('s_lshl_b32 %s, %s, 14', t2, t1)
    S('s_add_u32 %s, %s, %d', sWOB, t2, WS_WOT)
    S('s_mul_i32 %s, %s, %d', t2, t1, 14 * 4096)
    S('s_add_u32 %s, %s, %d', sW2B, t2, WS_W2T)
    S('s_lshr_b32 %s, %s, 1', t1, sW)
    S('s_and_b32 %s, %s, 1', t2, sW)
    S('s_lshl3_add_u32 %s, %s, %s', t1, t1, t2)
    S('s_lshl_b32 %s, %s, 7', t1, t1)
    S('s_add_u32 %s, %s, %s', t1, t1, sM)
    S('s_mul_i32 %s, %s, 224', sW1G, t1)
    if OPT['dbg'] & 128:
        S('s_add_u32 %s, %s, 64', sW1G, sW1G)
        S('s_and_b32 %s, %s, 0xffffff80', sW1G, sW1G)
    S('s_mul_i32 %s, %s, 7168', sW1L, sW)
    if OPT['w1r'] == 2:
        S('s_lshr_b32 %s, %s, 2', t1, sX)
        S('s_mul_i32 %s, %s, 7168', sXC, t1)
        S('s_lshl_b32 %s, %s, 12', t1, t1)
        S('s_add_u32 %s, %s, %s', sW1L, sW1L, t1)
    if OPT['w1s']:
        assert OPT['qd'] == 0
        S('s_and_b32 %s, %s, 3', t1, sM)
        S('s_lshr_b32 %s, %d, %s', t1, OPT['w1s'], t1)
        S('s_lshr_b32 %s, %s, 4', t2, sJ)
        S('s_and_b32 %s, %s, %s', t1, t1, t2)
        S('s_mul_i32 %s, %s, %d', t1, t1, 8 * 7168)
        S('s_add_u32 %s, %s, %s', sW1L, sW1L, t1)
        S('s_lshl4_add_u32 %s, %s, %s', sW1G, t1, sW1G)
        S('s_lshl_b32 %s, %s, 1', sXC, t1)
    S('s_lshl_b32 %s, %s, 2', t1, sW)
    S('s_lshl_b32 s60, 15, %s', t1)
    if OPT['gall']:
        A('s_mov_b32 s60, 0xffff')
    A('s_mov_b32 s61, s60')
    S('s_lshl_b32 %s, %s, 12', t1, sW)
    S('s_add_u32 %s, %s, %d', t1, t1, L_KV)
    S('v_add_u32 %s, %s, %s', vKV, t1, vL16)
    for bit, regs in enumerate(((sHL,), (sKVO,), (sR4, sR8), (sOO,), STG_O, (sYO,), sYL, sHO, STG_H, (sPS,))):
        if OPT['nul'] >> bit & 1:
            for r in regs:
                S('s_mov_b32 %s, 0x%x', r, WS_SIZE)


def setup_vector():
    a, b, t, q = 'v10', 'v11', 'v12', 'v15'
    S('v_and_b32 %s, 15, %s', t, vLANE)
    S('v_lshrrev_b32 %s, 4, %s', q, vLANE)
    S('s_lshl_b32 %s, %s, 14', t0, sTS)
    S('s_lshl_b32 %s, %s, 7', t1, sCT)
    S('s_add_u32 %s, %s, %s', t0, t0, t1)
    S('v_lshrrev_b32 %s, 3, %s', b, vLANE)
    S('v_lshl_add_u32 %s, %s, 10, %s', a, b, t0)
    S('v_xor_b32 %s, %s, %s', b, b, l7)
    S('v_lshl_add_u32 %s, %s, 4, %s', vXO, b, a)
    if OPT['w1r'] == 3:
        S('s_lshl_b32 %s, %s, 8', t2, sX)
        S('s_sub_u32 %s, %s, %s', t1, t1, t2)
        S('s_and_b32 %s, %s, 1023', t1, t1)
    S('s_add_u32 %s, %s, %d', t1, t1, L_MODL + 1024)
    S('v_lshl_add_u32 %s, %s, 5, %s', vG2A, q, t1)
    S('s_mov_b32 %s, %d', t1, L_GAB)
    S('v_lshl_add_u32 %s, %s, 6, %s', vGAB, q, t1)
    S('s_mov_b32 %s, %d', t1, L_UT)
    S('v_lshl_add_u32 %s, %s, 4, %s', vUTR, q, t1)
    S('s_lshl_b32 %s, %s, 10', t0, sW)
    S('s_add_u32 %s, %s, %d', t1, t0, WS_MOD + 6144)
    S('v_add_u32 %s, %s, %s', vMR0, t1, vL16)
    S('s_lshr_b32 %s, %s, 1', t0, t0)
    if OPT['w1r'] == 3:
        S('s_sub_u32 %s, %s, %s', t1, t0, t2)
        S('v_lshl_add_u32 %s, %s, 3, %s', a, vLANE, t1)
        S('v_and_b32 %s, 1023, %s', a, a)
        S('s_and_b32 %s, %s, 1024', t1, t0)
        S('s_add_u32 %s, %s, %d', t1, t1, L_MODL)
        S('v_add_u32 %s, %s, %s', vMW, t1, a)
    else:
        S('s_add_u32 %s, %s, %d', t1, t0, L_MODL)
        S('v_lshl_add_u32 %s, %s, 3, %s', vMW, vLANE, t1)
    S('v_bfe_u32 %s, %s, 3, 1', b, vLANE)
    S('v_lshl_add_u32 %s, %s, 1, %s', a, q, b)
    S('v_mul_u32_u24 %s, 6144, %s', a, a)
    S('v_lshl_add_u32 %s, %s, 4, %s', a, l7, a)
    S('s_and_b32 %s, %s, 1', t0, sW)
    S('s_lshl1_add_u32 %s, %s, %s', t1, sCT, t0)
    S('s_lshl_b32 %s, %s, 7', t1, t1)
    S('s_add_u32 %s, %s, %d', t1, t1, WS_MOD + 4096)
    S('v_add_u32 %s, %s, %s', vMR1, t1, a)
    S('s_lshl_b32 %s, %s, 7', t0, t0)
    S('s_add_u32 %s, %s, %d', t0, t0, L_GAB)
    S('v_lshl_add_u32 %s, %s, 8, %s', a, b, t0)
    S('v_lshl_add_u32 %s, %s, 4, %s', a, l7, a)
    S('v_lshrrev_b32 %s, 5, %s', b, vLANE)
    S('v_lshl_add_u32 %s, %s, 2, %s', a, b, a)
    S('v_and_b32 %s, 1, %s', q, q)
    S('v_lshl_add_u32 %s, %s, 3, %s', vGW, q, a)
    S('v_lshlrev_b32 %s, 4, %s', a, t)
    S('v_lshl_add_u32 %s, %s, 14, %s', a, q, a)
    S('v_lshl_add_u32 %s, %s, 8, %s', vOO, b, a)
    S('v_lshlrev_b32 %s, 2, %s', a, t)
    S('v_lshl_add_u32 %s, %s, 6, %s', vSS, b, a)
    S('v_lshl_add_u32 %s, %s, 10, %s', vSL, q, vSS)
    S('s_lshl_b32 %s, %s, 8', t0, sT0)
    S('s_add_u32 %s, %s, %d', t0, t0, WS_FA)
    S('v_lshl_add_u32 %s, %s, 7, %s', a, b, t0)
    S('v_lshl_add_u32 %s, %s, 2, %s', vPG, vLANE, a)
    S('v_bfe_u32 %s, %s, 2, 3', a, vLANE)
    S('v_lshl_add_u32 %s, %s, 4, %s', a, b, a)
    S('v_mul_u32_u24 %s, 224, %s', a, a)
    S('v_and_b32 %s, 3, %s', b, vLANE)
    S('v_lshl_add_u32 v%d, %s, 3, %s', vT1, b, a)
    S('v_add_u32 v%d, 57344, v%d', vT2, vT1)
    S('s_and_b32 %s, %s, 1', t0, sM)
    S('s_lshl_b32 %s, %s, 12', t1, t0)
    S('v_add_u32 %s, %s, %s', vH4, t1, vL16)
    S('s_lshl_b32 %s, %s, 9', t1, t0)
    S('v_lshlrev_b32 %s, 2, %s', vL8, vLANE)
    S('v_add_u32 %s, %s, %s', vH2, t1, vL8)
    for s in range(4):
        S('s_add_u32 %s, %s, %d', t0, sW, s + 1)
        S('s_and_b32 %s, %s, 3', t0, t0)
        S('s_lshl_b32 %s, %s, 13', t0, t0)
        S('s_add_u32 %s, %s, %d', t0, t0, L_RED + (4096 if s == 1 else 0))
        S('v_add_u32 v%d, %s, %s', (vRW + (vRR,))[s], t0, vL16)
    S('s_mul_i32 %s, %s, 14', t0, sW)
    S('v_min_u32 %s, 13, %s', a, t)
    S('v_add_u32 %s, %s, %s', a, t0, a)
    S('s_lshl2_add_u32 %s, %s, 56', t0, sW)
    S('v_and_b32 %s, 3, %s', b, vLANE)
    S('v_add_u32 %s, %s, %s', b, t0, b)
    S('v_cndmask_b32 %s, %s, %s, %s', a, b, a, sMASK)
    S('s_lshl_b32 %s, %s, 13', t0, sCT)
    S('s_add_u32 %s, %s, %d', t0, t0, WS_FP)
    S('v_lshl_add_u32 %s, %s, 6, %s', a, a, t0)
    S('s_mov_b32 %s, %d', t0, WS_FKV)
    S('v_lshl_add_u32 %s, %s, 13, %s', b, l7, t0)
    S('s_or_b32 %s, %s, %s', t0, sLID, sW)
    S('s_min_u32 %s, %s, 1', t0, t0)
    S('s_sub_u32 %s, %s, 1', t0, t0)
    S('s_and_b32 s93, %s, 0xff', t0)
    A('s_mov_b32 s92, 0')
    S('v_cndmask_b32 %s, %s, %s, s[92:93]', vFP, a, b)


def w1_addr():
    for i in range(7):
        if OPT['w1r'] == 2:
            S('v_add_u32 v10, %d, v%d', 64 * i, W1V + (5 if i < 3 else 6))
        else:
            S('v_add_u32 v10, %d, %s', 64 * i, vLANE)
        A('v_mul_u32_u24 v11, 4682, v10')
        A('v_lshrrev_b32 v11, 16, v11')
        A('v_mad_i32_i24 v10, v11, -14, v10')
        S('v_add_u32 v10, %s, v10', t4)
        A('v_subrev_u32 v12, 14, v10')
        A('v_min_u32 v10, v10, v12')
        A('v_and_b32 v12, 4, v11')
        A('v_mad_u32_u24 v12, v12, 3, v11')
        A('v_and_b32 v15, 16, v11')
        A('v_add_u32 v12, v12, v15')
        A('v_bfe_u32 v15, v11, 3, 1')
        A('v_mad_i32_i24 v12, v15, -4, v12')
        A('v_mul_u32_u24 v12, 3584, v12')
        S('v_lshl_add_u32 v%d, v10, 4, v12', W1V + i)


def ut_addr():
    S('s_lshl_b32 %s, %s, 5', t3, sW)
    S('s_add_u32 %s, %s, 128', t4, t3)
    S('s_min_u32 %s, %s, 192', t4, t4)
    S('v_add_u32 v%d, %s, v%d', UTA, t3, vT1)
    S('v_add_u32 v%d, %s, v%d', UTA + 1, t3, vT2)
    S('v_add_u32 v%d, %s, v%d', UTA + 2, t4, vT1)
    S('v_add_u32 v%d, %s, v%d', UTA + 3, t4, vT2)
    S('v_and_b32 v10, 1, %s', vLANE)
    A('v_lshlrev_b32 v11, 10, v10')
    S('v_sub_u32 v11, %d, v11', L_MODL + 1024)
    S('v_lshrrev_b32 v12, 4, %s', vLANE)
    S('v_lshl_add_u32 v%d, v12, 5, v11', UTA + 4)
    S('v_lshl_add_u32 v12, v10, 9, %s', vUTR)
    S('v_lshl_add_u32 v%d, %s, 1, v12', UTA + 5, t3)
    S('v_lshl_add_u32 v%d, %s, 1, v12', UTA + 6, t4)


def mod_poll(wst):
    def loads():
        S('buffer_load_dword v58, v157, %s, 0 offen sc1', SRD_WS)
        return [S('buffer_load_dwordx4 %s, v156, %s, %s offen sc1', vr(40 + 4 * i, 4), SRD_WS, sMP[i]) for i in range(4)]
    L, D = A.label('pmod'), A.label('dmod')
    wst.drip(OPT['n2b'])
    if OPT['spos']:
        assert OPT['ppos'] == 0
        prep_srd()
        prep_addr()
        setup_a()
    if OPT['lnp']:
        ln1_apply()
    stamp('ln done')
    tk = loads()
    if OPT['tw1'] == 2:
        warm(SRD_W1, 14)
    wst.drip(OPT['n3'])
    if not OPT['lnp']:
        ln1_apply()
    swarm_at(3)
    stamp('.setup a')
    for i in range(4):
        A.wait(vm=tk[i])
        untag(40 + 4 * i, 56, i == 0)
    untag_test(56)
    S('s_mov_b32 %s, 0', sCNT)
    A('s_cbranch_vccz ' + D)
    vm_save = A.vm
    A(L + ':')
    loads()
    S('s_add_u32 %s, %s, 1', sCNT, sCNT)
    for i in range(4):
        S('s_waitcnt vmcnt(%d)', 3 - i)
        untag(40 + 4 * i, 56, i == 0)
    untag_test(56)
    S('s_cmp_lt_u32 %s, %d', sCNT, LIMIT)
    A('s_cbranch_vccz ' + D)
    A('s_cbranch_scc1 ' + L)
    A(D + ':')
    A.vm = vm_save
    stamp('mod seen')
    S('v_cmp_ne_u32 vcc, %s, v58', sXC)
    sum_partials(40, 'v150')
    unpack(44, 40)
    unpack(46, 41)
    A('s_cbranch_vccnz L_xcslow')
    A('L_local:')


def xc_slow():
    A('L_xcslow:')
    S('s_mov_b32 %s, 0', sCNT)
    A('L_xc1:')
    S('buffer_load_dword v58, v157, %s, 0 offen sc1', SRD_WS)
    S('s_add_u32 %s, %s, 1', sCNT, sCNT)
    A('s_waitcnt vmcnt(0)')
    S('v_cmp_ne_u32 vcc, %s, v58', sXC)
    A('s_cbranch_vccz L_local')
    S('s_cmp_lt_u32 %s, 32', sCNT)
    A('s_cbranch_scc1 L_xc1')
    S('s_lshl_b32 %s, %s, 6', t0, sLID)
    S('s_add_u32 %s, %s, %d', t0, t0, WS_XB)
    flag_store(t0, True, vXCV)
    S('s_lshl_b32 %s, %s, 11', t0, sX)
    S('s_add_u32 %s, %s, %d', t0, t0, WS_XB)
    S('v_lshl_add_u32 v59, v151, 6, %s', t0)
    S('buffer_load_dword v57, v59, %s, 0 offen sc1', SRD_WS)
    A('s_waitcnt vmcnt(0)')
    S('v_cmp_ne_u32 vcc, %s, v57', sXC)
    A('s_cbranch_vccz L_local')
    S('s_add_u32 %s, %s, 1', t0, sTAG)
    S('v_subrev_u32 v56, %s, v57', t0)
    A('v_cmp_le_u32 vcc, 16, v56')
    A('s_cbranch_vccz L_remote')
    S('s_cmp_lt_u32 %s, %d', sCNT, LIMIT)
    A('s_cbranch_scc1 L_xc1')
    A('L_remote:')


def h_phase(wst, pst):
    t = A('ds_write_b128 v158, v[44:47]')
    S('s_add_u32 %s, %s, 4096', t3, H_S)
    A.wait(lg=t)
    tr = []
    for i in range(4):
        S('ds_read_b128 %s, v159 offset:%d', vr(64 + 8 * i, 4), 256 * (i >> 1) + 16 * (i & 1))
        tr.append(S('ds_read_b128 %s, v159 offset:%d', vr(68 + 8 * i, 4), 512 + 256 * (i >> 1) + 16 * (i & 1)))
    for i in range(4):
        A.wait(lg=tr[i])
        for d in range(2):
            x = 24 + 4 * i + 2 * d
            S('v_pk_fma_f32 %s, %s, %s, %s', vr(x, 2), vr(x, 2), vr(68 + 8 * i + 2 * d, 2), vr(64 + 8 * i + 2 * d, 2))
        for d in range(2):
            x = 24 + 4 * i + 2 * d
            S('v_cvt_pk_bf16_f32 v%d, v%d, v%d', 16 + 2 * i + d, x, x + 1)
        if i & 1:
            ts = S('buffer_store_dwordx4 %s, %s, %s, %s offen%s', vr(16 + 4 * (i >> 1), 4), H_V, SRD_WS, (H_S, t3)[i >> 1], sc('h'))
    stamp('.h st')
    keep = 8 - OPT['wq0']
    wst.drip(max(0, min(OPT['n4'], len(wst) - keep)))
    swarm_at(4)
    sl = capture(setup_scalar)
    n0 = OPT['sv'] if len(wst) <= 11 else 0
    while any(l.startswith('s_cselect') for l in sl[n0:n0 + 2]):
        n0 += 1
    A.lines += sl[:n0]
    A.wait(vm=ts)
    flag_store(t4, not LOCAL[0])
    stamp('h pub')
    if OPT['tw1'] == 3:
        warm(SRD_W1, 14)
    role_only(lambda: pst.drip(4))
    nb = max(0, len(wst) - keep)
    wst.drip(nb)
    A.lines += sl[n0:]
    lanes = 0
    if LOCAL[0] and OPT['toy']:
        S('v_and_b32 v10, 7, %s', vLANE)
        S('v_bfe_u32 v11, %s, 3, 1', vLANE)
        S('v_lshl_add_u32 v10, v10, 7, %s', sOO)
        A('v_lshl_add_u32 v10, v11, 14, v10')
        S('v_and_b32 v11, 15, %s', vLANE)
        S('v_lshl_add_u32 v11, v11, 7, %s', sYO)
        S('v_cndmask_b32 v10, v11, v10, %s', sMASK)
        S('v_writelane_b32 v10, %s, 32', sSO)
        lanes |= (0xffff if OPT['po'] else 0) | (0x1ffff0000 if OPT['py'] else 0)
    if OPT['tfl'] == 1:
        S('v_writelane_b32 v10, %s, 33', sFKV)
        S('v_writelane_b32 v10, %s, 34', sFP)
        lanes |= 3 << 33
    if OPT['tlb'] & 1:
        for i, r in enumerate((sKVO, sR8, sOO, sYO, sHO[0], STG_H[0], sW2B)):
            S('s_or_b32 %s, %s, 0x1fff80', t0, r)
            S('v_writelane_b32 v10, %s, %d', t0, 35 + i)
        lanes |= 0x7f << 35
    if OPT['tlb'] & 2:
        A('s_mov_b64 exec, 1')
        S('buffer_load_dword v%d, off, %s, 0', JUNK + 1, SRD_OUT)
        A('s_mov_b64 exec, -1')
    if lanes:
        S('s_mov_b32 exec_lo, 0x%x', lanes & 0xffffffff)
        S('s_mov_b32 exec_hi, 0x%x', lanes >> 32)
        S('buffer_load_dword v%d, v10, %s, 0 offen sc1', JUNK + 2, SRD_WS)
        A('s_mov_b64 exec, -1')
    stamp('.dma iss')
    assert not len(pst)
    setup_vector()
    stamp('.setup v')


def qkv(wq, w1):
    RING = 4
    rd = {}

    def bread(s, tile):
        b = 64 + 8 * (s % RING)
        for half in range(2):
            rd[s] = S('ds_read_b64_tr_b16 %s, v13 offset:%d', vr(b + 4 * tile + 2 * half, 2), tile * 32768 + s * 1024 + half * 256)
    S('s_and_b32 %s, %s, 1', t4, sM)
    S('s_lshl_b32 %s, %s, 1', t4, t4)
    if OPT['hrot']:
        S('s_and_b32 %s, %s, %d', t3, sG, OPT['hrot'])
        S('s_lshl_b32 %s, %s, 13', t3, t3)
    if OPT['w1r'] == 2:
        S('s_lshr_b32 %s, %s, 2', t0, sX)
        S('v_lshl_add_u32 v%d, %s, 8, %s', W1V + 5, t0, vLANE)
        S('s_mul_i32 %s, %s, 192', t0, t0)
        S('v_subrev_u32 v%d, %s, %s', W1V + 6, t0, vLANE)
    twq = poll2(vPT, 0, 'h', sMASK, lambda: wq.drip(OPT['bh'])) or 0
    stamp('h seen')
    ta = []

    def aload(s):
        if OPT['hrot'] and s & 7 == 0:
            if s:
                S('s_add_u32 %s, %s, 8192', t3, t3)
                S('s_and_b32 %s, %s, 0x7fff', t3, t3)
            S('s_add_u32 %s, %s, %s', t2, sHL, t3)
        elif s and s & 3 == 0:
            S('s_add_u32 %s, %s, 4096', hl, hl)
        ta.append(S('buffer_load_dwordx4 %s, %s, %s, %s offen offset:%d sc1', vr(128 + 4 * s, 4), vL16, SRD_WS, hl, (s & 3) * 1024))
    hl = t2 if OPT['hrot'] else sHL
    AH = OPT['kvah']
    for s in range(AH):
        aload(s)
    A('s_barrier')
    for s in range(RING - 1):
        bread(s, 0)
        bread(s, 1)
    def l2warm():
        S('s_lshl2_add_u32 %s, %s, %s', t0, sJ, sW)
        S('s_mul_i32 %s, %s, %d', t0, t0, OPT['l2n'])
        S('s_add_u32 %s, %s, %d', t1, sX, OPT['l2o'])
        S('s_lshl_b32 %s, %s, 7', t1, t1)
        S('s_add_u32 %s, %s, %s', t0, t0, t1)
        S('s_and_b32 %s, %s, 511', t0, t0)
        S('s_mul_i32 %s, %s, 3584', t0, t0)
        S('v_lshlrev_b32 v48, 7, %s', vLANE)
        S('s_bfm_b64 exec, %d, 0', 28 * OPT['l2n'])
        S('buffer_load_dword v49, v48, %s, %s offen', SRD_W1, t0)
        A('s_mov_b64 exec, -1')
    fill = capture(w1_addr)
    A.lines += fill[:12]
    fill = fill[12:]
    for s in range(32):
        b = 64 + 8 * (s % RING)
        A.wait(vm=ta[s], lg=rd[s])
        a = vr(128 + 4 * s, 4)
        S('%s v[16:31], %s, %s, %s', MF32, vr(b, 4), a, 'v[16:31]' if s else '0')
        if s + AH < 32:
            aload(s + AH)
        elif s + AH - 32 < OPT['wq1'] and len(wq):
            twq = wq.drip(1)
        if s + RING - 1 < 32:
            bread(s + RING - 1, 0)
        A.lines += fill[:1]
        S('%s v[32:47], %s, %s, %s', MF32, a, vr(b + 4, 4), 'v[32:47]' if s else '0')
        if s + RING - 1 < 32:
            bread(s + RING - 1, 1)
        if s == OPT['l2w']:
            l2warm()
        A.lines += fill[1:3]
        fill = fill[3:]
    assert not fill
    stamp('kv pass')
    for p in range(4):
        for d in range(4):
            S('v_cvt_pk_bf16_f32 v%d, v%d, v%d', 48 + 4 * p + d, 16 + 8 * p + 2 * d, 17 + 8 * p + 2 * d)
        tkvs = S('buffer_store_dwordx4 %s, %s, %s, %s offen offset:%d sc1', vr(48 + 4 * p, 4), vL16, SRD_WS, sKVO, p * 1024)
    stamp('.kv st')
    if OPT['kb']:
        A('s_barrier')
    twq = wq.drip(OPT['wq2']) or twq
    for p in range(4):
        tl = S('ds_write_b128 %s, %s offset:%d', vKV, vr(48 + 4 * p, 4), 8 * 4096 + p * 1024)
    for nt in range(4):
        tl = prep_read(nt)
    S('v_and_b32 v11, 31, %s', vLANE)
    S('v_lshrrev_b32 v12, 5, %s', vLANE)
    A('v_lshlrev_b32 v12, 2, v12')
    A('v_sub_u32 v11, v11, v12')
    A('v_mov_b32 v12, 0xff800000')
    ms = ('s[90:91]', 's[92:93]', 's[94:95]')
    for r in range(18):
        if r < 16:
            S('v_cmp_le_i32 %s, %d, v11', ms[r % 3], (r & 3) + 8 * (r >> 2))
        if r >= 2:
            S('v_cndmask_b32 v%d, v12, 0, %s', MD + r - 2, ms[(r - 2) % 3])
            S('v_cndmask_b32 v%d, 0, v12, %s', MFAR + r - 2, ms[(r - 2) % 3])
    stamp('.masks')

    def kvflag():
        A.wait(vm=tkvs)
        flag_store(sFKV, True)
        stamp('kv pub')
    if OPT['qf'] < 0:
        kvflag()
    twq = wq.drip(99) or twq
    if OPT['tw1'] == 7:
        warm(SRD_W1, 14, 95, 95)
    ut_addr()
    if OPT['nsp']:
        S('v_and_b32 %s, 0xffffff7f, %s', vPT, vPT)
    S('s_lshl_b32 %s, %s, 12', t2, sW)
    S('s_mov_b32 %s, 0x3eb8aa3b', t0)
    S('s_mov_b32 %s, 0x3eb8aa3b', t1)
    A.wait(lg=tl)
    assert OPT['qf'] < 0
    if OPT['bk']:
        A.wait(vm=twq)
    else:
        role_only(lambda: ([prep_store(p) for p in range(4)], A.wait(vm=twq)), lambda: A.wait(vm=twq))
    A('s_barrier')
    stamp('wq ready')
    rq = {}

    def qread(s):
        b = 64 + 4 * (s % 6)
        for half in range(2):
            rq[s] = S('ds_read_b64_tr_b16 %s, v14 offset:%d', vr(b + 2 * half, 2), s * 1024 + half * 256)
    if OPT['qp'] == 0:
        tpoll = poll_load(vPKV, 0)
        if OPT['bk']:
            role_only(lambda: [prep_store(p) for p in range(4)])
    for s in range(5):
        qread(s)
    kq = Stream()
    tkv = {}
    for n, (t, slot, v) in enumerate(((sR4, 4, vD4), (sR8, 0, vD8))):
        for p in range(4):
            def f(n=n, t=t, v=v, p=p):
                tkv[n] = S('buffer_load_dwordx4 %s, %s, %s offen offset:%d sc1 lds', v, SRD_WS, t, p * 1024)
            kq.add(f, (lambda slot=slot: S('s_add_u32 m0, %s, %d', t2, L_KV + slot * 4096)) if p == 0 else None)
    assert OPT['w1r'] == 3 or OPT['bp'] + OPT['qd'] == 0
    assert OPT['bp'] + OPT['qd'] <= 14 and OPT['qp'] + OPT['bp'] < OPT['qchk']
    nq = OPT['qd']
    fill = capture(v_ones)
    for s in range(32):
        A.wait(lg=rq[s])
        S('%s v[48:63], %s, %s, %s', MF32, vr(64 + 4 * (s % 6), 4), vr(128 + 4 * s, 4), 'v[48:63]' if s else '0')
        if s and s == OPT['qp']:
            tpoll = poll_load(vPKV, 0)
        if OPT['qp'] < s <= OPT['qp'] + OPT['bp']:
            w1.drip(1)
        if s > OPT['qchk']:
            kq.pre()
        if s + 5 < 32:
            qread(s + 5)
        elif s == 28:
            rdK(0, 0)
            rdK(1, 0)
        elif s == 29:
            assert not fill
            rdV(0, 0)
        if s == OPT['qf']:
            kvflag()
        if s == OPT['qchk']:
            D = A.label('kvseen')
            stamp('.q chk')
            if OPT['bk']:
                role_only(lambda: A('s_waitcnt vmcnt(4)'), lambda: A.wait(vm=tpoll))
            else:
                A.wait(vm=tpoll)
            poll_test(sM2)
            A('s_cbranch_scc0 ' + D)
            vm_save = A.vm
            poll(vPKV, 0, 'kv', sM2)
            A.vm, A.vm_done = vm_save, tpoll
            A(D + ':')
            stamp('.polled')
            kq.drip(4)
        elif s > OPT['qchk'] and len(kq):
            kq.drip(2)
        elif s >= 6:
            if s > OPT['qchk'] and nq:
                w1.drip(1)
                nq -= 1
            A.lines += fill[:2]
            fill = fill[2:]
    kq.drip(99)
    w1.drip(nq)
    if OPT['tw1'] == 6:
        warm(SRD_W1, 14, 11, 12)
    stamp('q pass')
    return tkv


def mr_load(i):
    if i < 4:
        S('s_mov_b32 s65, %d', 12288 * i)
        return S('buffer_load_dwordx4 %s, %s, %s, s65 offen sc1', vr(MRD + 4 * i, 4), vMR0, SRD_WS)
    return S('buffer_load_dwordx4 %s, %s, %s, 0 offen sc1', vr(MRD + 16, 4), vMR1, SRD_WS)


def v_ones():
    if not OPT['vz']:
        for r in range(16):
            S('v_mov_b32 v%d, 0x3f803f80', V0 + r)
        return
    A('s_mov_b32 s92, 0x00110011')
    A('s_mov_b32 s93, 0x00110011')
    A('v_mov_b32 v10, 0x3f803f80')
    S('v_cndmask_b32 v%d, 0, v10, s[92:93]', V0)
    for r in range(1, 16):
        S('v_mov_b32 v%d, v%d', V0 + r, V0)


def tok_addr(dst, base):
    S('v_and_b32 v%d, 15, %s', dst, vLANE)
    S('v_lshrrev_b32 v%d, 3, %s', dst + 1, vLANE)
    S('v_and_b32 v%d, 6, v%d', dst + 1, dst + 1)
    S('v_xor_b32 v%d, v%d, v%d', dst + 1, dst + 1, dst)
    S('v_and_b32 v%d, 7, v%d', dst + 1, dst + 1)
    S('v_lshl_add_u32 v%d, v%d, 7, %s', dst, dst, base)
    S('v_lshl_add_u32 v%d, v%d, 4, v%d', dst, dst + 1, dst)
    S('v_xor_b32 v%d, 16, v%d', dst + 1, dst)


def kv_off(d, piece):
    return (8 - d) * 4096 + piece * 1024


def rdK(h, d):
    return S('ds_read_b128 %s, %s offset:%d', vr((K0, K1)[h], 4), vKV, kv_off(d, h))


def rdV(h, d):
    if d:
        S('s_cselect_b64 exec, -1, %s', (sLO, sHI)[h])
    else:
        S('s_mov_b64 exec, %s', (sLO, sHI)[h])
    S('ds_read_b128 %s, %s offset:%d', vr((V0, V1)[h], 4), vKV, kv_off(d, 2))
    t = S('ds_read_b128 %s, %s offset:%d', vr((V0, V1)[h] + 4, 4), vKV, kv_off(d, 3))
    A('s_mov_b64 exec, -1')
    return t


def attention(w1, tkv):
    bg = Stream()
    wo = frag_stream(sWOB, 4, 192)
    tk = {}
    RET, RETB = A.label('fpretry'), A.label('fpback')

    def fp_load():
        tk[0] = poll_load(vFP, 0)

    def fp_check():
        A.wait(vm=tk[0])
        S('v_cmp_ne_u32 vcc, %s, v15', sTAG)
        A('s_cbranch_vccnz ' + RET)
        A(RETB + ':')
    while len(bg) < OPT['aw1']:
        bg.q.append(w1.q.pop(0) if len(w1) else (lambda: None, None))
    if LOCAL[0] and OPT['po'] and OPT['toy'] != 1:
        bg.add(lambda: touch(vOO, sOO))
        bg.add(lambda: touch(vOO, sOO, 512))

    def y_touch():
        S('v_lshl_add_u32 v10, %s, 7, %s', vLANE, sYO)
        S('v_writelane_b32 v10, %s, 16', sSO)
        A('s_mov_b64 exec, 0x1ffff')
        S('buffer_load_dword v%d, v10, %s, 0 offen sc1', JUNK, SRD_WS)
        A('s_mov_b64 exec, -1')
    if LOCAL[0] and OPT['yov'] and OPT['ytp'] >= 0:
        bg.q.insert(OPT['ytp'], (y_touch, None))
    bg.q.insert(OPT['fpl'], (fp_load, None))
    bg.q.insert(OPT['fpf'], (lambda: None, lambda: role_only(lambda: flag_store(sFP, True))))
    bg.add(fp_check)
    chk = bg.q.pop()
    at = len(bg) - OPT['mrp']
    assert at >= 0
    bg.q[at:at] = [(lambda i=i: mr_load(i), None) for i in range(5)]
    bg.q.append(chk)
    nmust = len(bg)
    if not OPT['nobg'] & 4:
        bg.q += wo.q
    bg.q += w1.q
    ntail = len(bg) - nmust
    cut = max(nmust, OPT['ad'] + 34 - OPT['ae'])
    rest_, bg.q = bg.q[cut:], bg.q[:cut]

    def cop(d):
        return vr(MD, 16) if d == 0 else vr(MFAR, 16) if d == 8 else '0'

    for i in range(8):
        S('v_pk_mul_f32 %s, %s, s[76:77]', vr(48 + 2 * i, 2), vr(48 + 2 * i, 2))
    for i in range(8):
        S('v_cvt_pk_bf16_f32 v%d, v%d, v%d', 48 + i, 48 + 2 * i, 49 + 2 * i)
    A.wait(lg='all')
    S('%s %s, %s, %s, %s', MF32, vr(S0, 16), vr(K0, 4), vr(Q0, 4), cop(0))

    def half(h, d):
        S_, P, O, V = (S0, S1)[h], (P0, P1)[h], (O0, O1)[h], (V0, V1)[h]
        oS, oP, oO, oV, oK, oQ = (S1, S0)[h], (P1, P0)[h], (O1, O0)[h], (V1, V0)[h], (K1, K0)[h], (Q1, Q0)[h]
        od = d if h == 0 else d + 1
        first = d == 0 and h == 0
        if od <= 8:
            S('%s %s, %s, %s, %s', MF32, vr(oS, 16), vr(oK, 4), vr(oQ, 4), cop(od))
            if od:
                S('s_cmp_lt_u32 %s, %d', sT, od)
        if not first:
            if d + 1 <= 8:
                rdK(h, d + 1)
            bg.go()
        else:
            rdV(1, 0)
        for i in range(4):
            S('v_exp_f32 v%d, v%d', S_ + i, S_ + i)
        if not first:
            S('%s %s, %s, %s, %s', MF32, vr(oO, 16), vr(oV + 4, 4), vr(oP + 4, 4), vr(oO, 16))
            if od <= 8:
                rdV(1 - h, od)
            bg.pre()
        for i in range(4, 8):
            S('v_exp_f32 v%d, v%d', S_ + i, S_ + i)
        for i in range(4):
            S('v_cvt_pk_bf16_f32 v%d, v%d, v%d', P + i, S_ + 2 * i, S_ + 2 * i + 1)
        for i in range(8, 12):
            S('v_exp_f32 v%d, v%d', S_ + i, S_ + i)
        S('%s %s, %s, %s, %s', MF32, vr(O, 16), vr(V, 4), vr(P, 4), vr(O, 16) if d else '0')
        if first:
            A.wait(vm=tkv[1 - OPT['kv2']])
            A('s_barrier')
            stamp('kv loaded')
            rdK(0, 1)
            bg.drip(OPT['ad'])
        else:
            if OPT['kv2'] and d == 3 and h == 1:
                A.wait(vm=tkv[1], lg='all')
                A('s_barrier')
            A.wait(lg='all')
            bg.go()
        bg.pre()
        for i in range(12, 16):
            S('v_exp_f32 v%d, v%d', S_ + i, S_ + i)
        for i in range(4, 8):
            S('v_cvt_pk_bf16_f32 v%d, v%d, v%d', P + i, S_ + 2 * i, S_ + 2 * i + 1)
        if first:
            A.wait(lg='all')

    for d in range(9):
        if d in (3, 6):
            stamp('.d%d' % d)
        half(0, d)
        half(1, d)
    bg.drip(99)
    w1.q, w1.ready = rest_, False
    S('%s %s, %s, %s, %s', MF32, vr(O1, 16), vr(V1 + 4, 4), vr(P1 + 4, 4), vr(O1, 16))
    stamp('att done')
    FB, OK = A.label('fb'), A.label('attok')
    S('s_mov_b32 %s, 0x1f800000', t0)
    S('s_mov_b32 %s, 0x5f800000', t1)
    S('s_mov_b32 %s, 0x7f000000', t2)
    S('v_add_f32 v10, abs(v%d), abs(v%d)', O0, O0 + 1)
    for i in range(2, 8):
        S('v_add_f32 v10, v10, abs(v%d)', O0 + i)
    S('v_cmp_nle_f32 vcc, %s, v%d', t0, O0 + 8)
    S('v_cmp_nge_f32 s[92:93], %s, v%d', t1, O0 + 8)
    for i in range(8):
        S('v_add_f32 v10, v10, abs(v%d)', O1 + 8 + i)
    A('s_or_b64 vcc, vcc, s[92:93]')
    S('v_cmp_nle_f32 s[92:93], %s, v%d', t0, O1)
    S('v_cmp_nge_f32 s[94:95], %s, v%d', t1, O1)
    S('v_cmp_ngt_f32 s[90:91], %s, v10', t2)
    S('v_rcp_f32 v10, v%d', O0 + 8)
    S('v_rcp_f32 v12, v%d', O1)
    A('s_or_b64 vcc, vcc, s[92:93]')
    A('s_or_b64 vcc, vcc, s[94:95]')
    A('s_or_b64 vcc, vcc, s[90:91]')
    if OPT['force_fallback']:
        A('s_branch ' + FB)
    if OPT['ns']:
        A('s_cmp_eq_u32 0, 1')
    A('s_cbranch_scc1 ' + FB)
    A(OK + ':')
    for h, (src, rc) in enumerate(((O0, 10), (O1 + 8, 12))):
        for i in range(4):
            S('v_pk_mul_f32 %s, %s, %s op_sel_hi:[1,0]', vr(src + 2 * i, 2), vr(src + 2 * i, 2), vr(rc, 2))
        for i in range(4):
            S('v_cvt_pk_bf16_f32 v%d, v%d, v%d', P0 + 4 * h + i, src + 2 * i, src + 2 * i + 1)
        ts = S('buffer_store_dwordx4 %s, %s, %s, %s offen offset:%d%s', vr(P0 + 4 * h, 4), vOO, SRD_WS, sOO, h * 512, sc('o'))
    return (FB, OK, RET, RETB), ts


def out_of_line(FB, OK, RET, RETB):
    A(RET + ':')
    A('s_cselect_b32 s66, 1, 0')
    poll(vFP, 0, 'fp', '-1')
    A('s_cmp_lg_u32 s66, 0')
    A('s_branch ' + RETB)
    A(FB + ':')
    S('s_min_u32 %s, %s, 8', t3, sT)
    v_ones()
    for h in range(2):
        Kp, Q, O, V = h, (Q0, Q1)[h], (O0, O1)[h], (V0, V1)[h]
        for ps in range(2):
            L, ND, NF = A.label('fl'), A.label('fnd'), A.label('fnf')
            S('s_mov_b32 %s, 0', t4)
            S('v_add_u32 v10, %d, %s', 8 * 4096, vKV)
            if ps == 0:
                A('v_mov_b32 v11, 0xff800000')
            else:
                for r in range(16):
                    S('v_mov_b32 v%d, 0', O + r)
            A(L + ':')
            S('ds_read_b128 %s, v10 offset:%d', vr(K0, 4), Kp * 1024)
            if ps == 1:
                S('s_mov_b64 exec, %s', (sLO, sHI)[h])
                S('ds_read_b128 %s, v10 offset:2048', vr(V, 4))
                S('ds_read_b128 %s, v10 offset:3072', vr(V + 4, 4))
                A('s_mov_b64 exec, -1')
            A('s_waitcnt lgkmcnt(0)')
            S('%s %s, %s, %s, 0', MF32, vr(S0, 16), vr(K0, 4), vr(Q, 4))
            A('s_nop 15')
            S('s_cmp_lg_u32 %s, 0', t4)
            A('s_cbranch_scc1 ' + ND)
            for r in range(16):
                S('v_add_f32 v%d, v%d, v%d', S0 + r, S0 + r, MD + r)
            A(ND + ':')
            S('s_cmp_lg_u32 %s, 8', t4)
            A('s_cbranch_scc1 ' + NF)
            for r in range(16):
                S('v_add_f32 v%d, v%d, v%d', S0 + r, S0 + r, MFAR + r)
            A(NF + ':')
            if ps == 0:
                for r in range(8):
                    S('v_max3_f32 v11, v11, v%d, v%d', S0 + 2 * r, S0 + 2 * r + 1)
            else:
                for r in range(16):
                    S('v_sub_f32 v%d, v%d, v11', S0 + r, S0 + r)
                for r in range(16):
                    S('v_exp_f32 v%d, v%d', S0 + r, S0 + r)
                for r in range(8):
                    S('v_cvt_pk_bf16_f32 v%d, v%d, v%d', P0 + r, S0 + 2 * r, S0 + 2 * r + 1)
                S('%s %s, %s, %s, %s', MF32, vr(O, 16), vr(V, 4), vr(P0, 4), vr(O, 16))
                S('%s %s, %s, %s, %s', MF32, vr(O, 16), vr(V + 4, 4), vr(P0 + 4, 4), vr(O, 16))
                A('s_nop 15')
            A('v_subrev_u32 v10, 4096, v10')
            S('s_add_u32 %s, %s, 1', t4, t4)
            S('s_cmp_le_u32 %s, %s', t4, t3)
            A('s_cbranch_scc1 ' + L)
            if ps == 0:
                A('v_mov_b32 v12, v11')
                A('v_permlane32_swap_b32 v11, v12')
                A('v_max_f32 v11, v11, v12')
    S('v_rcp_f32 v10, v%d', O0 + 8)
    S('v_rcp_f32 v12, v%d', O1)
    A('s_nop 1')
    A('s_branch ' + OK)


def ring_gemm(nks, STG, areg, ring_base, ring_n, ahead, split=(), pre=None, post=None, npost=0, extra=None, head=None):
    ta = {}
    aq = Stream()
    n = 4 * nks
    for i in range(n):
        st, k = divmod(i, nks)
        r = ring_base + 4 * (i % ring_n)

        def pr(st=st, k=k):
            if k and k & 3 == 0:
                S('s_add_u32 %s, %s, 4096', STG[st], STG[st])

        def f(i=i, st=st, k=k, r=r):
            if k in split:
                for d in range(4):
                    ta[i] = S('buffer_load_dword v%d, %s, %s, %s offen offset:%d sc1', r + d, vL8, SRD_WS, STG[st], (k & 3) * 1024 + 256 * d)
            else:
                ta[i] = S('buffer_load_dwordx4 %s, %s, %s, %s offen offset:%d sc1', vr(r, 4), vL16, SRD_WS, STG[st], (k & 3) * 1024)
        aq.add(f, pr)
    assert ahead < ring_n or n <= ring_n
    aq.drip(ahead)
    if head:
        head()
    btick = {}
    long_ = nks >= 8
    acc = (CA, CB, CA, CO) if long_ else (CA, CB, 112, CO)
    tw = {}
    for i in range(n):
        st, k = divmod(i, nks)
        tk = ta[i]
        assert not pre or len(pre) <= 4 * (nks - 1 - i) or not len(pre)
        if st == 0 and k in btick:
            tk = max(tk, btick[k])
        lgw = None
        slots = [[], [], [], []]

        def wr(g, st=st):
            tw[st - 1] = S('ds_write_b128 v%d, %s offset:%d', vRW[st - 1], vr(acc[st - 1] + 4 * g, 4), g * 1024)

        def rds(dst, off):
            for g in range(4):
                slots[g].append(lambda g=g: S('ds_read_b128 %s, v%d offset:%d', vr(dst + 4 * g, 4), vRR, off + g * 1024))
        if k == 0 and OPT['fine'] in (3, 4):
            A.wait(vm=tk)
            stamp('.st%d' % st)
        if long_:
            if st >= 1 and 1 <= k <= 4:
                slots[3].append(lambda k=k: wr(k - 1))
            if st >= 2 and k == 0 or (st == 3 and k == 7):
                A.wait(vm=tk, lg='all')
                A('s_barrier')
                rds(*((CO, 0) if st == 2 else (CR, 4096) if k == 0 else (CB, 0)))
            if st == 3 and k in (10, 11, 12, 13):
                lgw = 'all'
                for g in range(4):
                    r = 4 * (k - 10) + g
                    slots[g].append(lambda r=r: S('v_add_f32 v%d, v%d, v%d', CR + r, CR + r, CB + r))
        else:
            if st >= 1:
                slots[3 - k].append(lambda k=k: wr(k))
            if st == 2 and k == 1:
                A.wait(vm=tk, lg=tw[0])
                A('s_barrier')
                rds(CO, 0)
            if st == 3 and k == 0:
                A.wait(vm=tk, lg='all')
                A('s_barrier')
                rds(CR, 4096)
        if extra:
            extra(st, k, slots)
        A.wait(vm=tk, lg=lgw)
        a = vr(ring_base + 4 * (i % ring_n), 4)
        for nt in range(4):
            c = vr(acc[st] + 4 * nt, 4)
            S('%s %s, %s, %s, %s', MF16, c, ar(areg + 16 * k + 4 * nt, 4), a, c if (k or st == 3) else '0')
            if nt == 0:
                aq.pre()
            if nt == 1:
                if len(aq):
                    aq.go()
                elif post and npost > 0 and i >= OPT['wops']:
                    post.drip(1)
                    npost -= 1
            if nt in (0, 3)[:OPT['wor'] - 2] and not len(aq) and post and npost > 0 and i >= OPT['wops']:
                post.drip(1)
                npost -= 1
            if nt == 2:
                if pre and len(pre):
                    kk = nks - (len(pre) + 3) // 4
                    btick[kk] = pre.drip(1)
                elif not len(aq) and post and npost > 0 and i >= OPT['wops']:
                    post.drip(1)
                    npost -= 1
            for f in slots[nt]:
                f()
    if post and npost > 0:
        post.drip(npost)
    stamp('.mm end')
    if not long_:
        A.wait(lg='all')
        A('s_barrier')
        for g in range(4):
            tr = S('ds_read_b128 %s, v%d offset:%d', vr(CB + 4 * g, 4), vRR, g * 1024)
    for g in range(8):
        S('v_pk_add_f32 %s, %s, %s', vr(CO + 2 * g, 2), vr(CO + 2 * g, 2), vr(CR + 2 * g, 2))
    if not long_:
        for g in range(4):
            A.wait(lg=tr - 3 + g)
            for e in range(2):
                r = 4 * g + 2 * e
                S('v_pk_add_f32 %s, %s, %s', vr(CO + r, 2), vr(CO + r, 2), vr(CB + r, 2))


def wo_phase(ts, w1, w2):
    stamp('.o st')
    if OPT['ob']:
        A('s_barrier')
    w1.drip(OPT['ow1'])
    A.wait(vm=ts - 2)
    L, D = A.label('pmr'), A.label('dmr')
    S('s_mov_b32 %s, 0', sCNT)
    A(L + ':')
    for i in range(5):
        untag(MRD + 4 * i, 84, i == 0)
    untag_test(84)
    A('s_cbranch_vccz ' + D)
    S('s_add_u32 %s, %s, 1', sCNT, sCNT)
    S('s_cmp_ge_u32 %s, %d', sCNT, LIMIT)
    A('s_cbranch_scc1 ' + D)
    vm_save = A.vm
    for i in range(5):
        mr_load(i)
    A.vm = vm_save
    A('s_waitcnt vmcnt(0)')
    A('s_branch ' + L)
    A(D + ':')
    A.wait(vm=ts)
    flag_store(sFO, not LOCAL[0])
    stamp('o pub')
    if OPT['ct'] & 1:
        code_touch('v10', 'v%d' % JUNK)
    w1.drip(max(0, len(w1) - OPT['bo']))
    if LOCAL[0] and OPT['py'] and OPT['toy'] != 1 and not OPT['yov']:
        touch(vL16, sYO)
        touch(vL16, sYO, 1024)
        S('buffer_load_dword v%d, %s, %s, %s offen sc1', JUNK, vSS, SRD_WS, sSO)
    S('s_cmp_ge_u32 %s, 2', sW)
    S('s_cselect_b32 %s, 1.0, 0', t4)
    g = MRD + 16
    S('v_permlane32_swap_b32 v%d, v%d', g, g + 1)
    S('v_permlane32_swap_b32 v%d, v%d', g + 2, g + 3)
    S('v_add_f32 v%d, v%d, v%d', g, g, g + 1)
    S('v_add_f32 v%d, v%d, v%d', g + 2, g + 2, g + 3)
    sum_partials(MRD, t4)
    S('v_permlane16_swap_b32 v%d, v%d', g, g + 2)
    S('v_add_f32 v%d, v%d, v%d', g, g, g + 2)
    S('v_cvt_pk_bf16_f32 v%d, v%d, v%d', g, g, g)
    S('v_lshlrev_b32 v12, 16, v%d', g)
    S('s_lshl_b32 %s, %s, 11', t0, sW)
    S('s_add_u32 %s, %s, %d', t0, t0, L_RED + 32768)
    S('s_mov_b32 %s, 8192', t1)
    tok_addr(13, t0)
    S('v_mov_b32 v95, %s', vG2A)
    assert OPT['uh'] == 0
    A('s_barrier')
    for p in range(2):
        S('s_add_u32 m0, %s, %d', t0, 1024 * p)
        S('buffer_load_dwordx4 %s, %s, %s offen lds', vXO, SRD_X, ('0', t1)[p])
    S('ds_write_b64 %s, %s', vMW, vr(MRD, 2))
    t = S('ds_write_b32 %s, v12', vGW)
    A.wait(lg=t)
    stamp('.mr')
    assert not w1.ready
    poll2(vPG, 64, 'o', sGM, lambda: w1.drip(99))
    stamp('o seen')

    tx = {}

    def head():
        for i in range(2):
            tx[0] = S('ds_read_b128 %s, v%d', vr(192 + 4 * i, 4), 13 + i)
        A.wait(lg=tx[0])
        for i in range(8):
            unpack(X2 + 2 * i, 192 + i)

    def extra(st, k, slots):
        if st == 2 and k == 2:
            for i in range(2):
                slots[2 + i].append(lambda i=i: S('ds_read_b128 %s, v95 offset:%d', vr(80 + 4 * i, 4), 16 * i))
        if st == 2 and k == 3:
            for i in range(3):
                slots[1 + i].append(lambda i=i: S('ds_read_b128 %s, %s offset:%d', vr(GA + 4 * i, 4), vGAB, 16 * i))
        if st == 3 and k == 1:
            slots[0].append(lambda: S('ds_read_b128 %s, %s offset:48', vr(GA + 12, 4), vGAB))
        if st == 3 and k >= 1:
            for i in range(8):
                if i * 3 // 8 == k - 1:
                    slots[(i + 1) & 3].append(lambda i=i: unpack(G2 + 2 * i, 80 + i))
    ring_gemm(4, STG_O, 192, 128, 16, OPT['woah'], post=w2, npost=OPT['w2a'], extra=extra, head=head)
    stamp('wo gemm')
    for e in range(2):
        for i in range(4 * e, 4 * e + 4):
            S('v_pk_fma_f32 %s, %s, %s, %s', vr(X2 + 2 * i, 2), vr(CO + 2 * i, 2), vr(GA + 2 * i, 2), vr(X2 + 2 * i, 2))
        for i in range(4 * e, 4 * e + 4):
            S('v_pk_mul_f32 %s, %s, %s', vr(G2 + 2 * i, 2), vr(X2 + 2 * i, 2), vr(G2 + 2 * i, 2))
        for i in range(4 * e, 4 * e + 4):
            S('v_cvt_pk_bf16_f32 v%d, v%d, v%d', 192 + i, G2 + 2 * i, G2 + 1 + 2 * i)
        S('buffer_store_dwordx4 %s, %s, %s, %s offen offset:%d%s', vr(192 + 4 * e, 4), vL16, SRD_WS, sYO, e * 1024, sc('y'))
    S('v_pk_add_f32 v[200:201], %s, %s', vr(X2, 2), vr(X2 + 2, 2))
    S('v_pk_mul_f32 v[202:203], %s, %s', vr(X2, 2), vr(X2, 2))
    S('v_pk_fma_f32 v[202:203], %s, %s, v[202:203]', vr(X2 + 2, 2), vr(X2 + 2, 2))
    for i in range(2, 8):
        S('v_pk_add_f32 v[200:201], v[200:201], %s', vr(X2 + 2 * i, 2))
        S('v_pk_fma_f32 v[202:203], %s, %s, v[202:203]', vr(X2 + 2 * i, 2), vr(X2 + 2 * i, 2))
    A('v_add_f32 v200, v200, v201')
    A('v_add_f32 v202, v202, v203')
    A('v_permlane32_swap_b32 v200, v202')
    A('v_add_f32 v200, v200, v202')
    A('v_mov_b32 v201, v200')
    A('v_permlane16_swap_b32 v200, v201')
    A('v_add_f32 v200, v200, v201')
    ts = S('buffer_store_dword v200, %s, %s, %s offen%s', vSS, SRD_WS, sSO, sc('y'))
    if OPT['nsp']:
        S('s_lshl_b64 %s, %s, 16', sGM, sGM)
    stamp('.y st')
    return ts


UACC = (96, 204)


def ut_steps(k0, k1, hook=None, tail=None):
    rd = {}
    UB = 16

    def rv(ks):
        S('ds_read_b128 %s, v%d offset:%d', vr(UB + 12 * (ks % 4), 4), UTA + 4, 128 * (ks >> 1) + 16 * (ks & 1))

    def rt(ks, n):
        for half in range(2):
            rd[ks] = S('ds_read_b64_tr_b16 %s, v%d offset:%d', vr(UB + 12 * (ks % 4) + 4 + 4 * n + 2 * half, 2), UTA + 2 * n + (ks >> 3), (ks & 7) * 7168 + half * 8 * 224)
    if OPT['dbg'] & 32:
        for ks in range(k0 - 1, k1):
            if tail and ks >= 14:
                tail(ks, 0), tail(ks, 1)
            if hook:
                hook(ks)
        return
    for ks in range(k0, min(k0 + 3, k1)):
        rv(ks), rt(ks, 0), rt(ks, 1)
    if hook:
        hook(k0 - 1)
    for ks in range(k0, k1):
        A.wait(lg=rd[ks])
        b = UB + 12 * (ks % 4)
        for n in range(2):
            c = vr(UACC[n], 4)
            S('%s %s, %s, %s, %s', MF16, c, vr(b + 4 + 4 * n, 4), vr(b, 4), c if ks else '0')
            if ks + 3 < k1:
                if n == 0:
                    rv(ks + 3)
                rt(ks + 3, n)
            elif tail:
                tail(ks, n)
        if hook:
            hook(ks)


TPA = [0]
HOFF = 128 if OPT['nsp'] else 192


def g1_phase(ts, w2):
    passes = ((0, 1, 2, 3, 6), (4, 5)) if OPT['gsplit'] == 1 or OPT['two'] else ((0, 1, 2, 3), (4, 5, 6)) if OPT['gsplit'] == 2 else ((0, 1, 2, 3, 4, 5, 6),)
    groups = [(ks, nt) for p in passes for ks in range(16) for nt in p]
    AHB = 5
    ta = {}
    aq = Stream()
    for ks in range(16):
        for tt in range(2):
            def pr(ks=ks, tt=tt):
                if ks and ks & 3 == 0:
                    if OPT['w1r'] != 3:
                        S('s_add_u32 %s, %s, 4096', sYL[tt], sYL[tt])
                    elif tt == 0:
                        S('s_add_u32 %s, %s, 4096', sYL[0], sYL[0])
                        S('s_bitset0_b32 %s, 14', sYL[0])
                    else:
                        S('s_add_u32 %s, %s, 16384', sYL[1], sYL[0])

            def f(ks=ks, tt=tt):
                ta[ks, tt] = S('buffer_load_dwordx4 %s, %s, %s, %s offen offset:%d sc1', vr(YA + 8 * ks + 4 * tt, 4), vL16, SRD_WS, sYL[tt], (ks & 3) * 1024)
            aq.add(f, pr)
    first = list(aq.q[:8])
    LATE = A.label('ylate')
    rb = {}

    def bread(g, half):
        ks, nt = groups[g]
        rb[g] = S('ds_read_b64_tr_b16 %s, v%d offset:%d', vr(BF + 4 * (g % 6) + 2 * half, 2), (vT1, vT2)[ks >> 3], (ks & 7) * 7168 + half * 8 * 224 + nt * 32)
    tp = {}

    def hook(ks):
        if ks == OPT['uh'] - 1:
            if OPT['yb']:
                A('s_barrier')
            w2.drip(OPT['w2b0'])
            S('s_mov_b32 %s, 1', t5)
        if ks == OPT['uf']:
            A.wait(vm=ts)
            flag_store(sFY, not LOCAL[0])
            stamp('y pub')
            w2.drip(OPT['w2b'] - OPT['w2b0'] - OPT['by'])
        if ks == OPT['up']:
            tp[0] = poll_load(vPT, 128)
            w2.drip(OPT['by'])
        if ks == OPT['uc']:
            A.wait(vm=tp[0])
            poll_test(sMASK)
            A('s_cbranch_scc1 ' + LATE)
            aq.drip(8)
            S('s_mov_b32 %s, 0', t5)
            A(LATE + ':')

    def tail(ks, n):
        if ks >= 14:
            bread(2 * (ks - 14) + n, 0)
            bread(2 * (ks - 14) + n, 1)
    assert OPT['uh'] - 1 <= OPT['uf'] <= OPT['up'] < OPT['uc'] and OPT['uh'] <= 11
    ut_steps(OPT['uh'], 16, hook, tail)
    S('ds_write_b128 v%d, %s', UTA + 5, vr(UACC[0], 4))
    tuw = S('ds_write_b128 v%d, %s', UTA + 6, vr(UACC[1], 4))
    bread(4, 0)
    bread(4, 1)
    OKK = A.label('yok')
    S('s_cmp_eq_u32 %s, 0', t5)
    A.wait(lg=tuw)
    A('s_barrier')
    A('s_cbranch_scc1 ' + OKK)
    vm_save, vd, tas = A.vm, A.vm_done, dict(ta)
    poll(vPT, 128, 'y', sMASK)
    for f, pr in first:
        f()
    A.vm, A.vm_done = vm_save, vd
    ta.update(tas)
    A(OKK + ':')
    stamp('y seen')
    aq.drip(2)
    split = len(passes) > 1
    SR = ACC + 8 * passes[1][0] if split else YA
    RP = 10
    tst = {}
    sq = []
    for p in range(8):
        def f(p=p):
            tst[0] = S('buffer_load_dword v%d, %s, %s, %s offen offset:%d sc1', SR + p, vSL, SRD_WS, sSL, p * 128)
        sq.append((f, None))
    if split:
        aq.q[8:8] = sq
    else:
        aq.q += sq
    nw = (OPT['w2f'], OPT['w2c'] - OPT['w2e'] - OPT['w2f']) if split else (OPT['w2c'],)

    def stats():
        for n in (4, 2, 1):
            for i in range(n):
                S('v_add_f32 v%d, v%d, v%d', SR + i, SR + i, SR + n + i)
        S('v_mul_f32 v%d, 0x3b000000, v%d', SR, SR)
        S('v_mov_b32 v%d, v%d', SR + 1, SR)
        S('v_permlane32_swap_b32 v%d, v%d', SR, SR + 1)
        S('v_fma_f32 v%d, -v%d, v%d, v%d', SR + 1, SR, SR, SR + 1)
        S('v_max_f32 v%d, 0, v%d', SR + 1, SR + 1)
        S('v_add_f32 v%d, 0x3727c5ac, v%d', SR + 1, SR + 1)
        S('v_rsq_f32 v%d, v%d', RP, SR + 1)
        S('v_mul_f32 v%d, -v%d, v%d', RP + 1, SR, RP)
        S('v_mov_b32 v%d, v%d', RP + 2, RP)
        S('v_mov_b32 v%d, v%d', RP + 3, RP + 1)
        S('v_permlane16_swap_b32 v%d, v%d', RP, RP + 2)
        S('v_permlane16_swap_b32 v%d, v%d', RP + 1, RP + 3)
    fill = capture(stats)
    tu = {}

    def epilogue(nts, ub, drip, defer):
        pre = isinstance(ub, int)

        def rut(i):
            for e in range(2):
                tu[i] = S('ds_read_b128 %s, %s offset:%d', vr(ub[i & 1] + 4 * e, 4), vUTR, 512 * e + nts[i] * 64)
        if not pre:
            rut(0)
            rut(1)
        ts = None
        for i, nt in enumerate(nts):
            A.wait(lg=tu[i])
            u = ub + 8 * i if pre else ub[i & 1]
            for tt in range(2):
                rp = vr(RP + 2 * tt, 2)
                c = ACC + 8 * nt + 4 * tt
                o = ACC + 8 * (nt & ~1) + 4 * tt + 2 * (nt & 1)
                for e in range(2):
                    S('v_pk_fma_f32 %s, %s, %s, %s op_sel:[0,1,0] op_sel_hi:[1,1,1]', vr(96 + 2 * e, 2), vr(u + 2 * e, 2), rp, vr(u + 4 + 2 * e, 2))
                for e in range(2):
                    S('v_pk_fma_f32 %s, %s, %s, %s op_sel:[0,0,0] op_sel_hi:[1,0,1]', vr(96 + 2 * e, 2), vr(c + 2 * e, 2), rp, vr(96 + 2 * e, 2))
                if tt == 1 and i + 2 < len(nts) and not pre:
                    rut(i + 2)
                for e in range(2):
                    S('v_cvt_pk_bf16_f32 v%d, v%d, v%d', o + e, 96 + 2 * e, 97 + 2 * e)
                for e in range(2):
                    S('v_pk_max_i16 v%d, v%d, 0', o + e, o + e)
                if nt == 6:
                    for e in range(2):
                        ts = S('buffer_store_dword v%d, %s, %s, %s offen offset:%d%s', o + e, vH2, SRD_WS, sHO[tt], 3072 + 256 * e, sc('hid'))
                elif nt & 1:
                    f = lambda o=o, tt=tt, nt=nt: S('buffer_store_dwordx4 %s, %s, %s, %s offen offset:%d%s', vr(o - 2, 4), vH4, SRD_WS, sHO[tt], (nt >> 1) * 1024, sc('hid'))
                    ts = (ts or []) + [f] if defer else f()
                if drip > 0 and (nt & 1 or nt == 6):
                    w2.drip(min(2, drip))
                    drip -= 2
        w2.drip(max(0, drip))
        return ts
    g = 0
    for pi, p in enumerate(passes):
        L = len(p)
        for _ in range(nw[pi]):
            if len(w2):
                aq.q.append(w2.q.pop(0))
        for ks in range(16):
            if split:
                n = OPT['r1' if ks < 3 else 'r2' if ks < 6 else 'r3' if ks < 11 else 'r4'] if pi == 0 else 1
            else:
                n = ([3, 3, 3, 3, 3, 3, 4, 6] + [4] * 8)[ks]
            for i, nt in enumerate(p):
                go = (i + 1) * n // L > i * n // L and len(aq)
                if i % 2 == 0:
                    vmw = ta[ks, 1] if (i == 0 and pi == 0) else None
                    if pi == 0 and ks == 11 and i == 0:
                        vmw = max(vmw, tst[0])
                    A.wait(vm=vmw, lg=rb[g + 1] if i + 1 < L else rb[g])
                for tt in range(2):
                    t_ = tt ^ (i & OPT['snake'])
                    c = vr(ACC + 8 * nt + 4 * t_, 4)
                    S('%s %s, %s, %s, %s', MF16, c, vr(BF + 4 * (g % 6), 4), vr(YA + 8 * ks + 4 * t_, 4), c if ks else '0')
                    if go and tt == 0:
                        aq.pre()
                    if g + AHB < 112:
                        bread(g + AHB, tt)
                    if ks == 15 and pi == len(passes) - 1:
                        tu[i] = S('ds_read_b128 %s, %s offset:%d', vr(176 + 8 * i + 4 * tt, 4), vUTR, 512 * tt + nt * 64)
                    if go and tt == 0:
                        aq.go()
                    elif ks >= 11 and fill and (tt == 0 or (i % 2 == 0 and i + 1 < L)):
                        A.lines.append(fill.pop(0))
                g += 1
            if ks == 7:
                stamp('.p%d mid' % pi)
            if OPT['two'] and pi == 1 and ks == OPT['fa']:
                A.wait(vm=ts)
                flag_store(sFHID, not LOCAL[0])
        A.lines += fill
        fill = []
        aq.drip(99)
        last = pi == len(passes) - 1
        stamp('g1 gemm' if last else '.pass1')
        if last and OPT['two'] and OPT['pa']:
            TPA[0] = poll_load(vPG, HOFF)
            w2.drip(99)
        ts = epilogue(p, 176 if last else (SR, SR + 8), 0 if last else OPT['w2e'], last and OPT['two'])
        if not last:
            stamp('.epi1')
    return ts


def g2_two(stores, w2):
    KA, KB = (0, 1, 3, 4, 5, 7, 8, 10, 11, 12), (2, 6, 9, 13)
    oa, ahead = OPT['oa'], OPT['ah']
    order = [(st, k) for st in range(3) for k in KA] + [(3, k) for k in KA[:oa]]
    nA = len(order)
    order += [(st, k) for st in range(3) for k in KB] + [(3, k) for k in KA[oa:] + KB]
    acc = (CA, CB, CR, CO)
    stamp('.hid st')
    tsB = None
    if OPT['bst'] == 0:
        for f in stores:
            tsB = f()
    w2.drip(99)
    for i in range(4):
        t = S('ds_read_b128 %s, %s offset:%d', vr(GB + 4 * i, 4), vGAB, 256 + 16 * i)
    S('v_add_u32 v12, 1, %s', vTAG)
    stamp('hid pub')
    if OPT['pa']:
        assert OPT['bst']
        D = A.label('hida')
        A.wait(vm=TPA[0])
        poll_test(sGM, 'v15', 1)
        A('s_cbranch_scc0 ' + D)
        vm_save = A.vm
    poll(vPG, HOFF, 'hid', sGM, 1)
    if OPT['pa']:
        A.vm, A.vm_done = vm_save, TPA[0]
        A(D + ':')
    stamp('hid seen')
    if OPT['bst'] == 0:
        flag_store(sFHID, not LOCAL[0], 'v12')
    ta = {}
    aq = Stream()
    for i, (st, k) in enumerate(order):
        r = 112 + 4 * (i % 16)

        def pr(st=st, k=k):
            if k >> 2:
                S('s_add_u32 %s, %s, %d', t2, STG_H[st], (k >> 2) * 4096)

        def f(i=i, st=st, k=k, r=r):
            so = t2 if k >> 2 else STG_H[st]
            if k in (3, 10):
                for d in range(4):
                    ta[i] = S('buffer_load_dword v%d, %s, %s, %s offen offset:%d sc1', r + d, vL8, SRD_WS, so, (k & 3) * 1024 + 256 * d)
            else:
                ta[i] = S('buffer_load_dwordx4 %s, %s, %s, %s offen offset:%d sc1', vr(r, 4), vL16, SRD_WS, so, (k & 3) * 1024)
        aq.add(f, pr if (i == 0 or order[i - 1][0] != st or order[i - 1][1] >> 2 != k >> 2) else None)
    aq.drip(ahead)
    if OPT['bst']:
        for f in stores:
            tsB = f()
    S('s_lshl_b32 %s, %s, 13', t0, sW)
    S('s_add_u32 %s, %s, %d', t0, t0, L_RED + 4096)
    S('s_mov_b32 %s, 8192', t1)
    tok_addr(13, t0)
    S('v_subrev_u32 v%d, 40960, v%d', vRW[2], vRW[2])
    S('v_subrev_u32 v11, 40960, v%d', vRR)
    seen = set()
    last = {st: max(i for i, o in enumerate(order) if o[0] == st) for st in range(4)}
    wq, rq, vq = [], [], []
    bar = last[2] + 6
    n = len(order)
    tr = {}
    for i, (st, k) in enumerate(order):
        if i in (0, 10, 20, nA, last[2] + 1) and OPT['fine'] == 4:
            A.wait(vm=ta[i])
            stamp('.s%d' % i)
        if i == nA - ahead:
            D = A.label('hidb')
            A.wait(vm=tp)
            poll_test(sGM, 'v15', 2)
            A('s_cbranch_scc0 ' + D)
            vm_save, vd = A.vm, A.vm_done
            poll(vPG, HOFF, 'hb', sGM, 2)
            A.vm, A.vm_done = vm_save, vd
            A(D + ':')
        if i == nA:
            A('s_barrier')
        if i == bar:
            assert not wq
            A.wait(vm=ta[i], lg='all')
            A('s_barrier')
            for p, (va, off) in enumerate(((vRR, 0), (vRR, 4096), (11, 0))):
                for g in range(4):
                    def f(p=p, g=g, va=va, off=off):
                        tr[p] = S('ds_read_b128 %s, v%d offset:%d', vr(acc[p] + 4 * g, 4), va, off + g * 1024)
                    rq.append(f)
        lgw = None
        if i == bar + 3:
            lgw = tr[1]
            vq += ['v_add_f32 v%d, v%d, v%d' % (CA + r, CA + r, CB + r) for r in range(16)]
        if i == bar + 5:
            lgw = tr[2]
            vq += ['v_add_f32 v%d, v%d, v%d' % (CA + r, CA + r, CR + r) for r in range(16)]
            if OPT['pre2']:
                vq += ['v_fmac_f32 v%d, v%d, v%d' % (X2 + r, CA + r, GB + r) for r in range(16)]
        A.wait(vm=ta[i], lg=lgw)
        if OPT['bst'] and i == ahead:
            A.wait(vm=tsB)
            flag_store(sFHID, not LOCAL[0], 'v12')
        a = vr(112 + 4 * (i % 16), 4)
        for nt in range(4):
            c = vr(acc[st] + 4 * nt, 4)
            S('%s %s, %s, %s, %s', MF16, c, ar(16 * k + 4 * nt, 4), a, c if st in seen else '0')
            if nt == 0:
                aq.pre()
            if nt == 1:
                aq.go()
            if nt == 2 and i == OPT['pb']:
                tp = poll_load(vPG, HOFF)
            if nt == 3 and wq:
                wq.pop(0)()
            if rq:
                rq.pop(0)()
            else:
                A.lines += vq[:2]
                vq = vq[2:]
        seen.add(st)
        if st < 3 and i == last[st]:
            for g in range(4):
                wq.append(lambda st=st, g=g: S('ds_write_b128 v%d, %s offset:%d', vRW[st], vr(acc[st] + 4 * g, 4), g * 1024))
    stamp('.mm end')
    assert bar + 3 < n and not rq
    A.lines += vq
    if bar + 5 >= n:
        A.wait(lg=tr[2])
        for g in range(8):
            S('v_pk_add_f32 %s, %s, %s', vr(CA + 2 * g, 2), vr(CA + 2 * g, 2), vr(CR + 2 * g, 2))
    if bar + 5 >= n or not OPT['pre2']:
        for g in range(8):
            S('v_pk_add_f32 %s, %s, %s', vr(CO + 2 * g, 2), vr(CO + 2 * g, 2), vr(CA + 2 * g, 2))


def g2_one(ts, w2):
    stamp('.hid st')
    if OPT['hb']:
        A('s_barrier')
    w2.drip(min(OPT['w2d0'], OPT['w2d']))
    for i in range(4):
        S('ds_read_b128 %s, %s offset:%d', vr(GB + 4 * i, 4), vGAB, 256 + 16 * i)
    S('s_lshl_b32 %s, %s, 13', t0, sW)
    S('s_add_u32 %s, %s, %d', t0, t0, L_RED + 4096)
    S('s_mov_b32 %s, 8192', t1)
    tok_addr(13, t0)
    A.wait(vm=ts)
    flag_store(sFHID, not LOCAL[0])
    stamp('hid pub')
    w2.drip(max(0, OPT['w2d'] - OPT['w2d0']))
    poll(vPG, HOFF, 'hid', sGM)
    stamp('hid seen')
    ring_gemm(14, STG_H, 0, 112, 32, 12, split=(3, 10), pre=w2)


def g2_phase(ts, w2):
    (g2_two if OPT['two'] else g2_one)(ts, w2)
    stamp('g2 gemm')
    for p in range(2):
        for i in range(4 * p, 4 * p + 4):
            S('v_pk_fma_f32 %s, %s, %s, %s', vr(X2 + 2 * i, 2), vr(CO + 2 * i, 2), vr(GB + 2 * i, 2), vr(X2 + 2 * i, 2))
        for i in range(4 * p, 4 * p + 4):
            S('v_cvt_pk_bf16_f32 v%d, v%d, v%d', 16 + i, X2 + 2 * i, X2 + 2 * i + 1)
        S('ds_write_b128 v%d, %s', 13 + p, vr(16 + 4 * p, 4))
    tr = [S('ds_read_b128 %s, v%d offset:%d', vr(24 + 4 * p, 4), vRR, 4096 + 1024 * p) for p in range(2)]
    for p in range(2):
        A.wait(lg=tr[p])
        S('buffer_store_dwordx4 %s, %s, %s, %s offen%s', vr(24 + 4 * p, 4), vXO, SRD_OUT, ('0', t1)[p], ('', ' sc1', ' nt', ' sc0 sc1', ' sc1 nt')[OPT['outsc']])
    stamp('.out st')
    SK = A.label('noep')
    S('s_or_b32 %s, %s, %s', t0, sLID, sW)
    A('s_cbranch_scc1 ' + SK)
    S('s_mov_b32 %s, %d', t2, WS_E)
    flag_store(t2, False)
    A(SK + ':')


def dump_stamps():
    if OPT['diag']:
        D = A.label('diag')
        A('s_waitcnt vmcnt(0) lgkmcnt(0)')
        A('s_add_u32 s97, s97, 6000')
        A('s_mov_b32 s98, 0')
        A(D + ':')
        A('s_memrealtime s[92:93]')
        A('s_add_u32 s98, s98, 1')
        A('s_cmp_gt_u32 s98, 0x8000')
        A('s_cbranch_scc1 L_exit')
        A('s_waitcnt lgkmcnt(0)')
        A('s_sub_u32 s92, s92, s97')
        A('s_cmp_lt_i32 s92, 0')
        A('s_cbranch_scc1 ' + D)
    if not OPT['stamps']:
        return
    A.wait(vm='all', force=True)
    A('s_memrealtime s[92:93]')
    stamp('end')
    A('v_writelane_b32 v0, s92, 25')
    S('s_getreg_b32 %s, hwreg(HW_REG_XCC_ID)', t1)
    S('v_writelane_b32 v0, %s, 24', t1)
    S('v_writelane_b32 v0, %d, 26', int(LOCAL[0]))
    S('s_lshl2_add_u32 %s, %s, %s', t0, sLID, sW)
    S('s_lshl_b32 %s, %s, 7', t0, t0)
    S('s_add_u32 %s, %s, %d', t0, t0, WS_TS)
    S('v_lshlrev_b32 v10, 2, %s', vLANE)
    A('s_mov_b64 exec, 0xffffffff')
    S('buffer_store_dword v0, v10, %s, %s offen', SRD_WS, t0)


def rest(wq, pq):
    wst = Stream()
    wst.q = list(wq)
    pst = Stream()
    pst.q = list(pq)
    h_phase(wst, pst)
    w1 = w1_stream()
    w2 = frag_stream(sW2B, 14, 0)
    if OPT['nobg'] & 1:
        w1.q = []
    if OPT['nobg'] & 2:
        w2.q = []
    ool, ts = attention(w1, qkv(wst, w1))
    ts = wo_phase(ts, w1, w2)
    ts = g1_phase(ts, w2)
    g2_phase(ts, w2)
    dump_stamps()
    return ool


DOC = '''; One persistent launch, 256 workgroups of 4 waves (one per CU), generated by a Python script (hand-scheduled).
; Workgroup id = 8*j + x. Cluster x owns rows 256x..256x+255; phases hand data over through d_ws:
;   P0   mod = silu(c) . w_mod as K-split partials (tag in the low byte of every word), LayerNorm 1, h in MFMA fragment order,
;        wo / W2 re-laid out once into fragment order for later register loads
;   QKV  128 x 96 tile (two heads), weights in LDS (transposing reads); K/V tiles published for the two following row blocks
;        (two-pass code after the main body) whenever the check fails
; Hand-offs: data is stored write-through (sc1) and read with sc1 loads; a flag follows the acknowledged stores. Flags carry a tag
; derived from an epoch word in d_ws that the launch advances, so words of earlier launches never match. The workgroups of a cluster
'''


def main():
    tw, tx = prologue()
    wst = wqkv_stream()
    wq_setup()
    if OPT['spos'] == 0:
        prep_srd()
        prep_addr()
        setup_a()
    else:
        ln_addr()
    wst.drip(OPT['n1'])
    pst = prep_stream()
    mod_partial(tw)
    stamp('mod pub')
    if OPT['tw1'] == 5:
        warm(SRD_W1, 14)
    ln1(tx, wst)
    mod_poll(wst)
    st = (A.vm, A.vm_done, A.lg, A.lg_done, nstamp[0], ALLN[0], vST[0])
    ool = rest(wst.q, pst.q)
    A('L_exit:')
    A('s_endpgm')
    A('L_localend:')
    out_of_line(*ool)
    xc_slow()
    LOCAL[0] = False
    A.vm, A.vm_done, A.lg, A.lg_done, nstamp[0], ALLN[0], vST[0] = st
    ool = rest(wst.q, pst.q)
    A('s_endpgm')
    out_of_line(*ool)
    body, nops = A.finalize()
    hdr = open(os.path.join(os.path.dirname(os.path.abspath(__file__)), '..', 'cdna_kernels', NAME + '.s.ref')).read().split('; Override')[0]
    out = hdr
    out += '; @launch grid=(256,1,1) block=(256,1,1) lds=163840\n'
    out += DOC
    out += '.amdgcn_target "amdgcn-amd-amdhsa--gfx950"\n.text\n.globl %s_kernel\n.p2align 8\n.type %s_kernel,@function\n%s_kernel:\n' % (NAME, NAME, NAME)
    out += '\n'.join(('' if l.endswith(':') else '    ') + l for l in body) + '\n'
    out += 'L_textend:\n.if (L_textend - L_pc) < 32768\n.error "code prefetch reads past the code"\n.endif\n'
    out += '''.section .rodata,"a"
.p2align 6
.amdhsa_kernel %s_kernel
  .amdhsa_next_free_vgpr 512
  .amdhsa_next_free_sgpr 102
  .amdhsa_accum_offset 256
  .amdhsa_group_segment_fixed_size 0
  .amdhsa_kernarg_size 88
  .amdhsa_user_sgpr_count 2
  .amdhsa_user_sgpr_kernarg_segment_ptr 1
  .amdhsa_system_sgpr_workgroup_id_x 1
  .amdhsa_float_denorm_mode_32 3
.end_amdhsa_kernel
''' % NAME
    open(sys.argv[1], 'w').write(out)
    if OPT['stamps']:
        open(sys.argv[1] + '.stamps', 'w').write('\n'.join(STAMP_NAMES))
    print('instructions', len(body), 'pad states', nops, file=sys.stderr)


main()
```
